```python
import torch

def _softmax(x, axis=-1):
    return torch.softmax(x, dim=axis)
def _gelu(x):
    return torch.nn.functional.gelu(x, approximate="tanh")
def _silu(x):
    return torch.nn.functional.silu(x)
def _sigmoid(x):
    return torch.sigmoid(x)
def _layernorm(x, axis=-1, eps=1e-5):
    m = x.mean(dim=axis, keepdim=True)
    v = x.var(dim=axis, keepdim=True, unbiased=False)
    return (x - m) / torch.sqrt(v + eps)
def _scatter_add(tgt, idx, src, axis=0):
    return tgt.clone().index_add_(axis, idx, src)
def _segment_sum(src, seg, n):
    out = torch.zeros((n,) + src.shape[1:], dtype=src.dtype)
    return out.index_add_(0, seg, src)
def _pad(x, pw):
    flat = tuple(v for pair in reversed(pw) for v in pair)
    return torch.nn.functional.pad(x, flat)

kernel_name = 'parallel_sum__compressed_kv_cla__dense_activation_mish__prompt'

def setup_inputs():

    _w = (lambda a: (lambda t: t.to(torch.bfloat16) if t.is_floating_point() else t)(torch.as_tensor(a)))
    def _A_setup():
        B, H, Sq, Sk, D, M = 1, 32, 2048, 2048, 128, 512
        Dc = 4 * D
        return {
            "x": _w((lambda *s: torch.randn(*s, dtype=torch.bfloat16) * 0.05)(B, Sq, M)),
            "c_kv": _w((lambda *s: torch.randn(*s, dtype=torch.bfloat16) * 0.4)(B, Sk, Dc)),
            "w_q": _w((lambda *s: torch.randn(*s, dtype=torch.bfloat16) * 3.2)(M, H, D) * (M ** -0.5)),
            "w_uk": _w((lambda *s: torch.randn(*s, dtype=torch.bfloat16) * 3.2)(Dc, H, D) * (Dc ** -0.5)),
            "w_uv": _w((lambda *s: torch.randn(*s, dtype=torch.bfloat16) * 0.4)(Dc, H, D) * (Dc ** -0.5)),
            "w_o": _w((lambda *s: torch.randn(*s, dtype=torch.bfloat16) * 0.4)(H, D, M) * ((H * D) ** -0.5)),
        }
    _A_in = _A_setup()

    def _B_setup():
        B, S, D, F = 1, 2048, 512, 1792
        return {
            "x": _w((lambda *s: torch.randn(*s, dtype=torch.bfloat16) * 0.05)(B, S, D)),
            "w1": _w((lambda *s: torch.randn(*s, dtype=torch.bfloat16) * 0.8)(D, F) * (D ** -0.5)),
            "b1": _w((lambda *s: torch.randn(*s, dtype=torch.bfloat16) * 0.2)(F)),
            "w2": _w((lambda *s: torch.randn(*s, dtype=torch.bfloat16) * 0.1)(F, D) * (F ** -0.5)),
        }
    _B_in = _B_setup()

    return {
        "A_x": _A_in["x"],
        "A_c_kv": _A_in["c_kv"],
        "A_w_q": _A_in["w_q"],
        "A_w_uk": _A_in["w_uk"],
        "A_w_uv": _A_in["w_uv"],
        "A_w_o": _A_in["w_o"],
        "B_x": _B_in["x"],
        "B_w1": _B_in["w1"],
        "B_b1": _B_in["b1"],
        "B_w2": _B_in["w2"],
    }

def reference(A_x, A_c_kv, A_w_q, A_w_uk, A_w_uv, A_w_o, B_x, B_w1, B_b1, B_w2):
    def _A_ref(x, c_kv, w_q, w_uk, w_uv, w_o):
        B, Sq, M = x.shape[0], x.shape[1], x.shape[2]
        Sk = c_kv.shape[1]
        H, D = w_q.shape[1], w_q.shape[2]
        q = torch.einsum("bqm,mhd->bhqd", x, w_q)
        k = torch.einsum("bkc,chd->bhkd", c_kv, w_uk)
        v = torch.einsum("bkc,chd->bhkd", c_kv, w_uv)
        scores = torch.einsum("bhqd,bhkd->bhqk", q, k) * (D ** -0.5)
        off = Sk - Sq
        qi = torch.arange(Sq)[:, None]
        kj = torch.arange(Sk)[None, :]
        cmask = kj <= (qi + off)
        scores = torch.where(cmask[None, None], scores, -1e9)
        p = _softmax(scores, axis=-1)
        ctx = torch.einsum("bhqk,bhkd->bhqd", p, v)
        return torch.einsum("bhqd,hdm->bqm", ctx, w_o)

    def _B_ref(x, w1, b1, w2):
        h = torch.einsum("bsd,df->bsf", x, w1) + b1
        sp = torch.log1p(torch.exp(-torch.abs(h))) + torch.where(h > 0, h, torch.zeros_like(h))
        act = h * torch.tanh(sp)
        return torch.einsum("bsf,fd->bsd", act, w2)

    x = A_x
    xn = _layernorm(x, axis=-1)
    return x + _A_ref(xn, A_c_kv, A_w_q, A_w_uk, A_w_uv, A_w_o) + _B_ref(xn, B_w1, B_b1, B_w2)
```

```python
import re


class I:
    __slots__ = ("text", "tag", "needs", "kind")

    def __init__(self, text, tag=None, needs=()):
        self.text = text
        self.tag = tag
        self.needs = tuple(needs)
        op = text.split()[0] if text.split() else ""
        if op.startswith("ds_"):
            self.kind = "ds"
        elif op.startswith("buffer_") or op.startswith("global_"):
            self.kind = "vm"
        elif op.startswith("s_load") or op.startswith("s_memtime") or op.startswith("s_memrealtime"):
            self.kind = "sm"
        elif op == "WAIT":
            self.kind = "wait"
        elif op.endswith(":") or op.startswith(".") or op.startswith(";") or op == "":
            self.kind = "meta"
        else:
            self.kind = "op"


def WAIT(*tags):
    return I("WAIT", needs=tags)


class Prog:
    def __init__(self):
        self.l = []

    def e(self, x, tag=None, needs=()):
        if isinstance(x, I):
            self.l.append(x)
        elif isinstance(x, (list, tuple)):
            for y in x:
                self.e(y)
        else:
            for ln in x.strip("\n").split("\n"):
                ln = ln.strip()
                if ln:
                    self.l.append(I(ln, tag, needs))
        return self

    def wait(self, *tags):
        self.l.append(WAIT(*tags))


def resolve_waits(lst):
    out = []
    ds, vm = [], []
    seen = set()
    for ins in lst:
        if ins.kind == "wait":
            parts = []
            for name, q, mx in (("vmcnt", vm, 63), ("lgkmcnt", ds, 15)):
                idx = -1
                for i, t in enumerate(q):
                    if t in ins.needs:
                        idx = i
                if idx >= 0:
                    n = min(len(q) - 1 - idx, mx)
                    del q[: len(q) - n]
                    parts.append(f"{name}({n})")
            for t in ins.needs:
                assert t in seen, f"WAIT on unknown tag {t}"
            if parts:
                out.append(I("s_waitcnt " + " ".join(parts)))
            continue
        if ins.text.startswith("s_waitcnt"):
            m = re.search(r"vmcnt\((\d+)\)", ins.text)
            if m:
                n = int(m.group(1))
                if len(vm) > n:
                    del vm[: len(vm) - n]
            m = re.search(r"lgkmcnt\((\d+)\)", ins.text)
            if m:
                n = int(m.group(1))
                if len(ds) > n:
                    del ds[: len(ds) - n]
        for t in ins.needs:
            assert t in seen, f"needs unknown tag {t}: {ins.text}"
            assert t not in ds and t not in vm, f"unsatisfied need {t}: {ins.text}"
        if ins.kind == "ds":
            ds.append(ins.tag)
        elif ins.kind == "vm":
            vm.append(ins.tag)
            assert len(vm) <= 63 + 64, "vmcnt overflow"
        if ins.tag is not None:
            seen.add(ins.tag)
        out.append(ins)
    return out


class Gaps:
    def __init__(self, mf):
        self.mf = mf
        n = len(mf)
        self.pre = [[] for _ in range(n)]
        self.mem = [[] for _ in range(n)]
        self.val = [[] for _ in range(n)]
        self.post = [[] for _ in range(n)]

    def cost(self, g):
        c = 0
        for x in self.mem[g]:
            c += 8 if (x.kind == "vm") else 4
        for x in self.val[g]:
            c += vcost(x)
        c += 4 * len(self.post[g]) + 4 * max(0, len(self.pre[g]) - 1)
        return c

    def spread(self, items, g0, g1, cap=24):
        items = [x if isinstance(x, I) else I(x) for x in items]
        tot = sum(vcost(x) for x in items)
        free = [max(0, cap - self.cost(g)) for g in range(g0, g1)]
        sf = sum(free)
        scale = tot / sf if sf else 1.0
        acc = 0.0
        used = 0.0
        i = 0
        for k, g in enumerate(range(g0, g1)):
            acc += free[k] * scale
            while i < len(items) and (used + vcost(items[i]) / 2 <= acc or g == g1 - 1):
                self.val[g].append(items[i])
                used += vcost(items[i])
                i += 1
        assert i == len(items)

    def emit(self):
        out = []
        for g, m in enumerate(self.mf):
            if m is not None:
                out.append(m if isinstance(m, I) else I(m))
            for grp in (self.pre[g], self.mem[g], self.val[g], self.post[g]):
                for x in grp:
                    out.append(x if isinstance(x, I) else I(x))
        return out


TRANS = ("v_exp_f32", "v_log_f32", "v_rcp_f32", "v_rsq_f32", "v_sqrt_f32")


def vcost(x):
    t = x.text if isinstance(x, I) else x
    op = t.split()[0]
    if op in TRANS:
        return 8
    if op.startswith("buffer_") or op.startswith("global_"):
        return 16
    if op.startswith("ds_"):
        return 12
    return 4


_REG = re.compile(r"\b([vas])(\d+)\b|\b([vas])\[(\d+):(\d+)\]")


def regs(s):
    r = set()
    for m in _REG.finditer(s):
        if m.group(1):
            r.add((m.group(1), int(m.group(2))))
        else:
            for k in range(int(m.group(4)), int(m.group(5)) + 1):
                r.add((m.group(3), k))
    if re.search(r"\bvcc\b", s):
        r.add(("s", "vcc"))
    if re.search(r"\bm0\b", s):
        r.add(("s", "m0"))
    return r


def split_ops(text):
    text = text.split(";")[0].strip()
    p = text.split(None, 1)
    op = p[0]
    if len(p) == 1:
        return op, []
    return op, [x.strip() for x in p[1].split(",")]


def rw(text):
    op, a = split_ops(text)
    if op.startswith("v_mfma"):
        return "mfma", regs(a[0]), regs(a[1]) | regs(a[2]) | regs(a[3]), regs(a[3])
    if op.startswith("v_cmp"):
        return "valu", regs(a[0]), regs(",".join(a[1:])), None
    if op.startswith("v_permlane"):
        r = regs(a[0]) | regs(a[1])
        return "perm", r, r, None
    if op.startswith("v_readfirstlane") or op.startswith("v_readlane"):
        return "rdlane", regs(a[0]), regs(",".join(a[1:])), None
    if op.startswith("v_"):
        w = regs(a[0])
        r = regs(",".join(a[1:]))
        if op.startswith("v_fmac") or op.startswith("v_dot2c"):
            r |= w
        if op in ("v_add_co_u32", "v_addc_co_u32"):
            w |= regs(a[1])
        cls = "trans" if op.replace("_e32", "") in TRANS else "valu"
        if "row_" in text or "quad_perm" in text:
            cls = "dpp"
        return cls, w, r, None
    if op.startswith("ds_read"):
        return "ds", regs(a[0]), regs(a[1]), None
    if op.startswith("ds_write"):
        return "ds", set(), regs(",".join(a)), None
    if op.startswith("buffer_load") or op.startswith("global_load"):
        if text.rstrip().endswith("lds") or " lds" in text:
            return "dma", set(), regs(",".join(a)) | {("s", "m0")}, None
        return "vm", regs(a[0]), regs(",".join(a[1:])), None
    if op.startswith("buffer_store") or op.startswith("buffer_atomic"):
        return "vmst", set(), regs(",".join(a)), regs(a[0]) if "x4" in op or "x3" in op else set()
    if op.startswith("global_store"):
        return "vmst", set(), regs(",".join(a)), regs(a[1]) if "x4" in op or "x3" in op else set()
    if op.startswith("s_"):
        if op.startswith("s_cmp") or op.startswith("s_cbranch") or op in ("s_waitcnt", "s_barrier", "s_nop", "s_branch", "s_endpgm", "s_setprio", "s_sleep", "s_setpc_b64"):
            return "salu", set(), regs(",".join(a)), None
        return "salu", regs(a[0]) if a else set(), regs(",".join(a[1:])), None
    if op.startswith("buffer_"):
        return "vm", set(), set(), None
    raise Exception("lint: unknown op " + text)


def lint(lst, name=""):
    t = 0
    last_mf = -100
    hist = []
    errs = []
    VAL = ("valu", "trans", "perm", "rdlane", "dpp")
    for ins in lst:
        if ins.kind in ("meta", "wait"):
            continue
        text = ins.text
        cls, w, r, ex = rw(text)
        if cls == "mfma":
            t = max(t, last_mf + 8)
        for (t0, c0, w0, r0, e0, x0) in hist[-40:]:
            d = t - t0 - 1
            need = 0
            vw0 = {x for x in w0 if x[0] in "va"}
            sw0 = {x for x in w0 if x[0] == "s"}
            if c0 in VAL and cls == "mfma" and vw0 & r:
                need = 2
            if c0 == "mfma":
                if cls in VAL and w0 & (r | w):
                    need = 12
                if cls in ("ds", "vm", "vmst", "dma") and w0 & (r | w):
                    need = 12
                if cls == "mfma":
                    op, a = split_ops(text)
                    if w0 & (regs(a[1]) | regs(a[2])):
                        need = 12
                    elif w0 & ex and w0 != ex:
                        need = 10
                if cls in VAL and e0 & w:
                    need = max(need, 7)
            if c0 == "trans" and cls in ("valu", "perm", "rdlane", "dpp") and vw0 & r:
                need = max(need, 1)
            if c0 in VAL and cls in ("perm", "dpp") and vw0 & r:
                need = max(need, 2)
            if c0 in VAL and cls == "rdlane" and vw0 & r:
                need = max(need, 1)
            if c0 in VAL and cls in VAL and sw0 & r:
                need = max(need, 2)
            if c0 in VAL and cls in ("vm", "vmst", "dma") and sw0 & r:
                need = max(need, 5)
            if c0 == "salu" and cls == "dma" and ("s", "m0") in w0:
                need = max(need, 1)
            if c0 == "vmst" and e0 and e0 & w:
                need = max(need, 2)
            if d < need:
                errs.append(f"[{name}] need {need} have {d}: '{x0}' -> '{text}'")
        hist.append((t, cls, w, r, ex, text))
        if cls == "mfma":
            last_mf = t
        op = text.split()[0]
        if op == "s_nop":
            t += int(text.split()[1]) + 1
        else:
            t += 1
    return errs


def text_of(lst):
    o = []
    for ins in lst:
        if ins.kind == "meta":
            o.append(ins.text)
        else:
            o.append("  " + ins.text)
    return "\n".join(o) + "\n"
```

```python
import sys, struct
from asmlib import *

NAME = "parallel_sum__compressed_kv_cla__dense_activation_mish__prompt"
OPT = dict(stamp=0, thr=40)
for a in sys.argv[2:]:
    k, v = a.split("=")
    OPT[k] = int(v)


def f2u(x):
    return struct.unpack("<I", struct.pack("<f", x))[0]


MF = "v_mfma_f32_32x32x16_bf16"
XN_OFF = 0
KV_OFF = 2 << 20
AF_OFF = 34 << 20
AF_KS = 368
ST_OFF = 60 << 20
WS_BYTES = 268435456

sW, sH, sJ = "s3", "s4", "s5"
SRD_CKV, SRD_WUK, SRD_WUV, SRD_W1, SRD_WQ, SRD_WS, SRD_X, SRD_B1, SRD_DBG, SRD_ACT = (
    8, 12, 16, 20, 24, 28, 32, 36, 40, 44)
SRD_KV = 32


def srd(n):
    return f"s[{n}:{n+3}]"


def vr(b, n=4):
    return f"v[{b}:{b+n-1}]"


def ar(b, n=4):
    return f"a[{b}:{b+n-1}]"


vL16 = "v1"
VA_DMA, VW_DMA, VW1_DMA, VTR, VA_RD = 2, 6, 10, 14, 16
WF, TP, ACC0, ACC1, BIAS = 32, 64, 96, 160, 224
LDS_A = 65536
LDS_KV = 32768


def mk_srd(p, n, lo, nbytes):
    p.e(f"s_mov_b32 s{n}, s{lo}")
    p.e(f"s_and_b32 s{n+1}, s{lo+1}, 0xffff")
    p.e(f"s_mov_b32 s{n+2}, {nbytes}")
    p.e(f"s_mov_b32 s{n+3}, 0x20000")


stamp_n = [0]


def stamp(p):
    if not OPT["stamp"]:
        return
    i = stamp_n[0]
    stamp_n[0] += 1
    p.e(f"s_memtime s[98:99]")
    p.e("s_waitcnt lgkmcnt(0)")
    p.e(f"v_writelane_b32 v31, s98, {i}")


def stamp_flush(p):
    if not OPT["stamp"]:
        return
    p.e("s_lshl_b32 s98, s2, 2")
    p.e(f"s_add_u32 s98, s98, {sW}")
    p.e("s_lshl_b32 s98, s98, 8")
    p.e(f"s_add_u32 s98, s98, {ST_OFF}")
    p.e(f"v_lshrrev_b32 v30, 2, {vL16}")
    p.e(f"buffer_store_dword v31, v30, {srd(SRD_WS)}, s98 offen")


def k1_setup(p):
    p.e(f"""
s_cmp_ge_u32 s2, 256
s_cbranch_scc1 L1_end
s_load_dwordx16 s[48:63], s[0:1], 0
s_load_dwordx8 s[64:71], s[0:1], 64
s_load_dwordx2 s[72:73], s[0:1], 96
v_lshrrev_b32 v20, 6, v0
v_and_b32 v0, 63, v0
v_readfirstlane_b32 {sW}, v20
v_lshlrev_b32 {vL16}, 4, v0
s_and_b32 s6, s2, 7
s_lshr_b32 s7, s2, 6
s_lshl_b32 s7, s7, 3
s_add_u32 {sH}, s6, s7
s_lshr_b32 {sJ}, s2, 3
s_and_b32 {sJ}, {sJ}, 7
""")
    p.e(f"""
v_lshrrev_b32 v20, 3, v0
v_and_b32 v21, 7, v0
v_lshrrev_b32 v22, 4, v0
v_xor_b32 v23, v21, v22
v_lshlrev_b32 v23, 4, v23
v_lshl_add_u32 v{VA_DMA}, v20, 10, v23
v_xor_b32 v24, 64, v{VA_DMA}
v_add_u32 v{VA_DMA+1}, {7*1024}, v24
v_add_u32 v{VA_DMA+2}, {14*1024}, v{VA_DMA}
v_add_u32 v{VA_DMA+3}, {21*1024}, v24
v_and_b32 v22, 1, v22
v_lshlrev_b32 v22, 2, v22
v_xor_b32 v23, v21, v22
v_lshlrev_b32 v23, 4, v23
v_lshl_add_u32 v{VW_DMA}, v20, 13, v23
v_mul_u32_u24 v24, 3584, v20
v_add_u32 v{VW1_DMA}, v24, v23
""")
    for u in range(1, 4):
        p.e(f"v_add_u32 v{VW_DMA+u}, {u*(8*8192-1024)}, v{VW_DMA}")
        p.e(f"v_add_u32 v{VW1_DMA+u}, {u*(8*3584-1024)}, v{VW1_DMA}")
    p.e(f"""
v_lshrrev_b32 v20, 5, v0
v_lshlrev_b32 v20, 3, v20
v_bfe_u32 v21, v0, 2, 2
v_add_u32 v20, v20, v21
v_lshlrev_b32 v20, 7, v20
v_bfe_u32 v21, v0, 4, 1
v_lshl_add_u32 v20, v21, 5, v20
v_and_b32 v21, 3, v0
v_lshl_add_u32 v20, v21, 3, v20
v_bfe_u32 v21, v0, 3, 1
v_lshl_add_u32 v{VTR}, v21, 6, v20
v_xor_b32 v{VTR+1}, 64, v{VTR}
""")
    p.e(f"""
s_mul_i32 s6, {sW}, 24576
s_add_u32 s74, s6, {LDS_A}
v_and_b32 v20, 31, v0
v_lshlrev_b32 v20, 7, v20
v_add_u32 v20, s74, v20
v_bfe_u32 v21, v0, 1, 3
v_lshrrev_b32 v22, 5, v0
v_xor_b32 v21, v21, v22
v_lshl_add_u32 v{VA_RD}, v21, 4, v20
""")
    for s in range(1, 4):
        p.e(f"v_xor_b32 v{VA_RD+s}, {32*s}, v{VA_RD}")
    p.e("s_waitcnt lgkmcnt(0)")
    mk_srd(p, SRD_CKV, 50, 2048 * 1024)
    mk_srd(p, SRD_WUK, 54, 512 * 8192)
    mk_srd(p, SRD_X, 48, 2048 * 1024)
    p.e(f"""
s_lshl_b32 s75, {sJ}, 2
s_add_u32 s75, s75, {sW}
s_lshl_b32 s75, s75, 16
s_lshl_b32 s76, {sH}, 8
s_lshl_b32 s77, {sW}, 12
s_lshr_b32 s6, {sW}, 1
s_lshl_b32 s6, s6, 7
s_and_b32 s7, {sW}, 1
s_lshl_b32 s7, s7, 18
s_add_u32 s78, s76, s6
s_add_u32 s78, s78, s7
s_lshl_b32 s6, {sW}, 18
s_add_u32 s79, s76, s6
""")


def a_dma(q):
    out = []
    for rb in range(2):
        for u in range(4):
            pre = []
            if u == 0:
                pre = [f"s_add_u32 m0, s74, {(q%3)*8192 + rb*4096}",
                       f"s_add_u32 s80, s75, {rb*32768 + q*128}"]
            out.append((pre, I(f"buffer_load_dwordx4 v{VA_DMA+u}, {srd(SRD_CKV)}, s80 offen offset:{u*1024} lds", tag=f"A{q}")))
    return out


def a_reads(q):
    out = []
    for s in range(4):
        for rb in range(2):
            ks = 4 * q + s
            out.append(I(f"ds_read_b128 {ar((rb*32+ks)*4)}, v{VA_RD+s} offset:{(q%3)*8192 + rb*4096}",
                         tag=f"Ar{ks}", needs=[f"A{q}"]))
    return out


CHUNKS = [("Vlo", SRD_WUV, 0), ("Vhi", SRD_WUV, 128), ("H", SRD_W1, 0), ("Qlo", SRD_WQ, 0), ("Qhi", SRD_WQ, 128)]
NSLAB = 28


def w_dma(pslab):
    out = []
    slot = (pslab % 4) * 16384
    if pslab < 8:
        sr, va = SRD_WUK, VW_DMA
        so = f"s_add_u32 s81, s78, {pslab*64*8192}"
    else:
        c, i = divmod(pslab - 8, 4)
        nm, sr, col = CHUNKS[c]
        if nm == "H":
            va = VW1_DMA
            so = f"s_add_u32 s81, s82, {i*128*3584}"
        else:
            va = VW_DMA
            so = f"s_add_u32 s81, s79, {i*128*8192 + col}"
    for u in range(4):
        pre = [f"s_add_u32 m0, s77, {slot}", so] if u == 0 else []
        out.append((pre, I(f"buffer_load_dwordx4 v{va+u}, {srd(sr)}, s81 offen offset:{u*1024} lds", tag=f"W{pslab}")))
    return out


def w_read(G):
    pslab = G // 32
    slot = (pslab % 4) * 16384
    if G < 256:
        ks, r = divmod(G, 8)
        blk, j = divmod(r, 2)
        off = slot + (blk // 2) * 8192 + (ks % 4) * 2048 + j * 512
        dst = WF + 16 * (ks % 2) + 4 * blk + 2 * j
    else:
        ks, r = divmod((G - 256) % 128, 4)
        blk, j = divmod(r, 2)
        off = slot + (ks % 8) * 2048 + j * 512
        dst = WF + 8 * (ks % 4) + 4 * blk + 2 * j
    return I(f"ds_read_b64_tr_b16 {vr(dst,2)}, v{VTR + blk % 2} offset:{off}", tag=f"Wr{G//4}")


def k1_ln(p):
    p.e(f"""
v_and_b32 v20, 7, v0
v_lshlrev_b32 v21, 4, v20
s_lshl_b32 s6, {sW}, 2
v_add_u32 v22, s6, v21
""")
    p.wait("X")
    for i in range(8):
        p.e(f"v_and_b32 v{41+2*i}, 0xffff0000, v{32+i}")
        p.e(f"v_lshlrev_b32 v{40+2*i}, 16, v{32+i}")

    def reduce(v, slot):
        p.e(f"""
s_nop 1
v_add_f32_dpp {v}, {v}, {v} row_ror:8 row_mask:0xf bank_mask:0xf
v_mov_b32 v24, {v}
s_nop 1
v_permlane16_swap_b32 {v}, v24
v_add_f32 {v}, {v}, v24
v_mov_b32 v24, {v}
s_nop 1
v_permlane32_swap_b32 {v}, v24
v_add_f32 {v}, {v}, v24
""")
        p.e(I(f"ds_write_b32 v22, {v} offset:{49152 + slot*128}", tag=f"lnw{slot}"))
        p.wait(f"lnw{slot}")
        p.e("s_barrier")
        p.e(I(f"ds_read_b128 v[24:27], v21 offset:{49152 + slot*128}", tag=f"lnr{slot}"))
        p.wait(f"lnr{slot}")
        p.e(f"""
v_add_f32 v24, v24, v25
v_add_f32 v26, v26, v27
v_add_f32 {v}, v24, v26
v_mul_f32 {v}, 0x{f2u(1/512):x}, {v}
""")

    p.e("v_add_f32 v23, v40, v41")
    for i in range(2, 16):
        p.e(f"v_add_f32 v23, v23, v{40+i}")
    reduce("v23", 0)
    p.e("v_sub_f32 v29, v40, v23")
    p.e("v_mul_f32 v28, v29, v29")
    for i in range(1, 16):
        p.e(f"v_sub_f32 v29, v{40+i}, v23")
        p.e(f"v_fmac_f32 v28, v29, v29")
    reduce("v28", 1)
    p.e(f"""
v_cvt_pk_bf16_f32 v24, v23, v28
v_lshlrev_b32 v23, 16, v24
v_and_b32 v28, 0xffff0000, v24
v_add_f32 v28, 0x{f2u(1e-5):x}, v28
v_cvt_pk_bf16_f32 v24, v28, v28
v_lshlrev_b32 v28, 16, v24
v_sqrt_f32 v28, v28
s_nop 0
v_cvt_pk_bf16_f32 v24, v28, v28
v_lshlrev_b32 v28, 16, v24
v_rcp_f32 v28, v28
""")
    for i in range(16):
        p.e(f"v_sub_f32 v{40+i}, v{40+i}, v23")
    for i in range(8):
        p.e(f"v_cvt_pk_bf16_f32 v24, v{40+2*i}, v{41+2*i}")
        p.e(f"v_lshlrev_b32 v25, 16, v24")
        p.e(f"v_and_b32 v26, 0xffff0000, v24")
        p.e(f"v_mul_f32 v25, v25, v28")
        p.e(f"v_mul_f32 v26, v26, v28")
        p.e(f"v_cvt_pk_bf16_f32 v{32+i}, v25, v26")
    p.e(f"""
v_lshrrev_b32 v24, 3, v0
v_lshl_add_u32 v24, v24, 9, v21
s_lshr_b32 s6, s2, 2
s_lshl_b32 s6, s6, 15
s_and_b32 s7, s2, 3
s_lshl_b32 s7, s7, 7
s_add_u32 s6, s6, s7
s_lshl_b32 s7, {sW}, 13
s_add_u32 s6, s6, s7
s_add_u32 s7, s6, 4096
""")
    p.e(I(f"buffer_store_dwordx4 v[32:35], v24, {srd(SRD_WS)}, s6 offen sc1", tag="XNst"))
    p.e(I(f"buffer_store_dwordx4 v[36:39], v24, {srd(SRD_WS)}, s7 offen sc1", tag="XNst"))
    p.e("s_nop 1")


def poll_slow(out, label, back, voff, want):
    out.e(f"""
{label}:
s_mov_b32 s96, 0x40000
{label}_l:
s_sleep 2
buffer_load_dword v29, {voff}, {srd(SRD_DBG)}, 0 offen sc1
s_waitcnt vmcnt(0)
v_readfirstlane_b32 s97, v29
s_sub_u32 s96, s96, 1
s_cmp_eq_u32 s96, 0
s_cbranch_scc1 {back}
s_cmp_lt_u32 s97, {want}
s_cbranch_scc1 {label}_l
s_branch {back}
""")


def accb(buf, blk2, rb):
    return buf + (blk2 * 2 + rb) * 16


def k1_proj(p, ool):
    xl = f"""
v_and_b32 v20, 7, v0
v_lshrrev_b32 v21, 3, v0
v_lshlrev_b32 v21, 4, v21
v_lshl_add_u32 v20, v20, 10, v21
s_lshl_b32 s6, s2, 13
s_lshl_b32 s7, {sW}, 8
s_add_u32 s6, s6, s7
"""
    p.e(xl)
    p.e(I(f"buffer_load_dwordx4 v[32:35], v20, {srd(SRD_X)}, s6 offen", tag="X"))
    p.e(I(f"buffer_load_dwordx4 v[36:39], v20, {srd(SRD_X)}, s6 offen offset:128", tag="X"))

    def issue(lst):
        for pre, ins in lst:
            p.e(pre)
            p.e(ins)
    issue(a_dma(0)); issue(w_dma(0)); issue(a_dma(1)); issue(w_dma(1)); issue(a_dma(2))
    mk_srd(p, SRD_WS, 72, WS_BYTES)
    mk_srd(p, SRD_WUV, 56, 512 * 8192)
    mk_srd(p, SRD_WQ, 52, 512 * 8192)
    mk_srd(p, SRD_W1, 62, 512 * 3584)
    mk_srd(p, SRD_B1, 64, 3584)
    mk_srd(p, SRD_DBG, 70, 256)
    mk_srd(p, SRD_ACT, 72, WS_BYTES)
    p.e(f"""
s_cmp_lt_u32 {sH}, 28
s_cselect_b32 s{SRD_W1+2}, s{SRD_W1+2}, 0
s_cselect_b32 s{SRD_ACT+2}, s{SRD_ACT+2}, 0
s_lshl_b32 s6, {sH}, 7
s_mul_i32 s7, {sW}, {32*3584}
s_add_u32 s82, s6, s7
s_lshl_b32 s6, {sH}, 6
s_lshl_b32 s7, {sJ}, 3
s_add_u32 s6, s6, s7
s_lshl_b32 s7, {sW}, 1
s_add_u32 s6, s6, s7
s_lshl_b32 s6, s6, 14
s_add_u32 s84, s6, {KV_OFF}
""")
    for i in range(1, 8):
        p.e(f"s_add_u32 s{84+i}, s84, {i*4096}")
    p.e(f"""
s_lshl_b32 s48, {sJ}, 2
s_add_u32 s48, s48, {sW}
s_sub_u32 s49, 63, s48
s_lshl_b32 s92, s48, 15
s_lshl_b32 s93, s49, 15
s_mul_i32 s50, s48, {AF_KS*1024}
s_mul_i32 s51, s49, {AF_KS*1024}
s_add_u32 s50, s50, {AF_OFF}
s_add_u32 s51, s51, {AF_OFF}
s_lshl_b32 s6, {sH}, 12
s_add_u32 s6, s6, {256*1024}
s_add_u32 s94, s50, s6
s_add_u32 s95, s51, s6
""")
    k1_ln(p)
    p.e(f"""
s_cmp_eq_u32 {sW}, 0
s_cselect_b32 s6, 0, 0x1000
v_lshl_add_u32 v26, v0, 12, s6
s_lshl_b32 s7, {sH}, 2
v_add_u32 v27, s7, v26
v_add_u32 v26, 128, v26
v_mov_b32 v28, 1
v_mov_b32 v24, 128
v_mov_b32 v25, s7
""")
    stamp(p)
    p.wait("A0")
    for x in a_reads(0):
        p.e(x)
    p.wait("W0")
    p.e("s_barrier")
    for G in range(8):
        p.e(w_read(G))
    issue(w_dma(2))
    p.wait("Wr0", "Ar0", "Ar3")

    mf = []
    for ks in range(32):
        for blk in range(4):
            for rb in range(2):
                d = accb(ACC0 if blk < 2 else ACC1, blk % 2, rb)
                c = "0" if ks == 0 else vr(d, 16)
                G = len(mf)
                mf.append(I(f"{MF} {vr(d,16)}, {vr(WF+16*(ks%2)+4*blk)}, {ar((rb*32+ks)*4)}, {c}",
                            needs=[f"Wr{G//4}", f"Ar{ks}"]))
    for ci, (nm, _, _) in enumerate(CHUNKS):
        buf = ACC0 if ci % 2 == 0 else ACC1
        for ks in range(32):
            for blk in range(2):
                for rb in range(2):
                    d = accb(buf, blk, rb)
                    c = vr(d, 16)
                    if ks == 0:
                        c = vr(BIAS + 16 * blk, 16) if nm == "H" else "0"
                    wf, af = vr(WF + 8 * (ks % 4) + 4 * blk), ar((rb * 32 + ks) * 4)
                    a, b = (af, wf) if nm[0] == "V" else (wf, af)
                    G = len(mf)
                    nd = [f"Wr{G//4}"]
                    if nm == "H":
                        nd.append(f"XN{ks}")
                    mf.append(I(f"{MF} {vr(d,16)}, {a}, {b}, {c}", needs=nd))
    NG = len(mf)
    g = Gaps(mf)
    for G in range(8, NG):
        g.mem[G - 8].append(w_read(G))
    for G in range(4, NG, 4):
        tags = [f"Wr{G//4}"]
        if G < 256 and G % 32 == 0:
            tags += [f"Ar{G//8 + 3}"]
        if 512 <= G < 640:
            tags += [f"XN{(G-512)//4}"]
        g.pre[G - 1].append(WAIT(*tags))

    def place(lst, g0, step):
        for i, (pre, ins) in enumerate(lst):
            G = g0 + i * step
            for x in pre:
                g.post[G - 1].append(x)
            g.mem[G].append(ins)

    for ps in range(1, NSLAB):
        G = 32 * ps - 9
        tags = [f"W{ps}"]
        if ps == 2:
            tags.append("XNst")
        if ps == 20:
            tags.append("KVst")
        g.post[G].append(WAIT(*tags))
        g.post[G].append("s_barrier")
        if ps + 2 < NSLAB:
            place(w_dma(ps + 2), G + 2, 2)
    for q in range(1, 8):
        G = 32 * q - 14
        g.post[G - 1].append(WAIT(f"A{q}"))
        for i, x in enumerate(a_reads(q)):
            g.mem[G + i].append(x)
    for q in range(0, 5):
        place(a_dma(q + 3), 32 * q + 1, 2)
    g.mem[32 * 2 - 8].append(I(f"buffer_atomic_add v28, v26, {srd(SRD_DBG)}, 0 offen"))
    g.mem[32 * 20 - 8].append(I(f"buffer_atomic_add v28, v27, {srd(SRD_DBG)}, 0 offen"))

    def kv_store(src, rb, f):
        return I(f"buffer_store_dwordx4 {vr(src)}, {vL16}, {srd(SRD_WS)}, s{84+rb*4+f//4} offen offset:{(f%4)*1024} sc1", tag="KVst")

    def cvt8(dst, src):
        return [f"v_cvt_pk_bf16_f32 v{dst+c}, v{src+2*c}, v{src+2*c+1}" for c in range(8)]

    it = []
    for i in range(4):
        it += cvt8(TP + 8 * i, ACC0 + 16 * i)
    for n, x in enumerate(it):
        g.val[250 + (n + 2) // 5].append(I(x))
    G = 260
    for i in range(4):
        blk, rb = divmod(i, 2)
        for t in range(2):
            g.mem[G].append(kv_store(TP + 8 * i + 4 * t, rb, 2 * blk + t)); G += 4

    def epi_inplace(buf, G0, fidx):
        G = G0
        for i in range(4):
            blk, rb = divmod(i, 2)
            b = buf + 16 * i
            for n, x in enumerate(cvt8(b, b)):
                g.val[G + n // 4].append(I(x))
            for t in range(2):
                g.mem[G + 3 + 4 * t].append(kv_store(b + 4 * t, rb, fidx(blk, t)))
            G += 9
    epi_inplace(ACC1, 296, lambda blk, t: 2 * (blk + 2) + t)
    epi_inplace(ACC0, 384 + 3, lambda blk, t: 8 + 4 * t + blk)
    epi_inplace(ACC1, 512 + 3, lambda blk, t: 8 + 4 * t + blk + 2)
    g.val[340].append(I("v_lshrrev_b32 v20, 5, v0"))
    g.val[340].append(I("v_lshlrev_b32 v20, 3, v20"))
    g.post[340].append(f"s_lshl_b32 s83, {sH}, 7")
    for i in range(8):
        g.mem[342 + 2 * i].append(I(f"buffer_load_dwordx2 {vr(BIAS+4*i+2,2)}, v20, {srd(SRD_B1)}, s83 offen offset:{16*i}", tag="B1"))
    g.post[439].append(WAIT("B1"))
    for i in range(8):
        b = BIAS + 4 * i
        g.val[440 + i] += [I(f"v_lshlrev_b32 v{b}, 16, v{b+2}", needs=["B1"]), I(f"v_and_b32 v{b+1}, 0xffff0000, v{b+2}"),
                           I(f"v_lshlrev_b32 v{b+2}, 16, v{b+3}"), I(f"v_and_b32 v{b+3}, 0xffff0000, v{b+3}")]
    g.mem[338].append(I(f"buffer_load_dword v29, v24, {srd(SRD_DBG)}, 0 offen sc1", tag="pollLN"))
    g.post[380].append(WAIT("pollLN"))
    g.val[381].append(I("v_readfirstlane_b32 s97, v29", needs=["pollLN"]))
    g.post[382] += ["s_cmp_lt_u32 s97, 256", "s_cbranch_scc1 L1_pollLN", "L1_pollLN_back:"]
    poll_slow(ool, "L1_pollLN", "L1_pollLN_back", "v24", 256)
    for i in range(64):
        ks, rb = divmod(i, 2)
        G = 388 + 3 * i
        g.mem[G].append(I(f"buffer_load_dwordx4 {ar((rb*32+ks)*4)}, {vL16}, {srd(SRD_WS)}, s{92+rb} offen offset:{(ks%4)*1024} sc1", tag=f"XN{ks}"))
        if ks % 4 == 3:
            g.post[G].append(f"s_add_u32 s{92+rb}, s{92+rb}, 4096")
    it = []
    LOG2E = f"0x{f2u(1.4426950408889634):x}"
    for i in range(4):
        blk, rb = divmod(i, 2)
        b = ACC0 + 16 * i
        for c in range(8):
            x0, x1 = b + 2 * c, b + 2 * c + 1
            it += [f"v_mul_f32 v20, {LOG2E}, v{x0}", f"v_mul_f32 v21, {LOG2E}, v{x1}",
                   "v_exp_f32 v20, v20", "v_exp_f32 v21, v21",
                   "v_add_f32 v22, 2.0, v20", "v_add_f32 v23, 2.0, v21",
                   "v_fma_f32 v20, v20, v22, 2.0", "v_fma_f32 v21, v21, v23, 2.0",
                   "v_rcp_f32 v20, v20", "v_rcp_f32 v21, v21",
                   "v_fma_f32 v20, v20, -2.0, 1.0", "v_fma_f32 v21, v21, -2.0, 1.0",
                   f"v_mul_f32 v20, v20, v{x0}", f"v_mul_f32 v21, v21, v{x1}",
                   f"v_cvt_pk_bf16_f32 v{b+c}, v20, v21"]
            if c % 4 == 3:
                t = c // 4
                it.append(I(f"buffer_store_dwordx4 {vr(b+4*t)}, {vL16}, {srd(SRD_ACT)}, s{94+rb} offen offset:{(2*blk+t)*1024}"))
    g.spread(it, 640 + 2, 768 - 1)
    QS = f"0x{f2u(1.4426950408889634 / 128 ** 0.5):x}"

    def q_epi(buf, dst):
        it = []
        for i in range(4):
            blk, rb = divmod(i, 2)
            b = buf + 16 * i
            for c in range(8):
                it += [f"v_mul_f32 v{b+2*c}, {QS}, v{b+2*c}", f"v_mul_f32 v{b+2*c+1}, {QS}, v{b+2*c+1}",
                       f"v_cvt_pk_bf16_f32 v{dst+16*rb+8*blk+c}, v{b+2*c}, v{b+2*c+1}"]
        return it
    for ks in range(31):
        for r in range(4):
            g.val[768 + 4 * (ks + 1) + r].append(I(f"v_accvgpr_write_b32 a{4*ks+r}, 0"))
    g.spread(q_epi(ACC1, TP), 768 + 2, 768 + 50)
    g.mem[776].append(I(f"buffer_load_dword v29, v25, {srd(SRD_DBG)}, 0 offen sc1", tag="pollKV"))
    kv = [f"s_lshl_b32 s6, {sH}, 20", f"s_add_u32 s6, s6, s77", f"s_add_u32 s6, s6, {KV_OFF}",
          f"s_add_u32 s{SRD_KV}, s72, s6", f"s_addc_u32 s{SRD_KV+1}, s73, 0", f"s_and_b32 s{SRD_KV+1}, s{SRD_KV+1}, 0xffff",
          f"s_mov_b32 s{SRD_KV+2}, 0x100000", f"s_add_u32 s52, s77, {LDS_KV}"]
    g.post[780] += kv[:3]
    g.post[781] += kv[3:6]
    g.post[782] += kv[6:]
    g.post[810].append(WAIT("pollKV"))
    g.val[811].append(I("v_readfirstlane_b32 s97, v29", needs=["pollKV"]))
    g.post[812] += ["s_cmp_lt_u32 s97, 8", "s_cbranch_scc1 L1_pollKV", "L1_pollKV_back:"]
    poll_slow(ool, "L1_pollKV", "L1_pollKV_back", "v25", 8)

    def kv_dma(n):
        out = []
        for u in range(4):
            pre = [f"s_add_u32 m0, s52, {((n+2)%8)*16384}", f"s_mov_b32 s80, {n*16384}"] if u == 0 else []
            out.append((pre, I(f"buffer_load_dwordx4 {vL16}, {srd(SRD_KV)}, s80 offen offset:{u*1024} sc1 lds", tag=f"KV{n}")))
        return out
    for n in range(6):
        place(kv_dma(n), 816 + 12 * n, 3)
    if OPT["stamp"]:
        for G in (255, 383, 511, 639, 767):
            q = Prog(); stamp(q); g.post[G] += q.l
    p.e(g.emit())
    stamp(p)
    p.wait("KV0")
    p.e("s_barrier")
    p.e(f"v_add_u32 v{vVa}, 0x8000, {vL16}")
    for r in range(4):
        p.e(f"v_accvgpr_write_b32 a{124+r}, 0")
    for k in range(8):
        p.e(I(f"ds_read_b128 {ar(KF+4*k)}, v{vVa} offset:{LDS_KV + k*1024}", tag="K0", needs=["KV0"]))
    issue(kv_dma(6))
    p.e(q_epi(ACC0, BIAS))
    return


S0, S1, EX, P0, P1, NMA, NMB, ET = 96, 112, 128, 144, 152, 160, 176, 192
OA, OB, KF, VF = 0, 64, 128, 160
vKa, vVa, vMask, vTs, vLA, vLB, vThr, vNinf, vK0 = 2, 3, 4, 5, 6, 7, 8, 9, 10
sV, sK, sCA, sCB = "s53", "s54", "s55", "s56"
MASKS = 64


def qfrag(blk, k):
    return (TP + 16 * blk + 4 * k) if k < 4 else (BIAS + 16 * blk + 4 * (k - 4))


class Job:
    def __init__(self, blk, par):
        self.blk = blk
        self.S = (S0, S1)[par]
        self.P = (P0, P1)[par]
        self.NM = (NMA, NMB)[blk]
        self.O = (OA, OB)[blk]
        self.L = (vLA, vLB)[blk]


def sm_ops(j):
    e = lambda r: f"v_exp_f32 v{EX+r}, v{j.S+r}"
    a = lambda r: (f"v_add_f32 v{vTs}, v{EX}, v{EX+1}" if r == 1 else f"v_add_f32 v{vTs}, v{vTs}, v{EX+r}")
    c = lambda i: f"v_cvt_pk_bf16_f32 v{j.P+i}, v{EX+2*i}, v{EX+2*i+1}"
    first = {9: [e(0), e(1)], 10: [e(2), e(3), a(1)], 11: [e(4), a(2), a(3), c(0)], 12: [e(5), a(4), c(1)],
             13: [e(6), a(5)], 14: [e(7), a(6), c(2)], 15: [e(8), a(7), c(3)]}
    second = {0: [e(9), a(8)], 1: [e(10), a(9), c(4)], 2: [e(11), a(10)], 3: [e(12), a(11), c(5)],
              4: [e(13), e(14), a(12)], 5: [e(15), a(13), a(14), c(6)],
              6: [a(15), c(7), f"v_cmp_nle_f32 vcc, v{vTs}, v{vThr}"]}
    return first, second


def qk_mf(j, c0=None):
    out = []
    for k in range(8):
        c = (vr(j.NM, 16) if c0 is None else c0) if k == 0 else vr(j.S, 16)
        out.append(f"{MF} {vr(j.S,16)}, {ar(KF+4*k)}, {vr(qfrag(j.blk,k))}, {c}")
    return out


def pv_mf(j):
    out = []
    for t in range(2):
        for d in range(4):
            o = ar(j.O + 16 * d, 16)
            out.append(f"{MF} {o}, {ar(VF+4*(4*t+d))}, {vr(j.P+4*t)}, {o}")
    return out


def rowmax(S, dst, tmp):
    l = [f"v_max3_f32 v{dst}, v{S}, v{S+1}, v{S+2}"]
    for r in range(3, 15, 2):
        l.append(f"v_max3_f32 v{dst}, v{dst}, v{S+r}, v{S+r+1}")
    l += [f"v_max_f32 v{dst}, v{dst}, v{S+15}", f"v_mov_b32 v{tmp}, v{dst}", "s_nop 1",
          f"v_permlane32_swap_b32 v{dst}, v{tmp}", f"v_max_f32 v{dst}, v{dst}, v{tmp}"]
    return l


def rare(ool, name, cur, nxt):
    q = Prog()
    q.e(f"L1_rare_{name}:")
    q.e("s_nop 15")
    q.e(rowmax(cur.S, 20, 21))
    q.e("v_max_f32 v20, 0, v20")
    q.e("v_exp_f32 v21, -v20")
    for r in range(16):
        q.e(f"v_sub_f32 v{cur.NM+r}, v{cur.NM+r}, v20")
        q.e(f"v_sub_f32 v{cur.S+r}, v{cur.S+r}, v20")
        if nxt is not None and nxt.blk == cur.blk:
            q.e(f"v_sub_f32 v{nxt.S+r}, v{nxt.S+r}, v20")
    q.e(f"v_mul_f32 v{cur.L}, v{cur.L}, v21")
    for r in range(64):
        q.e(f"v_accvgpr_read_b32 v22, a{cur.O+r}")
        q.e(f"v_mul_f32 v22, v22, v21")
        q.e(f"v_accvgpr_write_b32 a{cur.O+r}, v22")
    f, s = sm_ops(cur)
    for G in list(range(9, 16)) + list(range(0, 7)):
        for x in (f.get(G) or s.get(G)):
            if not x.startswith("v_cmp"):
                q.e(x)
    q.e("s_nop 1")
    q.e(f"s_branch L1_back_{name}")
    errs = lint(q.l, "rare" + name)
    assert not errs, errs
    ool.e(q.l)


def step(ool, name, cur, nxt, rdV, rdK, kadd, w3, extra=None):
    mf = (qk_mf(nxt) if nxt else [None] * 8) + pv_mf(cur)
    g = Gaps(mf)
    _, second = sm_ops(cur)
    for G, l in second.items():
        g.val[G] += l
    if nxt:
        first, _ = sm_ops(nxt)
        for G, l in first.items():
            g.val[G] += l
    g.post[7] += [f"s_cbranch_vccnz L1_rare_{name}", f"L1_back_{name}:"]
    rare(ool, name, cur, nxt)
    g.val[8].append(f"v_add_f32 v{cur.L}, v{cur.L}, v{vTs}")
    g.pre[3].append(f"s_waitcnt lgkmcnt({w3})")
    if rdV:
        for f in range(8):
            g.mem[f].append(f"ds_read_b128 {ar(VF+4*f)}, v{vVa} offset:{LDS_KV+8192+1024*f}")
        g.pre[7].append("s_waitcnt lgkmcnt(3)")
        g.pre[11].append("s_waitcnt lgkmcnt(%d)" % (3 if rdK else 0))
        g.pre[0].append("s_waitcnt vmcnt(12)")
        g.post[0].append("s_barrier")
        if nxt:
            for u, G in enumerate((2, 7, 8, 13)):
                g.mem[G].append(f"buffer_load_dwordx4 {vL16}, {srd(SRD_KV)}, {sV} offen offset:{u*1024} sc1 lds")
            g.pre[14].append(f"s_and_b32 s6, {sV}, 0x1c000")
            g.post[14].append(f"s_add_u32 {sV}, {sV}, 0x4000")
            g.post[15].append(f"s_add_u32 m0, s6, s52")
            g.val[15].insert(0, f"v_and_or_b32 v{vVa}, {sV}, v{vMask}, {vL16}")
    if rdK:
        g.pre[5].append(f"s_add_u32 {sK}, {sK}, 0x4000")
        g.val[7].append(f"v_and_or_b32 v{vKa}, {sK}, v{vMask}, {vL16}")
        for k in range(8):
            g.mem[8 + k].append(f"ds_read_b128 {ar(KF+4*k)}, v{vKa} offset:{LDS_KV+1024*k}")
        g.pre[15].append("s_waitcnt lgkmcnt(3)")
    if extra:
        extra(g)
    return g.emit()


def mask_ops(NM):
    return [f"v_cndmask_b32 v{NM+r}, v{NM+r}, v{vNinf}, s[{MASKS+2*r}:{MASKS+2*r+1}]" for r in range(16)] + ["s_nop 1"]


def epilogue(p, blk, bar):
    O, L = (OA, vLA) if blk == 0 else (OB, vLB)
    p.e(f"""
v_mov_b32 v20, v{L}
s_lshl_b32 s6, {sH}, 13
s_add_u32 s6, s6, s{50+blk}
v_permlane32_swap_b32 v{L}, v20
v_add_f32 v20, v{L}, v20
v_rcp_f32 v20, v20
s_add_u32 s7, s6, 4096
""")
    for d in range(4):
        b = ET + 16 * (d % 2)
        for r in range(16):
            p.e(f"v_accvgpr_read_b32 v{b+r}, a{O+16*d+r}")
        for c in range(8):
            p.e(f"v_mul_f32 v{b+2*c}, v{b+2*c}, v20")
            p.e(f"v_mul_f32 v{b+2*c+1}, v{b+2*c+1}, v20")
            p.e(f"v_cvt_pk_bf16_f32 v{b+c}, v{b+2*c}, v{b+2*c+1}")
        for t in range(2):
            f = 2 * d + t
            p.e(f"buffer_store_dwordx4 {vr(b+4*t)}, {vL16}, {srd(SRD_WS)}, s{6+f//4} offen offset:{(f%4)*1024}")
        if d in bar:
            bar[d](p)


def k1_attn(p, ool):
    A0, B1j, B0j = Job(0, 0), Job(1, 1), Job(1, 0)
    for r in range(16):
        a, b = divmod(r, 4)
        m = 0
        for l in range(64):
            if 8 * a + 4 * (l // 32) + b > l % 32:
                m |= 1 << l
        p.e(f"s_mov_b32 s{MASKS+2*r}, 0x{m & 0xffffffff:x}")
        p.e(f"s_mov_b32 s{MASKS+2*r+1}, 0x{m >> 32:x}")
    p.e(f"""
v_mov_b32 v{vMask}, 0x1c000
v_mov_b32 v{vLA}, 0
v_mov_b32 v{vLB}, 0
v_mov_b32 v{vThr}, 0x{f2u(2.0**OPT['thr']):x}
v_mov_b32 v{vNinf}, 0xff800000
s_mov_b32 {sV}, 0x8000
s_mov_b32 {sK}, 0x8000
s_mov_b32 {sCA}, s48
s_sub_u32 {sCB}, 31, s48
s_add_u32 s{SRD_KV}, s{SRD_KV}, {5*16384}
s_addc_u32 s{SRD_KV+1}, s{SRD_KV+1}, 0
s_lshl_b32 s6, {sJ}, 2
s_sub_u32 s6, 59, s6
s_lshl_b32 s{SRD_KV+2}, s6, 14
s_add_u32 m0, s52, 0x4000
""")
    for r in range(16):
        p.e(f"v_mov_b32 v{NMA+r}, 0")
    p.e(f"s_cmp_lg_u32 {sCA}, 0")
    p.e("s_cbranch_scc1 L1_nomask0")
    p.e(mask_ops(NMA))
    p.e("L1_nomask0:")
    p.wait("K0")
    p.e(qk_mf(B1j, "0"))
    g = Gaps(qk_mf(A0))
    it = rowmax(S1, 20, 21) + [f"v_sub_f32 v{NMB+r}, 0, v20" for r in range(16)]
    g.spread(it, 1, 8)
    p.e(g.emit())
    p.e("s_nop 7")
    p.e(rowmax(S0, 20, 21))
    for r in range(16):
        p.e(f"v_sub_f32 v{S0+r}, v{S0+r}, v20")
    first, _ = sm_ops(A0)
    for G in range(9, 16):
        p.e(first[G])
    for r in range(16):
        p.e(f"v_sub_f32 v{NMA+r}, 0, v20")
    stamp(p)
    return A0, B1j, B0j


def k1_loops(A0, B1j, B0j, ool):
    q = Prog()

    def exX(g):
        g.pre[12].append(f"s_nop 0")
        g.post[15] += [f"s_cmp_le_u32 {sCA}, 1", "s_cbranch_scc1 L1_Xsp"]
    X = step(ool, "X", A0, B1j, True, True, 1, 3, exX)

    def exY(g):
        g.pre[13].append(f"s_sub_u32 {sCA}, {sCA}, 1")
        g.post[15].append("s_branch L1_X")
    Y = step(ool, "Y", B1j, A0, False, False, 0, 0, exY)

    def exT(g):
        g.post[15] += [f"s_cmp_eq_u32 {sCB}, 0", "s_cbranch_scc1 L1_F"]
    T = step(ool, "T", B1j, B0j, False, True, 2, 0, exT)

    def exZ0(g):
        g.post[15] += [f"s_cmp_eq_u32 {sCB}, 1", "s_cbranch_scc1 L1_Zsp"]
    Z0 = step(ool, "Z0", B0j, B1j, True, True, 2, 3, exZ0)

    def exZ1(g):
        g.pre[13].append(f"s_sub_u32 {sCB}, {sCB}, 1")
        g.post[15] += [f"s_cmp_lg_u32 {sCB}, 0", "s_cbranch_scc1 L1_Z0"]
    Z1 = step(ool, "Z1", B1j, B0j, True, True, 2, 3, exZ1)
    F = step(ool, "F", B0j, None, True, False, 0, 15)
    for nm, seq in (("XY", X + Y + X), ("XT", X + T + Z0 + Z1 + Z0), ("TF", T + F), ("ZF", Z1 + F)):
        errs = lint(seq, nm)
        assert not errs, "\n".join(errs)
    q.e(".p2align 5\nL1_X:"); q.e(X); q.e("L1_Y:"); q.e(Y)
    q.e("L1_T:"); q.e(T)
    q.e(".p2align 5\nL1_Z0:"); q.e(Z0); q.e("L1_Z1:"); q.e(Z1)
    q.e("L1_F:"); q.e(F)
    ool.e(f"""
L1_Xsp:
s_cmp_eq_u32 {sCA}, 0
s_cbranch_scc1 L1_Tpre
""")
    ool.e(mask_ops(NMA)); ool.e("s_branch L1_Y")
    ool.e(f"""
L1_Tpre:
s_cmp_lg_u32 {sCB}, 0
s_cbranch_scc1 L1_T
""")
    ool.e(mask_ops(NMB)); ool.e("s_branch L1_T")
    ool.e("L1_Zsp:"); ool.e(mask_ops(NMB)); ool.e("s_branch L1_Z1")
    return q, F


def kernel1():
    p, ool = Prog(), Prog()
    k1_setup(p)
    if OPT["stamp"]:
        p.e("v_mov_b32 v31, 0")
    stamp(p)
    k1_proj(p, ool)
    jobs = k1_attn(p, ool)
    head = resolve_waits(p.l)
    errs = lint(head, "head")
    assert not errs, "\n".join(errs)
    loops, F = k1_loops(*jobs, ool)
    e = Prog()
    stamp(e)

    def cbar(n):
        def f(p):
            p.e(f"s_cmp_lt_u32 {sW}, {n}\ns_cbranch_scc1 L1_nb{n}\ns_barrier\nL1_nb{n}:")
        return f
    cbar(1)(e)
    epilogue(e, 0, {2: cbar(2)})
    epilogue(e, 1, {1: cbar(3)})
    stamp(e)
    stamp_flush(e)
    e.e("L1_end:\ns_endpgm")
    errs = lint(F + e.l, "epi")
    assert not errs, "\n".join(errs)
    return text_of(head) + text_of(loops.l) + text_of(e.l) + text_of(ool.l)


def kernel2():
    p = Prog()
    SA, SWO, SW2, SX, SO = 8, 12, 16, 20, 24
    p.e(f"""
s_cmp_ge_u32 s2, 256
s_cbranch_scc1 L2_end
s_load_dwordx2 s[48:49], s[0:1], 0
s_load_dwordx2 s[50:51], s[0:1], 40
s_load_dwordx4 s[52:55], s[0:1], 72
s_load_dwordx2 s[56:57], s[0:1], 96
v_lshrrev_b32 v20, 6, v0
v_mov_b32 v30, v0
v_and_b32 v0, 63, v0
v_readfirstlane_b32 s3, v20
v_lshlrev_b32 v1, 4, v0
s_and_b32 s6, s2, 7
s_lshl_b32 s6, s6, 2
s_lshr_b32 s7, s2, 6
s_add_u32 s4, s6, s7
s_lshr_b32 s5, s2, 3
s_and_b32 s5, s5, 7
v_lshrrev_b32 v20, 3, v0
v_and_b32 v21, 7, v0
v_bfe_u32 v22, v0, 4, 1
v_lshlrev_b32 v22, 2, v22
v_xor_b32 v23, v21, v22
v_lshlrev_b32 v23, 4, v23
v_lshl_add_u32 v2, v20, 10, v23
v_add_u32 v3, {7*1024}, v2
v_add_u32 v4, {14*1024}, v2
v_add_u32 v5, {21*1024}, v2
s_lshl_b32 s28, s3, 15
v_lshrrev_b32 v20, 5, v0
v_lshlrev_b32 v20, 2, v20
v_bfe_u32 v21, v0, 2, 2
v_add_u32 v20, v20, v21
v_lshlrev_b32 v20, 7, v20
v_bfe_u32 v21, v0, 4, 1
v_lshl_add_u32 v20, v21, 5, v20
v_and_b32 v21, 3, v0
v_lshl_add_u32 v20, v21, 3, v20
v_bfe_u32 v21, v0, 3, 1
v_lshl_add_u32 v6, v21, 6, v20
v_add_u32 v6, s28, v6
v_xor_b32 v7, 64, v6
s_waitcnt lgkmcnt(0)
""")
    mk_srd(p, SA, 56, WS_BYTES)
    mk_srd(p, SWO, 50, 4096 * 1024)
    mk_srd(p, SW2, 52, 1792 * 1024)
    mk_srd(p, SX, 48, 2048 * 1024)
    mk_srd(p, SO, 54, 2048 * 1024)
    p.e(f"""
s_mul_i32 s30, s4, {2*AF_KS*1024}
s_add_u32 s30, s30, {AF_OFF}
s_lshl_b32 s6, s3, 16
s_add_u32 s32, s30, s6
s_mul_i32 s6, s3, {28*1024}
s_add_u32 s6, s6, {256*1024}
s_add_u32 s30, s30, s6
s_lshl_b32 s7, s5, 7
s_mul_i32 s6, s3, {28*16*1024}
s_add_u32 s34, s6, s7
s_lshl_b32 s6, s3, 20
s_add_u32 s35, s6, s7
""")
    NST, DEP = 46, 6
    AR = 64
    WR = 32

    def req(st):
        out = []
        if st < 14:
            a0, w0, sw = f"s_add_u32 s36, s30, {st*2048}", f"s_add_u32 s38, s34, {st*32768}", SW2
        else:
            a0, w0, sw = f"s_add_u32 s36, s32, {(st-14)*2048}", f"s_add_u32 s38, s35, {(st-14)*32768}", SWO
        pre = [a0, w0, f"s_add_u32 m0, s28, {(st%8)*4096}", f"s_add_u32 s37, s36, {AF_KS*1024}"]
        for u in range(4):
            out.append(I(f"buffer_load_dwordx4 v{2+u}, {srd(sw)}, s38 offen offset:{u*1024} lds", tag=f"W{st}"))
        for s in range(2):
            for rb in range(2):
                out.append(I(f"buffer_load_dwordx4 {vr(AR+16*(st%8)+8*s+4*rb)}, v1, {srd(SA)}, s{36+rb} offen offset:{s*1024}", tag=f"A{st}"))
        return pre, out

    def rd(st):
        out = []
        for s in range(2):
            for blk in range(2):
                for j in range(2):
                    out.append(I(f"ds_read_b64_tr_b16 {vr(WR+16*(st%2)+8*s+4*blk+2*j,2)}, v{6+blk} offset:{(st%8)*4096+s*2048+j*1024}",
                                 tag=f"R{st}", needs=[f"W{st}"]))
        return out
    for st in range(DEP + 1):
        pre, out = req(st)
        p.e(pre); p.e(out)
    p.wait("W0")
    p.e(rd(0))
    mf = []
    for st in range(NST):
        for s in range(2):
            for blk in range(2):
                for rb in range(2):
                    d = ar(16 * (blk * 2 + rb), 16)
                    c = "0" if (st == 0 and s == 0) else d
                    mf.append(I(f"{MF} {d}, {vr(WR+16*(st%2)+8*s+4*blk)}, {vr(AR+16*(st%8)+8*s+4*rb)}, {c}", needs=[f"R{st}", f"A{st}"]))
    g = Gaps(mf)
    p.wait("R0", "A0", "W1")
    for st in range(NST):
        G = 8 * st
        if st + 1 < NST:
            r = rd(st + 1)
            for i in range(4):
                g.mem[G + i] += r[2 * i:2 * i + 2]
            tags = [f"R{st+1}", f"A{st+1}"]
            if st + 2 < NST:
                tags.append(f"W{st+2}")
            g.post[G + 7].append(WAIT(*tags))
        if st + DEP + 1 < NST:
            pre, out = req(st + DEP + 1)
            g.pre[G] += pre
            for i in range(8):
                g.mem[G + i].append(out[i])
    p.e(g.emit())
    p.e(f"""
v_and_b32 v20, 31, v0
v_mul_u32_u24 v20, 272, v20
v_lshrrev_b32 v21, 5, v0
v_lshl_add_u32 v20, v21, 4, v20
s_mul_i32 s6, s3, {64*272}
v_add_u32 v20, s6, v20
v_lshrrev_b32 v21, 2, v30
v_and_b32 v22, 3, v30
v_mul_u32_u24 v23, 272, v21
v_lshl_add_u32 v23, v22, 6, v23
v_lshlrev_b32 v21, 10, v21
v_lshl_add_u32 v21, v22, 5, v21
s_lshl_b32 s6, s4, 16
s_add_u32 s6, s6, s7
""")
    p.e(I(f"buffer_load_dwordx4 v[32:35], v21, {srd(SX)}, s6 offen", tag="x"))
    p.e(I(f"buffer_load_dwordx4 v[36:39], v21, {srd(SX)}, s6 offen offset:16", tag="x"))
    p.e("s_barrier")
    for blk in range(2):
        for rb in range(2):
            for a in range(4):
                p.e(I(f"ds_write_b128 v20, {ar(16*(blk*2+rb)+4*a)} offset:{rb*32*272 + blk*128 + a*32}", tag="pw"))
    p.wait("pw")
    p.e("s_barrier")
    for w in range(4):
        for i in range(4):
            p.e(I(f"ds_read_b128 {vr(64+16*w+4*i)}, v23 offset:{w*64*272 + 16*i}", tag=f"pr{w}"))
    p.wait("pr1")
    for i in range(16):
        p.e(f"v_add_f32 v{64+i}, v{64+i}, v{80+i}")
    p.wait("pr3")
    for i in range(16):
        p.e(f"v_add_f32 v{96+i}, v{96+i}, v{112+i}")
    p.wait("x")
    for i in range(8):
        p.e(f"v_lshlrev_b32 v40, 16, v{32+i}")
        p.e(f"v_and_b32 v41, 0xffff0000, v{32+i}")
        p.e(f"v_add_f32 v{64+2*i}, v{64+2*i}, v{96+2*i}")
        p.e(f"v_add_f32 v{65+2*i}, v{65+2*i}, v{97+2*i}")
        p.e(f"v_add_f32 v40, v40, v{64+2*i}")
        p.e(f"v_add_f32 v41, v41, v{65+2*i}")
        p.e(f"v_cvt_pk_bf16_f32 v{32+i}, v40, v41")
    p.e(f"buffer_store_dwordx4 v[32:35], v21, {srd(SO)}, s6 offen")
    p.e(f"buffer_store_dwordx4 v[36:39], v21, {srd(SO)}, s6 offen offset:16")
    p.e("L2_end:\ns_endpgm")
    l = resolve_waits(p.l)
    errs = lint(l, "k2")
    assert not errs, "\n".join(errs)
    return text_of(l)


KD = """.amdhsa_kernel {name}
  .amdhsa_next_free_vgpr {vgpr}
  .amdhsa_next_free_sgpr 102
  .amdhsa_accum_offset 256
  .amdhsa_group_segment_fixed_size 0
  .amdhsa_kernarg_size 104
  .amdhsa_user_sgpr_count 2
  .amdhsa_user_sgpr_kernarg_segment_ptr 1
  .amdhsa_system_sgpr_workgroup_id_x 1
.end_amdhsa_kernel
"""


def main():
    k1, k2 = kernel1(), kernel2()
    s = f"""; fused layernorm + projections + causal attention, then the output projection (generated by gen/gen.py)
; @launch kernel=attn_kernel grid=(256,1,1) block=(256,1,1) lds=163840
; @launch kernel=oproj_kernel grid=(256,1,1) block=(256,1,1) lds=131072
.amdgcn_target "amdgcn-amd-amdhsa--gfx950"
.text
.globl attn_kernel
.p2align 8
.type attn_kernel,@function
attn_kernel:
{k1}
.globl oproj_kernel
.p2align 8
.type oproj_kernel,@function
oproj_kernel:
{k2}
.section .rodata,"a"
.p2align 6
{KD.format(name="attn_kernel", vgpr=512)}
.p2align 6
{KD.format(name="oproj_kernel", vgpr=320)}
"""
    open(sys.argv[1], "w").write(s)


main()
```

```python
import re


class I:
    __slots__ = ("text", "tag", "needs", "kind")

    def __init__(self, text, tag=None, needs=()):
        self.text = text
        self.tag = tag
        self.needs = tuple(needs)
        op = text.split()[0] if text.split() else ""
        if op.startswith("ds_"):
            self.kind = "ds"
        elif op.startswith("buffer_") or op.startswith("global_"):
            self.kind = "vm"
        elif op.startswith("s_load") or op.startswith("s_memtime") or op.startswith("s_memrealtime"):
            self.kind = "sm"
        elif op == "WAIT":
            self.kind = "wait"
        elif op.endswith(":") or op.startswith(".") or op.startswith(";") or op == "":
            self.kind = "meta"
        else:
            self.kind = "op"


def WAIT(*tags):
    return I("WAIT", needs=tags)


class Prog:
    def __init__(self):
        self.l = []

    def e(self, x, tag=None, needs=()):
        if isinstance(x, I):
            self.l.append(x)
        elif isinstance(x, (list, tuple)):
            for y in x:
                self.e(y)
        else:
            for ln in x.strip("\n").split("\n"):
                ln = ln.strip()
                if ln:
                    self.l.append(I(ln, tag, needs))
        return self

    def wait(self, *tags):
        self.l.append(WAIT(*tags))


def resolve_waits(lst):
    out = []
    ds, vm = [], []
    seen = set()
    for ins in lst:
        if ins.kind == "wait":
            parts = []
            for name, q, mx in (("vmcnt", vm, 63), ("lgkmcnt", ds, 15)):
                idx = -1
                for i, t in enumerate(q):
                    if t in ins.needs:
                        idx = i
                if idx >= 0:
                    n = min(len(q) - 1 - idx, mx)
                    del q[: len(q) - n]
                    parts.append(f"{name}({n})")
            for t in ins.needs:
                assert t in seen, f"WAIT on unknown tag {t}"
            if parts:
                out.append(I("s_waitcnt " + " ".join(parts)))
            continue
        if ins.text.startswith("s_waitcnt"):
            m = re.search(r"vmcnt\((\d+)\)", ins.text)
            if m:
                n = int(m.group(1))
                if len(vm) > n:
                    del vm[: len(vm) - n]
            m = re.search(r"lgkmcnt\((\d+)\)", ins.text)
            if m:
                n = int(m.group(1))
                if len(ds) > n:
                    del ds[: len(ds) - n]
        for t in ins.needs:
            assert t in seen, f"needs unknown tag {t}: {ins.text}"
            assert t not in ds and t not in vm, f"unsatisfied need {t}: {ins.text}"
        if ins.kind == "ds":
            ds.append(ins.tag)
        elif ins.kind == "vm":
            vm.append(ins.tag)
            assert len(vm) <= 63 + 64, "vmcnt overflow"
        if ins.tag is not None:
            seen.add(ins.tag)
        out.append(ins)
    return out


class Gaps:
    def __init__(self, mf):
        self.mf = mf
        n = len(mf)
        self.pre = [[] for _ in range(n)]
        self.mem = [[] for _ in range(n)]
        self.val = [[] for _ in range(n)]
        self.post = [[] for _ in range(n)]

    def cost(self, g):
        c = 0
        for x in self.mem[g]:
            c += 8 if (x.kind == "vm") else 4
        for x in self.val[g]:
            c += vcost(x)
        c += 4 * len(self.post[g]) + 4 * max(0, len(self.pre[g]) - 1)
        return c

    def spread(self, items, g0, g1, cap=24):
        items = [x if isinstance(x, I) else I(x) for x in items]
        tot = sum(vcost(x) for x in items)
        free = [max(0, cap - self.cost(g)) for g in range(g0, g1)]
        sf = sum(free)
        scale = tot / sf if sf else 1.0
        acc = 0.0
        used = 0.0
        i = 0
        for k, g in enumerate(range(g0, g1)):
            acc += free[k] * scale
            while i < len(items) and (used + vcost(items[i]) / 2 <= acc or g == g1 - 1):
                self.val[g].append(items[i])
                used += vcost(items[i])
                i += 1
        assert i == len(items)

    def emit(self):
        out = []
        for g, m in enumerate(self.mf):
            if m is not None:
                out.append(m if isinstance(m, I) else I(m))
            for grp in (self.pre[g], self.mem[g], self.val[g], self.post[g]):
                for x in grp:
                    out.append(x if isinstance(x, I) else I(x))
        return out


TRANS = ("v_exp_f32", "v_log_f32", "v_rcp_f32", "v_rsq_f32", "v_sqrt_f32")


def vcost(x):
    t = x.text if isinstance(x, I) else x
    op = t.split()[0]
    if op in TRANS:
        return 8
    if op.startswith("buffer_") or op.startswith("global_"):
        return 16
    if op.startswith("ds_"):
        return 12
    return 4


_REG = re.compile(r"\b([vas])(\d+)\b|\b([vas])\[(\d+):(\d+)\]")


def regs(s):
    r = set()
    for m in _REG.finditer(s):
        if m.group(1):
            r.add((m.group(1), int(m.group(2))))
        else:
            for k in range(int(m.group(4)), int(m.group(5)) + 1):
                r.add((m.group(3), k))
    if re.search(r"\bvcc\b", s):
        r.add(("s", "vcc"))
    if re.search(r"\bm0\b", s):
        r.add(("s", "m0"))
    return r


def split_ops(text):
    text = text.split(";")[0].strip()
    p = text.split(None, 1)
    op = p[0]
    if len(p) == 1:
        return op, []
    return op, [x.strip() for x in p[1].split(",")]


def rw(text):
    op, a = split_ops(text)
    if op.startswith("v_mfma"):
        return "mfma", regs(a[0]), regs(a[1]) | regs(a[2]) | regs(a[3]), regs(a[3])
    if op.startswith("v_cmp"):
        return "valu", regs(a[0]), regs(",".join(a[1:])), None
    if op.startswith("v_permlane"):
        r = regs(a[0]) | regs(a[1])
        return "perm", r, r, None
    if op.startswith("v_readfirstlane") or op.startswith("v_readlane"):
        return "rdlane", regs(a[0]), regs(",".join(a[1:])), None
    if op.startswith("v_"):
        w = regs(a[0])
        r = regs(",".join(a[1:]))
        if op.startswith("v_fmac") or op.startswith("v_dot2c"):
            r |= w
        if op in ("v_add_co_u32", "v_addc_co_u32"):
            w |= regs(a[1])
        cls = "trans" if op.replace("_e32", "") in TRANS else "valu"
        if "row_" in text or "quad_perm" in text:
            cls = "dpp"
        return cls, w, r, None
    if op.startswith("ds_read"):
        return "ds", regs(a[0]), regs(a[1]), None
    if op.startswith("ds_write"):
        return "ds", set(), regs(",".join(a)), None
    if op.startswith("buffer_load") or op.startswith("global_load"):
        if text.rstrip().endswith("lds") or " lds" in text:
            return "dma", set(), regs(",".join(a)) | {("s", "m0")}, None
        return "vm", regs(a[0]), regs(",".join(a[1:])), None
    if op.startswith("buffer_store") or op.startswith("buffer_atomic"):
        return "vmst", set(), regs(",".join(a)), regs(a[0]) if "x4" in op or "x3" in op else set()
    if op.startswith("global_store"):
        return "vmst", set(), regs(",".join(a)), regs(a[1]) if "x4" in op or "x3" in op else set()
    if op.startswith("s_"):
        if op.startswith("s_cmp") or op.startswith("s_cbranch") or op in ("s_waitcnt", "s_barrier", "s_nop", "s_branch", "s_endpgm", "s_setprio", "s_sleep", "s_setpc_b64", "s_bitcmp1_b32"):
            return "salu", set(), regs(",".join(a)), None
        return "salu", regs(a[0]) if a else set(), regs(",".join(a[1:])), None
    if op.startswith("buffer_"):
        return "vm", set(), set(), None
    raise Exception("lint: unknown op " + text)


def lint(lst, name=""):
    t = 0
    last_mf = -100
    hist = []
    errs = []
    VAL = ("valu", "trans", "perm", "rdlane", "dpp")
    for ins in lst:
        if ins.kind in ("meta", "wait"):
            continue
        text = ins.text
        cls, w, r, ex = rw(text)
        if cls == "mfma":
            t = max(t, last_mf + 8)
        for (t0, c0, w0, r0, e0, x0) in hist[-40:]:
            d = t - t0 - 1
            need = 0
            vw0 = {x for x in w0 if x[0] in "va"}
            sw0 = {x for x in w0 if x[0] == "s"}
            if c0 in VAL and cls == "mfma" and vw0 & r:
                need = 2
            if c0 == "mfma":
                if cls in VAL and w0 & (r | w):
                    need = 12
                if cls in ("ds", "vm", "vmst", "dma") and w0 & (r | w):
                    need = 12
                if cls == "mfma":
                    op, a = split_ops(text)
                    if w0 & (regs(a[1]) | regs(a[2])):
                        need = 12
                    elif w0 & ex and w0 != ex:
                        need = 10
                if cls in VAL and e0 & w:
                    need = max(need, 7)
            if c0 == "trans" and cls in ("valu", "perm", "rdlane", "dpp") and vw0 & r:
                need = max(need, 1)
            if c0 in VAL and cls in ("perm", "dpp") and vw0 & r:
                need = max(need, 2)
            if c0 in VAL and cls == "rdlane" and vw0 & r:
                need = max(need, 1)
            if c0 in VAL and cls in VAL and sw0 & r:
                need = max(need, 2)
            if c0 in VAL and cls in ("vm", "vmst", "dma") and sw0 & r:
                need = max(need, 5)
            if c0 == "salu" and cls == "dma" and ("s", "m0") in w0:
                need = max(need, 1)
            if c0 == "vmst" and e0 and e0 & w:
                need = max(need, 2)
            if d < need:
                errs.append(f"[{name}] need {need} have {d}: '{x0}' -> '{text}'")
        hist.append((t, cls, w, r, ex, text))
        if cls == "mfma":
            last_mf = t
        op = text.split()[0]
        if op == "s_nop":
            t += int(text.split()[1]) + 1
        else:
            t += 1
    return errs


def text_of(lst):
    o = []
    for ins in lst:
        if ins.kind == "meta":
            o.append(ins.text)
        else:
            o.append("  " + ins.text)
    return "\n".join(o) + "\n"


def simulate(lst, verbose=False, taken=()):
    t = 0
    last_mf = -100
    valu_done = -100
    sgpr_done = -100
    gaps = []
    prev_trans = False
    pen = 0
    for ins in lst:
        if ins.kind == "meta":
            continue
        text = ins.text
        op = text.split()[0]
        if op == "WAIT":
            cls = "salu"
        else:
            cls, w, r, ex = rw(text)
        if cls == "mfma":
            t = max(t, last_mf + 32)
            if last_mf > -100:
                gaps.append(t - last_mf)
            last_mf = t
            t += 4
            prev_trans = False
            pen = 0
        elif cls in ("valu", "trans", "perm", "rdlane", "dpp"):
            t = max(t, last_mf + 8)
            if cls != "trans":
                t += pen
            pen = 0
            d = 8 if cls == "trans" else 4
            valu_done = t + d + 8
            if any(x[0] == "s" for x in w):
                sgpr_done = t + 24
            t += d
            prev_trans = cls == "trans"
        elif cls in ("ds",):
            t = max(t, valu_done) + 4
            prev_trans = False
        elif cls in ("vm", "vmst", "dma"):
            t = max(t, valu_done) + 8
            prev_trans = False
        else:
            t = max(t, sgpr_done)
            if prev_trans:
                pen = 4
            prev_trans = False
            if op == "s_nop":
                t += 4 * (int(text.split()[1]) + 1)
            elif op == "s_barrier":
                t += 8
            elif op == "s_branch":
                t += 20
            elif op.startswith("s_cbranch"):
                t += 24 if text.split()[1] in taken else 8
            else:
                t += 4
    return t, gaps
```

```python
import sys, struct
from asmlib import *

NAME = "parallel_sum__compressed_kv_cla__dense_activation_mish__prompt"
OPT = dict(stamp=0, thr=40, kvst=1, rot=1, nt=1, deep=1, cpf=1, wopf=1)
for a in sys.argv[2:]:
    k, v = a.split("=")
    OPT[k] = int(v)


KVF = ("", "sc1", "nt", "sc1 nt", "sc0 sc1")[OPT["kvst"]]


def f2u(x):
    return struct.unpack("<I", struct.pack("<f", x))[0]


MF = "v_mfma_f32_32x32x16_bf16"
XN_OFF = 0
KV_OFF = 2 << 20
AF_OFF = 34 << 20
AF_KS = 368
ST_OFF = 60 << 20
WS_BYTES = 268435456

sW, sH, sJ = "s3", "s4", "s5"
SRD_CKV, SRD_WUK, SRD_WUV, SRD_W1, SRD_WQ, SRD_WS, SRD_X, SRD_B1, SRD_DBG, SRD_ACT = (
    8, 12, 16, 20, 24, 28, 32, 36, 40, 44)
SRD_KV = 32


def srd(n):
    return f"s[{n}:{n+3}]"


def vr(b, n=4):
    return f"v[{b}:{b+n-1}]"


def ar(b, n=4):
    return f"a[{b}:{b+n-1}]"


vL16 = "v1"
VA_DMA, VW_DMA, VW1_DMA, VTR, VA_RD = 2, 6, 10, 14, 16
VTRW = (14, 24, 2)
WF, TP, ACC0, ACC1, BIAS = 32, 64, 96, 160, 224
LDS_A = 98304
LDS_KV = 32768


def mk_srd(p, n, lo, nbytes):
    p.e(f"s_mov_b32 s{n}, s{lo}")
    p.e(f"s_and_b32 s{n+1}, s{lo+1}, 0xffff")
    p.e(f"s_mov_b32 s{n+2}, {nbytes}")
    p.e(f"s_mov_b32 s{n+3}, 0x20000")


stamp_n = [0]


def stamp(p):
    if not OPT["stamp"]:
        return
    i = stamp_n[0]
    stamp_n[0] += 1
    p.e(f"s_memtime s[98:99]")
    p.e("s_waitcnt lgkmcnt(0)")
    p.e(f"v_writelane_b32 v31, s98, {i}")


def rstamp(p, lane):
    if not OPT["stamp"]:
        return
    p.e(f"s_memrealtime s[98:99]")
    p.e("s_waitcnt lgkmcnt(0)")
    p.e(f"v_writelane_b32 v31, s98, {lane}")


def stamp_flush(p):
    if not OPT["stamp"]:
        return
    p.e("s_lshl_b32 s98, s2, 2")
    p.e(f"s_add_u32 s98, s98, {sW}")
    p.e("s_lshl_b32 s98, s98, 8")
    p.e(f"s_add_u32 s98, s98, {ST_OFF}")
    p.e(f"v_lshrrev_b32 v30, 2, {vL16}")
    p.e(f"buffer_store_dword v31, v30, {srd(SRD_WS)}, s98 offen")


def k1_setup(p):
    p.e(f"""
s_cmp_ge_u32 s2, 256
s_cbranch_scc1 L1_end
s_load_dwordx16 s[48:63], s[0:1], 0
s_load_dwordx8 s[64:71], s[0:1], 64
s_load_dwordx2 s[72:73], s[0:1], 96
v_lshrrev_b32 v20, 6, v0
v_and_b32 v0, 63, v0
v_readfirstlane_b32 {sW}, v20
v_lshlrev_b32 {vL16}, 4, v0
s_and_b32 s6, s2, 7
s_lshr_b32 s7, s2, 6
s_lshl_b32 s7, s7, 3
s_add_u32 {sH}, s6, s7
s_lshr_b32 {sJ}, s2, 3
s_and_b32 {sJ}, {sJ}, 7
""")
    p.e(f"""
v_lshrrev_b32 v20, 3, v0
v_and_b32 v21, 7, v0
v_lshrrev_b32 v22, 4, v0
v_xor_b32 v23, v21, v22
v_lshlrev_b32 v23, 4, v23
v_lshl_add_u32 v{VA_DMA}, v20, 10, v23
v_xor_b32 v24, 64, v{VA_DMA}
v_add_u32 v{VA_DMA+1}, {7*1024}, v24
v_add_u32 v{VA_DMA+2}, {14*1024}, v{VA_DMA}
v_add_u32 v{VA_DMA+3}, {21*1024}, v24
v_and_b32 v22, 1, v22
v_lshlrev_b32 v22, 2, v22
v_xor_b32 v23, v21, v22
v_lshlrev_b32 v23, 4, v23
v_lshl_add_u32 v{VW_DMA}, v20, 13, v23
v_mul_u32_u24 v24, 3584, v20
v_add_u32 v{VW1_DMA}, v24, v23
""")
    for u in range(1, 4):
        p.e(f"v_add_u32 v{VW_DMA+u}, {u*(8*8192-1024)}, v{VW_DMA}")
        p.e(f"v_add_u32 v{VW1_DMA+u}, {u*(8*3584-1024)}, v{VW1_DMA}")
    p.e(f"""
v_lshrrev_b32 v20, 5, v0
v_lshlrev_b32 v20, 3, v20
v_bfe_u32 v21, v0, 2, 2
v_add_u32 v20, v20, v21
v_lshlrev_b32 v20, 7, v20
v_bfe_u32 v21, v0, 4, 1
v_lshl_add_u32 v20, v21, 5, v20
v_and_b32 v21, 3, v0
v_lshl_add_u32 v20, v21, 3, v20
v_bfe_u32 v21, v0, 3, 1
v_lshl_add_u32 v{VTR}, v21, 6, v20
v_xor_b32 v{VTR+1}, 64, v{VTR}
""")
    p.e(f"""
s_lshl_b32 s6, {sW}, 13
s_add_u32 s74, s6, {LDS_A}
v_and_b32 v20, 31, v0
v_lshlrev_b32 v20, 7, v20
v_add_u32 v20, s74, v20
v_bfe_u32 v21, v0, 1, 3
v_lshrrev_b32 v22, 5, v0
v_xor_b32 v21, v21, v22
v_lshl_add_u32 v{VA_RD}, v21, 4, v20
""")
    for s in range(1, 4):
        p.e(f"v_xor_b32 v{VA_RD+s}, {32*s}, v{VA_RD}")
    p.e("s_waitcnt lgkmcnt(0)")
    mk_srd(p, SRD_CKV, 50, 2048 * 1024)
    mk_srd(p, SRD_WUK, 54, 512 * 8192)
    mk_srd(p, SRD_X, 48, 2048 * 1024)
    p.e(f"""
s_lshl_b32 s75, {sJ}, 2
s_add_u32 s75, s75, {sW}
s_lshl_b32 s75, s75, 16
s_lshl_b32 s76, {sH}, 8
s_lshl_b32 s77, {sW}, 12
s_lshr_b32 s6, {sW}, 1
s_lshl_b32 s6, s6, 7
s_and_b32 s7, {sW}, 1
s_lshl_b32 s7, s7, 18
s_add_u32 s78, s76, s6
s_add_u32 s78, s78, s7
s_add_u32 s79, {sJ}, {sH}
s_and_b32 s79, s79, {7 if OPT["rot"] else 0}
s_lshl_b32 s100, s79, 19
s_lshl_b32 s101, s79, 7
""")


def a_dma(q):
    out = []
    for rb in range(2):
        for u in range(4):
            pre = []
            if u == 0 and rb == 0:
                pre = [f"s_add_u32 s80, s101, {q*128}", "s_and_b32 s80, s80, 0x3ff", "s_add_u32 s80, s80, s75",
                       f"s_add_u32 m0, s74, {(q%2)*32768}"]
            if u == 0 and rb == 1:
                pre = [f"s_add_u32 m0, s74, {(q%2)*32768 + 4096}", "s_add_u32 s80, s80, 32768"]
            if pre and pre[-1].startswith("s_add_u32 m0"):
                pre = [pre[-1]] + pre[:-1]
            out.append((pre, I(f"buffer_load_dwordx4 v{VA_DMA+u}, {srd(SRD_CKV)}, s80 offen offset:{u*1024} lds", tag=f"A{q}")))
    return out


def a_reads(q):
    out = []
    for s in range(4):
        for rb in range(2):
            ks = 4 * q + s
            out.append(I(f"ds_read_b128 {ar((rb*32+ks)*4)}, v{VA_RD+s} offset:{(q%2)*32768 + rb*4096}",
                         tag=f"Ar{ks}", needs=[f"A{q}"]))
    return out


CHUNKS = [("Vlo", SRD_WUV, 0), ("Vhi", SRD_WUV, 128), ("H", SRD_W1, 0), ("Qlo", SRD_WQ, 0), ("Qhi", SRD_WQ, 128)]
NSLAB = 28


if OPT["deep"]:
    W_ISSUE = [-1, -1, 0, 1, 2, 3, 4, 5, 6, 6, 6, 7, 7, 7, 8, 8, 9, 9, 10, 11, 17, 19, 20, 20, 21, 21, 22, 22]
else:
    W_ISSUE = [-1, -1] + list(range(26))
W_SLOT = []
_free_at = [-1] * 6 + [7, 7, 8, 8]
for _s in range(NSLAB):
    assert W_ISSUE[_s] <= max(_s - 2, -1)
    _c = [k for k in range(10) if _free_at[k] <= W_ISSUE[_s] and (_s < 24 or k < 4)]
    _k = max(_c) if 20 <= _s < 24 else min(_c, key=lambda k: (_free_at[k], k))
    W_SLOT.append(_k)
    _free_at[_k] = _s + 2
WNT = " nt" if OPT["nt"] else ""


def w_dma(pslab):
    out = []
    slot = W_SLOT[pslab] * 16384
    if pslab < 8:
        sr, va = SRD_WUK, VW_DMA
        so = [f"s_add_u32 s81, s100, {pslab<<19}", "s_and_b32 s81, s81, 0x3fffff", "s_add_u32 s81, s81, s78"]
    else:
        c, i = divmod(pslab - 8, 4)
        nm, sr, col = CHUNKS[c]
        if nm == "H":
            va = VW1_DMA
            so = [f"s_mov_b32 s81, s{64+i}"]
        else:
            va = VW_DMA
            so = [f"s_add_u32 s81, s{60+i}, {col}"]
    for u in range(4):
        pre = [f"s_add_u32 m0, s77, {slot}"] + so if u == 0 else []
        out.append((pre, I(f"buffer_load_dwordx4 v{va+u}, {srd(sr)}, s81 offen offset:{u*1024}{WNT} lds", tag=f"W{pslab}")))
    return out


def w_read(G):
    pslab = G // 32
    win, slot = divmod(W_SLOT[pslab] * 16384, 65536)
    if G < 256:
        ks, r = divmod(G, 8)
        blk, j = divmod(r, 2)
        off = slot + (blk // 2) * 8192 + (ks % 4) * 2048 + j * 512
        dst = WF + 16 * (ks % 2) + 4 * blk + 2 * j
    else:
        ks, r = divmod((G - 256) % 128, 4)
        blk, j = divmod(r, 2)
        off = slot + (ks % 8) * 2048 + j * 512
        dst = WF + 8 * (ks % 4) + 4 * blk + 2 * j
    return I(f"ds_read_b64_tr_b16 {vr(dst,2)}, v{VTRW[win] + blk % 2} offset:{off}", tag=f"Wr{G//4}")


def k1_ln(p):
    p.e(f"""
v_and_b32 v20, 7, v0
v_lshlrev_b32 v21, 4, v20
s_lshl_b32 s6, {sW}, 2
v_add_u32 v22, s6, v21
""")
    p.wait("X")
    for i in range(8):
        p.e(f"v_and_b32 v{41+2*i}, 0xffff0000, v{32+i}")
        p.e(f"v_lshlrev_b32 v{40+2*i}, 16, v{32+i}")

    def reduce(v, slot):
        p.e(f"""
s_nop 1
v_add_f32_dpp {v}, {v}, {v} row_ror:8 row_mask:0xf bank_mask:0xf
v_mov_b32 v24, {v}
s_nop 1
v_permlane16_swap_b32 {v}, v24
v_add_f32 {v}, {v}, v24
v_mov_b32 v24, {v}
s_nop 1
v_permlane32_swap_b32 {v}, v24
v_add_f32 {v}, {v}, v24
""")
        p.e(I(f"ds_write_b32 v22, {v} offset:{49152 + slot*128}", tag=f"lnw{slot}"))
        p.wait(f"lnw{slot}")
        p.e("s_barrier")
        p.e(I(f"ds_read_b128 v[24:27], v21 offset:{49152 + slot*128}", tag=f"lnr{slot}"))
        p.wait(f"lnr{slot}")
        p.e(f"""
v_add_f32 v24, v24, v25
v_add_f32 v26, v26, v27
v_add_f32 {v}, v24, v26
v_mul_f32 {v}, 0x{f2u(1/512):x}, {v}
""")

    p.e("v_add_f32 v23, v40, v41")
    for i in range(2, 16):
        p.e(f"v_add_f32 v23, v23, v{40+i}")
    reduce("v23", 0)
    p.e("v_sub_f32 v29, v40, v23")
    p.e("v_mul_f32 v28, v29, v29")
    for i in range(1, 16):
        p.e(f"v_sub_f32 v29, v{40+i}, v23")
        p.e(f"v_fmac_f32 v28, v29, v29")
    reduce("v28", 1)
    p.e(f"""
v_cvt_pk_bf16_f32 v24, v23, v28
v_lshlrev_b32 v23, 16, v24
v_and_b32 v28, 0xffff0000, v24
v_add_f32 v28, 0x{f2u(1e-5):x}, v28
v_cvt_pk_bf16_f32 v24, v28, v28
v_lshlrev_b32 v28, 16, v24
v_sqrt_f32 v28, v28
s_nop 0
v_cvt_pk_bf16_f32 v24, v28, v28
v_lshlrev_b32 v28, 16, v24
v_rcp_f32 v28, v28
""")
    for i in range(16):
        p.e(f"v_sub_f32 v{40+i}, v{40+i}, v23")
    for i in range(8):
        p.e(f"v_cvt_pk_bf16_f32 v24, v{40+2*i}, v{41+2*i}")
        p.e(f"v_lshlrev_b32 v25, 16, v24")
        p.e(f"v_and_b32 v26, 0xffff0000, v24")
        p.e(f"v_mul_f32 v25, v25, v28")
        p.e(f"v_mul_f32 v26, v26, v28")
        p.e(f"v_cvt_pk_bf16_f32 v{32+i}, v25, v26")
    p.e(f"""
v_lshrrev_b32 v24, 3, v0
v_lshl_add_u32 v24, v24, 9, v21
s_lshr_b32 s6, s2, 2
s_lshl_b32 s6, s6, 15
s_and_b32 s7, s2, 3
s_lshl_b32 s7, s7, 7
s_add_u32 s6, s6, s7
s_lshl_b32 s7, {sW}, 13
s_add_u32 s6, s6, s7
s_add_u32 s7, s6, 4096
""")
    p.e(I(f"buffer_store_dwordx4 v[32:35], v24, {srd(SRD_WS)}, s6 offen sc1", tag="XNst"))
    p.e(I(f"buffer_store_dwordx4 v[36:39], v24, {srd(SRD_WS)}, s7 offen sc1", tag="XNst"))
    p.e("s_nop 1")


def poll_slow(out, label, back, where, want):
    out.e(f"""
{label}:
s_mov_b32 s96, 0x40000
{label}_l:
s_sleep 2
buffer_load_dword v29, off, {srd(SRD_DBG)}, {where} sc1
s_waitcnt vmcnt(0)
v_readfirstlane_b32 s97, v29
s_sub_u32 s96, s96, 1
s_cmp_eq_u32 s96, 0
s_cbranch_scc1 {back}
s_cmp_lt_u32 s97, {want}
s_cbranch_scc1 {label}_l
s_branch {back}
""")


def accb(buf, blk2, rb):
    return buf + (blk2 * 2 + rb) * 16


def k1_proj(p, ool):
    xl = f"""
v_and_b32 v20, 7, v0
v_lshrrev_b32 v21, 3, v0
v_lshlrev_b32 v21, 4, v21
v_lshl_add_u32 v20, v20, 10, v21
s_lshl_b32 s6, s2, 13
s_lshl_b32 s7, {sW}, 8
s_add_u32 s6, s6, s7
"""
    if OPT["cpf"]:
        p.e(f"""
s_getpc_b64 s[96:97]
L1_pc:
s_lshr_b32 s6, s2, 3
s_lshl_b32 s6, s6, 11
v_and_b32 v20, 15, v0
v_lshl_add_u32 v20, v20, 7, s6
v_min_u32 v20, L1_end-L1_pc, v20
s_cmp_lg_u32 {sW}, 0
s_cbranch_scc1 L1_nocpf
global_load_dword v30, v20, s[96:97]
L1_nocpf:
""")
        p.l[-2].kind = "op"
    p.e(xl)
    p.e(I(f"buffer_load_dwordx4 v[32:35], v20, {srd(SRD_X)}, s6 offen{WNT}", tag="X"))
    p.e(I(f"buffer_load_dwordx4 v[36:39], v20, {srd(SRD_X)}, s6 offen offset:128{WNT}", tag="X"))

    def issue(lst):
        for pre, ins in lst:
            p.e(pre)
            p.e(ins)
    issue(a_dma(0)); issue(w_dma(0))
    mk_srd(p, SRD_WS, 72, WS_BYTES)
    mk_srd(p, SRD_WUV, 56, 512 * 8192)
    mk_srd(p, SRD_WQ, 52, 512 * 8192)
    mk_srd(p, SRD_W1, 62, 512 * 3584)
    mk_srd(p, SRD_B1, 64, 3584)
    mk_srd(p, SRD_DBG, 70, 256)
    mk_srd(p, SRD_ACT, 72, WS_BYTES)
    p.e(f"""
s_cmp_lt_u32 {sH}, 28
s_cselect_b32 s{SRD_W1+2}, s{SRD_W1+2}, 0
s_cselect_b32 s{SRD_ACT+2}, s{SRD_ACT+2}, 0
s_lshl_b32 s82, {sH}, 2
s_lshl_b32 s83, {sH}, 7
s_lshl_b32 s6, {sH}, 6
s_lshl_b32 s7, {sJ}, 3
s_add_u32 s6, s6, s7
s_lshl_b32 s7, {sW}, 1
s_add_u32 s6, s6, s7
s_lshl_b32 s6, s6, 14
s_add_u32 s84, s6, {KV_OFF}
""")
    for i in range(1, 8):
        p.e(f"s_add_u32 s{84+i}, s84, {i*4096}")
    p.e(f"s_lshl_b32 s6, s79, 1\ns_add_u32 s6, s6, {sW}\ns_lshl_b32 s6, s6, 5")
    for i in range(4):
        p.e(f"""
s_add_u32 s7, s6, {128*i}
s_and_b32 s7, s7, 511
s_lshl_b32 s{60+i}, s7, 13
s_add_u32 s{60+i}, s{60+i}, s76
s_mul_i32 s{64+i}, s7, 3584
s_add_u32 s{64+i}, s{64+i}, s83
""")
    p.e("s_lshl_b32 s70, s79, 12")
    p.e(f"""
s_lshl_b32 s48, {sJ}, 2
s_add_u32 s48, s48, {sW}
s_sub_u32 s49, 63, s48
s_lshl_b32 s92, s48, 15
s_lshl_b32 s93, s49, 15
s_mul_i32 s50, s48, {AF_KS*1024}
s_mul_i32 s51, s49, {AF_KS*1024}
s_add_u32 s50, s50, {AF_OFF}
s_add_u32 s51, s51, {AF_OFF}
s_lshl_b32 s6, {sH}, 12
s_add_u32 s6, s6, {256*1024}
s_add_u32 s94, s50, s6
s_add_u32 s95, s51, s6
""")
    k1_ln(p)
    issue(a_dma(1)); issue(w_dma(1))
    p.e(f"""
s_cmp_eq_u32 {sW}, 0
s_cselect_b32 s6, 0, 0x1000
v_lshl_add_u32 v26, v0, 12, s6
v_mov_b32 v28, 1
v_add_u32 v{VTRW[1]}, 0x10000, v{VTR}
v_add_u32 v{VTRW[1]+1}, 0x10000, v{VTR+1}
""")
    stamp(p)
    p.wait("A0")
    for x in a_reads(0):
        p.e(x)
    p.wait("W0")
    p.e("s_barrier")
    for G in range(8):
        p.e(w_read(G))
    p.wait("Wr0", "Ar0", "Ar3")

    mf = []
    for ks in range(32):
        for blk in range(4):
            for rb in range(2):
                d = accb(ACC0 if blk < 2 else ACC1, blk % 2, rb)
                c = "0" if ks == 0 else vr(d, 16)
                G = len(mf)
                mf.append(I(f"{MF} {vr(d,16)}, {vr(WF+16*(ks%2)+4*blk)}, {ar((rb*32+ks)*4)}, {c}",
                            needs=[f"Wr{G//4}", f"Ar{ks}"]))
    for ci, (nm, _, _) in enumerate(CHUNKS):
        buf = ACC0 if ci % 2 == 0 else ACC1
        for ks in range(32):
            for blk in range(2):
                for rb in range(2):
                    d = accb(buf, blk, rb)
                    c = vr(d, 16)
                    if ks == 0:
                        c = vr(BIAS + 16 * blk, 16) if nm == "H" else "0"
                    wf, af = vr(WF + 8 * (ks % 4) + 4 * blk), ar((rb * 32 + ks) * 4)
                    a, b = (af, wf) if nm[0] == "V" else (wf, af)
                    G = len(mf)
                    nd = [f"Wr{G//4}"]
                    if nm == "H":
                        nd.append(f"XN{ks}")
                    mf.append(I(f"{MF} {vr(d,16)}, {a}, {b}, {c}", needs=nd))
    NG = len(mf)
    g = Gaps(mf)
    for G in range(8, NG):
        g.mem[G - 8].append(w_read(G))
    for G in range(4, NG, 4):
        tags = [f"Wr{G//4}"]
        if G < 256 and G % 32 == 0:
            tags += [f"Ar{G//8 + 3}"]
        if 512 <= G < 640:
            tags += [f"XN{(G-512)//4}"]
        g.pre[G - 1].append(WAIT(*tags))

    def place(lst, g0, step):
        for i, (pre, ins) in enumerate(lst):
            G = g0 + i * step
            for x in pre:
                g.post[G - 1].append(x)
            g.mem[G].append(ins)

    KVSIG = 22
    for ps in range(0, NSLAB):
        G = 32 * ps - 9
        if ps > 0:
            tags = [f"W{ps}"]
            if ps == 2:
                tags.append("XNst")
            if ps == KVSIG:
                tags.append("KVst")
            g.post[G].append(WAIT(*tags))
            g.post[G].append("s_barrier")
        lst = []
        for sl in range(NSLAB):
            if W_ISSUE[sl] == ps:
                lst += w_dma(sl)
        if ps == 0:
            place(a_dma(2) + lst, 1, 2)
        elif ps < 6:
            place(lst, G + 2 + (2 if ps == 1 else 0), 2 if ps > 1 else 1)
            place(a_dma(ps + 2), 32 * ps + 1, 3)
        elif lst:
            place(lst, G + 2, 2 if len(lst) > 8 else 3)
    for q in range(1, 8):
        G = 32 * q - 14
        g.post[G - 1].append(WAIT(f"A{q}"))
        for i, x in enumerate(a_reads(q)):
            g.mem[G + i].append(x)
    g.val[200] += [I(f"v_add_u32 v{VTRW[2]}, 0x20000, v{VTR}"), I(f"v_add_u32 v{VTRW[2]+1}, 0x20000, v{VTR+1}")]
    g.mem[32 * 2 - 8].append(I(f"buffer_atomic_add v28, v26, {srd(SRD_DBG)}, 0 offen offset:128"))
    g.mem[32 * KVSIG - 8].append(I(f"buffer_atomic_add v28, v26, {srd(SRD_DBG)}, s82 offen"))

    def kv_store(src, rb, f):
        return I(f"buffer_store_dwordx4 {vr(src)}, {vL16}, {srd(SRD_WS)}, s{84+rb*4+f//4} offen offset:{(f%4)*1024} {KVF}", tag="KVst")

    def cvt8(dst, src):
        return [f"v_cvt_pk_bf16_f32 v{dst+c}, v{src+2*c}, v{src+2*c+1}" for c in range(8)]

    it = []
    for i in range(4):
        it += cvt8(TP + 8 * i, ACC0 + 16 * i)
    for n, x in enumerate(it):
        g.val[250 + (n + 2) // 5].append(I(x))
    tp_st = []
    for i in range(4):
        blk, rb = divmod(i, 2)
        for t in range(2):
            tp_st.append(kv_store(TP + 8 * i + 4 * t, rb, 2 * blk + t))

    def epi_inplace(buf, G0, fidx, extra):
        st = []
        for i in range(4):
            blk, rb = divmod(i, 2)
            b = buf + 16 * i
            for n, x in enumerate(cvt8(b, b)):
                g.val[G0 + 3 + 2 * i + n // 4].append(I(x))
            for t in range(2):
                st.append(kv_store(b + 4 * t, rb, fidx(blk, t)))
        st = extra[:1] + st + extra[1:]
        for n, x in enumerate(st):
            g.mem[G0 + 4 + (n * 122) // len(st)].append(x)
    epi_inplace(ACC1, 256, lambda blk, t: 2 * (blk + 2) + t, tp_st[:4])
    epi_inplace(ACC0, 384, lambda blk, t: 8 + 4 * t + blk, tp_st[4:6])
    epi_inplace(ACC1, 512, lambda blk, t: 8 + 4 * t + blk + 2, tp_st[6:])
    g.val[340].append(I("v_lshrrev_b32 v20, 5, v0"))
    g.val[340].append(I("v_lshlrev_b32 v20, 3, v20"))
    for i in range(8):
        g.mem[342 + 2 * i].append(I(f"buffer_load_dwordx2 {vr(BIAS+4*i+2,2)}, v20, {srd(SRD_B1)}, s83 offen offset:{16*i}", tag="B1"))
    g.post[439].append(WAIT("B1"))
    for i in range(8):
        b = BIAS + 4 * i
        g.val[440 + i] += [I(f"v_lshlrev_b32 v{b}, 16, v{b+2}", needs=["B1"]), I(f"v_and_b32 v{b+1}, 0xffff0000, v{b+2}"),
                           I(f"v_lshlrev_b32 v{b+2}, 16, v{b+3}"), I(f"v_and_b32 v{b+3}, 0xffff0000, v{b+3}")]
    g.mem[338].append(I(f"buffer_load_dword v29, off, {srd(SRD_DBG)}, 0 offset:128 sc1", tag="pollLN"))
    g.post[380].append(WAIT("pollLN"))
    g.val[381].append(I("v_readfirstlane_b32 s97, v29", needs=["pollLN"]))
    g.post[382] += ["s_cmp_lt_u32 s97, 256", "s_cbranch_scc1 L1_pollLN", "L1_pollLN_back:"]
    poll_slow(ool, "L1_pollLN", "L1_pollLN_back", "0 offset:128", 256)
    for i in range(64):
        ks, rb = divmod(i, 2)
        G = 388 + (33 * i) // 10
        if i % 8 == 0:
            g.post[G - 1] += ["s_add_u32 s68, s92, s70", "s_add_u32 s69, s93, s70"]
            g.post[G] += ["s_add_u32 s70, s70, 4096", "s_and_b32 s70, s70, 0x7fff"]
        g.mem[G].append(I(f"buffer_load_dwordx4 {ar((rb*32+ks)*4)}, {vL16}, {srd(SRD_WS)}, s{68+rb} offen offset:{(ks%4)*1024} sc1", tag=f"XN{ks}"))
    it = []
    LOG2E = f"0x{f2u(1.4426950408889634):x}"
    for i in range(4):
        blk, rb = divmod(i, 2)
        b = ACC0 + 16 * i
        for c in range(8):
            x0, x1 = b + 2 * c, b + 2 * c + 1
            it += [f"v_mul_f32 v20, {LOG2E}, v{x0}", f"v_mul_f32 v21, {LOG2E}, v{x1}",
                   "v_exp_f32 v20, v20", "v_exp_f32 v21, v21",
                   "v_add_f32 v22, 2.0, v20", "v_add_f32 v23, 2.0, v21",
                   "v_fma_f32 v20, v20, v22, 2.0", "v_fma_f32 v21, v21, v23, 2.0",
                   "v_rcp_f32 v20, v20", "v_rcp_f32 v21, v21",
                   "v_fma_f32 v20, v20, -2.0, 1.0", "v_fma_f32 v21, v21, -2.0, 1.0",
                   f"v_mul_f32 v20, v20, v{x0}", f"v_mul_f32 v21, v21, v{x1}",
                   f"v_cvt_pk_bf16_f32 v{b+c}, v20, v21"]
            if c % 4 == 3:
                t = c // 4
                it.append(I(f"buffer_store_dwordx4 {vr(b+4*t)}, {vL16}, {srd(SRD_ACT)}, s{94+rb} offen offset:{(2*blk+t)*1024}"))
    g.spread(it, 640 + 2, 768 - 1)
    QS = f"0x{f2u(1.4426950408889634 / 128 ** 0.5):x}"

    def q_epi(buf, dst):
        it = []
        for i in range(4):
            blk, rb = divmod(i, 2)
            b = buf + 16 * i
            for c in range(8):
                it += [f"v_mul_f32 v{b+2*c}, {QS}, v{b+2*c}", f"v_mul_f32 v{b+2*c+1}, {QS}, v{b+2*c+1}",
                       f"v_cvt_pk_bf16_f32 v{dst+16*rb+8*blk+c}, v{b+2*c}, v{b+2*c+1}"]
        return it
    for ks in range(31):
        for r in range(4):
            g.val[768 + 4 * (ks + 1) + r].append(I(f"v_accvgpr_write_b32 a{4*ks+r}, 0"))
    g.spread(q_epi(ACC1, TP), 768 + 2, 768 + 50)
    g.mem[776].append(I(f"buffer_load_dword v29, off, {srd(SRD_DBG)}, s82 sc1", tag="pollKV"))
    kv = [f"s_lshl_b32 s6, {sH}, 20", f"s_add_u32 s6, s6, s77", f"s_add_u32 s6, s6, {KV_OFF}",
          f"s_add_u32 s{SRD_KV}, s72, s6", f"s_addc_u32 s{SRD_KV+1}, s73, 0", f"s_and_b32 s{SRD_KV+1}, s{SRD_KV+1}, 0xffff",
          f"s_mov_b32 s{SRD_KV+2}, 0x100000", f"s_add_u32 s52, s77, {LDS_KV}"]
    g.post[780] += kv[:3]
    g.post[781] += kv[3:6]
    g.post[782] += kv[6:]
    g.post[810].append(WAIT("pollKV"))
    g.val[811].append(I("v_readfirstlane_b32 s97, v29", needs=["pollKV"]))
    g.post[812] += ["s_cmp_lt_u32 s97, 8", "s_cbranch_scc1 L1_pollKV", "L1_pollKV_back:"]
    poll_slow(ool, "L1_pollKV", "L1_pollKV_back", "s82", 8)

    def kv_dma(n):
        out = []
        for u in range(4):
            pre = [f"s_add_u32 m0, s52, {((n+2)%8)*16384}", f"s_mov_b32 s80, {n*16384}"] if u == 0 else []
            out.append((pre, I(f"buffer_load_dwordx4 {vL16}, {srd(SRD_KV)}, s80 offen offset:{u*1024} sc1 lds", tag=f"KV{n}")))
        return out
    for n in range(6):
        place(kv_dma(n), 816 + 12 * n, 3)
    if OPT["stamp"]:
        for G in (255, 383, 511, 639, 767):
            q = Prog(); stamp(q); g.post[G] += q.l
    p.e(g.emit())
    stamp(p)
    p.wait("KV0")
    p.e("s_barrier")
    p.e(f"v_add_u32 v{vVa}, 0x8000, {vL16}")
    for r in range(4):
        p.e(f"v_accvgpr_write_b32 a{124+r}, 0")
    for k in range(8):
        p.e(I(f"ds_read_b128 {ar(KF+4*k)}, v{vVa} offset:{LDS_KV + k*1024}", tag="K0", needs=["KV0"]))
    issue(kv_dma(6))
    if OPT["wopf"]:
        p.e(f"""
s_load_dwordx2 s[8:9], s[0:1], 40
s_load_dwordx2 s[12:13], s[0:1], 72
s_lshl_b32 s6, s2, 1
s_add_u32 s6, s6, {sW}
s_lshl_b32 s6, s6, 13
s_mul_i32 s7, s2, 7168
s_cmp_lt_u32 {sW}, 2
s_cselect_b32 s6, s6, s7
s_mov_b32 s10, {4096*1024}
s_cselect_b32 s10, s10, {1792*1024}
s_waitcnt lgkmcnt(0)
s_cselect_b32 s8, s8, s12
s_cselect_b32 s9, s9, s13
s_and_b32 s9, s9, 0xffff
s_cmp_eq_u32 {sW}, 3
s_cselect_b32 s10, 0, s10
v_lshlrev_b32 v20, 7, v0
""")
        p.e(I(f"buffer_load_dword v30, v20, s[8:11], s6 offen", tag="wopf"))
    p.e(q_epi(ACC0, BIAS))
    return


S0, S1, EX, P0, P1, NMA, NMB, ET = 96, 112, 128, 144, 152, 160, 176, 192
OA, OB, KF, VF = 0, 64, 128, 160
vKa, vVa, vMask, vTs, vLA, vLB, vThr, vNinf, vK0 = 2, 3, 4, 5, 6, 7, 8, 9, 10
sV, sK, sCA, sCB = "s53", "s54", "s55", "s56"
MASKS = 64


def qfrag(blk, k):
    return (TP + 16 * blk + 4 * k) if k < 4 else (BIAS + 16 * blk + 4 * (k - 4))


class Job:
    def __init__(self, blk, par):
        self.blk = blk
        self.S = (S0, S1)[par]
        self.P = (P0, P1)[par]
        self.NM = (NMA, NMB)[blk]
        self.O = (OA, OB)[blk]
        self.L = (vLA, vLB)[blk]


def sm_ops(j):
    e = lambda r: f"v_exp_f32 v{EX+r}, v{j.S+r}"
    a = lambda r: (f"v_add_f32 v{vTs}, v{EX}, v{EX+1}" if r == 1 else f"v_add_f32 v{vTs}, v{vTs}, v{EX+r}")
    c = lambda i: f"v_cvt_pk_bf16_f32 v{j.P+i}, v{EX+2*i}, v{EX+2*i+1}"
    first = {9: [e(0), e(1)], 10: [e(2), e(3), a(1)], 11: [e(4), a(2), a(3), c(0)], 12: [e(5), a(4), c(1)],
             13: [e(6), a(5)], 14: [e(7), a(6), c(2)], 15: [e(8), a(7), c(3)]}
    second = {0: [e(9), a(8)], 1: [e(10), a(9), c(4)], 2: [e(11), a(10)], 3: [e(12), a(11), c(5)],
              4: [e(13), e(14), a(12)], 5: [e(15), a(13), a(14), c(6)],
              6: [a(15), c(7), f"v_cmp_nle_f32 vcc, v{vTs}, v{vThr}"]}
    return first, second


def qk_mf(j, c0=None):
    out = []
    for k in range(8):
        c = (vr(j.NM, 16) if c0 is None else c0) if k == 0 else vr(j.S, 16)
        out.append(f"{MF} {vr(j.S,16)}, {ar(KF+4*k)}, {vr(qfrag(j.blk,k))}, {c}")
    return out


def pv_mf(j):
    out = []
    for t in range(2):
        for d in range(4):
            o = ar(j.O + 16 * d, 16)
            out.append(f"{MF} {o}, {ar(VF+4*(4*t+d))}, {vr(j.P+4*t)}, {o}")
    return out


def rowmax(S, dst, tmp):
    l = [f"v_max3_f32 v{dst}, v{S}, v{S+1}, v{S+2}"]
    for r in range(3, 15, 2):
        l.append(f"v_max3_f32 v{dst}, v{dst}, v{S+r}, v{S+r+1}")
    l += [f"v_max_f32 v{dst}, v{dst}, v{S+15}", f"v_mov_b32 v{tmp}, v{dst}", "s_nop 1",
          f"v_permlane32_swap_b32 v{dst}, v{tmp}", f"v_max_f32 v{dst}, v{dst}, v{tmp}"]
    return l


def rare(ool, name, cur, nxt):
    q = Prog()
    q.e(f"L1_rare_{name}:")
    q.e("s_nop 15")
    q.e(rowmax(cur.S, 20, 21))
    q.e("v_max_f32 v20, 0, v20")
    q.e("v_exp_f32 v21, -v20")
    for r in range(16):
        q.e(f"v_sub_f32 v{cur.NM+r}, v{cur.NM+r}, v20")
        q.e(f"v_sub_f32 v{cur.S+r}, v{cur.S+r}, v20")
        if nxt is not None and nxt.blk == cur.blk:
            q.e(f"v_sub_f32 v{nxt.S+r}, v{nxt.S+r}, v20")
    q.e(f"v_mul_f32 v{cur.L}, v{cur.L}, v21")
    for r in range(64):
        q.e(f"v_accvgpr_read_b32 v22, a{cur.O+r}")
        q.e(f"v_mul_f32 v22, v22, v21")
        q.e(f"v_accvgpr_write_b32 a{cur.O+r}, v22")
    f, s = sm_ops(cur)
    for G in list(range(9, 16)) + list(range(0, 7)):
        for x in (f.get(G) or s.get(G)):
            if not x.startswith("v_cmp"):
                q.e(x)
    q.e("s_nop 1")
    q.e(f"s_branch L1_back_{name}")
    errs = lint(q.l, "rare" + name)
    assert not errs, errs
    ool.e(q.l)


def step(ool, name, cur, nxt, rdV, rdK, kadd, w3, extra=None):
    mf = (qk_mf(nxt) if nxt else [None] * 8) + pv_mf(cur)
    g = Gaps(mf)
    _, second = sm_ops(cur)
    for G, l in second.items():
        g.val[G] += l
    if nxt:
        first, _ = sm_ops(nxt)
        for G, l in first.items():
            g.val[G] += l
    g.post[7] += [f"s_cbranch_vccnz L1_rare_{name}", f"L1_back_{name}:"]
    rare(ool, name, cur, nxt)
    g.val[8].append(f"v_add_f32 v{cur.L}, v{cur.L}, v{vTs}")
    g.pre[3].append(f"s_waitcnt lgkmcnt({w3})")
    if rdV:
        for f in range(8):
            g.mem[f].append(f"ds_read_b128 {ar(VF+4*f)}, v{vVa} offset:{LDS_KV+8192+1024*f}")
        g.pre[7].append("s_waitcnt lgkmcnt(3)")
        g.pre[11].append("s_waitcnt lgkmcnt(%d)" % (3 if rdK else 0))
        g.pre[0].append("s_waitcnt vmcnt(12)")
        g.post[0].append("s_barrier")
        if nxt:
            for u, G in enumerate((2, 7, 8, 13)):
                g.mem[G].append(f"buffer_load_dwordx4 {vL16}, {srd(SRD_KV)}, {sV} offen offset:{u*1024} sc1 lds")
            g.pre[14].append(f"s_and_b32 s6, {sV}, 0x1c000")
            g.post[14].append(f"s_add_u32 {sV}, {sV}, 0x4000")
            g.post[15].append(f"s_add_u32 m0, s6, s52")
            g.val[15].insert(0, f"v_and_or_b32 v{vVa}, {sV}, v{vMask}, {vL16}")
    if rdK:
        g.pre[5].append(f"s_add_u32 {sK}, {sK}, 0x4000")
        g.val[7].append(f"v_and_or_b32 v{vKa}, {sK}, v{vMask}, {vL16}")
        for k in range(8):
            g.mem[8 + k].append(f"ds_read_b128 {ar(KF+4*k)}, v{vKa} offset:{LDS_KV+1024*k}")
        g.pre[15].append("s_waitcnt lgkmcnt(3)")
    if extra:
        extra(g)
    return g.emit()


def mask_ops(NM):
    return [f"v_cndmask_b32 v{NM+r}, v{NM+r}, v{vNinf}, s[{MASKS+2*r}:{MASKS+2*r+1}]" for r in range(16)] + ["s_nop 1"]


def epilogue(p, blk, bar):
    O, L = (OA, vLA) if blk == 0 else (OB, vLB)
    p.e(f"""
v_mov_b32 v20, v{L}
s_lshl_b32 s6, {sH}, 13
s_add_u32 s6, s6, s{50+blk}
v_permlane32_swap_b32 v{L}, v20
v_add_f32 v20, v{L}, v20
v_rcp_f32 v20, v20
s_add_u32 s7, s6, 4096
""")
    for d in range(4):
        b = ET + 16 * (d % 2)
        for r in range(16):
            p.e(f"v_accvgpr_read_b32 v{b+r}, a{O+16*d+r}")
        for c in range(8):
            p.e(f"v_mul_f32 v{b+2*c}, v{b+2*c}, v20")
            p.e(f"v_mul_f32 v{b+2*c+1}, v{b+2*c+1}, v20")
            p.e(f"v_cvt_pk_bf16_f32 v{b+c}, v{b+2*c}, v{b+2*c+1}")
        for t in range(2):
            f = 2 * d + t
            p.e(f"buffer_store_dwordx4 {vr(b+4*t)}, {vL16}, {srd(SRD_WS)}, s{6+f//4} offen offset:{(f%4)*1024}")
        if d in bar:
            bar[d](p)


def k1_attn(p, ool):
    A0, B1j, B0j = Job(0, 0), Job(1, 1), Job(1, 0)
    for r in range(16):
        a, b = divmod(r, 4)
        m = 0
        for l in range(64):
            if 8 * a + 4 * (l // 32) + b > l % 32:
                m |= 1 << l
        p.e(f"s_mov_b32 s{MASKS+2*r}, 0x{m & 0xffffffff:x}")
        p.e(f"s_mov_b32 s{MASKS+2*r+1}, 0x{m >> 32:x}")
    p.e(f"""
v_mov_b32 v{vMask}, 0x1c000
v_mov_b32 v{vLA}, 0
v_mov_b32 v{vLB}, 0
v_mov_b32 v{vThr}, 0x{f2u(2.0**OPT['thr']):x}
v_mov_b32 v{vNinf}, 0xff800000
s_mov_b32 {sV}, 0x8000
s_mov_b32 {sK}, 0x8000
s_mov_b32 {sCA}, s48
s_sub_u32 {sCB}, 31, s48
s_add_u32 s{SRD_KV}, s{SRD_KV}, {5*16384}
s_addc_u32 s{SRD_KV+1}, s{SRD_KV+1}, 0
s_lshl_b32 s6, {sJ}, 2
s_sub_u32 s6, 59, s6
s_lshl_b32 s{SRD_KV+2}, s6, 14
s_add_u32 m0, s52, 0x4000
""")
    for r in range(16):
        p.e(f"v_mov_b32 v{NMA+r}, 0")
    p.e(f"s_cmp_lg_u32 {sCA}, 0")
    p.e("s_cbranch_scc1 L1_nomask0")
    p.e(mask_ops(NMA))
    p.e("L1_nomask0:")
    p.wait("K0")
    p.e(qk_mf(B1j, "0"))
    g = Gaps(qk_mf(A0))
    it = rowmax(S1, 20, 21) + [f"v_sub_f32 v{NMB+r}, 0, v20" for r in range(16)]
    g.spread(it, 1, 8)
    p.e(g.emit())
    p.e("s_nop 7")
    p.e(rowmax(S0, 20, 21))
    for r in range(16):
        p.e(f"v_sub_f32 v{S0+r}, v{S0+r}, v20")
    first, _ = sm_ops(A0)
    for G in range(9, 16):
        p.e(first[G])
    for r in range(16):
        p.e(f"v_sub_f32 v{NMA+r}, 0, v20")
    stamp(p)
    return A0, B1j, B0j


def k1_loops(A0, B1j, B0j, ool):
    q = Prog()

    def exX(g):
        g.pre[12].append(f"s_nop 0")
        g.post[15] += [f"s_cmp_le_u32 {sCA}, 1", "s_cbranch_scc1 L1_Xsp"]
    X = step(ool, "X", A0, B1j, True, True, 1, 3, exX)

    def exY(g):
        g.pre[13].append(f"s_sub_u32 {sCA}, {sCA}, 1")
        g.post[15].append("s_branch L1_X")
    Y = step(ool, "Y", B1j, A0, False, False, 0, 0, exY)

    def exT(g):
        g.post[15] += [f"s_cmp_eq_u32 {sCB}, 0", "s_cbranch_scc1 L1_F"]
    T = step(ool, "T", B1j, B0j, False, True, 2, 0, exT)

    def exZ0(g):
        g.post[15] += [f"s_cmp_eq_u32 {sCB}, 1", "s_cbranch_scc1 L1_Zsp"]
    Z0 = step(ool, "Z0", B0j, B1j, True, True, 2, 3, exZ0)

    def exZ1(g):
        g.pre[13].append(f"s_sub_u32 {sCB}, {sCB}, 1")
        g.post[15] += [f"s_cmp_lg_u32 {sCB}, 0", "s_cbranch_scc1 L1_Z0"]
    Z1 = step(ool, "Z1", B1j, B0j, True, True, 2, 3, exZ1)
    F = step(ool, "F", B0j, None, True, False, 0, 15)
    for nm, seq in (("XY", X + Y + X), ("XT", X + T + Z0 + Z1 + Z0), ("TF", T + F), ("ZF", Z1 + F)):
        errs = lint(seq, nm)
        assert not errs, "\n".join(errs)
    q.e(".p2align 5\nL1_X:"); q.e(X); q.e("L1_Y:"); q.e(Y)
    q.e("L1_T:"); q.e(T)
    q.e(".p2align 5\nL1_Z0:"); q.e(Z0); q.e("L1_Z1:"); q.e(Z1)
    q.e("L1_F:"); q.e(F)
    ool.e(f"""
L1_Xsp:
s_cmp_eq_u32 {sCA}, 0
s_cbranch_scc1 L1_Tpre
""")
    ool.e(mask_ops(NMA)); ool.e("s_branch L1_Y")
    ool.e(f"""
L1_Tpre:
s_cmp_lg_u32 {sCB}, 0
s_cbranch_scc1 L1_T
""")
    ool.e(mask_ops(NMB)); ool.e("s_branch L1_T")
    ool.e("L1_Zsp:"); ool.e(mask_ops(NMB)); ool.e("s_branch L1_Z1")
    return q, F


def kernel1():
    p, ool = Prog(), Prog()
    k1_setup(p)
    if OPT["stamp"]:
        p.e("v_mov_b32 v31, 0")
    rstamp(p, 60)
    stamp(p)
    k1_proj(p, ool)
    jobs = k1_attn(p, ool)
    head = resolve_waits(p.l)
    errs = lint(head, "head")
    assert not errs, "\n".join(errs)
    loops, F = k1_loops(*jobs, ool)
    e = Prog()
    stamp(e)

    def cbar(n):
        def f(p):
            p.e(f"s_cmp_lt_u32 {sW}, {n}\ns_cbranch_scc1 L1_nb{n}\ns_barrier\nL1_nb{n}:")
        return f
    cbar(1)(e)
    epilogue(e, 0, {2: cbar(2)})
    epilogue(e, 1, {1: cbar(3)})
    stamp(e)
    rstamp(e, 61)
    stamp_flush(e)
    e.e("L1_end:\ns_endpgm")
    errs = lint(F + e.l, "epi")
    assert not errs, "\n".join(errs)
    return text_of(head) + text_of(loops.l) + text_of(e.l) + text_of(ool.l)


def kernel2():
    p = Prog()
    SA, SWO, SW2, SX, SO = 8, 12, 16, 20, 24
    p.e(f"""
s_cmp_ge_u32 s2, 256
s_cbranch_scc1 L2_end
s_load_dwordx2 s[48:49], s[0:1], 0
s_load_dwordx2 s[50:51], s[0:1], 40
s_load_dwordx4 s[52:55], s[0:1], 72
s_load_dwordx2 s[56:57], s[0:1], 96
v_lshrrev_b32 v20, 6, v0
v_mov_b32 v30, v0
v_and_b32 v0, 63, v0
v_readfirstlane_b32 s3, v20
v_lshlrev_b32 v1, 4, v0
s_and_b32 s6, s2, 7
s_lshl_b32 s6, s6, 2
s_lshr_b32 s7, s2, 6
s_add_u32 s4, s6, s7
s_lshr_b32 s5, s2, 3
s_and_b32 s5, s5, 7
v_lshrrev_b32 v20, 3, v0
v_and_b32 v21, 7, v0
v_bfe_u32 v22, v0, 4, 1
v_lshlrev_b32 v22, 2, v22
v_xor_b32 v23, v21, v22
v_lshlrev_b32 v23, 4, v23
v_lshl_add_u32 v2, v20, 10, v23
v_add_u32 v3, {7*1024}, v2
v_add_u32 v4, {14*1024}, v2
v_add_u32 v5, {21*1024}, v2
s_lshl_b32 s28, s3, 15
v_lshrrev_b32 v20, 5, v0
v_lshlrev_b32 v20, 2, v20
v_bfe_u32 v21, v0, 2, 2
v_add_u32 v20, v20, v21
v_lshlrev_b32 v20, 7, v20
v_bfe_u32 v21, v0, 4, 1
v_lshl_add_u32 v20, v21, 5, v20
v_and_b32 v21, 3, v0
v_lshl_add_u32 v20, v21, 3, v20
v_bfe_u32 v21, v0, 3, 1
v_lshl_add_u32 v6, v21, 6, v20
v_add_u32 v6, s28, v6
v_xor_b32 v7, 64, v6
s_waitcnt lgkmcnt(0)
""")
    if OPT["stamp"]:
        p.e("v_mov_b32 v31, 0")
        p.e("s_memrealtime s[60:61]\ns_memtime s[62:63]\ns_waitcnt lgkmcnt(0)")
    mk_srd(p, SA, 56, WS_BYTES)
    mk_srd(p, SWO, 50, 4096 * 1024)
    mk_srd(p, SW2, 52, 1792 * 1024)
    mk_srd(p, SX, 48, 2048 * 1024)
    mk_srd(p, SO, 54, 2048 * 1024)
    p.e(f"""
s_mul_i32 s30, s4, {2*AF_KS*1024}
s_add_u32 s30, s30, {AF_OFF}
s_lshl_b32 s6, s3, 16
s_add_u32 s32, s30, s6
s_mul_i32 s6, s3, {28*1024}
s_add_u32 s6, s6, {256*1024}
s_add_u32 s30, s30, s6
s_lshl_b32 s7, s5, 7
s_mul_i32 s6, s3, {28*16*1024}
s_add_u32 s34, s6, s7
s_lshl_b32 s6, s3, 20
s_add_u32 s35, s6, s7
""")
    NST, DEP = 46, 6
    AR = 64
    WR = 32

    def req(st):
        out = []
        if st < 14:
            a0, w0, sw = f"s_add_u32 s36, s30, {st*2048}", f"s_add_u32 s38, s34, {st*32768}", SW2
        else:
            a0, w0, sw = f"s_add_u32 s36, s32, {(st-14)*2048}", f"s_add_u32 s38, s35, {(st-14)*32768}", SWO
        pre = [a0, w0, f"s_add_u32 m0, s28, {(st%8)*4096}", f"s_add_u32 s37, s36, {AF_KS*1024}"]
        for u in range(4):
            out.append(I(f"buffer_load_dwordx4 v{2+u}, {srd(sw)}, s38 offen offset:{u*1024} lds", tag=f"W{st}"))
        for s in range(2):
            for rb in range(2):
                out.append(I(f"buffer_load_dwordx4 {vr(AR+16*(st%8)+8*s+4*rb)}, v1, {srd(SA)}, s{36+rb} offen offset:{s*1024}", tag=f"A{st}"))
        return pre, out

    def rd(st):
        out = []
        for s in range(2):
            for blk in range(2):
                for j in range(2):
                    out.append(I(f"ds_read_b64_tr_b16 {vr(WR+16*(st%2)+8*s+4*blk+2*j,2)}, v{6+blk} offset:{(st%8)*4096+s*2048+j*1024}",
                                 tag=f"R{st}", needs=[f"W{st}"]))
        return out
    for st in range(DEP + 1):
        pre, out = req(st)
        p.e(pre); p.e(out)
    p.wait("W0")
    p.e(rd(0))
    mf = []
    for st in range(NST):
        for s in range(2):
            for blk in range(2):
                for rb in range(2):
                    d = ar(16 * (blk * 2 + rb), 16)
                    c = "0" if (st == 0 and s == 0) else d
                    mf.append(I(f"{MF} {d}, {vr(WR+16*(st%2)+8*s+4*blk)}, {vr(AR+16*(st%8)+8*s+4*rb)}, {c}", needs=[f"R{st}", f"A{st}"]))
    g = Gaps(mf)
    p.wait("R0", "A0", "W1")
    for st in range(NST):
        G = 8 * st
        if st + 1 < NST:
            r = rd(st + 1)
            for i in range(4):
                g.mem[G + i] += r[2 * i:2 * i + 2]
            tags = [f"R{st+1}", f"A{st+1}"]
            if st + 2 < NST:
                tags.append(f"W{st+2}")
            g.post[G + 7].append(WAIT(*tags))
        if st + DEP + 1 < NST:
            pre, out = req(st + DEP + 1)
            g.pre[G] += pre
            for i in range(8):
                g.mem[G + i].append(out[i])
    p.e(g.emit())
    p.e(f"""
v_and_b32 v20, 31, v0
v_mul_u32_u24 v20, 272, v20
v_lshrrev_b32 v21, 5, v0
v_lshl_add_u32 v20, v21, 4, v20
s_mul_i32 s6, s3, {64*272}
v_add_u32 v20, s6, v20
v_lshrrev_b32 v21, 2, v30
v_and_b32 v22, 3, v30
v_mul_u32_u24 v23, 272, v21
v_lshl_add_u32 v23, v22, 6, v23
v_lshlrev_b32 v21, 10, v21
v_lshl_add_u32 v21, v22, 5, v21
s_lshl_b32 s6, s4, 16
s_add_u32 s6, s6, s7
""")
    p.e(I(f"buffer_load_dwordx4 v[32:35], v21, {srd(SX)}, s6 offen", tag="x"))
    p.e(I(f"buffer_load_dwordx4 v[36:39], v21, {srd(SX)}, s6 offen offset:16", tag="x"))
    p.e("s_barrier")
    for blk in range(2):
        for rb in range(2):
            for a in range(4):
                p.e(I(f"ds_write_b128 v20, {ar(16*(blk*2+rb)+4*a)} offset:{rb*32*272 + blk*128 + a*32}", tag="pw"))
    p.wait("pw")
    p.e("s_barrier")
    for w in range(4):
        for i in range(4):
            p.e(I(f"ds_read_b128 {vr(64+16*w+4*i)}, v23 offset:{w*64*272 + 16*i}", tag=f"pr{w}"))
    p.wait("pr1")
    for i in range(16):
        p.e(f"v_add_f32 v{64+i}, v{64+i}, v{80+i}")
    p.wait("pr3")
    for i in range(16):
        p.e(f"v_add_f32 v{96+i}, v{96+i}, v{112+i}")
    p.wait("x")
    for i in range(8):
        p.e(f"v_lshlrev_b32 v40, 16, v{32+i}")
        p.e(f"v_and_b32 v41, 0xffff0000, v{32+i}")
        p.e(f"v_add_f32 v{64+2*i}, v{64+2*i}, v{96+2*i}")
        p.e(f"v_add_f32 v{65+2*i}, v{65+2*i}, v{97+2*i}")
        p.e(f"v_add_f32 v40, v40, v{64+2*i}")
        p.e(f"v_add_f32 v41, v41, v{65+2*i}")
        p.e(f"v_cvt_pk_bf16_f32 v{32+i}, v40, v41")
    p.e(f"buffer_store_dwordx4 v[32:35], v21, {srd(SO)}, s6 offen")
    p.e(f"buffer_store_dwordx4 v[36:39], v21, {srd(SO)}, s6 offen offset:16")
    if OPT["stamp"]:
        p.e(f"""s_memrealtime s[64:65]
s_memtime s[66:67]
s_waitcnt lgkmcnt(0)
v_writelane_b32 v31, s60, 0
v_writelane_b32 v31, s64, 1
v_writelane_b32 v31, s62, 2
v_writelane_b32 v31, s66, 3
s_lshl_b32 s98, s2, 2
s_add_u32 s98, s98, s3
s_lshl_b32 s98, s98, 8
s_add_u32 s98, s98, {ST_OFF + (1<<20)}
v_lshrrev_b32 v30, 2, v1
buffer_store_dword v31, v30, {srd(SA)}, s98 offen""")
    p.e("L2_end:\ns_endpgm")
    l = resolve_waits(p.l)
    errs = lint(l, "k2")
    assert not errs, "\n".join(errs)
    return text_of(l)


KD = """.amdhsa_kernel {name}
  .amdhsa_next_free_vgpr {vgpr}
  .amdhsa_next_free_sgpr 102
  .amdhsa_accum_offset 256
  .amdhsa_group_segment_fixed_size 0
  .amdhsa_kernarg_size 104
  .amdhsa_user_sgpr_count 2
  .amdhsa_user_sgpr_kernarg_segment_ptr 1
  .amdhsa_system_sgpr_workgroup_id_x 1
.end_amdhsa_kernel
"""


def main():
    k1, k2 = kernel1(), kernel2()
    s = f"""; fused layernorm + projections + causal attention, then the output projection (generated by gen/gen.py)
; @launch kernel=attn_kernel grid=(256,1,1) block=(256,1,1) lds=163840
; @launch kernel=oproj_kernel grid=(256,1,1) block=(256,1,1) lds=131072
.amdgcn_target "amdgcn-amd-amdhsa--gfx950"
.text
.globl attn_kernel
.p2align 8
.type attn_kernel,@function
attn_kernel:
{k1}
.globl oproj_kernel
.p2align 8
.type oproj_kernel,@function
oproj_kernel:
{k2}
.section .rodata,"a"
.p2align 6
{KD.format(name="attn_kernel", vgpr=512)}
.p2align 6
{KD.format(name="oproj_kernel", vgpr=320)}
"""
    open(sys.argv[1], "w").write(s)


main()
```

```python
import sys, struct
from asmlib import *

NAME = "parallel_sum__compressed_kv_cla__dense_activation_mish__prompt"
OPT = dict(stamp=0, thr=40, rot=1, nt=0, deep=1, cpf=1, wopf=1, sim=0, skew=1, kvst=1, wsoff=0)
for a in sys.argv[2:]:
    k, v = a.split("=")
    assert k in OPT, k
    OPT[k] = int(v)


def f2u(x):
    return struct.unpack("<I", struct.pack("<f", x))[0]


KVFL = ("", "sc1", "nt", "sc1 nt")[OPT["kvst"]]
MF = "v_mfma_f32_32x32x16_bf16"
XN_OFF = 0
KV_OFF = 2 << 20
AF_OFF = 34 << 20
AF_KS = 368
FL_OFF = 58 << 20
CTXF, ACTF, KVF, EXF = FL_OFF, FL_OFF + 32768, FL_OFF + 40960, FL_OFF + 49152
ST_OFF = 60 << 20
EX_OFF = 64 << 20
WS_BYTES = 268435456 - (OPT['wsoff'] << 20)

sW, sH, sJ = "s3", "s4", "s5"
SRD_CKV, SRD_WUK, SRD_WUV, SRD_W1, SRD_WQ, SRD_WS, SRD_X, SRD_B1, SRD_DBG, SRD_ACT = (
    8, 12, 16, 20, 24, 28, 32, 36, 40, 44)
SRD_W2, SRD_WO, SRD_OUT, SRD_KV = 8, 12, 16, 36


def srd(n):
    return f"s[{n}:{n+3}]"


def vr(b, n=4):
    return f"v[{b}:{b+n-1}]"


def ar(b, n=4):
    return f"a[{b}:{b+n-1}]"


vL16 = "v1"
VA_DMA, VW_DMA, VW1_DMA, VTR, VA_RD = 2, 6, 10, 14, 16
VTRW = (14, 24, 2)
WF, TP, ACC0, ACC1, BIAS = 32, 64, 96, 160, 224
LDS_A = 98304
vOne, vPoll, vDummy = 28, 29, 30
S0, S1, EX, P0, P1, NMA, NMB, ET = 192, 208, 128, 144, 152, 160, 176, 96
OA, OB, KF, VF = 0, 64, 128, 160
vR0, vR1, vMask, vTs, vLA, vLB, vThr, vNinf = 2, 3, 4, 5, 6, 7, 8, 9
sKa, sKb, sM, sCA, sCB = "s52", "s53", "s54", "s55", "s56"
MASKS = 64
VP_DMA = 10
VP_TR = (14, 16, 18)
sPA, sPC, sPW2, sPWO, sPM = 57, 58, 59, 60, (61, 62, 63)
PWF, PACC, PX, PR = 64, 128, 192, 200


def mk_srd(n, lo, nbytes):
    return [f"s_mov_b32 s{n}, s{lo}", f"s_and_b32 s{n+1}, s{lo+1}, 0xffff",
            f"s_mov_b32 s{n+2}, {nbytes}", f"s_mov_b32 s{n+3}, 0x20000"]


stamp_n = [0]


def stamp(p, idx=None):
    if not OPT["stamp"]:
        return
    if idx is None:
        idx = stamp_n[0]
        stamp_n[0] += 1
    p.e(f"s_memtime s[98:99]")
    p.e("s_waitcnt lgkmcnt(0)")
    p.e(f"v_writelane_b32 v31, s98, {idx}")


def rstamp(p, lane):
    if not OPT["stamp"]:
        return
    p.e(f"s_memrealtime s[98:99]")
    p.e("s_waitcnt lgkmcnt(0)")
    p.e(f"v_writelane_b32 v31, s98, {lane}")


def stamp_flush(p):
    if not OPT["stamp"]:
        return
    p.e("s_lshl_b32 s98, s2, 2")
    p.e(f"s_add_u32 s98, s98, {sW}")
    p.e("s_lshl_b32 s98, s98, 8")
    p.e(f"s_add_u32 s98, s98, {ST_OFF}")
    p.e(f"v_lshrrev_b32 v30, 2, {vL16}")
    p.e(f"buffer_store_dword v31, v30, {srd(SRD_WS)}, s98 offen")


def setup(p):
    p.e(f"""
s_cmp_ge_u32 s2, 256
s_cbranch_scc1 L_end
s_load_dwordx16 s[48:63], s[0:1], 0
s_load_dwordx8 s[64:71], s[0:1], 64
s_load_dwordx2 s[72:73], s[0:1], 96
v_lshrrev_b32 v20, 6, v0
v_and_b32 v0, 63, v0
v_readfirstlane_b32 {sW}, v20
v_lshlrev_b32 {vL16}, 4, v0
s_and_b32 s6, s2, 7
s_lshr_b32 s7, s2, 6
s_lshl_b32 s7, s7, 3
s_add_u32 {sH}, s6, s7
s_lshr_b32 {sJ}, s2, 3
s_and_b32 {sJ}, {sJ}, 7
""")
    if OPT["cpf"]:
        p.e(f"""
s_getpc_b64 s[96:97]
L_pc:
s_lshr_b32 s6, s2, 3
s_mul_i32 s6, s6, 3072
v_min_u32 v20, 23, v0
v_lshl_add_u32 v20, v20, 7, s6
v_min_u32 v20, L_hot_end-L_pc, v20
s_cmp_lg_u32 {sW}, 0
s_cbranch_scc1 L_nocpf
global_load_dword v{vDummy}, v20, s[96:97]
L_nocpf:
""")
        p.l[-2].kind = "op"
    p.e(f"""
v_lshrrev_b32 v20, 3, v0
v_and_b32 v21, 7, v0
v_lshrrev_b32 v22, 4, v0
v_xor_b32 v23, v21, v22
v_lshlrev_b32 v23, 4, v23
v_lshl_add_u32 v{VA_DMA}, v20, 10, v23
v_xor_b32 v24, 64, v{VA_DMA}
v_add_u32 v{VA_DMA+1}, {7*1024}, v24
v_add_u32 v{VA_DMA+2}, {14*1024}, v{VA_DMA}
v_add_u32 v{VA_DMA+3}, {21*1024}, v24
v_and_b32 v22, 1, v22
v_lshlrev_b32 v22, 2, v22
v_xor_b32 v23, v21, v22
v_lshlrev_b32 v23, 4, v23
v_lshl_add_u32 v{VW_DMA}, v20, 13, v23
v_mul_u32_u24 v24, 3584, v20
v_add_u32 v{VW1_DMA}, v24, v23
""")
    for u in range(1, 4):
        p.e(f"v_add_u32 v{VW_DMA+u}, {u*(8*8192-1024)}, v{VW_DMA}")
        p.e(f"v_add_u32 v{VW1_DMA+u}, {u*(8*3584-1024)}, v{VW1_DMA}")
    p.e(f"""
v_lshrrev_b32 v20, 5, v0
v_lshlrev_b32 v20, 3, v20
v_bfe_u32 v21, v0, 2, 2
v_add_u32 v20, v20, v21
v_lshlrev_b32 v20, 7, v20
v_bfe_u32 v21, v0, 4, 1
v_lshl_add_u32 v20, v21, 5, v20
v_and_b32 v21, 3, v0
v_lshl_add_u32 v20, v21, 3, v20
v_bfe_u32 v21, v0, 3, 1
v_lshl_add_u32 v{VTR}, v21, 6, v20
v_xor_b32 v{VTR+1}, 64, v{VTR}
""")
    p.e(f"""
s_lshl_b32 s6, {sW}, 13
s_add_u32 s74, s6, {LDS_A}
v_and_b32 v20, 31, v0
v_lshlrev_b32 v20, 7, v20
v_add_u32 v20, s74, v20
v_bfe_u32 v21, v0, 1, 3
v_lshrrev_b32 v22, 5, v0
v_xor_b32 v21, v21, v22
v_lshl_add_u32 v{VA_RD}, v21, 4, v20
""")
    for s in range(1, 4):
        p.e(f"v_xor_b32 v{VA_RD+s}, {32*s}, v{VA_RD}")
    p.e(f"""
s_lshl_b32 s75, {sJ}, 2
s_add_u32 s75, s75, {sW}
s_lshl_b32 s75, s75, 16
s_lshl_b32 s76, {sH}, 8
s_lshl_b32 s77, {sW}, 12
s_lshr_b32 s6, {sW}, 1
s_lshl_b32 s6, s6, 7
s_and_b32 s7, {sW}, 1
s_lshl_b32 s7, s7, 18
s_add_u32 s78, s76, s6
s_add_u32 s78, s78, s7
s_add_u32 s79, {sJ}, {sH}
s_and_b32 s79, s79, {7 if OPT["rot"] else 0}
s_lshl_b32 s100, s79, 19
s_lshl_b32 s101, s79, 7
v_and_b32 v20, 7, v0
v_lshrrev_b32 v21, 3, v0
v_lshlrev_b32 v21, 4, v21
v_lshl_add_u32 v20, v20, 10, v21
s_lshl_b32 s6, s2, 13
s_lshl_b32 s7, {sW}, 8
s_add_u32 s6, s6, s7
s_waitcnt lgkmcnt(0)
""")
    p.e(mk_srd(SRD_X, 48, 2048 * 1024))
    if OPT["wsoff"]:
        p.e(f"s_add_u32 s72, s72, {OPT['wsoff'] << 20}\ns_addc_u32 s73, s73, 0")


def a_dma(q):
    out = []
    for rb in range(2):
        for u in range(4):
            pre = []
            if u == 0 and rb == 0:
                pre = [f"s_add_u32 m0, s74, {(q%2)*32768}", f"s_add_u32 s80, s101, {q*128}",
                       "s_and_b32 s80, s80, 0x3ff", "s_add_u32 s80, s80, s75"]
            if u == 0 and rb == 1:
                pre = [f"s_add_u32 m0, s74, {(q%2)*32768 + 4096}", "s_add_u32 s80, s80, 32768"]
            out.append((pre, I(f"buffer_load_dwordx4 v{VA_DMA+u}, {srd(SRD_CKV)}, s80 offen offset:{u*1024} lds", tag=f"A{q}")))
    return out


def a_reads(q):
    out = []
    for s in range(4):
        for rb in range(2):
            ks = 4 * q + s
            out.append(I(f"ds_read_b128 {ar((rb*32+ks)*4)}, v{VA_RD+s} offset:{(q%2)*32768 + rb*4096}",
                         tag=f"Ar{ks}", needs=[f"A{q}"]))
    return out


CHUNKS = [("Vlo", SRD_WUV, 0), ("Vhi", SRD_WUV, 128), ("H", SRD_W1, 0), ("Qlo", SRD_WQ, 0), ("Qhi", SRD_WQ, 128)]
NSLAB = 28
if OPT["deep"]:
    W_ISSUE = [-1, -1, 0, 1, 2, 3, 4, 5, 6, 6, 6, 7, 7, 7, 8, 8, 9, 9, 10, 11, 17, 19, 20, 20, 21, 21, 22, 22]
else:
    W_ISSUE = [-1, -1] + list(range(26))
W_SLOT = []
_free_at = [-1] * 6 + [7, 7, 8, 8]
for _s in range(NSLAB):
    assert W_ISSUE[_s] <= max(_s - 2, -1)
    _c = [k for k in range(10) if _free_at[k] <= W_ISSUE[_s] and (_s < 24 or k >= 6) and (not 20 <= _s < 24 or k < 6)]
    _k = min(_c, key=lambda k: (_free_at[k], k))
    W_SLOT.append(_k)
    _free_at[_k] = _s + 2
WNT = " nt" if OPT["nt"] else ""


def w_dma(pslab):
    out = []
    slot = W_SLOT[pslab] * 16384
    if pslab < 8:
        sr, va = SRD_WUK, VW_DMA
        so = [f"s_add_u32 s81, s100, {pslab<<19}", "s_and_b32 s81, s81, 0x3fffff", "s_add_u32 s81, s81, s78"]
    else:
        c, i = divmod(pslab - 8, 4)
        nm, sr, col = CHUNKS[c]
        if nm == "H":
            va = VW1_DMA
            so = [f"s_mov_b32 s81, s{52+i}"]
        else:
            va = VW_DMA
            so = [f"s_add_u32 s81, s{60+i}, {col}"]
    for u in range(4):
        pre = [f"s_add_u32 m0, s77, {slot}"] + so if u == 0 else []
        out.append((pre, I(f"buffer_load_dwordx4 v{va+u}, {srd(sr)}, s81 offen offset:{u*1024}{WNT} lds", tag=f"W{pslab}")))
    return out


def w_read(G):
    pslab = G // 32
    win, slot = divmod(W_SLOT[pslab] * 16384, 65536)
    if G < 256:
        ks, r = divmod(G, 8)
        blk, j = divmod(r, 2)
        off = slot + (blk // 2) * 8192 + (ks % 4) * 2048 + j * 512
        dst = WF + 16 * (ks % 2) + 4 * blk + 2 * j
    else:
        ks, r = divmod((G - 256) % 128, 4)
        blk, j = divmod(r, 2)
        off = slot + (ks % 8) * 2048 + j * 512
        dst = WF + 8 * (ks % 4) + 4 * blk + 2 * j
    return I(f"ds_read_b64_tr_b16 {vr(dst,2)}, v{VTRW[win] + blk % 2} offset:{off}", tag=f"Wr{G//4}")


def layernorm(p):
    p.e(f"""
v_and_b32 v20, 7, v0
v_lshlrev_b32 v21, 4, v20
s_lshl_b32 s6, {sW}, 2
v_add_u32 v22, s6, v21
""")
    p.wait("X")
    for i in range(8):
        p.e(f"v_and_b32 v{41+2*i}, 0xffff0000, v{32+i}")
        p.e(f"v_lshlrev_b32 v{40+2*i}, 16, v{32+i}")

    def reduce(v, slot):
        p.e(f"""
s_nop 1
v_add_f32_dpp {v}, {v}, {v} row_ror:8 row_mask:0xf bank_mask:0xf
v_mov_b32 v24, {v}
s_nop 1
v_permlane16_swap_b32 {v}, v24
v_add_f32 {v}, {v}, v24
v_mov_b32 v24, {v}
s_nop 1
v_permlane32_swap_b32 {v}, v24
v_add_f32 {v}, {v}, v24
""")
        p.e(I(f"ds_write_b32 v22, {v} offset:{49152 + slot*128}", tag=f"lnw{slot}"))
        p.wait(f"lnw{slot}")
        p.e("s_barrier")
        p.e(I(f"ds_read_b128 v[24:27], v21 offset:{49152 + slot*128}", tag=f"lnr{slot}"))
        p.wait(f"lnr{slot}")
        p.e(f"""
v_add_f32 v24, v24, v25
v_add_f32 v26, v26, v27
v_add_f32 {v}, v24, v26
v_mul_f32 {v}, 0x{f2u(1/512):x}, {v}
""")

    p.e("v_add_f32 v23, v40, v41")
    for i in range(2, 16):
        p.e(f"v_add_f32 v23, v23, v{40+i}")
    reduce("v23", 0)
    p.e("v_sub_f32 v29, v40, v23")
    p.e("v_mul_f32 v28, v29, v29")
    for i in range(1, 16):
        p.e(f"v_sub_f32 v29, v{40+i}, v23")
        p.e(f"v_fmac_f32 v28, v29, v29")
    reduce("v28", 1)
    p.e(f"""
v_cvt_pk_bf16_f32 v24, v23, v28
v_lshlrev_b32 v23, 16, v24
v_and_b32 v28, 0xffff0000, v24
v_add_f32 v28, 0x{f2u(1e-5):x}, v28
v_cvt_pk_bf16_f32 v24, v28, v28
v_lshlrev_b32 v28, 16, v24
v_sqrt_f32 v28, v28
s_nop 0
v_cvt_pk_bf16_f32 v24, v28, v28
v_lshlrev_b32 v28, 16, v24
v_rcp_f32 v28, v28
""")
    for i in range(16):
        p.e(f"v_sub_f32 v{40+i}, v{40+i}, v23")
    for i in range(8):
        p.e(f"v_cvt_pk_bf16_f32 v24, v{40+2*i}, v{41+2*i}")
        p.e(f"v_lshlrev_b32 v25, 16, v24")
        p.e(f"v_and_b32 v26, 0xffff0000, v24")
        p.e(f"v_mul_f32 v25, v25, v28")
        p.e(f"v_mul_f32 v26, v26, v28")
        p.e(f"v_cvt_pk_bf16_f32 v{32+i}, v25, v26")
    p.e(f"""
v_lshrrev_b32 v24, 3, v0
v_lshl_add_u32 v24, v24, 9, v21
s_lshr_b32 s6, s2, 2
s_lshl_b32 s6, s6, 15
s_and_b32 s7, s2, 3
s_lshl_b32 s7, s7, 7
s_add_u32 s6, s6, s7
s_lshl_b32 s7, {sW}, 13
s_add_u32 s6, s6, s7
s_add_u32 s7, s6, 4096
""")
    p.e(I(f"buffer_store_dwordx4 v[32:35], v24, {srd(SRD_WS)}, s6 offen sc1", tag="XNst"))
    p.e(I(f"buffer_store_dwordx4 v[36:39], v24, {srd(SRD_WS)}, s7 offen sc1", tag="XNst"))
    p.e("s_nop 1")


def flag_addr(kind, dst):
    d = f"s{dst}"
    if kind in ("ctxA", "ctxB"):
        rb = "s48" if kind == "ctxA" else "s49"
        return [f"s_lshl_b32 {d}, {rb}, 2", f"s_lshr_b32 s7, {sH}, 3", f"s_add_u32 {d}, {d}, s7", f"s_lshl_b32 {d}, {d}, 5",
                f"s_and_b32 s7, {sH}, 7", f"s_add_u32 {d}, {d}, s7", f"s_lshl_b32 {d}, {d}, 2", f"s_add_u32 {d}, {d}, {CTXF}"]
    if kind in ("actA", "actB"):
        rb = "s48" if kind == "actA" else "s49"
        return [f"s_lshl_b32 {d}, {rb}, 5", f"s_add_u32 {d}, {d}, {sH}", f"s_lshl_b32 {d}, {d}, 2", f"s_add_u32 {d}, {d}, {ACTF}"]
    if kind == "kv":
        return [f"s_lshl_b32 {d}, {sH}, 5", f"s_add_u32 {d}, {d}, s48", f"s_lshl_b32 {d}, {d}, 2", f"s_add_u32 {d}, {d}, {KVF}"]
    if kind == "ex":
        return [f"s_and_b32 {d}, s2, 1", f"s_lshl_b32 {d}, {d}, 3", f"s_add_u32 {d}, {d}, {sJ}", f"s_lshl_b32 {d}, {d}, 2",
                "s_lshr_b32 s7, s2, 6", f"s_add_u32 {d}, {d}, s7", f"s_lshl_b32 {d}, {d}, 2", f"s_add_u32 {d}, {d}, {sW}",
                f"s_lshl_b32 {d}, {d}, 7", "s_and_b32 s7, s2, 6", "s_lshl_b32 s7, s7, 1", f"s_add_u32 {d}, {d}, s7",
                f"s_add_u32 {d}, {d}, {EXF}"]
    raise Exception(kind)


def flag_store(val, s, tag=None):
    return I(f"buffer_store_dword v{val}, off, {srd(SRD_WS)}, s{s} sc1", tag=tag)


def poll_req(vidx, s, tag):
    return I(f"buffer_load_dword v{vPoll}, v{vidx}, {srd(SRD_WS)}, s{s} offen sc1", tag=tag)


def poll_slow(out, label, vidx, s):
    out.e(f"""
{label}:
s_mov_b32 s96, 0x40000
{label}_l:
buffer_load_dword v{vPoll}, v{vidx}, {srd(SRD_WS)}, s{s} offen sc1
s_waitcnt vmcnt(0)
v_cmp_ne_u32 vcc, 1, v{vPoll}
s_sub_u32 s96, s96, 1
s_cbranch_scc1 {label}_back
s_cbranch_vccnz {label}_l
s_branch {label}_back
""")


def accb(buf, blk2, rb):
    return buf + (blk2 * 2 + rb) * 16


def issue(p, lst):
    for pre, ins in lst:
        p.e(pre)
        p.e(ins)


def sprinkle(p, valu, mems, every):
    mems = list(mems)
    for n, x in enumerate(valu):
        p.e(x)
        if n % every == every - 1 and mems:
            pre, ins = mems.pop(0)
            p.e(pre)
            p.e(ins)
    issue(p, mems)


def place(g, lst, g0, step):
    for i, (pre, ins) in enumerate(lst):
        G = g0 + int(i * step)
        for x in pre:
            g.post[G - 1].append(x)
        g.mem[G].append(ins)


def scalars(g, lst, g0, per=2):
    for i in range(0, len(lst), per):
        g.post[g0 + i // per] += lst[i:i + per]


def kv_dma(n):
    out = []
    for u in range(4):
        pre = [f"s_sub_u32 m0, s{sPM[2]}, {0x20000 - n*16384}", f"s_mov_b32 s97, {n*16384}"] if u == 0 else []
        out.append((pre, I(f"buffer_load_dwordx4 {vL16}, {srd(SRD_KV)}, s97 offen offset:{u*1024} sc1 lds", tag=f"KV{n}")))
    return out


PSLAB = 23
P_SLOT = [8, 9, 0, 1, 2, 3, 4, 5, 6, 7]
P_SLOT = [P_SLOT[s % 10] for s in range(PSLAB)]


def p_dma(s):
    win, k = divmod(P_SLOT[s], 4)
    sr, so = (SRD_W2, f"s_add_u32 s97, s{sPW2}, {s*65536}") if s < 7 else (SRD_WO, f"s_add_u32 s97, s{sPWO}, {(s-7)*65536}")
    out = []
    for u in range(4):
        pre = [f"s_add_u32 m0, s{sPM[win]}, {k*16384}", so] if u == 0 else []
        out.append((pre, I(f"buffer_load_dwordx4 v{VP_DMA+u}, {srd(sr)}, s97 offen offset:{u*1024} lds", tag=f"PW{s}")))
    return out


def p_areg(ks):
    if 16 <= ks < 24:
        return vr(32 + 4 * (ks - 16))
    return ar(128 + 4 * ((ks + 16) % 32) if ks < 16 else 128 + 4 * ((ks - 24) % 32))


def p_aload(ks0, ks1):
    out = []
    for ks in range(ks0, ks1):
        pre = []
        if ks % 4 == 0:
            pre = [f"s_add_u32 s100, s{sPA}, {ks*1024}" if ks < 28 else f"s_add_u32 s100, s{sPC}, {(ks-28)*1024}"]
        out.append((pre, I(f"buffer_load_dwordx4 {p_areg(ks)}, {vL16}, {srd(SRD_WS)}, s100 offen offset:{(ks%4)*1024} sc1", tag=f"PA{ks}")))
    return out


def projections(p, ool):
    p.e(I(f"buffer_load_dwordx4 v[32:35], v20, {srd(SRD_X)}, s6 offen{WNT}", tag="X"))
    p.e(I(f"buffer_load_dwordx4 v[36:39], v20, {srd(SRD_X)}, s6 offen offset:128{WNT}", tag="X"))
    p.e(mk_srd(SRD_CKV, 50, 2048 * 1024))
    issue(p, a_dma(0))
    p.e(mk_srd(SRD_WUK, 54, 512 * 8192))
    issue(p, w_dma(0))
    p.e(mk_srd(SRD_WS, 72, WS_BYTES))
    p.e(mk_srd(SRD_WUV, 56, 512 * 8192))
    p.e(mk_srd(SRD_WQ, 52, 512 * 8192))
    p.e(mk_srd(SRD_W1, 62, 512 * 3584))
    p.e(mk_srd(SRD_B1, 64, 3584))
    p.e(mk_srd(SRD_DBG, 70, 256))
    p.e(mk_srd(SRD_ACT, 72, WS_BYTES))
    p.e(f"""
s_cmp_lt_u32 {sH}, 28
s_cselect_b32 s{SRD_W1+2}, s{SRD_W1+2}, 0
s_cselect_b32 s{SRD_ACT+2}, s{SRD_ACT+2}, 0
s_lshl_b32 s83, {sH}, 7
s_lshl_b32 s6, {sH}, 6
s_lshl_b32 s7, {sJ}, 3
s_add_u32 s6, s6, s7
s_lshl_b32 s7, {sW}, 1
s_add_u32 s6, s6, s7
s_lshl_b32 s6, s6, 14
s_add_u32 s84, s6, {KV_OFF}
""")
    for i in range(1, 8):
        p.e(f"s_add_u32 s{84+i}, s84, {i*4096}")
    p.e(f"s_lshl_b32 s6, s79, 1\ns_add_u32 s6, s6, {sW}\ns_lshl_b32 s6, s6, 5")
    for i in range(4):
        p.e(f"""
s_add_u32 s7, s6, {128*i}
s_and_b32 s7, s7, 511
s_lshl_b32 s{60+i}, s7, 13
s_add_u32 s{60+i}, s{60+i}, s76
s_mul_i32 s{52+i}, s7, 3584
s_add_u32 s{52+i}, s{52+i}, s83
""")
    p.e(f"""
s_lshl_b32 s70, s79, 12
s_lshl_b32 s48, {sJ}, 2
s_add_u32 s48, s48, {sW}
s_sub_u32 s49, 63, s48
s_lshl_b32 s92, s48, 15
s_lshl_b32 s93, s49, 15
s_mul_i32 s50, s48, {AF_KS*1024}
s_mul_i32 s51, s49, {AF_KS*1024}
s_add_u32 s50, s50, {AF_OFF}
s_add_u32 s51, s51, {AF_OFF}
s_lshl_b32 s6, {sH}, 12
s_add_u32 s6, s6, {256*1024}
s_add_u32 s94, s50, s6
s_add_u32 s95, s51, s6
""")
    layernorm(p)
    p.e("v_mov_b32 v27, 0")
    for kind in ("kv", "actA", "actB", "ctxA", "ctxB", "ex"):
        p.e(flag_addr(kind, 6))
        p.e(flag_store(27, 6, "XNst"))
    issue(p, a_dma(1))
    issue(p, w_dma(1))
    p.e(f"""
s_cmp_eq_u32 {sW}, 0
s_cselect_b32 s6, 0, 0x1000
v_lshl_add_u32 v26, v0, 12, s6
v_mov_b32 v{vOne}, 1
v_add_u32 v{VTRW[1]}, 0x10000, v{VTR}
v_add_u32 v{VTRW[1]+1}, 0x10000, v{VTR+1}
""")
    stamp(p)
    p.wait("A0")
    for x in a_reads(0):
        p.e(x)
    p.wait("W0")
    p.e("s_barrier")
    for G in range(8):
        p.e(w_read(G))
    p.wait("Wr0", "Ar0", "Ar3")

    mf = []
    for ks in range(32):
        for blk in range(4):
            for rb in range(2):
                d = accb(ACC0 if blk < 2 else ACC1, blk % 2, rb)
                c = "0" if ks == 0 else vr(d, 16)
                G = len(mf)
                mf.append(I(f"{MF} {vr(d,16)}, {vr(WF+16*(ks%2)+4*blk)}, {ar((rb*32+ks)*4)}, {c}",
                            needs=[f"Wr{G//4}", f"Ar{ks}"]))
    for ci, (nm, _, _) in enumerate(CHUNKS):
        buf = ACC0 if ci % 2 == 0 else ACC1
        for ks in range(32):
            for blk in range(2):
                for rb in range(2):
                    d = accb(buf, blk, rb)
                    c = vr(d, 16)
                    if ks == 0:
                        c = vr(BIAS + 16 * blk, 16) if nm == "H" else "0"
                    wf, af = vr(WF + 8 * (ks % 4) + 4 * blk), ar((rb * 32 + ks) * 4)
                    a, b = (af, wf) if nm[0] == "V" else (wf, af)
                    G = len(mf)
                    nd = [f"Wr{G//4}"]
                    if nm == "H":
                        nd.append(f"XN{ks}")
                    mf.append(I(f"{MF} {vr(d,16)}, {a}, {b}, {c}", needs=nd))
    NG = len(mf)
    g = Gaps(mf)
    for G in range(8, NG):
        g.mem[G - 8].append(w_read(G))
    for G in range(4, NG, 4):
        tags = [f"Wr{G//4}"]
        if G < 256 and G % 32 == 0:
            tags += [f"Ar{G//8 + 3}"]
        if 512 <= G < 640:
            tags += [f"XN{(G-512)//4}"]
        g.pre[G - 1].append(WAIT(*tags))
    for ps in range(0, NSLAB):
        G = 32 * ps - 9
        if ps > 0:
            tags = [f"W{ps}"]
            if ps == 2:
                tags.append("XNst")
            if ps == 27:
                tags.append("KV0")
            g.post[G].append(WAIT(*tags))
            g.post[G].append("s_barrier")
        lst = []
        for sl in range(NSLAB):
            if W_ISSUE[sl] == ps:
                lst += w_dma(sl)
        if ps == 0:
            place(g, a_dma(2) + lst, 1, 2)
        elif ps < 6:
            place(g, lst, G + 2 + (2 if ps == 1 else 0), 2 if ps > 1 else 1)
            place(g, a_dma(ps + 2), 32 * ps + 1, 3)
        elif lst:
            place(g, lst, G + 2, 2 if len(lst) > 8 else 3)
    for q in range(1, 8):
        G = 32 * q - 14
        g.post[G - 1].append(WAIT(f"A{q}"))
        for i, x in enumerate(a_reads(q)):
            g.mem[G + i].append(x)
    g.val[200] += [I(f"v_add_u32 v{VTRW[2]}, 0x20000, v{VTR}"), I(f"v_add_u32 v{VTRW[2]+1}, 0x20000, v{VTR+1}")]
    g.mem[32 * 2 - 8].append(I(f"buffer_atomic_add v{vOne}, v26, {srd(SRD_DBG)}, 0 offen"))

    def kv_store(src, rb, f):
        return I(f"buffer_store_dwordx4 {vr(src)}, {vL16}, {srd(SRD_WS)}, s{84+rb*4+f//4} offen offset:{(f%4)*1024} {KVFL}", tag="KVst")

    def cvt8(dst, src):
        return [f"v_cvt_pk_bf16_f32 v{dst+c}, v{src+2*c}, v{src+2*c+1}" for c in range(8)]

    it = []
    for i in range(4):
        it += cvt8(TP + 8 * i, ACC0 + 16 * i)
    for n, x in enumerate(it):
        g.val[250 + (n + 2) // 5].append(I(x))
    tp_st = []
    for i in range(4):
        blk, rb = divmod(i, 2)
        for t in range(2):
            tp_st.append(kv_store(TP + 8 * i + 4 * t, rb, 2 * blk + t))

    def epi_inplace(buf, G0, fidx, extra):
        st = []
        for i in range(4):
            blk, rb = divmod(i, 2)
            b = buf + 16 * i
            for n, x in enumerate(cvt8(b, b)):
                g.val[G0 + 3 + 2 * i + n // 4].append(I(x))
            for t in range(2):
                st.append(kv_store(b + 4 * t, rb, fidx(blk, t)))
        st = extra[:1] + st + extra[1:]
        for n, x in enumerate(st):
            g.mem[G0 + 4 + (n * 122) // len(st)].append(x)
    epi_inplace(ACC1, 256, lambda blk, t: 2 * (blk + 2) + t, tp_st[:4])
    epi_inplace(ACC0, 384, lambda blk, t: 8 + 4 * t + blk, tp_st[4:6])
    epi_inplace(ACC1, 512, lambda blk, t: 8 + 4 * t + blk + 2, tp_st[6:])
    g.val[340].append(I("v_lshrrev_b32 v20, 5, v0"))
    g.val[340].append(I("v_lshlrev_b32 v20, 3, v20"))
    for i in range(8):
        g.mem[342 + 2 * i].append(I(f"buffer_load_dwordx2 {vr(BIAS+4*i+2,2)}, v20, {srd(SRD_B1)}, s83 offen offset:{16*i}", tag="B1"))
    g.post[439].append(WAIT("B1"))
    for i in range(8):
        b = BIAS + 4 * i
        g.val[440 + i] += [I(f"v_lshlrev_b32 v{b}, 16, v{b+2}", needs=["B1"]), I(f"v_and_b32 v{b+1}, 0xffff0000, v{b+2}"),
                           I(f"v_lshlrev_b32 v{b+2}, 16, v{b+3}"), I(f"v_and_b32 v{b+3}, 0xffff0000, v{b+3}")]
    g.mem[338].append(I(f"buffer_load_dword v{vPoll}, off, {srd(SRD_DBG)}, 0 sc1", tag="pollLN"))
    g.post[380].append(WAIT("pollLN"))
    g.val[381].append(I(f"v_cmp_gt_u32 vcc, 0x100, v{vPoll}", needs=["pollLN"]))
    g.post[382] += ["s_cbranch_vccnz L_pollLN", "L_pollLN_back:"]
    ool.e(f"""
L_pollLN:
s_mov_b32 s96, 0x40000
L_pollLN_l:
s_sleep 2
buffer_load_dword v{vPoll}, off, {srd(SRD_DBG)}, 0 sc1
s_waitcnt vmcnt(0)
v_cmp_gt_u32 vcc, 0x100, v{vPoll}
s_sub_u32 s96, s96, 1
s_cbranch_scc1 L_pollLN_back
s_cbranch_vccnz L_pollLN_l
s_branch L_pollLN_back
""")
    for i in range(64):
        ks, rb = divmod(i, 2)
        G = 388 + (33 * i) // 10
        if i % 8 == 0:
            g.post[G - 1] += ["s_add_u32 s64, s92, s70", "s_add_u32 s65, s93, s70"]
            g.post[G] += ["s_add_u32 s70, s70, 4096", "s_and_b32 s70, s70, 0x7fff"]
        g.mem[G].append(I(f"buffer_load_dwordx4 {ar((rb*32+ks)*4)}, {vL16}, {srd(SRD_WS)}, s{64+rb} offen offset:{(ks%4)*1024} sc1", tag=f"XN{ks}"))
    late = mk_srd(SRD_W2, 66, 1792 * 1024) + mk_srd(SRD_WO, 58, 4096 * 1024) + mk_srd(SRD_OUT, 68, 2048 * 1024)
    late += [f"s_lshl_b32 s6, {sH}, 20", "s_add_u32 s6, s6, s77", f"s_add_u32 s6, s6, {KV_OFF}", f"s_mov_b32 s{SRD_KV+2}, 0x100000",
             f"s_add_u32 s{SRD_KV}, s72, s6", f"s_addc_u32 s{SRD_KV+1}, s73, 0", f"s_and_b32 s{SRD_KV+1}, s{SRD_KV+1}, 0xffff", "s_nop 0"]
    late += flag_addr("kv", 82)
    scalars(g, late, 600)
    g.post[660].append(WAIT("KVst"))
    g.mem[661].append(flag_store(vOne, 82))
    it = []
    LOG2E = f"0x{f2u(1.4426950408889634):x}"
    for i in range(4):
        blk, rb = divmod(i, 2)
        b = ACC0 + 16 * i
        for c in range(8):
            x0, x1 = b + 2 * c, b + 2 * c + 1
            it += [f"v_mul_f32 v20, {LOG2E}, v{x0}", f"v_mul_f32 v21, {LOG2E}, v{x1}",
                   "v_exp_f32 v20, v20", "v_exp_f32 v21, v21",
                   "v_add_f32 v22, 2.0, v20", "v_add_f32 v23, 2.0, v21",
                   "v_fma_f32 v20, v20, v22, 2.0", "v_fma_f32 v21, v21, v23, 2.0",
                   "v_rcp_f32 v20, v20", "v_rcp_f32 v21, v21",
                   "v_fma_f32 v20, v20, -2.0, 1.0", "v_fma_f32 v21, v21, -2.0, 1.0",
                   f"v_mul_f32 v20, v20, v{x0}", f"v_mul_f32 v21, v21, v{x1}",
                   f"v_cvt_pk_bf16_f32 v{b+c}, v20, v21"]
            if c % 4 == 3:
                t = c // 4
                it.append(I(f"buffer_store_dwordx4 {vr(b+4*t)}, {vL16}, {srd(SRD_ACT)}, s{94+rb} offen offset:{(2*blk+t)*1024} sc1", tag="ACTst"))
    g.spread(it, 640 + 2, 768 - 1)
    QS = f"0x{f2u(1.4426950408889634 / 128 ** 0.5):x}"

    def q_epi(buf, dst):
        it = []
        for i in range(4):
            blk, rb = divmod(i, 2)
            b = buf + 16 * i
            for c in range(8):
                it += [f"v_mul_f32 v{b+2*c}, {QS}, v{b+2*c}", f"v_mul_f32 v{b+2*c+1}, {QS}, v{b+2*c+1}",
                       f"v_cvt_pk_bf16_f32 v{dst+16*rb+8*blk+c}, v{b+2*c}, v{b+2*c+1}"]
        return it
    for ks in range(31):
        for r in range(4):
            g.val[768 + 4 * (ks + 1) + r].append(I(f"v_accvgpr_write_b32 a{4*ks+r}, 0"))
    g.val[768] += [I("v_and_b32 v27, 31, v0"), I("v_lshlrev_b32 v27, 2, v27")]
    g.post[768] += [f"s_lshl_b32 s82, {sH}, 7", f"s_add_u32 s82, s82, {KVF}"]
    g.mem[770].append(poll_req(27, 82, "pollKV"))
    scalars(g, flag_addr("actA", 64) + flag_addr("actB", 65) + [f"s_add_u32 s{sPM[2]}, s77, 0x20000"], 772)
    g.post[794].append(WAIT("pollKV", "ACTst"))
    g.mem[795] += [flag_store(vOne, 64), flag_store(vOne, 65)]
    g.val[795].append(I(f"v_cmp_ne_u32 vcc, 1, v{vPoll}", needs=["pollKV"]))
    g.post[796] += ["s_cbranch_vccnz L_pollKV", "L_pollKV_back:"]
    poll_slow(ool, "L_pollKV", 27, 82)
    assert W_SLOT[24:] == [6, 7, 8, 9]
    for n in range(7):
        place(g, kv_dma(n), 799 + 12 * n, 3)
    g.spread(q_epi(ACC1, TP), 768 + 2, 768 + 60)
    ps = [
        "s_and_b32 s6, s2, 1", "s_lshl_b32 s6, s6, 5", "s_add_u32 s6, s6, s48",
        "s_lshr_b32 s71, s2, 1", "s_and_b32 s71, s71, 3",
        "s_lshl_b32 s101, s6, 7", "s_mul_i32 s7, s71, 28", f"s_add_u32 s101, s101, {ACTF}", "s_add_u32 s101, s101, s7",
        f"s_mul_i32 s6, s6, {AF_KS*1024}", f"s_add_u32 s6, s6, {AF_OFF}",
        "s_lshl_b32 s7, s7, 10", f"s_add_u32 s{sPA}, s6, s7", f"s_add_u32 s{sPA}, s{sPA}, {256*1024}",
        "s_lshl_b32 s7, s71, 16", f"s_add_u32 s{sPC}, s6, s7",
        f"s_xor_b32 s6, s71, {sW}", "s_xor_b32 s6, s6, 3", "s_lshr_b32 s6, s6, 1", "s_lshl_b32 s6, s6, 7",
        "s_lshr_b32 s7, s2, 6", "s_lshl_b32 s7, s7, 8", "s_add_u32 s6, s6, s7",
        f"s_and_b32 s7, {sW}, 1", "s_lshl_b32 s7, s7, 15", "s_add_u32 s6, s6, s7",
        f"s_mul_i32 s7, s71, {448*1024}", f"s_add_u32 s{sPW2}, s6, s7",
        "s_lshl_b32 s7, s71, 20", f"s_add_u32 s{sPWO}, s6, s7",
        f"s_and_b32 s6, {sJ}, 1", "s_lshl_b32 s6, s6, 16", f"s_add_u32 s{sPM[0]}, s77, s6",
        f"s_xor_b32 s{sPM[1]}, s{sPM[0]}, 0x10000", f"s_add_u32 {sM}, s77, {7*16384}",
        "s_and_b32 s71, s71, 1", "s_xor_b32 s71, s71, 1", "s_lshl_b32 s71, s71, 6",
    ]
    scalars(g, ps, 800)
    g.val[830] += [I("v_lshrrev_b32 v20, 3, v0"), I(f"v_and_b32 v21, 0x70, v{VW_DMA}"), I("v_xor_b32 v21, s71, v21")]
    g.val[831] += [I(f"v_lshl_add_u32 v{VP_DMA}, v20, 10, v21")] + [I(f"v_add_u32 v{VP_DMA+u}, {7168*u}, v{VP_DMA}") for u in (1, 2)]
    g.val[832] += [I(f"v_add_u32 v{VP_DMA+3}, {7168*3}, v{VP_DMA}"), I("v_min_u32 v27, 6, v0"), I("v_lshlrev_b32 v27, 2, v27")]
    c = []
    for r in range(16):
        a, b = divmod(r, 4)
        m = 0
        for l in range(64):
            if 8 * a + 4 * (l // 32) + b > l % 32:
                m |= 1 << l
        c += [f"s_mov_b32 s{MASKS+2*r}, 0x{m & 0xffffffff:x}", f"s_mov_b32 s{MASKS+2*r+1}, 0x{m >> 32:x}"]
    c += [f"s_mov_b32 {sKa}, 0x4000", f"s_mov_b32 {sCA}, s48", f"s_sub_u32 {sCB}, 30, s48", "s_nop 0"]
    scalars(g, c, 834)
    g.spread([f"v_mov_b32 v{NMA+r}, 0" for r in range(16)] +
             [f"v_mov_b32 v{vMask}, 0x1c000", f"v_mov_b32 v{vLA}, 0", f"v_mov_b32 v{vLB}, 0",
              f"v_mov_b32 v{vThr}, 0x{f2u(2.0**OPT['thr']):x}", f"v_mov_b32 v{vNinf}, 0xff800000"], 834, 850)
    g.post[886] += [f"s_cmp_eq_u32 {sCA}, 0", "s_cbranch_scc1 L_mask0", "L_mask0_back:"]
    ool.e("L_mask0:"); ool.e(mask_ops(NMA)); ool.e("s_branch L_mask0_back")
    for k in range(12):
        dst, off = (KF + 4 * k, k * 1024)
        g.mem[858 + 2 * k].append(I(f"ds_read_b128 {ar(dst)}, {vL16} offset:{off}", tag="K0", needs=["KV0"]))
    if OPT["wopf"]:
        g.post[630] += ["s_mul_i32 s56, s2, 7168", f"s_cmp_eq_u32 {sW}, 2", "s_cselect_b32 s56, s56, 0x1000000"]
        g.val[630].append(I("v_lshlrev_b32 v26, 7, v0"))
        g.mem[722].append(I(f"buffer_load_dword v{vDummy}, v26, {srd(SRD_W2)}, s56 offen", tag="wopf"))
        scalars(g, [f"s_sub_u32 s45, {sJ}, 2", "s_lshl_b32 s45, s45, 5", f"s_add_u32 s45, s45, {sH}", "s_lshl_b32 s45, s45, 2",
                    f"s_add_u32 s45, s45, {sW}", "s_lshl_b32 s45, s45, 13"], 856)
    g.mem[888].append(poll_req(27, 101, "pollACT"))
    scalars(g, [f"s_add_u32 s{SRD_KV}, s{SRD_KV}, {6*16384}", f"s_addc_u32 s{SRD_KV+1}, s{SRD_KV+1}, 0",
                f"s_lshl_b32 s7, {sJ}, 2", "s_sub_u32 s7, 58, s7", f"s_lshl_b32 s{SRD_KV+2}, s7, 14", f"s_mov_b32 m0, {sM}"], 882)
    g.val[892].append(I(f"v_mov_b32 v{vR0}, {vL16}"))
    if OPT["stamp"]:
        for G in (255, 383, 511, 639, 767):
            q = Prog(); stamp(q); g.post[G] += q.l
    p.e(g.emit())
    stamp(p)
    qe = q_epi(ACC0, BIAS)
    qb, qa = qe[24:48] + qe[72:96], qe[0:24] + qe[48:72]
    mB, mA = qk_mf(JB1, "0"), qk_mf(JA0)
    p.wait("K0")
    g = Gaps(mB[:4] + mA[:4] + mB[4:] + mA[4:])
    g.val[0] += [I(f"v_accvgpr_write_b32 a{124+r}, 0") for r in range(4)]
    g.spread(qb + ["s_nop 0"], 0, 8)
    g.spread(qa + ["s_nop 0"], 8, 12)
    g.spread(rowmax(S1, 20, 21) + [f"v_sub_f32 v{NMB+r}, 0, v20" for r in range(16)], 13, 16)
    p.e(g.emit())
    p.e("s_nop 2")
    p.e(rowmax(S0, 20, 21))
    first, _ = sm_ops(JA0)
    for r in range(16):
        p.e(f"v_sub_f32 v{S0+r}, v{S0+r}, v20")
    for G in range(9, 16):
        p.e(first[G])
    for r in range(16):
        p.e(f"v_sub_f32 v{NMA+r}, 0, v20")
    p.wait("KV3")
    stamp(p)
    for w in (1, 2, 3):
        p.e(f"s_cmp_eq_u32 {sW}, {w}\ns_cbranch_scc1 L_X1_{w}")
    p.e("s_branch L_X1_0")


def qfrag(blk, k):
    return (TP + 16 * blk + 4 * k) if k < 4 else (BIAS + 16 * blk + 4 * (k - 4))


class Job:
    def __init__(self, blk, par):
        self.blk = blk
        self.S = (S0, S1)[par]
        self.P = (P0, P1)[par]
        self.NM = (NMA, NMB)[blk]
        self.O = (OA, OB)[blk]
        self.L = (vLA, vLB)[blk]


JA0, JB1, JB0 = Job(0, 0), Job(1, 1), Job(1, 0)


def sm_ops(j):
    e = lambda r: f"v_exp_f32 v{EX+r}, v{j.S+r}"
    a = lambda r: (f"v_add_f32 v{vTs}, v{EX}, v{EX+1}" if r == 1 else f"v_add_f32 v{vTs}, v{vTs}, v{EX+r}")
    c = lambda i: f"v_cvt_pk_bf16_f32 v{j.P+i}, v{EX+2*i}, v{EX+2*i+1}"
    first = {9: [e(0), e(1)], 10: [e(2), e(3), a(1)], 11: [e(4), a(2)], 12: [e(5), a(3), a(4), c(0)],
             13: [e(6), e(7), a(5)], 14: [e(8), a(6), a(7), c(1)], 15: [e(9), a(8)]}
    second = {0: [e(10), a(9), c(2)], 1: [e(11), a(10), c(3)], 2: [e(12), a(11), c(4)], 3: [a(12)],
              4: [e(13), e(14), c(5)], 5: [e(15), a(13), a(14), c(6)],
              6: [a(15), f"v_cmp_nle_f32 vcc, v{vTs}, v{vThr}", c(7)]}
    return first, second


def qk_mf(j, c0=None):
    out = []
    for k in range(8):
        c = (vr(j.NM, 16) if c0 is None else c0) if k == 0 else vr(j.S, 16)
        out.append(f"{MF} {vr(j.S,16)}, {ar(KF+4*k)}, {vr(qfrag(j.blk,k))}, {c}")
    return out


def pv_mf(j):
    out = []
    for t in range(2):
        for d in range(4):
            o = ar(j.O + 16 * d, 16)
            out.append(f"{MF} {o}, {ar(VF+4*(4*t+d))}, {vr(j.P+4*t)}, {o}")
    return out


def rowmax(S, dst, tmp):
    l = [f"v_max3_f32 v{dst}, v{S}, v{S+1}, v{S+2}"]
    for r in range(3, 15, 2):
        l.append(f"v_max3_f32 v{dst}, v{dst}, v{S+r}, v{S+r+1}")
    l += [f"v_max_f32 v{dst}, v{dst}, v{S+15}", f"v_mov_b32 v{tmp}, v{dst}", "s_nop 1",
          f"v_permlane32_swap_b32 v{dst}, v{tmp}", f"v_max_f32 v{dst}, v{dst}, v{tmp}"]
    return l


RARE = {}


def rare(cur, nxt):
    fix = nxt is not None and nxt.blk == cur.blk
    name = f"L_rare_{cur.blk}_{cur.S}_{int(fix)}"
    if name in RARE:
        return name
    q = Prog()
    q.e(f"{name}:")
    q.e("s_nop 15")
    q.e(rowmax(cur.S, 20, 21))
    q.e("v_max_f32 v20, 0, v20")
    q.e("v_exp_f32 v21, -v20")
    for r in range(16):
        q.e(f"v_sub_f32 v{cur.NM+r}, v{cur.NM+r}, v20")
        q.e(f"v_sub_f32 v{cur.S+r}, v{cur.S+r}, v20")
        if fix:
            q.e(f"v_sub_f32 v{nxt.S+r}, v{nxt.S+r}, v20")
    q.e(f"v_mul_f32 v{cur.L}, v{cur.L}, v21")
    for r in range(64):
        q.e(f"v_accvgpr_read_b32 v22, a{cur.O+r}")
        q.e(f"v_mul_f32 v22, v22, v21")
        q.e(f"v_accvgpr_write_b32 a{cur.O+r}, v22")
    f, s = sm_ops(cur)
    for G in list(range(9, 16)) + list(range(0, 7)):
        for x in (f.get(G) or s.get(G)):
            if not x.startswith("v_cmp"):
                q.e(x)
    q.e("s_nop 1")
    q.e("s_setpc_b64 s[46:47]")
    errs = lint(q.l, name)
    assert not errs, errs
    RARE[name] = q
    return name


site_n = [0]


def step(ool, kind, w, extra=None, bar=True, ringdma=True, vmw=None):
    cur, nxt = dict(X=(JA0, JB1), Y=(JB1, JA0), T=(JB1, JB0), Z0=(JB0, JB1), Z1=(JB1, JB0), F=(JB0, None))[kind]
    rdV2, rdK, rdV1 = kind in ("X", "Z0", "Z1", "F"), kind in ("X", "T", "Z0", "Z1"), kind in ("Y", "T", "Z0", "Z1")
    dma = kind in ("X", "Z0", "Z1")
    rV2 = vR1 if kind == "Z1" else vR0
    rK = vR1 if kind in ("T", "Z1") else vR0
    rV1 = vR1 if kind == "Z0" else vR0
    sK = sKb if kind in ("T", "Z1") else sKa
    g = Gaps((qk_mf(nxt) if nxt else [None] * 8) + pv_mf(cur))
    if rdK:
        g.val[3].append(f"v_and_or_b32 v{rK}, {sK}, v{vMask}, {vL16}")
    g.val[9].append(f"v_add_f32 v{cur.L}, v{cur.L}, v{vTs}")
    _, second = sm_ops(cur)
    for G, l in second.items():
        g.val[G] += l
    if nxt:
        first, _ = sm_ops(nxt)
        for G, l in first.items():
            g.val[G] += l
    n = site_n[0]
    site_n[0] += 1
    g.pre[7] += [f"s_cbranch_vccnz L_site{n}", f"L_back{n}:"]
    ool.e(f"L_site{n}:\ns_call_b64 s[46:47], {rare(cur, nxt)}\ns_branch L_back{n}")
    if rdV2:
        for f in range(4, 8):
            g.mem[f - 4].append(f"ds_read_b128 {ar(VF+4*f)}, v{rV2} offset:{8192+1024*f}")
        g.pre[6].append("s_waitcnt lgkmcnt(%d)" % (2 if rdK else 0))
        if bar:
            g.pre[w if OPT["skew"] else 0].append("s_barrier")
    if rdK:
        for k in range(8):
            g.mem[4 + k].append(f"ds_read_b128 {ar(KF+4*k)}, v{rK} offset:{1024*k}")
        g.pre[15].append("s_waitcnt lgkmcnt(%d)" % (3 if rdV1 else 0))
    if rdV1:
        for f in range(4):
            g.mem[12 + f].append(f"ds_read_b128 {ar(VF+4*f)}, v{rV1} offset:{8192+1024*f}")
        if vmw != -1:
            g.pre[13].append("s_waitcnt vmcnt(%d)" % (vmw if vmw is not None else 11 if dma else 12))
    if dma and ringdma:
        for u, G in enumerate((3, 7, 11, 15)):
            g.mem[G].append(f"buffer_load_dwordx4 {vL16}, {srd(SRD_KV)}, {sK} offen offset:{u*1024} sc1 lds")
    if kind == "Y":
        g.pre[9].append("s_add_u32 m0, m0, 0x4000")
        g.pre[10].append("s_bitset0_b32 m0, 17")
        g.pre[11].append(f"s_add_u32 {sKa}, {sKa}, 0x4000")
        g.pre[12].append(f"s_sub_u32 {sCA}, {sCA}, 1")
    if kind == "X":
        g.pre[5].append(f"s_cmp_ge_u32 {sCA}, 2")
    if kind == "T":
        g.pre[0] += [f"s_add_u32 {sKb}, {sKa}, 0x4000", f"s_add_u32 {sM}, m0, 0x4000"]
        g.pre[1].append(f"s_add_u32 {sKa}, {sKa}, 0x8000")
        g.pre[2] += [f"s_sub_u32 s{SRD_KV}, s{SRD_KV}, 0x4000", f"s_subb_u32 s{SRD_KV+1}, s{SRD_KV+1}, 0"]
        g.pre[4].append(f"s_add_u32 s{SRD_KV+2}, s{SRD_KV+2}, 0x4000")
        g.pre[5].append(f"s_bitset0_b32 {sM}, 17")
    if kind in ("Z0", "Z1"):
        if ringdma:
            g.pre[1 if (w == 0 or not OPT["skew"]) else 0].append(f"s_mov_b32 m0, {sM}")
        g.pre[9].append(f"s_add_u32 {sM}, {sM}, 0x4000")
        g.pre[10].append(f"s_bitset0_b32 {sM}, 17")
        so = sKb if kind == "Z0" else sKa
        g.pre[11].append(f"s_add_u32 {so}, {so}, 0x8000")
    if kind == "Z0":
        g.pre[5].append(f"s_sub_u32 {sCB}, {sCB}, 1")
    if extra:
        extra(g)
    l = g.emit()
    cut = [i for i, x in enumerate(l) if x.text == g.mf[8]][0] + 1
    return l[:cut], l[cut:]


def mask_ops(NM):
    return [f"v_cndmask_b32 v{NM+r}, v{NM+r}, v{vNinf}, s[{MASKS+2*r}:{MASKS+2*r+1}]" for r in range(16)] + ["s_nop 1"]


def epilogue(p, blk, after={}, tag=None, ds=range(4)):
    O, L = (OA, vLA) if blk == 0 else (OB, vLB)
    if 0 in ds:
        p.e(f"""
v_mov_b32 v23, v{L}
s_lshl_b32 s6, {sH}, 13
s_add_u32 s6, s6, s{50+blk}
v_permlane32_swap_b32 v{L}, v23
v_add_f32 v23, v{L}, v23
v_rcp_f32 v24, v23
s_add_u32 s7, s6, 4096
""")
    for d in ds:
        b = ET + 16 * (d % 2)
        for r in range(16):
            p.e(f"v_accvgpr_read_b32 v{b+r}, a{O+16*d+r}")
        for c in range(8):
            p.e(f"v_pk_mul_f32 {vr(b+2*c,2)}, {vr(b+2*c,2)}, v[24:25] op_sel_hi:[1,0]")
        for c in range(8):
            p.e(f"v_cvt_pk_bf16_f32 v{b+c}, v{b+2*c}, v{b+2*c+1}")
        for t in range(2):
            f = 2 * d + t
            p.e(I(f"buffer_store_dwordx4 {vr(b+4*t)}, {vL16}, {srd(SRD_WS)}, s{6+f//4} offen offset:{(f%4)*1024} sc1", tag=tag))
        if d in after:
            p.e(after[d])


def attn_wave(w, ool):
    q = Prog()

    def memx(lst, gaps):
        def f(g):
            for (pre, ins), G in zip(lst, gaps):
                g.mem[G] += pre + [ins]
            assert len(gaps) >= len(lst)
        return f
    X1, X2 = step(ool, "X", w)
    def exY(g):
        if OPT["wopf"]:
            g.pre[8] += [f"s_cmp_eq_u32 {sCA}, 5", f"s_cbranch_scc1 L_wo_{w}", f"L_wo_{w}_back:"]
            ool.e(f"L_wo_{w}:\nbuffer_load_dword v{vDummy}, v26, {srd(SRD_WO)}, s45 offen\ns_branch L_wo_{w}_back")
    Y = sum(step(ool, "Y", w, exY), [])
    pl = p_aload(0, 24)
    gx = (8, 8, 9, 10, 12, 12, 13, 14, 14, 15)
    gt = (0, 0, 1, 1, 2, 2, 3, 3, 4, 5, 6, 6, 7, 7, 8, 8, 8, 9, 11, 12, 14, 15)
    _, X2c = step(Prog(), "X", w, memx(pl[:10], gx))
    T = sum(step(ool, "T", w, memx(pl[10:] + p_dma(0) + p_dma(1), gt), vmw=12 + 10 + 20), [])
    Z0a, Z0b = step(ool, "Z0", w)
    Z1 = sum(step(ool, "Z1", w), [])
    _, Z0bc = step(Prog(), "Z0", w, memx(p_dma(2), (8, 8, 11, 15)), ringdma=False, vmw=(3 if w >= 1 else -1))
    Z1c = sum(step(ool, "Z1", w, memx(p_dma(3) + p_dma(4), (3, 6, 7, 7, 8, 8, 11, 15)), bar=(w >= 1), ringdma=False, vmw=-1), [])
    F = sum(step(ool, "F", w, memx(p_dma(5) + p_aload(24, 28), (4, 6, 8, 9, 10, 11, 12, 13)), bar=(w >= 2)), [])
    for nm, seq in (("XY", X1 + X2 + Y + X1 + X2), ("XT", X1 + X2c + T + Z0a + Z0b + Z1 + Z0a + Z0bc + Z1c + F), ("TF", T + F)):
        errs = lint(seq, nm)
        assert not errs, "\n".join(errs)
    if OPT["sim"]:
        br = [I("s_cbranch_scc1 LL")]
        for nm, seq in (("XY", (X2 + Y + X1 + br) * 3), ("Z", (Z0b + Z1 + Z0a + br) * 3)):
            t, gp = simulate(seq, taken=("LL",))
            print(nm, w, sum(gp[30:62]))
        print("X2c+T", simulate(X2c + T)[0], "Z0bc+Z1c", simulate(Z0bc + Z1c)[0], "F", simulate(F)[0])
    q.e(f".p2align 5\nL_X_{w}:"); q.e(X2); q.e(Y); q.e(f"L_X1_{w}:"); q.e(X1)
    q.e(f"s_cbranch_scc1 L_X_{w}")
    q.e(f"s_cmp_eq_u32 {sCA}, 1\ns_cbranch_scc1 L_mA_{w}")
    ool.e(f"L_mA_{w}:"); ool.e(mask_ops(NMA)); ool.e(f"s_branch L_X_{w}")
    stamp(q, 9)
    q.e(f"s_waitcnt vmcnt(2)\nv_cmp_ne_u32 vcc, 1, v{vPoll}")
    if w == 3:
        q.e(f"s_cmp_eq_u32 {sCB}, -1\ns_cbranch_scc1 L_mB0\nL_mB0_back:")
        ool.e("L_mB0:"); ool.e(mask_ops(NMB)); ool.e("s_branch L_mB0_back")
    q.e(f"s_cbranch_vccnz L_pollACT{w}\nL_pollACT{w}_back:")
    poll_slow(ool, f"L_pollACT{w}", 27, 101)
    q.e(X2c); q.e(T)
    if w == 3:
        q.e(f"s_cmp_eq_u32 {sCB}, -1\ns_cbranch_scc1 L_TF")
        ool.e("L_TF:"); issue(ool, p_dma(2) + p_dma(3) + p_dma(4)); ool.e("s_branch L_F_3")
    if w < 2:
        e = Prog()
        e.e(sum(step(ool, "Z0", w), []))
        epilogue(e, 0, ds=(0, 1))
        e.e(sum(step(ool, "Z1", w), []))
        epilogue(e, 0, ds=(2, 3))
        errs = lint(T + e.l + Z0a, "epiA")
        assert not errs, "\n".join(errs)
        q.e(e.l)
    stamp(q, 10)
    q.e(f"s_branch L_Z0a_{w}")
    q.e(f".p2align 5\nL_Z_{w}:"); q.e(Z0b); q.e(Z1); q.e(f"L_Z0a_{w}:"); q.e(Z0a)
    q.e(f"s_cbranch_scc0 L_Z_{w}")
    stamp(q, 11)
    q.e(mask_ops(NMB)); q.e(Z0bc); q.e(Z1c)
    q.e(f"L_F_{w}:")
    t = Prog()
    t.e(F)
    stamp(t, 12)
    if w == 3:
        t.e("s_barrier")
    if w >= 2:
        epilogue(t, 0)
    else:
        t.e("s_nop 7")
    epilogue(t, 1, tag="CTXst")
    t.wait("PA27")
    tl = resolve_waits(t.l)
    errs = lint(tl, "tail")
    assert not errs, "\n".join(errs)
    q.e(tl)
    if w < 3:
        q.e("s_branch L_P4")
    return q


def oproj(ool):
    p = Prog()
    pre = [I("buffer_load_dword v0, v0, s[0:3], 0", tag=f"PA{ks}") for ks in range(28)]
    pre += [I("s_waitcnt vmcnt(0)")]
    pre += [I("buffer_load_dword v0, v0, s[0:3], 0", tag="CTXst") for _ in range(8)]
    p.e("L_P4:")
    stamp(p, 13)
    p.e(f"""
v_lshrrev_b32 v20, 5, v0
v_lshlrev_b32 v20, 9, v20
v_sub_u32 v20, v{VTR}, v20
s_and_b32 s6, s{sPM[0]}, 0x10000
v_add_u32 v{VP_TR[2]}, 0x20000, v20
v_add_u32 v{VP_TR[0]}, s6, v20
v_xor_b32 v{VP_TR[2]+1}, 64, v{VP_TR[2]}
v_xor_b32 v{VP_TR[0]+1}, 64, v{VP_TR[0]}
v_xor_b32 v{VP_TR[1]}, 0x10000, v{VP_TR[0]}
v_xor_b32 v{VP_TR[1]+1}, 0x10000, v{VP_TR[0]+1}
s_barrier
""")

    def rd(G):
        ks, i = divmod(G, 4)
        win, k = divmod(P_SLOT[ks // 4], 4)
        return [I(f"ds_read_b64_tr_b16 {vr(PWF+16*(ks%4)+4*i+2*j,2)}, v{VP_TR[win]+i%2} offset:{k*16384+(i//2)*8192+(ks%4)*2048+j*1024}",
                  tag=f"PR{ks}") for j in range(2)]
    for G in range(8):
        p.e(rd(G))
    p.wait("PR0")
    mf = []
    for ks in range(92):
        for i in range(4):
            d = vr(PACC + 16 * i, 16)
            mf.append(I(f"{MF} {d}, {vr(PWF+16*(ks%4)+4*i)}, {p_areg(ks)}, {'0' if ks == 0 else d}", needs=[f"PR{ks}", f"PA{ks}"]))
    NG = len(mf)
    g = Gaps(mf)
    for G in range(8, NG):
        g.mem[G - 8] += rd(G)
    for ks in range(1, 92):
        g.pre[4 * ks - 1].append(WAIT(f"PR{ks}", f"PA{ks}"))
    wstart = {6: 2, 7: 14, 8: 26, 9: 38, 10: 58, 11: 70}
    for s in range(12, PSLAB):
        wstart[s] = 92 + (s - 12) * 20
    for s in range(6, PSLAB):
        if s >= 10:
            b = s - 8 + (s % 2)
            assert wstart[s] > 16 * b - 9, (s, b)
        assert wstart[s] + 12 < 16 * (s - s % 2) - 9 - 16, s
        place(g, p_dma(s), wstart[s], 3 if s < 12 else 5)
    for b in range(2, PSLAB, 2):
        G = 16 * b - 9
        tags = [f"PW{s}" for s in (b, b + 1) if 6 <= s < PSLAB]
        if tags:
            g.post[G].append(WAIT(*tags))
        g.post[G].append("s_barrier")
    scalars(g, flag_addr("ctxA", 64) + flag_addr("ctxB", 65), 4)
    scalars(g, ["s_and_b32 s66, s2, 1", "s_lshl_b32 s66, s66, 5", "s_add_u32 s66, s66, s48", "s_lshl_b32 s66, s66, 2",
                "s_lshr_b32 s67, s2, 1", "s_and_b32 s67, s67, 3", "s_add_u32 s66, s66, s67", "s_lshl_b32 s66, s66, 7",
                f"s_add_u32 s66, s66, {CTXF}"], 16)
    g.val[16] += [I("v_and_b32 v27, 7, v0"), I("v_lshlrev_b32 v27, 2, v27")]
    FG = 30
    g.post[FG].append(WAIT("CTXst"))
    g.mem[FG + 1] += [flag_store(vOne, 64), flag_store(vOne, 65)]
    g.mem[60].append(poll_req(27, 66, "pollCTX"))
    g.post[82].append(WAIT("pollCTX"))
    g.val[83].append(I(f"v_cmp_ne_u32 vcc, 1, v{vPoll}", needs=["pollCTX"]))
    g.post[84] += ["s_cbranch_vccnz L_pollCTX", "L_pollCTX_back:"]
    poll_slow(ool, "L_pollCTX", 27, 66)
    al = p_aload(28, 92)
    for n, (pr, ins) in enumerate(al):
        G = 86 + n if n < 8 else max(86 + n, 4 * (28 + n) - 40)
        g.post[G - 1] += pr
        g.mem[G].append(ins)
    g.val[300] += [I("v_and_b32 v20, 31, v0"), I("v_lshrrev_b32 v21, 5, v0"), I("v_lshlrev_b32 v20, 10, v20")]
    g.val[301] += [I("v_lshl_add_u32 v22, v21, 3, v20"), I("v_lshl_add_u32 v23, v21, 4, v20"), I("v_and_b32 v27, 3, v0"), I("v_lshlrev_b32 v27, 2, v27")]
    ex = ["s_and_b32 s68, s2, 1", "s_lshl_b32 s68, s68, 5", "s_add_u32 s68, s68, s48", "s_lshl_b32 s68, s68, 15",
          "s_lshr_b32 s7, s2, 6", "s_lshl_b32 s6, s7, 8", "s_add_u32 s68, s68, s6", "s_lshl_b32 s6, s67, 6", "s_add_u32 s68, s68, s6",
          "s_and_b32 s69, s2, 1", "s_lshl_b32 s69, s69, 3", f"s_add_u32 s69, s69, {sJ}", "s_lshl_b32 s69, s69, 2", "s_add_u32 s69, s69, s7",
          "s_lshl_b32 s69, s69, 17", f"s_lshl_b32 s6, {sW}, 11", "s_add_u32 s69, s69, s6", f"s_add_u32 s69, s69, {EX_OFF}"]
    for i in range(3):
        ex += [f"s_xor_b32 s6, s67, {i ^ 3}", "s_lshl_b32 s7, s6, 2", "s_add_u32 s7, s7, s67", "s_lshl_b32 s7, s7, 13", f"s_add_u32 s{70+i}, s69, s7",
               "s_lshl_b32 s7, s67, 2", "s_add_u32 s7, s7, s6", "s_lshl_b32 s7, s7, 13", f"s_add_u32 s{73+i}, s69, s7"]
    ex += flag_addr("ex", 76) + ["s_and_b32 s77, s76, 0xffffff80"]
    scalars(g, ex, 260)
    for a in range(4):
        g.mem[330 + 4 * a].append(I(f"buffer_load_dwordx2 {vr(PX+2*a,2)}, v22, {srd(SRD_X)}, s68 offen offset:{16*a}", tag="xres"))
    if OPT["stamp"]:
        q = Prog(); stamp(q, 14); g.post[81] += q.l
        q = Prog(); stamp(q, 15); g.post[85] += q.l
        q = Prog(); stamp(q, 16); g.post[111] += q.l
    p.e(g.emit())
    stamp(p, 17)
    p.e("s_nop 3")
    for i in range(3):
        b = PACC + 16 * i
        for c in range(8):
            p.e(f"v_cvt_pk_bf16_f32 v{b+c}, v{b+2*c}, v{b+2*c+1}")
        for t in range(2):
            p.e(I(f"buffer_store_dwordx4 {vr(b+4*t)}, {vL16}, {srd(SRD_WS)}, s{70+i} offen offset:{t*1024} sc1", tag="EXst"))
    b = PACC + 48
    p.wait("xres")
    for c in range(8):
        p.e(f"v_lshlrev_b32 v20, 16, v{PX+c}")
        p.e(f"v_and_b32 v21, 0xffff0000, v{PX+c}")
        p.e(f"v_add_f32 v{b+2*c}, v{b+2*c}, v20")
        p.e(f"v_add_f32 v{b+2*c+1}, v{b+2*c+1}, v21")
    p.wait("EXst")
    p.e(flag_store(vOne, 76))
    stamp(p, 18)
    p.e(f"""
s_mov_b32 s96, 0x40000
L_pollEX:
buffer_load_dword v{vPoll}, v27, {srd(SRD_WS)}, s77 offen sc1
s_waitcnt vmcnt(0)
v_cmp_ne_u32 vcc, 1, v{vPoll}
s_sub_u32 s96, s96, 1
s_cbranch_scc1 L_pollEX_done
s_cbranch_vccnz L_pollEX
L_pollEX_done:
""")
    stamp(p, 19)
    for i in range(3):
        for t in range(2):
            p.e(I(f"buffer_load_dwordx4 {vr(PR+8*i+4*t)}, {vL16}, {srd(SRD_WS)}, s{73+i} offen offset:{t*1024} sc1", tag=f"EXr{i}"))
    for i in range(3):
        p.wait(f"EXr{i}")
        for c in range(8):
            p.e(f"v_lshlrev_b32 v20, 16, v{PR+8*i+c}")
            p.e(f"v_and_b32 v21, 0xffff0000, v{PR+8*i+c}")
            p.e(f"v_add_f32 v{b+2*c}, v{b+2*c}, v20")
            p.e(f"v_add_f32 v{b+2*c+1}, v{b+2*c+1}, v21")
    for c in range(8):
        p.e(f"v_cvt_pk_bf16_f32 v{b+c}, v{b+2*c}, v{b+2*c+1}")
    p.e("s_nop 1")
    for t in range(2):
        p.e(f"v_permlane32_swap_b32 v{b+4*t}, v{b+4*t+2}")
        p.e(f"v_permlane32_swap_b32 v{b+4*t+1}, v{b+4*t+3}")
    for t in range(2):
        p.e(f"buffer_store_dwordx4 {vr(b+4*t)}, v23, {srd(SRD_OUT)}, s68 offen offset:{32*t}")
    stamp(p, 20)
    rstamp(p, 61)
    stamp_flush(p)
    p.e("L_end:\ns_endpgm")
    l = resolve_waits(pre + p.l)[len(pre):]
    errs = lint(l, "oproj")
    assert not errs, "\n".join(errs)
    if OPT["sim"]:
        t, gp = simulate(l)
        print("oproj", t, sum(gp))
    return l


def kernel():
    p, ool = Prog(), Prog()
    setup(p)
    if OPT["stamp"]:
        p.e("v_mov_b32 v31, 0")
    rstamp(p, 60)
    stamp(p)
    projections(p, ool)
    head = resolve_waits(p.l)
    errs = lint(head, "head")
    assert not errs, "\n".join(errs)
    if OPT["sim"]:
        t, gp = simulate(head)
        print("head", t, [sum(gp[a:b]) for a, b in ((0, 256), (256, 384), (384, 512), (512, 640), (640, 768), (768, 895))])
    s = text_of(head)
    for w in range(4):
        s += text_of(attn_wave(w, ool).l)
    s += text_of(oproj(ool))
    s += text_of(ool.l) + "L_hot_end:\n"
    for q in RARE.values():
        s += text_of(q.l)
    return s


def main():
    k = kernel()
    s = f"""; layernorm + K/V/Q/MLP projections + causal attention + output projection in one launch (generated by gen/gen2.py)
; @launch grid=(256,1,1) block=(256,1,1) lds=163840
.amdgcn_target "amdgcn-amd-amdhsa--gfx950"
.text
.globl {NAME}_kernel
.p2align 8
.type {NAME}_kernel,@function
{NAME}_kernel:
{k}
.section .rodata,"a"
.p2align 6
.amdhsa_kernel {NAME}_kernel
  .amdhsa_next_free_vgpr 512
  .amdhsa_next_free_sgpr 102
  .amdhsa_accum_offset 256
  .amdhsa_group_segment_fixed_size 0
  .amdhsa_kernarg_size 104
  .amdhsa_user_sgpr_count 2
  .amdhsa_user_sgpr_kernarg_segment_ptr 1
  .amdhsa_system_sgpr_workgroup_id_x 1
.end_amdhsa_kernel
"""
    open(sys.argv[1], "w").write(s)


main()
```

```python
import re


class I:
    __slots__ = ("text", "tag", "needs", "kind")

    def __init__(self, text, tag=None, needs=()):
        self.text = text
        self.tag = tag
        self.needs = tuple(needs)
        op = text.split()[0] if text.split() else ""
        if op.startswith("ds_"):
            self.kind = "ds"
        elif op.startswith("buffer_") or op.startswith("global_"):
            self.kind = "vm"
        elif op.startswith("s_load") or op.startswith("s_memtime") or op.startswith("s_memrealtime"):
            self.kind = "sm"
        elif op == "WAIT":
            self.kind = "wait"
        elif op.endswith(":") or op.startswith(".") or op.startswith(";") or op == "":
            self.kind = "meta"
        else:
            self.kind = "op"


def WAIT(*tags):
    return I("WAIT", needs=tags)


class Prog:
    def __init__(self):
        self.l = []

    def e(self, x, tag=None, needs=()):
        if isinstance(x, I):
            self.l.append(x)
        elif isinstance(x, (list, tuple)):
            for y in x:
                self.e(y)
        else:
            for ln in x.strip("\n").split("\n"):
                ln = ln.strip()
                if ln:
                    self.l.append(I(ln, tag, needs))
        return self

    def wait(self, *tags):
        self.l.append(WAIT(*tags))


def resolve_waits(lst):
    out = []
    ds, vm = [], []
    seen = set()
    for ins in lst:
        if ins.kind == "wait":
            parts = []
            for name, q, mx in (("vmcnt", vm, 63), ("lgkmcnt", ds, 15)):
                idx = -1
                for i, t in enumerate(q):
                    if t in ins.needs:
                        idx = i
                if idx >= 0:
                    n = min(len(q) - 1 - idx, mx)
                    del q[: len(q) - n]
                    parts.append(f"{name}({n})")
            for t in ins.needs:
                assert t in seen, f"WAIT on unknown tag {t}"
            if parts:
                out.append(I("s_waitcnt " + " ".join(parts)))
            continue
        if ins.text.startswith("s_waitcnt"):
            m = re.search(r"vmcnt\((\d+)\)", ins.text)
            if m:
                n = int(m.group(1))
                if len(vm) > n:
                    del vm[: len(vm) - n]
            m = re.search(r"lgkmcnt\((\d+)\)", ins.text)
            if m:
                n = int(m.group(1))
                if len(ds) > n:
                    del ds[: len(ds) - n]
        for t in ins.needs:
            assert t in seen, f"needs unknown tag {t}: {ins.text}"
            assert t not in ds and t not in vm, f"unsatisfied need {t}: {ins.text}"
        if ins.kind == "ds":
            ds.append(ins.tag)
        elif ins.kind == "vm":
            vm.append(ins.tag)
            assert len(vm) <= 63 + 64, "vmcnt overflow"
        if ins.tag is not None:
            seen.add(ins.tag)
        out.append(ins)
    return out


class Gaps:
    def __init__(self, mf):
        self.mf = mf
        n = len(mf)
        self.pre = [[] for _ in range(n)]
        self.mem = [[] for _ in range(n)]
        self.val = [[] for _ in range(n)]
        self.post = [[] for _ in range(n)]

    def cost(self, g):
        c = 0
        for x in self.mem[g]:
            c += 8 if (x.kind == "vm") else 4
        for x in self.val[g]:
            c += vcost(x)
        c += 4 * len(self.post[g]) + 4 * max(0, len(self.pre[g]) - 1)
        return c

    def spread(self, items, g0, g1, cap=24):
        items = [x if isinstance(x, I) else I(x) for x in items]
        tot = sum(vcost(x) for x in items)
        free = [max(0, cap - self.cost(g)) for g in range(g0, g1)]
        sf = sum(free)
        scale = tot / sf if sf else 1.0
        acc = 0.0
        used = 0.0
        i = 0
        for k, g in enumerate(range(g0, g1)):
            acc += free[k] * scale
            while i < len(items) and (used + vcost(items[i]) / 2 <= acc or g == g1 - 1):
                self.val[g].append(items[i])
                used += vcost(items[i])
                i += 1
        assert i == len(items)

    def emit(self):
        out = []
        for g, m in enumerate(self.mf):
            if m is not None:
                out.append(m if isinstance(m, I) else I(m))
            for grp in (self.pre[g], self.mem[g], self.val[g], self.post[g]):
                for x in grp:
                    out.append(x if isinstance(x, I) else I(x))
        return out


TRANS = ("v_exp_f32", "v_log_f32", "v_rcp_f32", "v_rsq_f32", "v_sqrt_f32")


def vcost(x):
    t = x.text if isinstance(x, I) else x
    op = t.split()[0]
    if op in TRANS:
        return 8
    if op.startswith("buffer_") or op.startswith("global_"):
        return 16
    if op.startswith("ds_"):
        return 12
    return 4


_REG = re.compile(r"\b([vas])(\d+)\b|\b([vas])\[(\d+):(\d+)\]")


def regs(s):
    r = set()
    for m in _REG.finditer(s):
        if m.group(1):
            r.add((m.group(1), int(m.group(2))))
        else:
            for k in range(int(m.group(4)), int(m.group(5)) + 1):
                r.add((m.group(3), k))
    if re.search(r"\bvcc\b", s):
        r.add(("s", "vcc"))
    if re.search(r"\bm0\b", s):
        r.add(("s", "m0"))
    return r


def split_ops(text):
    text = text.split(";")[0].strip()
    p = text.split(None, 1)
    op = p[0]
    if len(p) == 1:
        return op, []
    return op, [x.strip() for x in p[1].split(",")]


def rw(text):
    op, a = split_ops(text)
    if op.startswith("v_mfma"):
        return "mfma", regs(a[0]), regs(a[1]) | regs(a[2]) | regs(a[3]), regs(a[3])
    if op.startswith("v_cmp"):
        return "valu", regs(a[0]), regs(",".join(a[1:])), None
    if op.startswith("v_permlane"):
        r = regs(a[0]) | regs(a[1])
        return "perm", r, r, None
    if op.startswith("v_readfirstlane") or op.startswith("v_readlane"):
        return "rdlane", regs(a[0]), regs(",".join(a[1:])), None
    if op.startswith("v_"):
        w = regs(a[0])
        r = regs(",".join(a[1:]))
        if op.startswith("v_fmac") or op.startswith("v_dot2c"):
            r |= w
        if op in ("v_add_co_u32", "v_addc_co_u32"):
            w |= regs(a[1])
        cls = "trans" if op.replace("_e32", "") in TRANS else "valu"
        if "row_" in text or "quad_perm" in text:
            cls = "dpp"
        return cls, w, r, None
    if op.startswith("ds_read"):
        return "ds", regs(a[0]), regs(a[1]), None
    if op.startswith("ds_write"):
        return "ds", set(), regs(",".join(a)), None
    if op.startswith("buffer_load") or op.startswith("global_load"):
        if text.rstrip().endswith("lds") or " lds" in text:
            return "dma", set(), regs(",".join(a)) | {("s", "m0")}, None
        return "vm", regs(a[0]), regs(",".join(a[1:])), None
    if op.startswith("buffer_store") or op.startswith("buffer_atomic"):
        return "vmst", set(), regs(",".join(a)), regs(a[0]) if "x4" in op or "x3" in op else set()
    if op.startswith("global_store"):
        return "vmst", set(), regs(",".join(a)), regs(a[1]) if "x4" in op or "x3" in op else set()
    if op.startswith("s_"):
        if op.startswith("s_cmp") or op.startswith("s_cbranch") or op in ("s_waitcnt", "s_barrier", "s_nop", "s_branch", "s_endpgm", "s_setprio", "s_sleep", "s_setpc_b64", "s_bitcmp1_b32"):
            return "salu", set(), regs(",".join(a)), None
        return "salu", regs(a[0]) if a else set(), regs(",".join(a[1:])), None
    if op.startswith("buffer_"):
        return "vm", set(), set(), None
    raise Exception("lint: unknown op " + text)


def lint(lst, name=""):
    t = 0
    last_mf = -100
    last_ps = 8
    hist = []
    errs = []
    VAL = ("valu", "trans", "perm", "rdlane", "dpp")
    for ins in lst:
        if ins.kind in ("meta", "wait"):
            continue
        text = ins.text
        cls, w, r, ex = rw(text)
        if cls == "mfma":
            t = max(t, last_mf + last_ps)
        for (t0, c0, w0, r0, e0, x0) in hist[-40:]:
            ps0 = 4 if "16x16x32" in x0 else 8
            d = t - t0 - 1
            need = 0
            vw0 = {x for x in w0 if x[0] in "va"}
            sw0 = {x for x in w0 if x[0] == "s"}
            if c0 in VAL and cls == "mfma" and vw0 & r:
                need = 2
            if c0 == "mfma":
                if cls in VAL and w0 & (r | w):
                    need = ps0 + 4
                if cls in ("ds", "vm", "vmst", "dma") and w0 & (r | w):
                    need = ps0 + 4
                if cls == "mfma":
                    op, a = split_ops(text)
                    if w0 & (regs(a[1]) | regs(a[2])):
                        need = ps0 + 4
                    elif w0 & ex and w0 != ex:
                        need = ps0 + 2
                if cls in VAL and e0 & w:
                    need = max(need, ps0 - 1)
            if c0 == "trans" and cls in ("valu", "perm", "rdlane", "dpp") and vw0 & r:
                need = max(need, 1)
            if c0 in VAL and cls in ("perm", "dpp") and vw0 & r:
                need = max(need, 2)
            if c0 in VAL and cls == "rdlane" and vw0 & r:
                need = max(need, 1)
            if c0 in VAL and cls in VAL and sw0 & r:
                need = max(need, 2)
            if c0 in VAL and cls in ("vm", "vmst", "dma") and sw0 & r:
                need = max(need, 5)
            if c0 == "salu" and cls == "dma" and ("s", "m0") in w0:
                need = max(need, 1)
            if c0 == "vmst" and e0 and e0 & w:
                need = max(need, 2)
            if d < need:
                errs.append(f"[{name}] need {need} have {d}: '{x0}' -> '{text}'")
        hist.append((t, cls, w, r, ex, text))
        if cls == "mfma":
            last_mf = t
            last_ps = 4 if "16x16x32" in text else 8
        op = text.split()[0]
        if op == "s_nop":
            t += int(text.split()[1]) + 1
        else:
            t += 1
    return errs


def text_of(lst):
    o = []
    for ins in lst:
        if ins.kind == "meta":
            o.append(ins.text)
        else:
            o.append("  " + ins.text)
    return "\n".join(o) + "\n"


def simulate(lst, verbose=False, taken=()):
    t = 0
    last_mf = -100
    last_len = 32
    valu_done = -100
    sgpr_done = -100
    gaps = []
    prev_trans = False
    pen = 0
    for ins in lst:
        if ins.kind == "meta":
            continue
        text = ins.text
        op = text.split()[0]
        if op == "WAIT":
            cls = "salu"
        else:
            cls, w, r, ex = rw(text)
        if cls == "mfma":
            t = max(t, last_mf + last_len)
            if last_mf > -100:
                gaps.append(t - last_mf)
            last_mf = t
            last_len = 16 if "16x16x32" in text else 32
            t += 4
            prev_trans = False
            pen = 0
        elif cls in ("valu", "trans", "perm", "rdlane", "dpp"):
            t = max(t, last_mf + 8)
            if cls != "trans":
                t += pen
            pen = 0
            d = 8 if cls == "trans" else 4
            valu_done = t + d + 8
            if any(x[0] == "s" for x in w):
                sgpr_done = t + 24
            t += d
            prev_trans = cls == "trans"
        elif cls in ("ds",):
            t = max(t, valu_done, last_mf + 8) + 4
            prev_trans = False
        elif cls in ("vm", "vmst", "dma"):
            t = max(t, valu_done, last_mf + 8) + 8
            prev_trans = False
        else:
            t = max(t, sgpr_done)
            if prev_trans:
                pen = 4
            prev_trans = False
            if op == "s_nop":
                t += 4 * (int(text.split()[1]) + 1)
            elif op == "s_barrier":
                t += 8
            elif op == "s_branch":
                t += 20
            elif op.startswith("s_cbranch"):
                t += 24 if text.split()[1] in taken else 8
            else:
                t += 4
    return t, gaps


def slots(x):
    t = x.text if isinstance(x, I) else x
    op = t.split()[0]
    if op.endswith(":"):
        return 0
    if op in TRANS or op.startswith("buffer_") or op.startswith("global_") or op == "s_barrier" or op.startswith("s_cbranch"):
        return 2
    if op == "s_nop":
        return int(t.split()[1]) + 1
    return 1


class Half:
    def __init__(self, mf):
        self.mf = mf
        n = len(mf)
        self.sh = [[] for _ in range(n)]
        self.mem = [[] for _ in range(n)]
        self.val = [[] for _ in range(n)]
        self.post = [[] for _ in range(n)]

    def cost(self, h):
        c = max(0, sum(slots(x) for x in self.sh[h]) - 1)
        for grp in (self.mem[h], self.val[h], self.post[h]):
            c += sum(slots(x) for x in grp)
        return c

    def before(self, lst, h, lo):
        lst = list(lst)
        k = h
        while lst:
            while k > lo and self.sh[k]:
                k -= 1
            if k == lo:
                for x in lst:
                    self.sh[k] += list(x) if isinstance(x, tuple) else [x]
                return lo
            x = lst.pop()
            self.sh[k] += list(x) if isinstance(x, tuple) else [x]
        return k

    def after(self, lst, h):
        for x in lst:
            while self.sh[h]:
                h += 1
            self.sh[h] += list(x) if isinstance(x, tuple) else [x]
        return h

    def fill(self, items, hs, dense=False):
        items = [x if isinstance(x, I) else I(x) for x in items]
        hs = list(hs)
        tot = sum(slots(x) for x in items)
        free = [max(0, 2 - self.cost(h)) for h in hs]
        sf = sum(free)
        i, used, acc = 0, 0, 0.0
        last = hs[0]
        for k, h in enumerate(hs):
            if dense:
                acc = used + free[k]
            elif tot > sf:
                acc += free[k] + (tot - sf) / len(hs)
            else:
                acc += free[k] * tot / sf
            room = free[k]
            while i < len(items):
                x = items[i]
                c = slots(x)
                final = k == len(hs) - 1
                if not final:
                    if tot <= sf or dense:
                        if c > room or used + c > acc + 1.01:
                            break
                    elif used + c > acc + (0.99 if room > 0 else 0.01):
                        break
                    if x.kind in ("vm", "ds") and self.val[h]:
                        break
                (self.mem if x.kind in ("vm", "ds") and not self.val[h] else self.val)[h].append(x)
                used += c
                room -= c
                i += 1
                last = h
        assert i == len(items)
        return last

    def emit(self):
        out = []
        for h, m in enumerate(self.mf):
            if m is not None:
                out.append(m if isinstance(m, I) else I(m))
            for grp in (self.sh[h], self.mem[h], self.val[h], self.post[h]):
                for x in grp:
                    out.append(x if isinstance(x, I) else I(x))
        return out
```

```python
import sys, struct
from asmlib import *

NAME = "parallel_sum__compressed_kv_cla__dense_activation_mish__prompt"
OPT = dict(stamp=0, thr=40, rot=7, nt=0, xnt=0, deep=1, cpf=1, wopf=1, sim=0, skew=1, kvst=0, wsoff=0, cpf2=1, padat=-1, padus=0)
for a in sys.argv[2:]:
    k, v = a.split("=")
    assert k in OPT, k
    OPT[k] = int(v)


def f2u(x):
    return struct.unpack("<I", struct.pack("<f", x))[0]


KVFL = ("", "sc1", "nt", "sc1 nt")[OPT["kvst"]]
MF = "v_mfma_f32_16x16x32_bf16"
MF32 = "v_mfma_f32_32x32x16_bf16"
XN_OFF = 0
KV_OFF = 2 << 20
AF_OFF = 34 << 20
AF_KS = 368
FL_OFF = 58 << 20
CTXF, ACTF, KVF, EXF = FL_OFF, FL_OFF + 32768, FL_OFF + 40960, FL_OFF + 49152
ST_OFF = 60 << 20
EX_OFF = 64 << 20
WS_BYTES = 268435456 - (OPT['wsoff'] << 20)

sW, sH, sJ = "s3", "s4", "s5"
SRD_CKV, SRD_WUK, SRD_WUV, SRD_W1, SRD_WQ, SRD_WS, SRD_X, SRD_B1, SRD_DBG, SRD_ACT = (
    8, 12, 16, 20, 24, 28, 32, 36, 40, 44)
SRD_W2, SRD_WO, SRD_OUT, SRD_KV = 8, 12, 16, 36


def srd(n):
    return f"s[{n}:{n+3}]"


def vr(b, n=4):
    return f"v[{b}:{b+n-1}]"


def ar(b, n=4):
    return f"a[{b}:{b+n-1}]"


vL16 = "v1"
VA_DMA, VW_DMA, VW1_DMA, VTR, VA_RD = 2, 6, 10, 14, 18
WF, TP, ACC0, ACC1, BIAS = 32, 64, 96, 160, 224
LDS_A = 98304
vOne, vPoll, vDummy = 28, 29, 30
S0, S1, EX, P0, P1, NMA, NMB, ONES = 192, 208, 128, 144, 152, 96, 112, 228
OA, OB, KF, VF = 0, 64, 128, 160
vR0, vR1, vMask, vChk, vBit, vNinf = 2, 3, 4, 5, 6, 7
sKa, sKb, sM, sCA, sCB = "s52", "s53", "s54", "s55", "s56"
MASKS = 64
SHIFT = float(OPT["thr"])
VP_DMA = 10
VP_TR = (224, 228, 232)
sPA, sPC, sPW2, sPWO, sPM = 57, 58, 59, 60, (61, 62, 63)
PWF, PACC, PX, PR = 64, 128, 192, 200


def mk_srd(n, lo, nbytes):
    return [f"s_mov_b32 s{n}, s{lo}", f"s_and_b32 s{n+1}, s{lo+1}, 0xffff",
            f"s_mov_b32 s{n+2}, {nbytes}", f"s_mov_b32 s{n+3}, 0x20000"]


stamp_n = [0]


pad_n = [0]


def stamp(p, idx=None):
    if OPT["padat"] >= 0:
        if idx is None:
            idx = stamp_n[0]
            stamp_n[0] += 1
        if idx == OPT["padat"]:
            n = pad_n[0]
            pad_n[0] += 1
            p.e(f"""v_readfirstlane_b32 s96, v31
L_pad{n}:
s_memrealtime s[98:99]
s_waitcnt lgkmcnt(0)
s_sub_u32 s98, s98, s96
s_cmp_lt_u32 s98, {OPT["padus"]*100}
s_cbranch_scc1 L_pad{n}""")
        return
    if not OPT["stamp"]:
        return
    if idx is None:
        idx = stamp_n[0]
        stamp_n[0] += 1
    p.e(f"s_memtime s[98:99]")
    p.e("s_waitcnt lgkmcnt(0)")
    p.e(f"v_writelane_b32 v31, s98, {idx}")


def rstamp(p, lane):
    if not OPT["stamp"]:
        return
    p.e(f"s_memrealtime s[98:99]")
    p.e("s_waitcnt lgkmcnt(0)")
    p.e(f"v_writelane_b32 v31, s98, {lane}")


def stamp_flush(p):
    if not OPT["stamp"]:
        return
    p.e("s_lshl_b32 s98, s2, 2")
    p.e(f"s_add_u32 s98, s98, {sW}")
    p.e("s_lshl_b32 s98, s98, 8")
    p.e(f"s_add_u32 s98, s98, {ST_OFF}")
    p.e(f"v_lshrrev_b32 v30, 2, {vL16}")
    p.e(f"buffer_store_dword v31, v30, {srd(SRD_WS)}, s98 offen")


def setup(p):
    p.e(f"""
s_cmp_ge_u32 s2, 256
s_cbranch_scc1 L_end
""")
    if OPT["padat"] >= 0:
        p.e("s_memrealtime s[98:99]\ns_waitcnt lgkmcnt(0)\nv_mov_b32 v31, s98")
    p.e(f"""
s_load_dwordx16 s[48:63], s[0:1], 0
s_load_dwordx8 s[64:71], s[0:1], 64
s_load_dwordx2 s[72:73], s[0:1], 96
v_lshrrev_b32 v20, 6, v0
v_and_b32 v0, 63, v0
v_readfirstlane_b32 {sW}, v20
v_lshlrev_b32 {vL16}, 4, v0
s_and_b32 s6, s2, 7
s_lshr_b32 s7, s2, 6
s_lshl_b32 s7, s7, 3
s_add_u32 {sH}, s6, s7
s_lshr_b32 {sJ}, s2, 3
s_and_b32 {sJ}, {sJ}, 7
""")
    if OPT["cpf"]:
        p.e(f"""
s_getpc_b64 s[96:97]
L_pc:
s_lshr_b32 s6, s2, 3
s_mul_i32 s6, s6, 3072
v_min_u32 v20, 23, v0
v_lshl_add_u32 v20, v20, 7, s6
v_min_u32 v20, L_hot_end-L_pc, v20
s_cmp_lg_u32 {sW}, 0
s_cbranch_scc1 L_nocpf
global_load_dword v{vDummy}, v20, s[96:97]
L_nocpf:
""")
        p.l[-2].kind = "op"
    p.e(f"""
v_lshrrev_b32 v20, 3, v0
v_and_b32 v21, 7, v0
v_lshrrev_b32 v22, 4, v0
v_xor_b32 v23, v21, v22
v_lshlrev_b32 v23, 4, v23
v_lshl_add_u32 v{VA_DMA}, v20, 10, v23
v_xor_b32 v24, 64, v{VA_DMA}
v_add_u32 v{VA_DMA+1}, {7*1024}, v24
v_add_u32 v{VA_DMA+2}, {14*1024}, v{VA_DMA}
v_add_u32 v{VA_DMA+3}, {21*1024}, v24
v_and_b32 v22, 1, v22
v_lshlrev_b32 v22, 1, v22
v_xor_b32 v23, v21, v22
v_lshlrev_b32 v23, 4, v23
v_xor_b32 v25, 64, v23
v_lshl_add_u32 v{VW_DMA}, v20, 13, v23
v_lshl_add_u32 v{VW_DMA+1}, v20, 13, v25
v_mul_u32_u24 v24, 3584, v20
v_add_u32 v{VW1_DMA}, v24, v23
v_add_u32 v{VW1_DMA+1}, v24, v25
""")
    for b, pitch in ((VW_DMA, 8192), (VW1_DMA, 3584)):
        d = 8 * pitch - 1024
        p.e(f"v_add_u32 v{b+2}, {2*d}, v{b}\nv_add_u32 v{b+3}, {3*d}, v{b+1}\nv_add_u32 v{b+1}, {d}, v{b+1}")
    p.e(f"""
v_lshrrev_b32 v20, 4, v0
v_lshlrev_b32 v20, 3, v20
v_bfe_u32 v21, v0, 2, 2
v_add_u32 v20, v20, v21
v_lshlrev_b32 v20, 7, v20
v_and_b32 v21, 3, v0
v_lshl_add_u32 v20, v21, 3, v20
v_bfe_u32 v21, v0, 3, 2
v_lshl_add_u32 v{VTR}, v21, 5, v20
""")
    for cb in range(1, 4):
        p.e(f"v_xor_b32 v{VTR+cb}, {32*cb}, v{VTR}")
    p.e(f"""
s_lshl_b32 s6, {sW}, 13
s_add_u32 s74, s6, {LDS_A}
v_and_b32 v20, 15, v0
v_lshlrev_b32 v20, 7, v20
v_add_u32 v20, s74, v20
v_bfe_u32 v21, v0, 1, 3
v_lshrrev_b32 v22, 4, v0
v_xor_b32 v21, v21, v22
v_lshl_add_u32 v{VA_RD}, v21, 4, v20
v_xor_b32 v{VA_RD+1}, 64, v{VA_RD}
""")
    p.e(f"""
s_lshl_b32 s75, {sJ}, 2
s_add_u32 s75, s75, {sW}
s_lshl_b32 s75, s75, 16
s_lshl_b32 s76, {sH}, 8
s_lshl_b32 s77, {sW}, 12
s_lshr_b32 s6, {sW}, 1
s_lshl_b32 s6, s6, 7
s_and_b32 s7, {sW}, 1
s_lshl_b32 s7, s7, 18
s_add_u32 s78, s76, s6
s_add_u32 s78, s78, s7
s_add_u32 s79, {sJ}, {sH}
s_and_b32 s79, s79, {OPT["rot"]}
s_lshl_b32 s100, s79, 19
s_lshl_b32 s101, s79, 7
v_and_b32 v20, 7, v0
v_lshrrev_b32 v21, 3, v0
v_lshlrev_b32 v21, 4, v21
v_lshl_add_u32 v20, v20, 10, v21
s_lshl_b32 s6, s2, 13
s_lshl_b32 s7, {sW}, 8
s_add_u32 s6, s6, s7
s_waitcnt lgkmcnt(0)
""")
    p.e(mk_srd(SRD_X, 48, 2048 * 1024))
    if OPT["wsoff"]:
        p.e(f"s_add_u32 s72, s72, {OPT['wsoff'] << 20}\ns_addc_u32 s73, s73, 0")


def a_dma(q):
    out = []
    for rb in range(2):
        for u in range(4):
            pre = []
            if u == 0 and rb == 0:
                pre = [f"s_add_u32 m0, s74, {(q%2)*32768}", f"s_add_u32 s80, s101, {q*128}",
                       "s_and_b32 s80, s80, 0x3ff", "s_add_u32 s80, s80, s75"]
            if u == 0 and rb == 1:
                pre = [f"s_add_u32 m0, s74, {(q%2)*32768 + 4096}", "s_add_u32 s80, s80, 32768"]
            out.append((pre, I(f"buffer_load_dwordx4 v{VA_DMA+u}, {srd(SRD_CKV)}, s80 offen offset:{u*1024} lds", tag=f"A{q}")))
    return out


def res(rb, ks):
    return ar(((rb // 2) * 32 + 2 * ks + rb % 2) * 4)


def a_reads(q):
    out = []
    for s in range(2):
        for rb in range(4):
            out.append(I(f"ds_read_b128 {res(rb, 2*q+s)}, v{VA_RD+s} offset:{(q%2)*32768 + rb*2048}",
                         tag=f"Ar{q}", needs=[f"A{q}"]))
    return out


CHUNKS = [("Vlo", SRD_WUV, 0), ("Vhi", SRD_WUV, 128), ("H", SRD_W1, 0), ("Qlo", SRD_WQ, 0), ("Qhi", SRD_WQ, 128)]
NSLAB = 28
if OPT["deep"]:
    W_ISSUE = [-1, -1, 0, 1, 2, 3, 4, 5, 6, 6, 6, 7, 7, 7, 8, 8, 9, 9, 10, 11, 17, 19, 20, 20, 21, 21, 22, 22]
else:
    W_ISSUE = [-1, -1] + list(range(26))
W_SLOT = []
_free_at = [-1] * 6 + [7, 7, 8, 8]
for _s in range(NSLAB):
    assert W_ISSUE[_s] <= max(_s - 2, -1)
    _c = [k for k in range(10) if _free_at[k] <= W_ISSUE[_s] and (_s < 24 or k >= 6) and (not 20 <= _s < 24 or k < 6)]
    _k = min(_c, key=lambda k: (_free_at[k], k))
    W_SLOT.append(_k)
    _free_at[_k] = _s + 2
WNT = " nt" if OPT["nt"] else ""
XNT = " nt" if OPT["xnt"] else ""


def w_dma(pslab):
    out = []
    slot = W_SLOT[pslab] * 16384
    if pslab < 8:
        sr, va = SRD_WUK, VW_DMA
        so = [f"s_add_u32 s81, s100, {pslab<<19}", "s_and_b32 s81, s81, 0x3fffff", "s_add_u32 s81, s81, s78"]
    else:
        c, i = divmod(pslab - 8, 4)
        nm, sr, col = CHUNKS[c]
        if nm == "H":
            va = VW1_DMA
            so = [f"s_mov_b32 s81, s{52+i}"]
        else:
            va = VW_DMA
            so = [f"s_add_u32 s81, s{60+i}, {col}"]
    for u in range(4):
        pre = [f"s_add_u32 m0, s77, {slot}"] + so if u == 0 else []
        out.append((pre, I(f"buffer_load_dwordx4 v{va+u}, {srd(sr)}, s81 offen offset:{u*1024}{WNT} lds", tag=f"W{pslab}")))
    return out


def w_read(n, j):
    slot = (W_SLOT[n // 16] * 16384) % 65536
    if n < 128:
        ks, cb = divmod(n, 8)
        off = slot + (cb // 4) * 8192 + (ks % 2) * 4096 + j * 512
    else:
        ks, cb = divmod(n, 4)
        off = slot + (ks % 4) * 4096 + j * 512
    return I(f"ds_read_b64_tr_b16 {vr(WF + 4*(n%8) + 2*j, 2)}, v{VTR + n % 4} offset:{off}", tag=f"Wr{n//2}")


def layernorm(p):
    p.e(f"""
v_and_b32 v20, 7, v0
v_lshlrev_b32 v21, 4, v20
s_lshl_b32 s6, {sW}, 2
v_add_u32 v22, s6, v21
""")
    p.wait("X")
    for i in range(8):
        p.e(f"v_and_b32 v{41+2*i}, 0xffff0000, v{32+i}")
        p.e(f"v_lshlrev_b32 v{40+2*i}, 16, v{32+i}")

    def reduce(v, slot):
        p.e(f"""
s_nop 1
v_add_f32_dpp {v}, {v}, {v} row_ror:8 row_mask:0xf bank_mask:0xf
v_mov_b32 v24, {v}
s_nop 1
v_permlane16_swap_b32 {v}, v24
v_add_f32 {v}, {v}, v24
v_mov_b32 v24, {v}
s_nop 1
v_permlane32_swap_b32 {v}, v24
v_add_f32 {v}, {v}, v24
""")
        p.e(I(f"ds_write_b32 v22, {v} offset:{49152 + slot*128}", tag=f"lnw{slot}"))
        p.wait(f"lnw{slot}")
        p.e("s_barrier")
        p.e(I(f"ds_read_b128 v[24:27], v21 offset:{49152 + slot*128}", tag=f"lnr{slot}"))
        p.wait(f"lnr{slot}")
        p.e(f"""
v_add_f32 v24, v24, v25
v_add_f32 v26, v26, v27
v_add_f32 {v}, v24, v26
v_mul_f32 {v}, 0x{f2u(1/512):x}, {v}
""")

    p.e("v_add_f32 v23, v40, v41")
    for i in range(2, 16):
        p.e(f"v_add_f32 v23, v23, v{40+i}")
    reduce("v23", 0)
    p.e("v_sub_f32 v29, v40, v23")
    p.e("v_mul_f32 v28, v29, v29")
    for i in range(1, 16):
        p.e(f"v_sub_f32 v29, v{40+i}, v23")
        p.e(f"v_fmac_f32 v28, v29, v29")
    reduce("v28", 1)
    p.e(f"""
v_cvt_pk_bf16_f32 v24, v23, v28
v_lshlrev_b32 v23, 16, v24
v_and_b32 v28, 0xffff0000, v24
v_add_f32 v28, 0x{f2u(1e-5):x}, v28
v_cvt_pk_bf16_f32 v24, v28, v28
v_lshlrev_b32 v28, 16, v24
v_sqrt_f32 v28, v28
s_nop 0
v_cvt_pk_bf16_f32 v24, v28, v28
v_lshlrev_b32 v28, 16, v24
v_rcp_f32 v28, v28
""")
    for i in range(16):
        p.e(f"v_sub_f32 v{40+i}, v{40+i}, v23")
    for i in range(8):
        p.e(f"v_cvt_pk_bf16_f32 v24, v{40+2*i}, v{41+2*i}")
        p.e(f"v_lshlrev_b32 v25, 16, v24")
        p.e(f"v_and_b32 v26, 0xffff0000, v24")
        p.e(f"v_mul_f32 v25, v25, v28")
        p.e(f"v_mul_f32 v26, v26, v28")
        p.e(f"v_cvt_pk_bf16_f32 v{32+i}, v25, v26")
    p.e(f"""
v_bfe_u32 v24, v0, 3, 2
v_lshl_add_u32 v24, v24, 8, v21
v_lshrrev_b32 v25, 5, v0
v_lshl_add_u32 v24, v25, 11, v24
s_lshr_b32 s6, s2, 2
s_lshl_b32 s6, s6, 15
s_and_b32 s7, s2, 2
s_lshl_b32 s7, s7, 9
s_add_u32 s6, s6, s7
s_and_b32 s7, s2, 1
s_lshl_b32 s7, s7, 7
s_add_u32 s6, s6, s7
s_lshl_b32 s7, {sW}, 13
s_add_u32 s6, s6, s7
s_add_u32 s7, s6, 4096
""")
    p.e(I(f"buffer_store_dwordx4 v[32:35], v24, {srd(SRD_WS)}, s6 offen sc1", tag="XNst"))
    p.e(I(f"buffer_store_dwordx4 v[36:39], v24, {srd(SRD_WS)}, s7 offen sc1", tag="XNst"))
    p.e("s_nop 1")


def flag_addr(kind, dst):
    d = f"s{dst}"
    if kind in ("ctxA", "ctxB"):
        rb = "s48" if kind == "ctxA" else "s49"
        return [f"s_lshl_b32 {d}, {rb}, 2", f"s_lshr_b32 s7, {sH}, 3", f"s_add_u32 {d}, {d}, s7", f"s_lshl_b32 {d}, {d}, 5",
                f"s_and_b32 s7, {sH}, 7", f"s_add_u32 {d}, {d}, s7", f"s_lshl_b32 {d}, {d}, 2", f"s_add_u32 {d}, {d}, {CTXF}"]
    if kind in ("actA", "actB"):
        rb = "s48" if kind == "actA" else "s49"
        return [f"s_lshl_b32 {d}, {rb}, 5", f"s_add_u32 {d}, {d}, {sH}", f"s_lshl_b32 {d}, {d}, 2", f"s_add_u32 {d}, {d}, {ACTF}"]
    if kind == "kv":
        return [f"s_lshl_b32 {d}, {sH}, 5", f"s_add_u32 {d}, {d}, s48", f"s_lshl_b32 {d}, {d}, 2", f"s_add_u32 {d}, {d}, {KVF}"]
    if kind == "ex":
        return [f"s_and_b32 {d}, s2, 1", f"s_lshl_b32 {d}, {d}, 3", f"s_add_u32 {d}, {d}, {sJ}", f"s_lshl_b32 {d}, {d}, 2",
                "s_lshr_b32 s7, s2, 6", f"s_add_u32 {d}, {d}, s7", f"s_lshl_b32 {d}, {d}, 2", f"s_add_u32 {d}, {d}, {sW}",
                f"s_lshl_b32 {d}, {d}, 7", "s_and_b32 s7, s2, 6", "s_lshl_b32 s7, s7, 1", f"s_add_u32 {d}, {d}, s7",
                f"s_add_u32 {d}, {d}, {EXF}"]
    raise Exception(kind)


def flag_store(val, s, tag=None):
    return I(f"buffer_store_dword v{val}, off, {srd(SRD_WS)}, s{s} sc1", tag=tag)


def poll_req(vidx, s, tag):
    return I(f"buffer_load_dword v{vPoll}, v{vidx}, {srd(SRD_WS)}, s{s} offen sc1", tag=tag)


def poll_slow(out, label, vidx, s, cmp="v_cmp_ne_u32 vcc, 1"):
    out.e(f"""
{label}:
s_mov_b32 s96, 0x40000
{label}_l:
buffer_load_dword v{vPoll}, v{vidx}, {srd(SRD_WS)}, s{s} offen sc1
s_waitcnt vmcnt(0)
{cmp}, v{vPoll}
s_sub_u32 s96, s96, 1
s_cbranch_scc1 {label}_back
s_cbranch_vccnz {label}_l
s_branch {label}_back
""")


def grp(buf, i):
    if buf == 2:
        return TP + 8 * i if i < 4 else BIAS + 8 * (i - 4)
    return buf + 8 * i


def acc(buf, vtype, cb, rb):
    if vtype:
        return grp(buf, (rb // 2) * 4 + cb) + 4 * (rb % 2)
    return grp(buf, (cb // 2) * 4 + rb) + 4 * (cb % 2)


def issue(p, lst):
    for pre, ins in lst:
        p.e(pre)
        p.e(ins)


def place(g, lst, h0, step, lo):
    prev = lo
    for i, (pre, ins) in enumerate(lst):
        h = h0 + i * step
        assert h > prev
        if pre:
            g.before(pre, h, prev + 1)
        g.mem[h].append(ins)
        prev = h
    return prev


def kv_dma(n):
    out = []
    for u in range(4):
        pre = [f"s_sub_u32 m0, s{sPM[2]}, {0x20000 - n*16384}", f"s_mov_b32 s97, {n*16384}"] if u == 0 else []
        out.append((pre, I(f"buffer_load_dwordx4 {vL16}, {srd(SRD_KV)}, s97 offen offset:{u*1024} sc1 lds", tag=f"KV{n}")))
    return out


PSLAB = 23
P_SLOT = [8, 9, 0, 1, 2, 3, 4, 5, 6, 7]
P_SLOT = [P_SLOT[s % 10] for s in range(PSLAB)]


def p_dma(s):
    win, k = divmod(P_SLOT[s], 4)
    sr, so = (SRD_W2, f"s_add_u32 s97, s{sPW2}, {s*65536}") if s < 7 else (SRD_WO, f"s_add_u32 s97, s{sPWO}, {(s-7)*65536}")
    out = []
    for u in range(4):
        pre = [f"s_add_u32 m0, s{sPM[win]}, {k*16384}", so] if u == 0 else []
        out.append((pre, I(f"buffer_load_dwordx4 v{VP_DMA+u}, {srd(sr)}, s97 offen offset:{u*1024} lds", tag=f"PW{s}")))
    return out


def p_areg(ks):
    if 16 <= ks < 24:
        return vr(32 + 4 * (ks - 16))
    return ar(128 + 4 * ((ks + 16) % 32) if ks < 16 else 128 + 4 * ((ks - 24) % 32))


def p_aload(ks0, ks1):
    out = []
    for ks in range(ks0, ks1):
        pre = []
        if ks % 4 == 0:
            pre = [f"s_add_u32 s100, s{sPA}, {ks*1024}" if ks < 28 else f"s_add_u32 s100, s{sPC}, {(ks-28)*1024}"]
        out.append((pre, I(f"buffer_load_dwordx4 {p_areg(ks)}, {vL16}, {srd(SRD_WS)}, s100 offen offset:{(ks%4)*1024} sc1", tag=f"PA{ks}")))
    return out


def projections(p, ool):
    p.e(I(f"buffer_load_dwordx4 v[32:35], v20, {srd(SRD_X)}, s6 offen{XNT}", tag="X"))
    p.e(I(f"buffer_load_dwordx4 v[36:39], v20, {srd(SRD_X)}, s6 offen offset:128{XNT}", tag="X"))
    p.e(mk_srd(SRD_CKV, 50, 2048 * 1024))
    issue(p, a_dma(0))
    p.e(mk_srd(SRD_WUK, 54, 512 * 8192))
    issue(p, w_dma(0))
    p.e(mk_srd(SRD_WS, 72, WS_BYTES))
    p.e(mk_srd(SRD_WUV, 56, 512 * 8192))
    p.e(mk_srd(SRD_WQ, 52, 512 * 8192))
    p.e(mk_srd(SRD_W1, 62, 512 * 3584))
    p.e(mk_srd(SRD_B1, 64, 3584))
    p.e(mk_srd(SRD_DBG, 70, 256))
    p.e(mk_srd(SRD_ACT, 72, WS_BYTES))
    p.e(f"""
s_cmp_lt_u32 {sH}, 28
s_cselect_b32 s{SRD_W1+2}, s{SRD_W1+2}, 0
s_cselect_b32 s{SRD_ACT+2}, s{SRD_ACT+2}, 0
s_lshl_b32 s83, {sH}, 7
s_lshl_b32 s6, {sH}, 6
s_lshl_b32 s7, {sJ}, 3
s_add_u32 s6, s6, s7
s_lshl_b32 s7, {sW}, 1
s_add_u32 s6, s6, s7
s_lshl_b32 s6, s6, 14
s_add_u32 s84, s6, {KV_OFF}
""")
    for i in range(1, 8):
        p.e(f"s_add_u32 s{84+i}, s84, {i*4096}")
    p.e(f"s_lshl_b32 s6, s79, 1\ns_add_u32 s6, s6, {sW}\ns_lshl_b32 s6, s6, 5")
    for i in range(4):
        p.e(f"""
s_add_u32 s7, s6, {128*i}
s_and_b32 s7, s7, 511
s_lshl_b32 s{60+i}, s7, 13
s_add_u32 s{60+i}, s{60+i}, s76
s_mul_i32 s{52+i}, s7, 3584
s_add_u32 s{52+i}, s{52+i}, s83
""")
    p.e(f"""
s_lshl_b32 s70, s79, 12
s_lshl_b32 s48, {sJ}, 2
s_add_u32 s48, s48, {sW}
s_sub_u32 s49, 63, s48
s_lshl_b32 s92, s48, 15
s_lshl_b32 s93, s49, 15
s_mul_i32 s50, s48, {AF_KS*1024}
s_mul_i32 s51, s49, {AF_KS*1024}
s_add_u32 s50, s50, {AF_OFF}
s_add_u32 s51, s51, {AF_OFF}
s_lshl_b32 s6, {sH}, 12
s_add_u32 s6, s6, {256*1024}
s_add_u32 s94, s50, s6
s_add_u32 s95, s51, s6
""")
    layernorm(p)
    p.e("s_getreg_b32 s57, hwreg(HW_REG_XCC_ID, 0, 4)\nv_mov_b32 v27, 0\nv_mov_b32 v26, s57")
    for kind in ("kv", "actA", "actB", "ctxA", "ctxB", "ex"):
        p.e(flag_addr(kind, 6))
        p.e(flag_store(26 if kind == "kv" else 27, 6, "XNst"))
    issue(p, a_dma(1))
    issue(p, w_dma(1))
    p.e(f"""
s_cmp_eq_u32 {sW}, 0
s_cselect_b32 s6, 0, 0x1000
v_lshl_add_u32 v26, v0, 12, s6
v_mov_b32 v{vOne}, 1
""")
    stamp(p)
    p.wait("A0")
    for x in a_reads(0):
        p.e(x)
    p.wait("W0")
    p.e("s_barrier")
    for n in range(4):
        p.e(w_read(n, 0))
        p.e(w_read(n, 1))
    p.wait("Wr0", "Ar0")

    mf = []
    for ks in range(16):
        for cb in range(8):
            for rb in range(4):
                d = vr(acc(ACC0 if cb < 4 else ACC1, 0, cb % 4, rb))
                n = len(mf) // 4
                mf.append(I(f"{MF} {d}, {vr(WF+4*(n%8))}, {res(rb, ks)}, {'0' if ks == 0 else d}", needs=[f"Wr{n//2}", f"Ar{ks//2}"]))
    for ci, (nm, _, _) in enumerate(CHUNKS):
        buf = (ACC0, ACC1, ACC0, ACC1, 2)[ci]
        for ks in range(16):
            for cb in range(4):
                for rb in range(4):
                    d = c = vr(acc(buf, nm[0] == "V", cb, rb))
                    if ks == 0:
                        c = vr(BIAS + 4 * cb) if nm == "H" else "0"
                    n = len(mf) // 4
                    wf, af = vr(WF + 4 * (n % 8)), res(rb, ks)
                    a, b = (af, wf) if nm[0] == "V" else (wf, af)
                    nd = [f"Wr{n//2}"] + ([f"XN{ks}"] if nm == "H" else [])
                    mf.append(I(f"{MF} {d}, {a}, {b}, {c}", needs=nd))
    NH = len(mf)
    g = Half(mf)
    for n in range(4, NH // 4):
        for j in range(2):
            g.mem[4 * (n - 4) + 2 * j].append(w_read(n, j))
        if n % 16 >= 12 and n // 16 + 1 < NSLAB:
            dw = W_SLOT[n // 16 + 1] // 4 - W_SLOT[n // 16] // 4
            if dw:
                g.val[4 * (n - 4) + 2].append(I(f"v_add_u32 v{VTR+n%4}, 0x{(dw*65536) & 0xffffffff:x}, v{VTR+n%4}"))
    for h in range(8, NH, 8):
        tags = [f"Wr{h//8}"]
        if h < 512 and h % 64 == 0:
            tags += [f"Ar{h//64}"]
        if 1024 <= h < 1280 and h % 16 == 0:
            tags += [f"XN{(h-1024)//16}"]
        g.sh[h - 1].append(WAIT(*tags))
    for q in range(1, 8):
        h = 64 * q - 27
        g.sh[h - 1].append(WAIT(f"A{q}"))
        for i, x in enumerate(a_reads(q)):
            g.mem[h - 1 + 2 * i].append(x)
    for ps in range(1, NSLAB):
        tags = [f"W{ps}"] + (["XNst"] if ps == 2 else []) + (["KV0"] if ps == 27 else [])
        g.sh[64 * ps - 19].append(WAIT(*tags))
        g.sh[64 * ps - 18].append("s_barrier")
    lo = -1
    for ps in range(0, NSLAB):
        lst = []
        for sl in range(NSLAB):
            if W_ISSUE[sl] == ps:
                lst += w_dma(sl)
        if ps == 0:
            lo = place(g, a_dma(2) + lst, 5, 4, -1)
        elif ps < 6:
            lo = place(g, lst, 64 * ps - (13 if ps > 1 else 9), 4 if ps > 1 else 2, lo)
            lo = place(g, a_dma(ps + 2), 64 * ps + 5, 6 if ps < 5 else 4, lo)
        elif lst:
            lo = place(g, lst, 64 * ps - 13, 4 if len(lst) > 8 else 6, max(lo, 64 * ps - 19))
    g.mem[64 * 2 - 15].append(I(f"buffer_atomic_add v{vOne}, v26, {srd(SRD_DBG)}, 0 offen"))

    def slot(h):
        h |= 1
        while g.mem[h] or g.val[h]:
            h += 2
        return h

    def kv_store(src, blk, f):
        return I(f"buffer_store_dwordx4 {vr(src)}, {vL16}, {srd(SRD_WS)}, s{84+blk*4+f//4} offen offset:{(f%4)*1024} {KVFL}", tag="KVst")

    def cvt4(dst, src):
        return [f"v_cvt_pk_bf16_f32 v{dst+c}, v{src+2*c}, v{src+2*c+1}" for c in range(4)]

    prev = 770
    for i in range(64):
        f, blk = divmod(i, 2)
        h = slot(max(2 * (392 + (33 * i) // 10), prev + 1))
        assert 768 + 16 * (f // 2 + 1) <= h < 1024 + 16 * (f // 2) - 50
        if i % 8 == 0:
            g.before(["s_add_u32 s64, s92, s70", "s_add_u32 s65, s93, s70"], h, prev + 1)
            g.after(["s_add_u32 s70, s70, 4096", "s_and_b32 s70, s70, 0x7fff"], h + 1)
        g.mem[h].append(I(f"buffer_load_dwordx4 {ar((blk*32+f)*4)}, {vL16}, {srd(SRD_WS)}, s{64+blk} offen offset:{(f%4)*1024} sc1", tag=f"XN{f//2}"))
        prev = h
    kf = lambda i, hi: ((i % 4) // 2, (i % 2) * 4 + 2 * hi + i // 4)
    vf = lambda i, hi: (i // 4, 8 + 4 * hi + i % 4)
    it = []
    for i in range(8):
        it += cvt4(TP + 4 * i, ACC0 + 8 * i)
    g.fill(it, range(487, 512))
    tp_st = [kv_store(TP + 4 * i, *kf(i, 0)) for i in range(8)]

    def epi_inplace(buf, h0, fidx, extra):
        it, st = [], []
        for i in range(8):
            it += cvt4(buf + 8 * i, buf + 8 * i)
            st.append(kv_store(buf + 8 * i, *fidx(i)))
        st = extra[:2] + st + extra[2:]
        for n, x in enumerate(st):
            g.mem[slot(h0 + 6 + (n * 240) // len(st))].append(x)
        g.fill(it, range(h0 + 2, h0 + 40))
    epi_inplace(ACC1, 512, lambda i: kf(i, 1), tp_st[:4])
    epi_inplace(ACC0, 768, lambda i: vf(i, 0), tp_st[4:6])
    epi_inplace(ACC1, 1024, lambda i: vf(i, 1), tp_st[6:])
    g.fill(["v_lshrrev_b32 v20, 4, v0", "v_lshlrev_b32 v20, 3, v20"], range(676, 680))
    for cb in range(4):
        g.mem[slot(684 + 6 * cb)].append(I(f"buffer_load_dwordx2 {vr(BIAS+4*cb+2,2)}, v20, {srd(SRD_B1)}, s83 offen offset:{32*cb}", tag="B1"))
    g.after([WAIT("B1")], 876)
    it = []
    for cb in range(4):
        b = BIAS + 4 * cb
        it += [I(f"v_lshlrev_b32 v{b}, 16, v{b+2}", needs=["B1"]), f"v_and_b32 v{b+1}, 0xffff0000, v{b+2}",
               f"v_lshlrev_b32 v{b+2}, 16, v{b+3}", f"v_and_b32 v{b+3}, 0xffff0000, v{b+3}"]
    g.fill(it, range(884, 920))
    g.mem[slot(672)].append(I(f"buffer_load_dword v{vPoll}, off, {srd(SRD_DBG)}, 0 sc1", tag="pollLN"))
    g.sh[760].append(WAIT("pollLN"))
    g.val[760].append(I(f"v_cmp_gt_u32 vcc, 0x100, v{vPoll}", needs=["pollLN"]))
    g.sh[763] += ["s_cbranch_vccnz L_pollLN", "L_pollLN_back:"]
    ool.e(f"""
L_pollLN:
s_mov_b32 s96, 0x40000
L_pollLN_l:
s_sleep 2
buffer_load_dword v{vPoll}, off, {srd(SRD_DBG)}, 0 sc1
s_waitcnt vmcnt(0)
v_cmp_gt_u32 vcc, 0x100, v{vPoll}
s_sub_u32 s96, s96, 1
s_cbranch_scc1 L_pollLN_back
s_cbranch_vccnz L_pollLN_l
s_branch L_pollLN_back
""")
    late = mk_srd(SRD_W2, 66, 1792 * 1024) + mk_srd(SRD_WO, 58, 4096 * 1024) + mk_srd(SRD_OUT, 68, 2048 * 1024)
    late += [f"s_lshl_b32 s6, {sH}, 20", "s_add_u32 s6, s6, s77", f"s_add_u32 s6, s6, {KV_OFF}", f"s_mov_b32 s{SRD_KV+2}, 0x100000",
             (f"s_add_u32 s{SRD_KV}, s72, s6", f"s_addc_u32 s{SRD_KV+1}, s73, 0"), f"s_and_b32 s{SRD_KV+1}, s{SRD_KV+1}, 0xffff"]
    late += flag_addr("kv", 82) + ["s_and_b32 s80, s82, 0xffffff80", "s_mov_b32 s71, 0"]
    if OPT["wopf"]:
        late += ["s_mul_i32 s56, s2, 7168", (f"s_cmp_eq_u32 {sW}, 2", "s_cselect_b32 s56, s56, 0x1000000")]
    assert g.after(late, 1160) < 1226
    g.fill(["v_and_b32 v27, 31, v0", "v_lshlrev_b32 v27, 2, v27", "v_lshlrev_b32 v26, 7, v0"], range(1218, 1226))
    g.mem[slot(1228)].append(poll_req(27, 80, "pollXC"))
    g.sh[1272].append(WAIT("pollXC"))
    g.fill([I(f"v_and_b32 v{vPoll}, 0xff, v{vPoll}", needs=["pollXC"]), f"v_cmp_ne_u32 vcc, s57, v{vPoll}",
            f"v_mov_b32 v{vPoll}, s57", f"v_or_b32 v{vPoll}, 0x100, v{vPoll}"], range(1272, 1277))
    g.sh[1300].append(WAIT("KVst"))
    g.sh[1301] += ["s_cbranch_vccnz L_xrel", "L_xrel_back:"]
    ool.e("L_xrel:\ns_mov_b32 s71, 1\nbuffer_wbl2 sc1\ns_waitcnt vmcnt(0)\ns_branch L_xrel_back")
    g.mem[slot(1302)].append(flag_store(vPoll, 82))
    if OPT["wopf"]:
        g.mem[slot(1444)].append(I(f"buffer_load_dword v{vDummy}, v26, {srd(SRD_W2)}, s56 offen", tag="wopf"))
    g.mem[slot(1540)].append(poll_req(27, 80, "pollKV"))
    assert g.after(flag_addr("actA", 78) + flag_addr("actB", 79) + [f"s_add_u32 s{sPM[2]}, s77, 0x20000"], 1544) < 1580
    g.sh[1586].append(WAIT("pollKV"))
    g.val[1586].append(I(f"v_cmp_gt_u32 vcc, 0x100, v{vPoll}", needs=["pollKV"]))
    g.sh[1589] += ["s_cbranch_vccnz L_pollKV", "L_pollKV_back:"]
    poll_slow(ool, "L_pollKV", 27, 80, "v_cmp_gt_u32 vcc, 0x100")
    g.sh[1592] += ["s_cmp_lg_u32 s71, 0", "s_cbranch_scc1 L_xacq", "L_xacq_back:"]
    ool.e("L_xacq:\nbuffer_inv sc1\ns_waitcnt vmcnt(0)\ns_branch L_xacq_back")
    assert W_SLOT[24:] == [6, 7, 8, 9]
    lo = 1592
    for n in range(7):
        lo = place(g, kv_dma(n), 1597 + 24 * n, 6, lo)
    for k in range(12):
        g.mem[1714 + 4 * k].append(I(f"ds_read_b128 {ar(KF+4*k)}, {vL16} offset:{k*1024}", tag="K0", needs=["KV0"]))
    ps = [
        "s_and_b32 s6, s2, 1", "s_lshl_b32 s6, s6, 5", "s_add_u32 s6, s6, s48",
        "s_lshr_b32 s71, s2, 1", "s_and_b32 s71, s71, 3",
        "s_lshl_b32 s101, s6, 7", "s_mul_i32 s7, s71, 28", f"s_add_u32 s101, s101, {ACTF}", "s_add_u32 s101, s101, s7",
        f"s_mul_i32 s6, s6, {AF_KS*1024}", f"s_add_u32 s6, s6, {AF_OFF}",
        "s_lshl_b32 s7, s7, 10", f"s_add_u32 s{sPA}, s6, s7", f"s_add_u32 s{sPA}, s{sPA}, {256*1024}",
        "s_lshl_b32 s7, s71, 16", f"s_add_u32 s{sPC}, s6, s7",
        f"s_xor_b32 s6, s71, {sW}", "s_xor_b32 s6, s6, 3", "s_lshr_b32 s6, s6, 1", "s_lshl_b32 s6, s6, 7",
        "s_lshr_b32 s7, s2, 6", "s_lshl_b32 s7, s7, 8", "s_add_u32 s6, s6, s7",
        f"s_and_b32 s7, {sW}, 1", "s_lshl_b32 s7, s7, 15", "s_add_u32 s6, s6, s7",
        f"s_mul_i32 s7, s71, {448*1024}", f"s_add_u32 s{sPW2}, s6, s7",
        "s_lshl_b32 s7, s71, 20", f"s_add_u32 s{sPWO}, s6, s7",
        f"s_and_b32 s6, {sJ}, 1", "s_lshl_b32 s6, s6, 16", f"s_add_u32 s{sPM[0]}, s77, s6",
        f"s_xor_b32 s{sPM[1]}, s{sPM[0]}, 0x10000", f"s_add_u32 {sM}, s77, {7*16384}",
        "s_and_b32 s75, s71, 1", "s_xor_b32 s75, s75, 1", "s_lshl_b32 s75, s75, 6",
        f"s_mov_b32 {sKa}, 0x4000", f"s_mov_b32 {sCA}, s48", f"s_sub_u32 {sCB}, 30, s48",
        f"s_sub_u32 s41, {sJ}, 2", "s_lshl_b32 s41, s41, 5", f"s_add_u32 s41, s41, {sH}", "s_lshl_b32 s41, s41, 2",
        f"s_add_u32 s41, s41, {sW}", "s_lshl_b32 s41, s41, 13",
    ]
    for r in range(4):
        m = sum(1 << l for l in range(64) if 4 * (l // 16) + r > l % 16)
        ps += [f"s_mov_b32 s{MASKS+2*r}, 0x{m & 0xffffffff:x}", f"s_mov_b32 s{MASKS+2*r+1}, 0x{m >> 32:x}"]
    assert g.after(ps, 1594) < 1675
    it = []
    LOG2E = f"0x{f2u(1.4426950408889634):x}"
    for i in range(8):
        dl, rb = divmod(i, 4)
        b = ACC0 + 8 * i
        for c in range(4):
            x0, x1 = b + 2 * c, b + 2 * c + 1
            it += [f"v_mul_f32 v20, {LOG2E}, v{x0}", "v_exp_f32 v20, v20", f"v_mul_f32 v21, {LOG2E}, v{x1}", "v_exp_f32 v21, v21",
                   "v_fma_f32 v22, v20, 0.5, 1.0", "v_fma_f32 v20, v20, v22, 1.0", "v_fma_f32 v23, v21, 0.5, 1.0",
                   "v_fma_f32 v21, v21, v23, 1.0", "v_rcp_f32 v20, v20"]
            if c or i:
                it.append(pend.pop())
            it += ["v_rcp_f32 v21, v21", f"v_fma_f32 v24, -v{x0}, v20, v{x0}"]
            if c == 0 and i:
                it.append(pst.pop())
            it.append(f"v_fma_f32 v25, -v{x1}, v21, v{x1}")
            pend = [f"v_cvt_pk_bf16_f32 v{b+c}, v24, v25"]
        pst = [I(f"buffer_store_dwordx4 {vr(b)}, {vL16}, {srd(SRD_ACT)}, s{94+rb//2} offen offset:{(2*dl+rb%2)*1024} sc1", tag="ACTst")]
    it += pend + pst
    nmish = len(it)
    QS = f"0x{f2u(1.4426950408889634 / 128 ** 0.5):x}"

    def q_epi(src, dst):
        it = []
        for c in range(4):
            it += [f"v_mul_f32 v{src+2*c}, {QS}, v{src+2*c}", f"v_mul_f32 v{src+2*c+1}, {QS}, v{src+2*c+1}",
                   f"v_cvt_pk_bf16_f32 v{dst+c}, v{src+2*c}, v{src+2*c+1}"]
        return it
    it += ["v_lshrrev_b32 v20, 3, v0", "v_and_b32 v21, 7, v0", "v_bfe_u32 v22, v0, 4, 2", "v_lshlrev_b32 v22, 1, v22",
           "v_xor_b32 v21, v21, v22", "v_lshlrev_b32 v21, 4, v21", "v_xor_b32 v21, s75, v21",
           f"v_lshl_add_u32 v{VP_DMA}, v20, 10, v21"] + [f"v_add_u32 v{VP_DMA+u}, {7168*u}, v{VP_DMA}" for u in (1, 2, 3)]
    it += ["v_min_u32 v27, 6, v0", "v_lshlrev_b32 v27, 2, v27", f"v_mov_b32 v{vMask}, 0x1c000", f"v_mov_b32 v{vBit}, 0x40004000",
           f"v_mov_b32 v{vNinf}, 0xff800000", f"v_mov_b32 v{vR0}, {vL16}"]
    it += [f"v_mov_b32 v{NMA+r}, 0" for r in range(16)] + [f"v_mov_b32 v{EX+r}, 0" for r in range(4)]
    for i in range(8):
        it += q_epi(ACC1 + 8 * i, ACC1 + 4 * i)
    it = [x if isinstance(x, I) else I(x) for x in it]
    FH = 1737
    g.sh[FH - 1].append(WAIT("ACTst"))
    g.mem[FH].append(flag_store(vOne, 78))
    g.mem[FH + 2].append(flag_store(vOne, 79))
    g.sh[1788] += [f"s_cmp_eq_u32 {sCA}, 0", "s_cbranch_scc1 L_mask0", "L_mask0_back:"]
    ool.e("L_mask0:"); ool.e(mask_ops(NMA)); ool.e("s_branch L_mask0_back")
    g.fill(it, range(1283, 1788))
    hm = [h for h in range(NH) if it[nmish - 1] in g.mem[h] + g.val[h]][0]
    assert 1675 < hm < FH - 40, hm
    assert g.after([(f"s_add_u32 s{SRD_KV}, s{SRD_KV}, {6*16384}", f"s_addc_u32 s{SRD_KV+1}, s{SRD_KV+1}, 0"),
                    f"s_lshl_b32 s7, {sJ}, 2", "s_sub_u32 s7, 58, s7", f"s_lshl_b32 s{SRD_KV+2}, s7, 14", f"s_mov_b32 m0, {sM}"], 1768) < 1786
    if OPT["stamp"] or OPT["padat"] >= 0:
        for h in (511, 767, 1023, 1279, 1535):
            q = Prog(); stamp(q); g.post[h] += q.l
    p.e(g.emit())
    stamp(p)
    mB, mA = qk_mf(JB1, True, "0"), qk_mf(JA0, True)
    p.wait("K0")
    g = Half(mB[:8] + mA[:8] + mB[8:] + mA[8:])
    qe = lambda l: sum((q_epi(grp(2, i), grp(2, i)) for i in l), [])
    g.fill(qe((2, 3, 6, 7)) + ["s_nop 0"], range(0, 16))
    g.fill(qe((0, 1, 4, 5)) + ["s_nop 0"], range(16, 24))
    g.fill(rowmax(S1), range(26, 32))
    p.e(g.emit())
    it = [f"v_sub_f32 v{NMB+r}, 0x{f2u(-SHIFT):x}, v{20+r//8}" for r in range(16)]
    it += rowmax(S0) + [f"v_add_f32 v{20+qb}, 0x{f2u(SHIFT):x}, v{20+qb}" for qb in range(2)]
    it += [f"v_sub_f32 v{S0+r}, v{S0+r}, v{20+r//8}" for r in range(16)]
    z = Gaps([f"{MF32} {ar(16*i,16)}, {vr(EX)}, {vr(EX)}, 0" for i in range(8)])
    z.spread(it, 0, 8)
    p.e(z.emit())
    p.e([f"v_sub_f32 v{NMA+r}, 0, v{20+r//8}" for r in range(16)])
    p.e(sm_split(JA0, "Y")[0])
    p.e([f"v_mov_b32 v{lreg(r//8, (r//4)%2)+r%4}, 0" for r in range(16)] + [f"v_mov_b32 v{ONES+r}, 0x3f803f80" for r in range(4)])
    p.e(poll_req(27, 101, "pollACT"))
    p.wait("KV3")
    stamp(p)
    for w in (1, 2, 3):
        p.e(f"s_cmp_eq_u32 {sW}, {w}\ns_cbranch_scc1 L_att_{w}")


def qfrag(blk, qb, ds):
    rb = 2 * blk + qb
    return ACC1 + 4 * (4 * ds + rb) if ds < 2 else grp(2, 4 * (ds - 2) + rb)


def lreg(blk, qb):
    return TP + 4 + 8 * (2 * blk + qb)


class Job:
    def __init__(self, blk, par):
        self.blk = blk
        self.S = (S0, S1)[par]
        self.P = (P0, P1)[par]
        self.NM = (NMA, NMB)[blk]
        self.O = (OA, OB)[blk]


JA0, JB1, JB0 = Job(0, 0), Job(1, 1), Job(1, 0)


def sm_ops(j):
    o = {}
    for r in range(16):
        o[f"e{r}"] = f"v_exp_f32 v{EX+r}, v{j.S+r}"
    for i in range(8):
        o[f"c{i}"] = f"v_cvt_pk_bf16_f32 v{j.P+i}, v{EX+2*i}, v{EX+2*i+1}"
    o["o0"] = f"v_or3_b32 v{vChk}, v{j.P}, v{j.P+1}, v{j.P+2}"
    o["o1"] = f"v_or3_b32 v{vChk}, v{vChk}, v{j.P+3}, v{j.P+4}"
    o["o2"] = f"v_or3_b32 v{vChk}, v{vChk}, v{j.P+5}, v{j.P+6}"
    o["o3"] = f"v_bitop3_b32 v{vChk}, v{vChk}, v{j.P+7}, v{vBit} bitop3:0xa8"
    o["k"] = f"v_cmp_ne_u32 vcc, 0, v{vChk}"
    return o


SM_PLAN = {
    "Z": ({17: "e0", 18: "e1", 19: "e2", 20: "c0", 21: "e3", 22: "e4", 24: "c1", 25: "e5", 26: "e6", 27: "e7", 28: "c2",
           29: "e8", 30: "c3", 32: "e9", 33: "e10"},
          {0: "o0", 1: "e11", 2: "c4", 3: "e12", 4: "o1", 5: "e13", 8: "c5 e14", 9: "e15", 10: "c6", 11: "o2 c7", 12: "o3 k"}),
    "X": ({17: "e0", 19: "e1", 21: "e2", 22: "c0", 24: "e3", 25: "e4", 26: "e5", 27: "c1 c2", 28: "e6", 29: "e7",
           30: "e8", 32: "o0 c3", 33: "e9"},
          {0: "e10", 1: "e11", 2: "c4 o1", 3: "e12", 4: "e13", 5: "e14", 6: "c5", 7: "e15", 8: "c6", 9: "o2 c7", 10: "o3", 11: "k"}),
    "Y": ({17: "e0", 18: "e1", 19: "e2", 20: "e3", 21: "e4", 22: "e5", 23: "e6", 24: "c0", 25: "e7", 26: "c1", 27: "e8",
           28: "c2", 29: "e9", 30: "c3", 31: "e10", 32: "e11", 33: "o0 c4"},
          {1: "e12", 3: "e13", 5: "e14", 8: "o1", 9: "e15", 10: "c5", 11: "c6 o2", 12: "c7 o3", 13: "k"}),
}


def sm_split(j, plan):
    o = sm_ops(j)
    return [[o[n] for h in sorted(part) for n in part[h].split()] for part in SM_PLAN[plan]]


for _p in SM_PLAN.values():
    _o = [n for part in _p for h in sorted(part) for n in part[h].split()]
    assert sorted(_o) == sorted(sm_ops(JA0))
    _dep = {f"c{i}": (f"e{2*i}", f"e{2*i+1}") for i in range(8)}
    _dep.update(o0=("c0", "c1", "c2"), o1=("o0", "c3", "c4"), o2=("o1", "c5", "c6"), o3=("o2", "c7"), k=("o3",))
    assert all(_o.index(d) < _o.index(n) for n in _dep for d in _dep[n])


def qk_mf(j, dsmajor=False, c0=None):
    idx = [(kb, qb, ds) for kb in range(2) for qb in range(2) for ds in range(4)]
    if dsmajor:
        idx.sort(key=lambda t: t[2])
    out = []
    for kb, qb, ds in idx:
        t = 8 * qb + 4 * kb
        c = (vr(j.NM + t) if c0 is None else c0) if ds == 0 else vr(j.S + t)
        out.append(f"{MF} {vr(j.S+t)}, {ar(KF+4*(4*kb+ds))}, {vr(qfrag(j.blk,qb,ds))}, {c}")
    return out


def pv_mf(j):
    out = [f"{MF} {vr(lreg(j.blk,qb))}, {vr(ONES)}, {vr(j.P+4*qb)}, {vr(lreg(j.blk,qb))}" for qb in range(2)]
    for db in range(8):
        for qb in range(2):
            o = ar(j.O + 8 * (2 * (db // 2) + qb) + 4 * (db % 2))
            out.append(f"{MF} {o}, {ar(VF+4*db)}, {vr(j.P+4*qb)}, {o}")
    return out


def rowmax(S):
    l = []
    for a, b in ((0, 1), (3, 4), (5, 6)):
        for qb in range(2):
            s = S + 8 * qb
            l.append(f"v_max3_f32 v{20+qb}, v{s+2 if a == 0 else 20+qb}, v{s+a}, v{s+b}")
    l += [f"v_max_f32 v{20+qb}, v{20+qb}, v{S+8*qb+7}" for qb in range(2)]
    for op in ("v_permlane16_swap_b32", "v_permlane32_swap_b32"):
        l += ["v_mov_b32 v22, v20", "v_mov_b32 v23, v21", "s_nop 0", f"{op} v20, v22", f"{op} v21, v23",
              "v_max_f32 v20, v20, v22", "v_max_f32 v21, v21, v23"]
    return l


RARE = {}


def rare(cur, nxt):
    fix = nxt is not None and nxt.blk == cur.blk
    name = f"L_rare_{cur.blk}_{cur.S}_{int(fix)}"
    if name in RARE:
        return name
    q = Prog()
    q.e(f"{name}:")
    q.e("s_nop 15")
    q.e(rowmax(cur.S))
    for qb in range(2):
        q.e(f"v_add_f32 v{20+qb}, 0x{f2u(SHIFT):x}, v{20+qb}\nv_max_f32 v{20+qb}, 0, v{20+qb}\nv_exp_f32 v{22+qb}, -v{20+qb}")
    for r in range(16):
        q.e(f"v_sub_f32 v{cur.NM+r}, v{cur.NM+r}, v{20+r//8}")
        q.e(f"v_sub_f32 v{cur.S+r}, v{cur.S+r}, v{20+r//8}")
        if fix:
            q.e(f"v_sub_f32 v{nxt.S+r}, v{nxt.S+r}, v{20+r//8}")
    for r in range(8):
        b = lreg(cur.blk, r // 4) + r % 4
        q.e(f"v_mul_f32 v{b}, v{b}, v{22+r//4}")
    for r in range(64):
        q.e(f"v_accvgpr_read_b32 v24, a{cur.O+r}")
        q.e(f"v_mul_f32 v24, v24, v{22+(r//8)%2}")
        q.e(f"v_accvgpr_write_b32 a{cur.O+r}, v24")
    o = sm_ops(cur)
    q.e([o[f"e{r}"] for r in range(16)] + [o[f"c{i}"] for i in range(8)])
    q.e("s_nop 1")
    q.e("s_setpc_b64 s[46:47]")
    errs = lint(q.l, name)
    assert not errs, errs
    RARE[name] = q
    return name


site_n = [0]


def step(ool, kind, w, extra=None, bar=True, ringdma=True, vmw=None):
    cur, nxt = dict(X=(JA0, JB1), Y=(JB1, JA0), T=(JB1, JB0), Z0=(JB0, JB1), Z1=(JB1, JB0), F=(JB0, None))[kind]
    pcur = dict(X="Y", Y="X", T="X", Z0="Z", Z1="Z", F="Z")[kind]
    pnxt = dict(X="X", Y="Y", T="Z", Z0="Z", Z1="Z", F=None)[kind]
    rdV2, rdK, rdV1 = kind in ("X", "Z0", "Z1", "F"), kind in ("X", "T", "Z0", "Z1"), kind in ("Y", "T", "Z0", "Z1")
    dma = kind in ("X", "Z0", "Z1")
    rV2 = vR1 if kind == "Z1" else vR0
    rK = vR1 if kind in ("T", "Z1") else vR0
    rV1 = vR1 if kind == "Z0" else vR0
    sK = sKb if kind in ("T", "Z1") else sKa
    g = Half((qk_mf(nxt) if nxt else [None] * 16) + pv_mf(cur))
    if rdK:
        g.val[6].append(f"v_and_or_b32 v{rK}, {sK}, v{vMask}, {vL16}")
    o = sm_ops(cur)
    for h, v in SM_PLAN[pcur][1].items():
        g.val[h] += [o[n] for n in v.split()]
    if nxt:
        o = sm_ops(nxt)
        for h, v in SM_PLAN[pnxt][0].items():
            g.val[h] += [o[n] for n in v.split()]
    else:
        g.val[7].append("s_nop 0")
    n = site_n[0]
    site_n[0] += 1
    g.sh[15] += [f"s_cbranch_vccnz L_site{n}", f"L_back{n}:"]
    ool.e(f"L_site{n}:\ns_call_b64 s[46:47], {rare(cur, nxt)}\ns_branch L_back{n}")
    KH = (8, 10, 13, 13, 15, 18, 20, 22) if pcur == "Z" else (8, 10, 15, 18, 18, 20, 20, 22) if kind == "X" else (8, 10, 12, 13, 15, 18, 20, 22)
    if rdV2:
        for f in range(4, 8):
            g.mem[2 * (f - 4)].append(f"ds_read_b128 {ar(VF+4*f)}, v{rV2} offset:{8192+1024*f}")
        g.sh[17].append("s_waitcnt lgkmcnt(%d)" % (sum(h < 17 for h in KH) if rdK else 0))
        if bar:
            g.sh[2 * w if OPT["skew"] else 0].append("s_barrier")
    if rdK:
        for k in range(8):
            g.mem[KH[k]].append(f"ds_read_b128 {ar(KF+4*k)}, v{rK} offset:{1024*k}")
        g.sh[33].append("s_waitcnt lgkmcnt(%d)" % (4 if rdV1 else 0))
    if rdV1:
        for f in range(4):
            g.mem[24 + 2 * f].append(f"ds_read_b128 {ar(VF+4*f)}, v{rV1} offset:{8192+1024*f}")
        if vmw != -1:
            g.sh[28].append("s_waitcnt vmcnt(%d)" % (vmw if vmw is not None else 11 if dma else 12))
    if dma and ringdma:
        for u, h in enumerate((7, 14, 23, 31)):
            g.mem[h].append(f"buffer_load_dwordx4 {vL16}, {srd(SRD_KV)}, {sK} offen offset:{u*1024} sc1 lds")
    if kind == "Y":
        g.after(["s_add_u32 m0, m0, 0x4000", "s_bitset0_b32 m0, 17", f"s_add_u32 {sKa}, {sKa}, 0x4000", f"s_sub_u32 {sCA}, {sCA}, 1"], 18)
    if kind == "X":
        g.sh[9].append(f"s_cmp_ge_u32 {sCA}, 2")
    if kind == "T":
        g.after([f"s_add_u32 {sKb}, {sKa}, 0x4000", f"s_add_u32 {sM}, m0, 0x4000", f"s_add_u32 {sKa}, {sKa}, 0x8000",
                 (f"s_sub_u32 s{SRD_KV}, s{SRD_KV}, 0x4000", f"s_subb_u32 s{SRD_KV+1}, s{SRD_KV+1}, 0"),
                 f"s_add_u32 s{SRD_KV+2}, s{SRD_KV+2}, 0x4000", f"s_bitset0_b32 {sM}, 17"], 0)
    if kind in ("Z0", "Z1"):
        if ringdma:
            g.sh[1].append(f"s_mov_b32 m0, {sM}")
        so = sKb if kind == "Z0" else sKa
        g.after([f"s_add_u32 {sM}, {sM}, 0x4000", f"s_bitset0_b32 {sM}, 17", f"s_add_u32 {so}, {so}, 0x8000"], 18)
    if kind == "Z0":
        g.sh[9].append(f"s_sub_u32 {sCB}, {sCB}, 1")
    if extra:
        extra(g)
    l = g.emit()
    cut = [i for i, x in enumerate(l) if x.text == g.mf[16]][0] + 1
    return l[:cut], l[cut:]


def mask_ops(NM):
    l = [f"v_cndmask_b32 v{NM+t+r}, v{NM+t+r}, v{vNinf}, s[{MASKS+2*r}:{MASKS+2*r+1}]" for t in (0, 12) for r in range(4)]
    return l + [f"v_mov_b32 v{NM+4+r}, v{vNinf}" for r in range(4)] + ["s_nop 1"]


def epilogue(p, blk, tag=None, gs=range(8)):
    O = (OA, OB)[blk]
    if 0 in gs:
        p.e(f"""
v_rcp_f32 v{lreg(blk,0)}, v{lreg(blk,0)}
v_rcp_f32 v{lreg(blk,1)}, v{lreg(blk,1)}
s_lshl_b32 s6, {sH}, 13
s_add_u32 s6, s6, s{50+blk}
s_add_u32 s7, s6, 4096
""")
    for i in gs:
        b = NMA + 8 * (i % 2)
        for r in range(8):
            p.e(f"v_accvgpr_read_b32 v{b+r}, a{O+8*i+r}")
        for c in range(4):
            p.e(f"v_pk_mul_f32 {vr(b+2*c,2)}, {vr(b+2*c,2)}, {vr(lreg(blk,i%2),2)} op_sel_hi:[1,0]")
        for c in range(4):
            p.e(f"v_cvt_pk_bf16_f32 v{b+c}, v{b+2*c}, v{b+2*c+1}")
        p.e(I(f"buffer_store_dwordx4 {vr(b)}, {vL16}, {srd(SRD_WS)}, s{6+i//4} offen offset:{(i%4)*1024} sc1", tag=tag))


def attn_wave(w, ool):
    q = Prog()

    def memx(lst, hs):
        def f(g):
            assert len(hs) == len(lst)
            for (pre, ins), h in zip(lst, hs):
                g.mem[h] += pre + [ins]
        return f
    X1, X2 = step(ool, "X", w)

    def exY(g):
        if OPT["wopf"]:
            g.sh[13].append(f"s_cmp_eq_u32 {sCA}, 5")
            g.sh[14] += [f"s_cbranch_scc1 L_wo_{w}", f"L_wo_{w}_back:"]
    Y = sum(step(ool, "Y", w, exY), [])
    pl = p_aload(0, 24)
    hx = (16, 17, 19, 21, 24, 26, 28, 30, 32, 33)
    ht = (0, 1, 2, 3, 4, 5, 6, 7, 9, 11, 12, 14, 14, 16, 16, 17, 19, 21, 23, 25, 29, 31)
    _, X2c = step(Prog(), "X", w, memx(pl[:10], hx))
    T = sum(step(ool, "T", w, memx(pl[10:] + p_dma(0) + p_dma(1), ht), vmw=12 + 10 + 20), [])
    Z0a, Z0b = step(ool, "Z0", w)
    Z1 = sum(step(ool, "Z1", w), [])
    _, Z0bc = step(Prog(), "Z0", w, memx(p_dma(2), (16, 19, 23, 31)), ringdma=False, vmw=(3 if w >= 1 else -1))
    Z1c = sum(step(ool, "Z1", w, memx(p_dma(3) + p_dma(4), (7, 9, 14, 16, 19, 23, 27, 31)), bar=(w >= 1), ringdma=False, vmw=-1), [])
    F = sum(step(ool, "F", w, memx(p_dma(5) + p_aload(24, 28), (16, 18, 20, 22, 24, 26, 28, 30)), bar=(w >= 2)), [])
    for nm, seq in (("XY", X1 + X2 + Y + X1 + X2), ("XT", X1 + X2c + T + Z0a + Z0b + Z1 + Z0a + Z0bc + Z1c + F), ("TF", T + F)):
        errs = lint(seq, nm)
        assert not errs, "\n".join(errs)
    if OPT["sim"]:
        br = [I("s_cbranch_scc1 LL")]
        for nm, seq in (("XY", (X2 + Y + X1 + br) * 3), ("Z", (Z0b + Z1 + Z0a + br) * 3)):
            t, gp = simulate(seq, taken=("LL",))
            print(nm, w, sum(gp[67:135]), gp[67:135])
        print("X2c+T", simulate(X2c + T)[0], "Z0bc+Z1c", simulate(Z0bc + Z1c)[0], "F", simulate(F)[0])
    q.e(f".p2align {6 if w else 3}\nL_att_{w}:"); q.e(step(ool, "X", w)[0])
    q.e(f"s_cbranch_scc0 L_Xx_{w}")
    q.e(f".p2align 5\nL_X_{w}:"); q.e(X2); q.e(Y); q.e(X1)
    q.e(f"s_cbranch_scc1 L_X_{w}\nL_Xx_{w}:")
    q.e(f"s_cmp_eq_u32 {sCA}, 0\ns_cbranch_scc1 L_Xo_{w}")
    q.e(mask_ops(NMA)); q.e(f"s_branch L_X_{w}")
    if OPT["wopf"]:
        q.e(f"L_wo_{w}:\nbuffer_load_dword v{vDummy}, v26, {srd(SRD_WO)}, s41 offen\ns_branch L_wo_{w}_back")
    q.e(f"L_Xo_{w}:")
    stamp(q, 9)
    q.e(f"s_waitcnt vmcnt(2)\nv_cmp_ne_u32 vcc, 1, v{vPoll}")
    if w == 3:
        q.e(f"s_cmp_eq_u32 {sCB}, -1\ns_cbranch_scc1 L_mB0\nL_mB0_back:")
        ool.e("L_mB0:"); ool.e(mask_ops(NMB)); ool.e("s_branch L_mB0_back")
    q.e(f"s_cbranch_vccnz L_pollACT{w}\nL_pollACT{w}_back:")
    poll_slow(ool, f"L_pollACT{w}", 27, 101)
    q.e(X2c); q.e(T)
    if w == 3:
        q.e(f"s_cmp_eq_u32 {sCB}, -1\ns_cbranch_scc1 L_TF")
        ool.e("L_TF:"); issue(ool, p_dma(2) + p_dma(3) + p_dma(4)); ool.e("s_branch L_F_3")
    if w < 2:
        e = Prog()
        e.e(sum(step(ool, "Z0", w), []))
        epilogue(e, 0, gs=range(4))
        e.e(sum(step(ool, "Z1", w), []))
        epilogue(e, 0, gs=range(4, 8))
        errs = lint(T + e.l + Z0a, "epiA")
        assert not errs, "\n".join(errs)
        q.e(e.l)
    stamp(q, 10)
    q.e(step(ool, "Z0", w)[0])
    q.e(f"s_cbranch_scc1 L_Zx_{w}")
    q.e(f".p2align 5\nL_Z_{w}:"); q.e(Z0b); q.e(Z1); q.e(Z0a)
    q.e(f"s_cbranch_scc0 L_Z_{w}\nL_Zx_{w}:")
    stamp(q, 11)
    q.e(mask_ops(NMB)); q.e(Z0bc); q.e(Z1c)
    q.e(f"L_F_{w}:")
    t = Prog()
    t.e(F)
    stamp(t, 12)
    if w == 3:
        t.e("s_barrier")
    if w >= 2:
        epilogue(t, 0)
    epilogue(t, 1, tag="CTXst")
    t.wait("PA27")
    tl = resolve_waits(t.l)
    errs = lint(tl, "tail")
    assert not errs, "\n".join(errs)
    q.e(tl)
    if w < 3:
        q.e("s_branch L_P4")
    return q


def oproj(ool):
    p = Prog()
    pre = [I("buffer_load_dword v0, v0, s[0:3], 0", tag=f"PA{f}") for f in range(28)]
    pre += [I("s_waitcnt vmcnt(0)")]
    pre += [I("buffer_load_dword v0, v0, s[0:3], 0", tag="CTXst") for _ in range(8)]
    p.e("L_P4:")
    stamp(p, 13)
    p.e(f"""
v_lshrrev_b32 v20, 2, v0
v_lshlrev_b32 v20, 7, v20
v_and_b32 v21, 3, v0
v_lshl_add_u32 v20, v21, 3, v20
v_bfe_u32 v21, v0, 3, 2
v_lshl_add_u32 v20, v21, 5, v20
s_and_b32 s6, s{sPM[0]}, 0x10000
v_add_u32 v{VP_TR[2]}, 0x20000, v20
v_add_u32 v{VP_TR[0]}, s6, v20
""")
    for cb in range(1, 4):
        p.e(f"v_xor_b32 v{VP_TR[2]+cb}, {32*cb}, v{VP_TR[2]}")
    p.e("s_barrier")

    def rd(n):
        ks, cb = divmod(n, 8)
        win, k = divmod(P_SLOT[ks // 2], 4)
        return [I(f"ds_read_b64_tr_b16 {vr(PWF+4*(n%16)+2*j,2)}, v{VP_TR[win]+cb%4} offset:{k*16384+(cb//4)*8192+(ks%2)*4096+j*2048}",
                  tag=f"PR{n//4}") for j in range(2)]
    for n in range(8):
        p.e(rd(n))
    p.wait("PR0")
    mf = []
    for ks in range(46):
        for cb in range(8):
            for rb in range(2):
                d = vr(PACC + 16 * (cb // 2) + 8 * rb + 4 * (cb % 2))
                n = 8 * ks + cb
                mf.append(I(f"{MF} {d}, {vr(PWF+4*(n%16))}, {p_areg(2*ks+rb)}, {'0' if ks == 0 else d}", needs=[f"PR{n//4}", f"PA{2*ks+rb}"]))
    NH = len(mf)
    g = Half(mf)
    for n in range(8, NH // 2):
        g.mem[2 * (n - 8)] += rd(n)
    for h in range(8, NH, 8):
        tags = [f"PR{h//8}"] + ([f"PA{h//8+1}"] if h % 16 == 0 else [])
        g.sh[h - 1].append(WAIT(*tags))
    for b in range(2, PSLAB, 2):
        tags = [f"PW{s}" for s in (b, b + 1) if 6 <= s < PSLAB]
        if tags:
            g.sh[32 * b - 20].append(WAIT(*tags))
        g.sh[32 * b - 19].append("s_barrier")

    def slot(h):
        h |= 1
        while g.cost(h):
            h += 2
        return h
    g.fill([f"v_xor_b32 v{VP_TR[0]+cb}, {32*cb}, v{VP_TR[0]}" for cb in range(1, 4)] +
           [f"v_xor_b32 v{VP_TR[1]+cb}, 0x10000, v{VP_TR[0]+cb}" for cb in range(4)] +
           ["v_and_b32 v27, 7, v0", "v_lshlrev_b32 v27, 2, v27"], (1, 3, 7, 9, 13))
    wstart = {6: 5, 7: 29, 8: 53, 9: 77, 10: 117, 11: 141}
    for s in range(12, PSLAB):
        wstart[s] = 191 + (s - 12) * 40
    lo = -1
    for s in range(6, PSLAB):
        if s >= 10:
            assert wstart[s] > 32 * (s - 8 + s % 2) - 19, s
        for i, (pr, ins) in enumerate(p_dma(s)):
            h = slot(wstart[s] + i * (6 if s < 12 else 10))
            if pr:
                g.before(pr, h, lo + 1)
            g.mem[h].append(ins)
            lo = h
        assert lo < 32 * (s - s % 2) - 40, s
    assert g.after(flag_addr("ctxA", 64) + flag_addr("ctxB", 65) +
                   ["s_and_b32 s66, s2, 1", "s_lshl_b32 s66, s66, 5", "s_add_u32 s66, s66, s48", "s_lshl_b32 s66, s66, 2",
                    "s_lshr_b32 s67, s2, 1", "s_and_b32 s67, s67, 3", "s_add_u32 s66, s66, s67", "s_lshl_b32 s66, s66, 7",
                    f"s_add_u32 s66, s66, {CTXF}"], 6) < 56
    g.sh[60].append(WAIT("CTXst"))
    g.mem[slot(61)].append(flag_store(vOne, 64))
    g.mem[slot(61)].append(flag_store(vOne, 65))
    g.mem[slot(120)].append(poll_req(27, 66, "pollCTX"))
    g.sh[163].append(WAIT("pollCTX"))
    g.val[163].append(I(f"v_cmp_ne_u32 vcc, 1, v{vPoll}", needs=["pollCTX"]))
    g.sh[165] += ["s_cbranch_vccnz L_pollCTX", "L_pollCTX_back:"]
    poll_slow(ool, "L_pollCTX", 27, 66)
    lo = 166
    for n, (pr, ins) in enumerate(p_aload(28, 92)):
        h = slot(max(lo + 1, 8 * (28 + n) - 88))
        if pr:
            g.before(pr, h, lo + 1)
        g.mem[h].append(ins)
        lo = h
    g.fill(["v_and_b32 v20, 15, v0", "v_lshrrev_b32 v21, 4, v0", "v_lshlrev_b32 v20, 10, v20", "v_lshl_add_u32 v22, v21, 3, v20",
            "v_lshrrev_b32 v21, 5, v0", "v_lshl_add_u32 v23, v21, 4, v20", "v_bfe_u32 v21, v0, 4, 1", "v_lshl_add_u32 v23, v21, 5, v23",
            "v_and_b32 v27, 3, v0", "v_lshlrev_b32 v27, 2, v27"], range(600, 640))
    ex = ["s_and_b32 s68, s2, 1", "s_lshl_b32 s68, s68, 5", "s_add_u32 s68, s68, s48", "s_lshl_b32 s68, s68, 15",
          "s_lshr_b32 s7, s2, 6", "s_lshl_b32 s6, s7, 8", "s_add_u32 s68, s68, s6", "s_lshl_b32 s6, s67, 6", "s_add_u32 s68, s68, s6",
          "s_add_u32 s69, s68, 0x4000",
          "s_and_b32 s78, s2, 1", "s_lshl_b32 s78, s78, 3", f"s_add_u32 s78, s78, {sJ}", "s_lshl_b32 s78, s78, 2", "s_add_u32 s78, s78, s7",
          "s_lshl_b32 s78, s78, 17", f"s_lshl_b32 s6, {sW}, 11", "s_add_u32 s78, s78, s6", f"s_add_u32 s78, s78, {EX_OFF}"]
    for i in range(3):
        ex += [f"s_xor_b32 s6, s67, {i ^ 3}", "s_lshl_b32 s7, s6, 2", "s_add_u32 s7, s7, s67", "s_lshl_b32 s7, s7, 13", f"s_add_u32 s{70+i}, s78, s7",
               "s_lshl_b32 s7, s67, 2", "s_add_u32 s7, s7, s6", "s_lshl_b32 s7, s7, 13", f"s_add_u32 s{73+i}, s78, s7"]
    ex += flag_addr("ex", 76) + ["s_and_b32 s77, s76, 0xffffff80"]
    assert g.after(ex, 500) < 640
    for a in range(4):
        g.mem[slot(656 + 8 * a)].append(I(f"buffer_load_dwordx2 {vr(PX+2*a,2)}, v22, {srd(SRD_X)}, s{68+a//2} offen offset:{32*(a%2)}", tag="xres"))
    if OPT["stamp"]:
        q = Prog(); stamp(q, 14); g.post[162] += q.l
        q = Prog(); stamp(q, 15); g.post[166] += q.l
        q = Prog(); stamp(q, 16); g.post[223] += q.l
    p.e(g.emit())
    stamp(p, 17)
    for i in range(3):
        b = PACC + 16 * i
        for c in range(8):
            p.e(f"v_cvt_pk_bf16_f32 v{b+c}, v{b+2*c}, v{b+2*c+1}")
        for t in range(2):
            p.e(I(f"buffer_store_dwordx4 {vr(b+4*t)}, {vL16}, {srd(SRD_WS)}, s{70+i} offen offset:{t*1024} sc1", tag="EXst"))
    b = PACC + 48

    def addbf(src):
        for c in range(8):
            p.e(f"v_lshlrev_b32 v20, 16, v{src+c}")
            p.e(f"v_and_b32 v21, 0xffff0000, v{src+c}")
            p.e(f"v_pk_add_f32 {vr(b+2*c,2)}, {vr(b+2*c,2)}, v[20:21]")
    p.wait("xres")
    addbf(PX)
    p.wait("EXst")
    p.e(flag_store(vOne, 76))
    stamp(p, 18)
    p.e(f"""
s_mov_b32 s96, 0x40000
L_pollEX:
buffer_load_dword v{vPoll}, v27, {srd(SRD_WS)}, s77 offen sc1
s_waitcnt vmcnt(0)
v_cmp_ne_u32 vcc, 1, v{vPoll}
s_sub_u32 s96, s96, 1
s_cbranch_scc1 L_pollEX_done
s_cbranch_vccnz L_pollEX
L_pollEX_done:
""")
    stamp(p, 19)
    for i in range(3):
        for t in range(2):
            p.e(I(f"buffer_load_dwordx4 {vr(PR+8*i+4*t)}, {vL16}, {srd(SRD_WS)}, s{73+i} offen offset:{t*1024} sc1", tag=f"EXr{i}"))
    for i in range(3):
        p.wait(f"EXr{i}")
        addbf(PR + 8 * i)
    for c in range(8):
        p.e(f"v_cvt_pk_bf16_f32 v{b+c}, v{b+2*c}, v{b+2*c+1}")
    p.e("s_nop 1")
    for t in range(2):
        p.e(f"v_permlane16_swap_b32 v{b+4*t}, v{b+4*t+2}")
        p.e(f"v_permlane16_swap_b32 v{b+4*t+1}, v{b+4*t+3}")
    for t in range(2):
        p.e(f"buffer_store_dwordx4 {vr(b+4*t)}, v23, {srd(SRD_OUT)}, s{68+t} offen")
    stamp(p, 20)
    rstamp(p, 61)
    stamp_flush(p)
    p.e("L_end:\ns_endpgm")
    l = resolve_waits(pre + p.l)[len(pre):]
    errs = lint(l, "oproj")
    assert not errs, "\n".join(errs)
    if OPT["sim"]:
        t, gp = simulate(l)
        print("oproj", t, sum(gp))
    return l


def kernel():
    p, ool = Prog(), Prog()
    setup(p)
    if OPT["stamp"]:
        p.e("v_mov_b32 v31, 0")
    rstamp(p, 60)
    stamp(p)
    projections(p, ool)
    head = resolve_waits(p.l)
    errs = lint(head, "head")
    assert not errs, "\n".join(errs)
    if OPT["sim"]:
        t, gp = simulate(head)
        print("head", t, [sum(gp[a:b]) for a, b in ((0, 512), (512, 768), (768, 1024), (1024, 1280), (1280, 1536), (1536, 1791), (1791, 1900))])
    s = text_of(head)
    for w in range(4):
        s += text_of(attn_wave(w, ool).l)
    s += text_of(oproj(ool))
    s += text_of(ool.l) + "L_hot_end:\n"
    for q in RARE.values():
        s += text_of(q.l)
    return s


def main():
    k = kernel()
    s = f"""; layernorm + K/V/Q/MLP projections + causal attention + output projection in one launch (generated by gen/gen3.py)
; @launch grid=(256,1,1) block=(256,1,1) lds=163840
.amdgcn_target "amdgcn-amd-amdhsa--gfx950"
.text
.globl {NAME}_kernel
.p2align 8
.type {NAME}_kernel,@function
{NAME}_kernel:
{k}
.section .rodata,"a"
.p2align 6
.amdhsa_kernel {NAME}_kernel
  .amdhsa_next_free_vgpr 512
  .amdhsa_next_free_sgpr 102
  .amdhsa_accum_offset 256
  .amdhsa_group_segment_fixed_size 0
  .amdhsa_kernarg_size 104
  .amdhsa_user_sgpr_count 2
  .amdhsa_user_sgpr_kernarg_segment_ptr 1
  .amdhsa_system_sgpr_workgroup_id_x 1
.end_amdhsa_kernel
"""
    open(sys.argv[1], "w").write(s)


main()
```

```python
import sys, struct, re
from asmlib import *

NAME = "parallel_sum__compressed_kv_cla__dense_activation_mish__prompt"
OPT = dict(stamp=0, thr=40, rot=7, nt=0, xnt=0, deep=1, cpf=1, wopf=1, sim=0, barh=0, pads=1, wqt=300, w2t=0, zc=4, sent=0, p2rot=7, xnsc=1, kvst=0, wsoff=0, cpf2=1, padat=-1, padus=0)
for a in sys.argv[2:]:
    k, v = a.split("=")
    assert k in OPT, k
    OPT[k] = int(v)


def f2u(x):
    return struct.unpack("<I", struct.pack("<f", x))[0]


KVFL = ("", "sc1", "nt", "sc1 nt")[OPT["kvst"]]
MF = "v_mfma_f32_16x16x32_bf16"
MF32 = "v_mfma_f32_32x32x16_bf16"
XN_OFF = 0
KV_OFF = 2 << 20
AF_OFF = 34 << 20
AF_KS = 368
FL_OFF = 58 << 20
CTXF, ACTF, KVF, EXF = FL_OFF, FL_OFF + 32768, FL_OFF + 40960, FL_OFF + 49152
ST_OFF = 60 << 20
EX_OFF = 64 << 20
WS_BYTES = 268435456 - (OPT['wsoff'] << 20)

sW, sH, sJ = "s3", "s4", "s5"
SRD_CKV, SRD_WUK, SRD_WUV, SRD_W1, SRD_WQ, SRD_WS, SRD_X, SRD_B1, SRD_DBG, SRD_ACT = (
    8, 12, 16, 20, 24, 28, 32, 36, 40, 44)
SRD_W2, SRD_WO, SRD_OUT, SRD_KV = 8, 12, 16, 36


def srd(n):
    return f"s[{n}:{n+3}]"


def vr(b, n=4):
    return f"v[{b}:{b+n-1}]"


def ar(b, n=4):
    return f"a[{b}:{b+n-1}]"


vL16 = "v1"
VA_DMA, VW_DMA, VW1_DMA, VTR, VA_RD = 2, 6, 10, 14, 18
WF, TP, ACC0, ACC1, BIAS = 32, 64, 96, 160, 224
LDS_A = 98304
vOne, vPoll, vDummy = 28, 29, 30
S0, S1, EX, P0, P1, NMA, NMB, ONES = 192, 208, 128, 144, 152, 96, 112, 228
OA, OB, KF, VF = 0, 64, 128, 160
vR0, vR1, vMask, vChk, vBit, vNinf = 2, 3, 4, 5, 6, 7
sKa, sKb, sM, sCA, sCB = "s52", "s53", "s54", "s55", "s56"
MASKS = 64
SHIFT = float(OPT["thr"])
VP_DMA = 10
VP_TR = (224, 228, 232)
sPA, sPC, sPW2, sPWO, sPM = 57, 58, 59, 60, (61, 62, 63)
PWF, PACC, PX, PR = 64, 128, 192, 200


def mk_srd(n, lo, nbytes):
    return [f"s_mov_b32 s{n}, s{lo}", f"s_and_b32 s{n+1}, s{lo+1}, 0xffff",
            f"s_mov_b32 s{n+2}, {nbytes}", f"s_mov_b32 s{n+3}, 0x20000"]


stamp_n = [0]


pad_n = [0]


def stamp(p, idx=None):
    if OPT["padat"] >= 0:
        if idx is None:
            idx = stamp_n[0]
            stamp_n[0] += 1
        if idx == OPT["padat"]:
            n = pad_n[0]
            pad_n[0] += 1
            p.e(f"""v_readfirstlane_b32 s96, v31
L_spin{n}:
s_memrealtime s[98:99]
s_waitcnt lgkmcnt(0)
s_sub_u32 s98, s98, s96
s_cmp_lt_u32 s98, {OPT["padus"]*100}
s_cbranch_scc1 L_spin{n}""")
        return
    if not OPT["stamp"]:
        return
    if idx is None:
        idx = stamp_n[0]
        stamp_n[0] += 1
    p.e(f"s_memtime s[98:99]")
    p.e("s_waitcnt lgkmcnt(0)")
    p.e(f"v_writelane_b32 v31, s98, {idx}")


def rstamp(p, lane):
    if not OPT["stamp"]:
        return
    p.e(f"s_memrealtime s[98:99]")
    p.e("s_waitcnt lgkmcnt(0)")
    p.e(f"v_writelane_b32 v31, s98, {lane}")


def stamp_flush(p):
    if not OPT["stamp"]:
        return
    p.e("s_lshl_b32 s98, s2, 2")
    p.e(f"s_add_u32 s98, s98, {sW}")
    p.e("s_lshl_b32 s98, s98, 8")
    p.e(f"s_add_u32 s98, s98, {ST_OFF}")
    p.e(f"v_lshrrev_b32 v30, 2, {vL16}")
    p.e(f"buffer_store_dword v31, v30, {srd(SRD_WS)}, s98 offen")


def setup(p):
    p.e(f"""
s_cmp_ge_u32 s2, 256
s_cbranch_scc1 L_end
""")
    if OPT["padat"] >= 0:
        p.e("s_memrealtime s[98:99]\ns_waitcnt lgkmcnt(0)\nv_mov_b32 v31, s98")
    p.e(f"""
s_load_dwordx16 s[48:63], s[0:1], 0
s_load_dwordx8 s[64:71], s[0:1], 64
s_load_dwordx2 s[72:73], s[0:1], 96
v_lshrrev_b32 v20, 6, v0
v_and_b32 v0, 63, v0
v_readfirstlane_b32 {sW}, v20
v_lshlrev_b32 {vL16}, 4, v0
s_and_b32 s6, s2, 7
s_lshr_b32 s7, s2, 6
s_lshl_b32 s7, s7, 3
s_add_u32 {sH}, s6, s7
s_lshr_b32 {sJ}, s2, 3
s_and_b32 {sJ}, {sJ}, 7
""")
    if OPT["cpf"]:
        p.e(f"""
s_getpc_b64 s[96:97]
L_pc:
s_lshr_b32 s6, s2, 3
s_mul_i32 s6, s6, 3072
v_min_u32 v20, 23, v0
v_lshl_add_u32 v20, v20, 7, s6
v_min_u32 v20, L_hot_end-L_pc, v20
s_cmp_lg_u32 {sW}, 0
s_cbranch_scc1 L_nocpf
global_load_dword v{vDummy}, v20, s[96:97]
L_nocpf:
""")
        p.l[-2].kind = "op"
    p.e(f"""
v_lshrrev_b32 v20, 3, v0
v_and_b32 v21, 7, v0
v_lshrrev_b32 v22, 4, v0
v_xor_b32 v23, v21, v22
v_lshlrev_b32 v23, 4, v23
v_lshl_add_u32 v{VA_DMA}, v20, 10, v23
v_xor_b32 v24, 64, v{VA_DMA}
v_add_u32 v{VA_DMA+1}, {7*1024}, v24
v_add_u32 v{VA_DMA+2}, {14*1024}, v{VA_DMA}
v_add_u32 v{VA_DMA+3}, {21*1024}, v24
v_and_b32 v22, 1, v22
v_lshlrev_b32 v22, 1, v22
v_xor_b32 v23, v21, v22
v_lshlrev_b32 v23, 4, v23
v_xor_b32 v25, 64, v23
v_lshl_add_u32 v{VW_DMA}, v20, 13, v23
v_lshl_add_u32 v{VW_DMA+1}, v20, 13, v25
v_mul_u32_u24 v24, 3584, v20
v_add_u32 v{VW1_DMA}, v24, v23
v_add_u32 v{VW1_DMA+1}, v24, v25
""")
    for b, pitch in ((VW_DMA, 8192), (VW1_DMA, 3584)):
        d = 8 * pitch - 1024
        p.e(f"v_add_u32 v{b+2}, {2*d}, v{b}\nv_add_u32 v{b+3}, {3*d}, v{b+1}\nv_add_u32 v{b+1}, {d}, v{b+1}")
    p.e(f"""
v_lshrrev_b32 v20, 4, v0
v_lshlrev_b32 v20, 3, v20
v_bfe_u32 v21, v0, 2, 2
v_add_u32 v20, v20, v21
v_lshlrev_b32 v20, 7, v20
v_and_b32 v21, 3, v0
v_lshl_add_u32 v20, v21, 3, v20
v_bfe_u32 v21, v0, 3, 2
v_lshl_add_u32 v{VTR}, v21, 5, v20
""")
    for cb in range(1, 4):
        p.e(f"v_xor_b32 v{VTR+cb}, {32*cb}, v{VTR}")
    p.e(f"""
s_lshl_b32 s6, {sW}, 13
s_add_u32 s74, s6, {LDS_A}
v_and_b32 v20, 15, v0
v_lshlrev_b32 v20, 7, v20
v_add_u32 v20, s74, v20
v_bfe_u32 v21, v0, 1, 3
v_lshrrev_b32 v22, 4, v0
v_xor_b32 v21, v21, v22
v_lshl_add_u32 v{VA_RD}, v21, 4, v20
v_xor_b32 v{VA_RD+1}, 64, v{VA_RD}
""")
    p.e(f"""
s_lshl_b32 s75, {sJ}, 2
s_add_u32 s75, s75, {sW}
s_lshl_b32 s75, s75, 16
s_lshl_b32 s76, {sH}, 8
s_lshl_b32 s77, {sW}, 12
s_lshr_b32 s6, {sW}, 1
s_lshl_b32 s6, s6, 7
s_and_b32 s7, {sW}, 1
s_lshl_b32 s7, s7, 18
s_add_u32 s78, s76, s6
s_add_u32 s78, s78, s7
s_add_u32 s79, {sJ}, {sH}
s_and_b32 s79, s79, {OPT["rot"]}
s_lshl_b32 s100, s79, 19
s_lshl_b32 s101, s79, 7
v_and_b32 v20, 7, v0
v_lshrrev_b32 v21, 3, v0
v_lshlrev_b32 v21, 4, v21
v_lshl_add_u32 v20, v20, 10, v21
s_lshl_b32 s6, s2, 13
s_lshl_b32 s7, {sW}, 8
s_add_u32 s6, s6, s7
s_waitcnt lgkmcnt(0)
""")
    p.e(mk_srd(SRD_X, 48, 2048 * 1024))
    if OPT["wsoff"]:
        p.e(f"s_add_u32 s72, s72, {OPT['wsoff'] << 20}\ns_addc_u32 s73, s73, 0")


def a_dma(q):
    out = []
    for rb in range(2):
        for u in range(4):
            pre = []
            if u == 0 and rb == 0:
                pre = [f"s_add_u32 m0, s74, {(q%2)*32768}", f"s_add_u32 s80, s101, {q*128}",
                       "s_and_b32 s80, s80, 0x3ff", "s_add_u32 s80, s80, s75"]
            if u == 0 and rb == 1:
                pre = [f"s_add_u32 m0, s74, {(q%2)*32768 + 4096}", "s_add_u32 s80, s80, 32768"]
            out.append((pre, I(f"buffer_load_dwordx4 v{VA_DMA+u}, {srd(SRD_CKV)}, s80 offen offset:{u*1024} lds", tag=f"A{q}")))
    return out


def res(rb, ks):
    return ar(((rb // 2) * 32 + 2 * ks + rb % 2) * 4)


def a_reads(q):
    out = []
    for s in range(2):
        for rb in range(4):
            out.append(I(f"ds_read_b128 {res(rb, 2*q+s)}, v{VA_RD+s} offset:{(q%2)*32768 + rb*2048}",
                         tag=f"Ar{q}", needs=[f"A{q}"]))
    return out


CHUNKS = [("Vlo", SRD_WUV, 0), ("Vhi", SRD_WUV, 128), ("H", SRD_W1, 0), ("Qlo", SRD_WQ, 0), ("Qhi", SRD_WQ, 128)]
NSLAB = 28
if OPT["deep"]:
    W_ISSUE = [-1, -1, 0, 1, 2, 3, 4, 5, 6, 6, 6, 7, 7, 7, 8, 8, 9, 9, 10, 11, 17, 19, 20, 20, 21, 21, 22, 22]
else:
    W_ISSUE = [-1, -1] + list(range(26))
W_SLOT = []
_free_at = [-1] * 6 + [7, 7, 8, 8]
for _s in range(NSLAB):
    assert W_ISSUE[_s] <= max(_s - 2, -1)
    _c = [k for k in range(10) if _free_at[k] <= W_ISSUE[_s] and (_s < 24 or k >= 6) and (not 20 <= _s < 24 or k < 6)]
    _k = min(_c, key=lambda k: (_free_at[k], k))
    W_SLOT.append(_k)
    _free_at[_k] = _s + 2
WNT = " nt" if OPT["nt"] else ""
XNT = " nt" if OPT["xnt"] else ""


def w_dma(pslab):
    out = []
    slot = W_SLOT[pslab] * 16384
    if pslab < 8:
        sr, va = SRD_WUK, VW_DMA
        so = [f"s_add_u32 s81, s100, {pslab<<19}", "s_and_b32 s81, s81, 0x3fffff", "s_add_u32 s81, s81, s78"]
    else:
        c, i = divmod(pslab - 8, 4)
        nm, sr, col = CHUNKS[c]
        if nm == "H":
            va = VW1_DMA
            so = [f"s_mov_b32 s81, s{52+i}"]
        else:
            va = VW_DMA
            so = [f"s_add_u32 s81, s{60+i}, {col}"]
    for u in range(4):
        pre = [f"s_add_u32 m0, s77, {slot}"] + so if u == 0 else []
        out.append((pre, I(f"buffer_load_dwordx4 v{va+u}, {srd(sr)}, s81 offen offset:{u*1024}{WNT} lds", tag=f"W{pslab}")))
    return out


def w_read(n, j):
    slot = (W_SLOT[n // 16] * 16384) % 65536
    if n < 128:
        ks, cb = divmod(n, 8)
        off = slot + (cb // 4) * 8192 + (ks % 2) * 4096 + j * 512
    else:
        ks, cb = divmod(n, 4)
        off = slot + (ks % 4) * 4096 + j * 512
    return I(f"ds_read_b64_tr_b16 {vr(WF + 4*(n%8) + 2*j, 2)}, v{VTR + n % 4} offset:{off}", tag=f"Wr{n//2}")


def layernorm(p):
    p.e(f"""
v_and_b32 v20, 7, v0
v_lshlrev_b32 v21, 4, v20
s_lshl_b32 s6, {sW}, 2
v_add_u32 v22, s6, v21
""")
    p.wait("X")
    for i in range(8):
        p.e(f"v_and_b32 v{41+2*i}, 0xffff0000, v{32+i}")
        p.e(f"v_lshlrev_b32 v{40+2*i}, 16, v{32+i}")

    def reduce(v, slot):
        p.e(f"""
s_nop 1
v_add_f32_dpp {v}, {v}, {v} row_ror:8 row_mask:0xf bank_mask:0xf
v_mov_b32 v24, {v}
s_nop 1
v_permlane16_swap_b32 {v}, v24
v_add_f32 {v}, {v}, v24
v_mov_b32 v24, {v}
s_nop 1
v_permlane32_swap_b32 {v}, v24
v_add_f32 {v}, {v}, v24
""")
        p.e(I(f"ds_write_b32 v22, {v} offset:{49152 + slot*128}", tag=f"lnw{slot}"))
        p.wait(f"lnw{slot}")
        p.e("s_barrier")
        p.e(I(f"ds_read_b128 v[24:27], v21 offset:{49152 + slot*128}", tag=f"lnr{slot}"))
        p.wait(f"lnr{slot}")
        p.e(f"""
v_add_f32 v24, v24, v25
v_add_f32 v26, v26, v27
v_add_f32 {v}, v24, v26
v_mul_f32 {v}, 0x{f2u(1/512):x}, {v}
""")

    p.e("v_add_f32 v23, v40, v41")
    for i in range(2, 16):
        p.e(f"v_add_f32 v23, v23, v{40+i}")
    reduce("v23", 0)
    p.e("v_sub_f32 v29, v40, v23")
    p.e("v_mul_f32 v28, v29, v29")
    for i in range(1, 16):
        p.e(f"v_sub_f32 v29, v{40+i}, v23")
        p.e(f"v_fmac_f32 v28, v29, v29")
    reduce("v28", 1)
    p.e(f"""
v_cvt_pk_bf16_f32 v24, v23, v28
v_lshlrev_b32 v23, 16, v24
v_and_b32 v28, 0xffff0000, v24
v_add_f32 v28, 0x{f2u(1e-5):x}, v28
v_cvt_pk_bf16_f32 v24, v28, v28
v_lshlrev_b32 v28, 16, v24
v_sqrt_f32 v28, v28
s_nop 0
v_cvt_pk_bf16_f32 v24, v28, v28
v_lshlrev_b32 v28, 16, v24
v_rcp_f32 v28, v28
""")
    for i in range(16):
        p.e(f"v_sub_f32 v{40+i}, v{40+i}, v23")
    for i in range(8):
        p.e(f"v_cvt_pk_bf16_f32 v24, v{40+2*i}, v{41+2*i}")
        p.e(f"v_lshlrev_b32 v25, 16, v24")
        p.e(f"v_and_b32 v26, 0xffff0000, v24")
        p.e(f"v_mul_f32 v25, v25, v28")
        p.e(f"v_mul_f32 v26, v26, v28")
        p.e(f"v_cvt_pk_bf16_f32 v{32+i}, v25, v26")
    p.e(f"""
v_bfe_u32 v24, v0, 3, 2
v_lshl_add_u32 v24, v24, 8, v21
v_lshrrev_b32 v25, 5, v0
v_lshl_add_u32 v24, v25, 11, v24
s_lshr_b32 s6, s2, 2
s_lshl_b32 s6, s6, 15
s_and_b32 s7, s2, 2
s_lshl_b32 s7, s7, 9
s_add_u32 s6, s6, s7
s_and_b32 s7, s2, 1
s_lshl_b32 s7, s7, 7
s_add_u32 s6, s6, s7
s_lshl_b32 s7, {sW}, 13
s_add_u32 s6, s6, s7
s_add_u32 s7, s6, 4096
""")
    p.e(I(f"buffer_store_dwordx4 v[32:35], v24, {srd(SRD_WS)}, s6 offen sc1", tag="XNst"))
    p.e(I(f"buffer_store_dwordx4 v[36:39], v24, {srd(SRD_WS)}, s7 offen sc1", tag="XNst"))
    p.e("s_nop 1")


def flag_addr(kind, dst):
    d = f"s{dst}"
    if kind in ("ctxA", "ctxB"):
        rb = "s48" if kind == "ctxA" else "s49"
        return [f"s_lshl_b32 {d}, {rb}, 2", f"s_lshr_b32 s7, {sH}, 3", f"s_add_u32 {d}, {d}, s7", f"s_lshl_b32 {d}, {d}, 5",
                f"s_and_b32 s7, {sH}, 7", f"s_add_u32 {d}, {d}, s7", f"s_lshl_b32 {d}, {d}, 2", f"s_add_u32 {d}, {d}, {CTXF}"]
    if kind in ("actA", "actB"):
        rb = "s48" if kind == "actA" else "s49"
        return [f"s_lshl_b32 {d}, {rb}, 5", f"s_add_u32 {d}, {d}, {sH}", f"s_lshl_b32 {d}, {d}, 2", f"s_add_u32 {d}, {d}, {ACTF}"]
    if kind == "kv":
        return [f"s_lshl_b32 {d}, {sH}, 5", f"s_add_u32 {d}, {d}, s48", f"s_lshl_b32 {d}, {d}, 2", f"s_add_u32 {d}, {d}, {KVF}"]
    if kind == "ex":
        return [f"s_and_b32 {d}, s2, 1", f"s_lshl_b32 {d}, {d}, 3", f"s_add_u32 {d}, {d}, {sJ}", f"s_lshl_b32 {d}, {d}, 2",
                "s_lshr_b32 s7, s2, 6", f"s_add_u32 {d}, {d}, s7", f"s_lshl_b32 {d}, {d}, 2", f"s_add_u32 {d}, {d}, {sW}",
                f"s_lshl_b32 {d}, {d}, 7", "s_and_b32 s7, s2, 6", "s_lshl_b32 s7, s7, 1", f"s_add_u32 {d}, {d}, s7",
                f"s_add_u32 {d}, {d}, {EXF}"]
    raise Exception(kind)


def flag_store(val, s, tag=None):
    return I(f"buffer_store_dword v{val}, off, {srd(SRD_WS)}, s{s} sc1", tag=tag)


def poll_req(vidx, s, tag):
    return I(f"buffer_load_dword v{vPoll}, v{vidx}, {srd(SRD_WS)}, s{s} offen sc1", tag=tag)


def poll_slow(out, label, vidx, s, cmp="v_cmp_ne_u32 vcc, 1"):
    out.e(f"""
{label}:
s_mov_b32 s96, 0x40000
{label}_l:
buffer_load_dword v{vPoll}, v{vidx}, {srd(SRD_WS)}, s{s} offen sc1
s_waitcnt vmcnt(0)
{cmp}, v{vPoll}
s_sub_u32 s96, s96, 1
s_cbranch_scc1 {label}_back
s_cbranch_vccnz {label}_l
s_branch {label}_back
""")


def grp(buf, i):
    if buf == 2:
        return TP + 8 * i if i < 4 else BIAS + 8 * (i - 4)
    return buf + 8 * i


def acc(buf, vtype, cb, rb):
    if vtype:
        return grp(buf, (rb // 2) * 4 + cb) + 4 * (rb % 2)
    return grp(buf, (cb // 2) * 4 + rb) + 4 * (cb % 2)


def issue(p, lst):
    for pre, ins in lst:
        p.e(pre)
        p.e(ins)


def place(g, lst, h0, step, lo):
    prev = lo
    for i, (pre, ins) in enumerate(lst):
        h = h0 + i * step
        assert h > prev
        if pre:
            g.before(pre, h, prev + 1)
        g.mem[h].append(ins)
        prev = h
    return prev


def kv_dma(n):
    out = []
    for u in range(4):
        pre = [f"s_sub_u32 m0, s{sPM[2]}, {0x20000 - n*16384}", f"s_mov_b32 s97, {n*16384}"] if u == 0 else []
        out.append((pre, I(f"buffer_load_dwordx4 {vL16}, {srd(SRD_KV)}, s97 offen offset:{u*1024} sc1 lds", tag=f"KV{n}")))
    return out


PSLAB = 23
P_SLOT = [8, 9, 0, 1, 2, 3, 4, 5, 6, 7]
P_SLOT = [P_SLOT[s % 10] for s in range(PSLAB)]


def p_dma(s):
    win, k = divmod(P_SLOT[s], 4)
    sr, so = (SRD_W2, f"s_add_u32 s97, s{sPW2}, {s*65536}") if s < 7 else (SRD_WO, f"s_add_u32 s97, s{sPWO}, {(s-7)*65536}")
    out = []
    for u in range(4):
        pre = [f"s_add_u32 m0, s{sPM[win]}, {k*16384}", so] if u == 0 else []
        out.append((pre, I(f"buffer_load_dwordx4 v{VP_DMA+u}, {srd(sr)}, s97 offen offset:{u*1024} lds", tag=f"PW{s}")))
    return out


def p_areg(ks):
    if 16 <= ks < 24:
        return vr(32 + 4 * (ks - 16))
    return ar(128 + 4 * ((ks + 16) % 32) if ks < 16 else 128 + 4 * ((ks - 24) % 32))


def p_aload(ks0, ks1):
    out = []
    for ks in range(ks0, ks1):
        pre = []
        if ks % 4 == 0:
            pre = [f"s_add_u32 s100, s{sPA}, {ks*1024}" if ks < 28 else f"s_add_u32 s100, s{sPC}, {(ks-28)*1024}"]
        out.append((pre, I(f"buffer_load_dwordx4 {p_areg(ks)}, {vL16}, {srd(SRD_WS)}, s100 offen offset:{(ks%4)*1024} sc1", tag=f"PA{ks}")))
    return out


def ex_addr():
    ex = ["s_and_b32 s76, s2, 1", "s_lshl_b32 s76, s76, 3", f"s_add_u32 s76, s76, {sJ}", "s_lshl_b32 s76, s76, 2", "s_lshr_b32 s7, s2, 6",
          "s_add_u32 s76, s76, s7", "s_lshl_b32 s76, s76, 17", f"s_lshl_b32 s6, {sW}, 11", "s_add_u32 s76, s76, s6", f"s_add_u32 s76, s76, {EX_OFF}"]
    for i in range(3):
        ex += [f"s_xor_b32 s6, s71, {i ^ 3}", "s_lshl_b32 s7, s6, 2", "s_add_u32 s7, s7, s71", "s_lshl_b32 s7, s7, 13", f"s_add_u32 s{72+i}, s76, s7",
               "s_lshl_b32 s7, s71, 2", "s_add_u32 s7, s7, s6", "s_lshl_b32 s7, s7, 13", f"s_add_u32 s{24+i}, s76, s7"]
    return ex + flag_addr("ex", 27)


def projections(p, ool):
    p.e(I(f"buffer_load_dwordx4 v[32:35], v20, {srd(SRD_X)}, s6 offen{XNT}", tag="X"))
    p.e(I(f"buffer_load_dwordx4 v[36:39], v20, {srd(SRD_X)}, s6 offen offset:128{XNT}", tag="X"))
    p.e(mk_srd(SRD_CKV, 50, 2048 * 1024))
    issue(p, a_dma(0))
    p.e(mk_srd(SRD_WUK, 54, 512 * 8192))
    issue(p, w_dma(0))
    p.e(mk_srd(SRD_WS, 72, WS_BYTES))
    p.e(mk_srd(SRD_WUV, 56, 512 * 8192))
    p.e(mk_srd(SRD_WQ, 52, 512 * 8192))
    p.e(mk_srd(SRD_W1, 62, 512 * 3584))
    p.e(mk_srd(SRD_B1, 64, 3584))
    p.e(mk_srd(SRD_DBG, 70, 256))
    p.e(mk_srd(SRD_ACT, 72, WS_BYTES))
    p.e(f"""
s_cmp_lt_u32 {sH}, 28
s_cselect_b32 s{SRD_W1+2}, s{SRD_W1+2}, 0
s_cselect_b32 s{SRD_ACT+2}, s{SRD_ACT+2}, 0
s_lshl_b32 s83, {sH}, 7
s_lshl_b32 s6, {sH}, 6
s_lshl_b32 s7, {sJ}, 3
s_add_u32 s6, s6, s7
s_lshl_b32 s7, {sW}, 1
s_add_u32 s6, s6, s7
s_lshl_b32 s6, s6, 14
s_add_u32 s84, s6, {KV_OFF}
""")
    for i in range(1, 8):
        p.e(f"s_add_u32 s{84+i}, s84, {i*4096}")
    p.e(f"s_lshl_b32 s6, s79, 1\ns_add_u32 s6, s6, {sW}\ns_lshl_b32 s6, s6, 5")
    for i in range(4):
        p.e(f"""
s_add_u32 s7, s6, {128*i}
s_and_b32 s7, s7, 511
s_lshl_b32 s{60+i}, s7, 13
s_add_u32 s{60+i}, s{60+i}, s76
""")
    p.e(f"s_and_b32 s79, s79, {OPT['p2rot']}\ns_lshl_b32 s6, s79, 1\ns_add_u32 s6, s6, {sW}\ns_lshl_b32 s82, s6, 5")
    for i in range(4):
        p.e(f"""
s_add_u32 s7, s82, {128*i}
s_and_b32 s7, s7, 511
s_mul_i32 s{52+i}, s7, 3584
s_add_u32 s{52+i}, s{52+i}, s83
""")
    p.e(f"""
s_lshl_b32 s70, s79, 12
s_lshl_b32 s48, {sJ}, 2
s_add_u32 s48, s48, {sW}
s_sub_u32 s49, 63, s48
s_lshl_b32 s92, s48, 15
s_lshl_b32 s93, s49, 15
s_mul_i32 s50, s48, {AF_KS*1024}
s_mul_i32 s51, s49, {AF_KS*1024}
s_add_u32 s50, s50, {AF_OFF}
s_add_u32 s51, s51, {AF_OFF}
s_lshl_b32 s6, {sH}, 12
s_add_u32 s6, s6, {256*1024}
s_add_u32 s94, s50, s6
s_add_u32 s95, s51, s6
""")
    layernorm(p)
    p.e("s_getreg_b32 s57, hwreg(HW_REG_XCC_ID, 0, 4)\nv_mov_b32 v27, 0\nv_mov_b32 v26, s57")
    for kind in ("kv", "actA", "actB", "ctxA", "ctxB", "ex"):
        p.e(flag_addr(kind, 6))
        p.e(flag_store(26 if kind == "kv" else 27, 6, "XNst"))
    if OPT["pads"]:
        p.e("s_mov_b64 exec, 0")
        for w in (1, 2, 3):
            p.e(f"s_cmp_eq_u32 {sW}, {w}\ns_cbranch_scc1 L_pad{w}")
        p.e("s_branch L_pad0\nL_padret:\ns_mov_b64 exec, -1")
    issue(p, a_dma(1))
    issue(p, w_dma(1))
    p.e(";PAGE")
    p.e(f"""
s_cmp_eq_u32 {sW}, 0
s_cselect_b32 s6, 0, 0x1000
v_lshl_add_u32 v26, v0, 12, s6
v_mov_b32 v{vOne}, 1
""")
    if OPT["wqt"] >= 0:
        p.e(f"""
v_bfe_u32 v25, v0, 1, 4
v_lshlrev_b32 v25, 13, v25
v_and_b32 v24, 1, v0
v_lshl_add_u32 v25, v24, 7, v25
s_lshl_b32 s56, s75, 1
s_add_u32 s56, s56, s76
""")
        if OPT["wqt"] == 0:
            p.e(I(f"buffer_load_dword v{vDummy}, v25, {srd(SRD_WQ)}, s56 offen"))
    stamp(p)
    p.wait("A0")
    for x in a_reads(0):
        p.e(x)
    p.wait("W0")
    p.e("s_barrier")
    for n in range(4):
        p.e(w_read(n, 0))
        p.e(w_read(n, 1))
    p.wait("Wr0", "Ar0")

    mf = []
    for ks in range(16):
        for cb in range(8):
            for rb in range(4):
                d = vr(acc(ACC0 if cb < 4 else ACC1, 0, cb % 4, rb))
                n = len(mf) // 4
                mf.append(I(f"{MF} {d}, {vr(WF+4*(n%8))}, {res(rb, ks)}, {'0' if ks == 0 else d}", needs=[f"Wr{n//2}", f"Ar{ks//2}"]))
    for ci, (nm, _, _) in enumerate(CHUNKS):
        buf = (ACC0, ACC1, ACC0, ACC1, 2)[ci]
        for ks in range(16):
            for cb in range(4):
                for rb in range(4):
                    d = c = vr(acc(buf, nm[0] == "V", cb, rb))
                    if ks == 0:
                        c = vr(BIAS + 4 * cb) if nm == "H" else "0"
                    n = len(mf) // 4
                    wf, af = vr(WF + 4 * (n % 8)), res(rb, ks)
                    a, b = (af, wf) if nm[0] == "V" else (wf, af)
                    nd = [f"Wr{n//2}"] + ([f"XN{ks}"] if nm == "H" else [])
                    mf.append(I(f"{MF} {d}, {a}, {b}, {c}", needs=nd))
    NH = len(mf)
    g = Half(mf)
    for n in range(4, NH // 4):
        for j in range(2):
            g.mem[4 * (n - 4) + 2 * j].append(w_read(n, j))
        if n % 16 >= 12 and n // 16 + 1 < NSLAB:
            dw = W_SLOT[n // 16 + 1] // 4 - W_SLOT[n // 16] // 4
            if dw:
                g.val[4 * (n - 4) + 2].append(I(f"v_add_u32 v{VTR+n%4}, 0x{(dw*65536) & 0xffffffff:x}, v{VTR+n%4}"))
    for h in range(8, NH, 8):
        tags = [f"Wr{h//8}"]
        if h < 512 and h % 64 == 0:
            tags += [f"Ar{h//64}"]
        if 1024 <= h < 1280 and h % 16 == 0:
            tags += [f"XN{(h-1024)//16}"]
        g.sh[h - 1].append(WAIT(*tags))
    for q in range(1, 8):
        h = 64 * q - 27
        g.sh[h - 1].append(WAIT(f"A{q}"))
        for i, x in enumerate(a_reads(q)):
            g.mem[h - 1 + 2 * i].append(x)
    for ps in range(1, NSLAB):
        tags = [f"W{ps}"] + (["XNst"] if ps == 2 else []) + (["KV0"] if ps == 27 else [])
        g.sh[64 * ps - 19].append(WAIT(*tags))
        g.sh[64 * ps - 18].append("s_barrier")
    lo = -1
    for ps in range(0, NSLAB):
        lst = []
        for sl in range(NSLAB):
            if W_ISSUE[sl] == ps:
                lst += w_dma(sl)
        if ps == 0:
            lo = place(g, a_dma(2) + lst, 5, 4, -1)
        elif ps < 6:
            lo = place(g, lst, 64 * ps - (13 if ps > 1 else 9), 4 if ps > 1 else 2, lo)
            lo = place(g, a_dma(ps + 2), 64 * ps + 5, 6 if ps < 5 else 4, lo)
        elif lst:
            lo = place(g, lst, 64 * ps - 13, 4 if len(lst) > 8 else 6, max(lo, 64 * ps - 19))
    g.mem[64 * 2 - 15].append(I(f"buffer_atomic_add v{vOne}, v26, {srd(SRD_DBG)}, 0 offen"))

    def slot(h):
        h |= 1
        while g.mem[h] or g.val[h]:
            h += 2
        return h

    def kv_store(src, blk, f):
        return I(f"buffer_store_dwordx4 {vr(src)}, {vL16}, {srd(SRD_WS)}, s{84+blk*4+f//4} offen offset:{(f%4)*1024} {KVFL}", tag="KVst")

    def cvt4(dst, src):
        return [f"v_cvt_pk_bf16_f32 v{dst+c}, v{src+2*c}, v{src+2*c+1}" for c in range(4)]

    prev = 770
    for i in range(64):
        f, blk = divmod(i, 2)
        h = slot(max(2 * (392 + (33 * i) // 10), prev + 1))
        assert 768 + 16 * (f // 2 + 1) <= h < 1024 + 16 * (f // 2) - 50
        if i % 8 == 0:
            g.before(["s_add_u32 s64, s92, s70", "s_add_u32 s65, s93, s70"], h, prev + 1)
            g.after(["s_add_u32 s70, s70, 4096", "s_and_b32 s70, s70, 0x7fff"], h + 1)
        g.mem[h].append(I(f"buffer_load_dwordx4 {ar((blk*32+f)*4)}, {vL16}, {srd(SRD_WS)}, s{64+blk} offen offset:{(f%4)*1024}{' sc1' if OPT['xnsc'] else ''}", tag=f"XN{f//2}"))
        prev = h
    kf = lambda i, hi: ((i % 4) // 2, (i % 2) * 4 + 2 * hi + i // 4)
    vf = lambda i, hi: (i // 4, 8 + 4 * hi + i % 4)
    it = []
    for i in range(8):
        it += cvt4(TP + 4 * i, ACC0 + 8 * i)
    g.fill(it, range(487, 512))
    tp_st = [kv_store(TP + 4 * i, *kf(i, 0)) for i in range(8)]

    def epi_inplace(buf, h0, fidx, extra):
        it, st = [], []
        for i in range(8):
            it += cvt4(buf + 8 * i, buf + 8 * i)
            st.append(kv_store(buf + 8 * i, *fidx(i)))
        st = extra[:2] + st + extra[2:]
        for n, x in enumerate(st):
            g.mem[slot(h0 + 6 + (n * 240) // len(st))].append(x)
        g.fill(it, range(h0 + 2, h0 + 40))
    epi_inplace(ACC1, 512, lambda i: kf(i, 1), tp_st[:4])
    epi_inplace(ACC0, 768, lambda i: vf(i, 0), tp_st[4:6])
    epi_inplace(ACC1, 1024, lambda i: vf(i, 1), tp_st[6:])
    g.fill(["v_lshrrev_b32 v20, 4, v0", "v_lshlrev_b32 v20, 3, v20"], range(676, 680))
    for cb in range(4):
        g.mem[slot(684 + 6 * cb)].append(I(f"buffer_load_dwordx2 {vr(BIAS+4*cb+2,2)}, v20, {srd(SRD_B1)}, s83 offen offset:{32*cb}", tag="B1"))
    g.after([WAIT("B1")], 876)
    it = []
    for cb in range(4):
        b = BIAS + 4 * cb
        it += [I(f"v_lshlrev_b32 v{b}, 16, v{b+2}", needs=["B1"]), f"v_and_b32 v{b+1}, 0xffff0000, v{b+2}",
               f"v_lshlrev_b32 v{b+2}, 16, v{b+3}", f"v_and_b32 v{b+3}, 0xffff0000, v{b+3}"]
    g.fill(it, range(884, 920))
    g.mem[slot(672)].append(I(f"buffer_load_dword v{vPoll}, off, {srd(SRD_DBG)}, 0 sc1", tag="pollLN"))
    g.sh[760].append(WAIT("pollLN"))
    g.val[760].append(I(f"v_cmp_gt_u32 vcc, 0x100, v{vPoll}", needs=["pollLN"]))
    g.sh[763] += ["s_cbranch_vccnz L_pollLN", "L_pollLN_back:"]
    ool.e(f"""
L_pollLN:
s_mov_b32 s96, 0x40000
L_pollLN_l:
s_sleep 2
buffer_load_dword v{vPoll}, off, {srd(SRD_DBG)}, 0 sc1
s_waitcnt vmcnt(0)
v_cmp_gt_u32 vcc, 0x100, v{vPoll}
s_sub_u32 s96, s96, 1
s_cbranch_scc1 L_pollLN_back
s_cbranch_vccnz L_pollLN_l
s_branch L_pollLN_back
""")
    if OPT["p2rot"] != 7:
        l = []
        for i in range(4):
            l += [f"s_add_u32 s7, s82, {128*i}", "s_and_b32 s7, s7, 511", f"s_lshl_b32 s{60+i}, s7, 13", f"s_add_u32 s{60+i}, s{60+i}, s76"]
        assert g.after(l, 930) < 1000
    late = mk_srd(SRD_W2, 66, 1792 * 1024) + mk_srd(SRD_WO, 58, 4096 * 1024) + mk_srd(SRD_OUT, 68, 2048 * 1024)
    late += [f"s_lshl_b32 s6, {sH}, 20", "s_add_u32 s6, s6, s77", f"s_add_u32 s6, s6, {KV_OFF}", f"s_mov_b32 s{SRD_KV+2}, 0x100000",
             (f"s_add_u32 s{SRD_KV}, s72, s6", f"s_addc_u32 s{SRD_KV+1}, s73, 0"), f"s_and_b32 s{SRD_KV+1}, s{SRD_KV+1}, 0xffff"]
    late += flag_addr("kv", 82) + ["s_and_b32 s80, s82, 0xffffff80", "s_mov_b32 s71, 0"]
    if OPT["wopf"]:
        late += ["s_mul_i32 s56, s2, 7168", (f"s_cmp_eq_u32 {sW}, 2", "s_cselect_b32 s56, s56, 0x1000000")]
    assert g.after(late, 1160) < 1226
    g.fill(["v_and_b32 v27, 31, v0", "v_lshlrev_b32 v27, 2, v27", "v_lshlrev_b32 v26, 7, v0"], range(1218, 1226))
    g.mem[slot(1228)].append(poll_req(27, 80, "pollXC"))
    g.sh[1272].append(WAIT("pollXC"))
    g.fill([I(f"v_and_b32 v{vPoll}, 0xff, v{vPoll}", needs=["pollXC"]), f"v_cmp_ne_u32 vcc, s57, v{vPoll}",
            f"v_mov_b32 v{vPoll}, s57", f"v_or_b32 v{vPoll}, 0x100, v{vPoll}"], range(1272, 1277))
    g.sh[1300].append(WAIT("KVst"))
    g.sh[1301] += ["s_cbranch_vccnz L_xrel", "L_xrel_back:"]
    ool.e("L_xrel:\ns_mov_b32 s71, 1\nbuffer_wbl2 sc1\ns_waitcnt vmcnt(0)\ns_branch L_xrel_back")
    g.mem[slot(1302)].append(flag_store(vPoll, 82))
    if OPT["wopf"]:
        if OPT["w2t"] > 0:
            g.mem[slot(OPT["w2t"])].append(I(f"buffer_load_dword v{vDummy}, v26, {srd(SRD_W2)}, s56 offen", tag="wopf"))
    if OPT["wqt"] > 0:
        g.mem[slot(OPT["wqt"])].append(I(f"buffer_load_dword v{vDummy}, v25, {srd(SRD_WQ)}, s56 offen"))
    g.mem[slot(1540)].append(poll_req(27, 80, "pollKV"))
    assert g.after(flag_addr("actA", 78) + flag_addr("actB", 79) + [f"s_add_u32 s{sPM[2]}, s77, 0x20000"], 1544) < 1580
    g.sh[1586].append(WAIT("pollKV"))
    g.val[1586].append(I(f"v_cmp_gt_u32 vcc, 0x100, v{vPoll}", needs=["pollKV"]))
    g.sh[1589] += ["s_cbranch_vccnz L_pollKV", "L_pollKV_back:"]
    poll_slow(ool, "L_pollKV", 27, 80, "v_cmp_gt_u32 vcc, 0x100")
    g.sh[1592] += ["s_cmp_lg_u32 s71, 0", "s_cbranch_scc1 L_xacq", "L_xacq_back:"]
    ool.e("L_xacq:\nbuffer_inv sc1\ns_waitcnt vmcnt(0)\ns_branch L_xacq_back")
    assert W_SLOT[24:] == [6, 7, 8, 9]
    lo = 1592
    for n in range(7):
        lo = place(g, kv_dma(n), 1597 + 24 * n, 6, lo)
    for k in range(12):
        g.mem[1714 + 4 * k].append(I(f"ds_read_b128 {ar(KF+4*k)}, {vL16} offset:{k*1024}", tag="K0", needs=["KV0"]))
    ps = [
        "s_and_b32 s6, s2, 1", "s_lshl_b32 s6, s6, 5", "s_add_u32 s6, s6, s48",
        "s_lshr_b32 s71, s2, 1", "s_and_b32 s71, s71, 3",
        "s_lshl_b32 s101, s6, 7", "s_mul_i32 s7, s71, 28", f"s_add_u32 s101, s101, {ACTF}", "s_add_u32 s101, s101, s7",
        f"s_mul_i32 s6, s6, {AF_KS*1024}", f"s_add_u32 s6, s6, {AF_OFF}",
        "s_lshl_b32 s7, s7, 10", f"s_add_u32 s{sPA}, s6, s7", f"s_add_u32 s{sPA}, s{sPA}, {256*1024}",
        "s_lshl_b32 s7, s71, 16", f"s_add_u32 s{sPC}, s6, s7",
        f"s_xor_b32 s6, s71, {sW}", "s_xor_b32 s6, s6, 3", "s_lshr_b32 s6, s6, 1", "s_lshl_b32 s6, s6, 7",
        "s_lshr_b32 s7, s2, 6", "s_lshl_b32 s7, s7, 8", "s_add_u32 s6, s6, s7",
        f"s_and_b32 s7, {sW}, 1", "s_lshl_b32 s7, s7, 15", "s_add_u32 s6, s6, s7",
        f"s_mul_i32 s7, s71, {448*1024}", f"s_add_u32 s{sPW2}, s6, s7",
        "s_lshl_b32 s7, s71, 20", f"s_add_u32 s{sPWO}, s6, s7",
        f"s_and_b32 s6, {sJ}, 1", "s_lshl_b32 s6, s6, 16", f"s_add_u32 s{sPM[0]}, s77, s6",
        f"s_xor_b32 s{sPM[1]}, s{sPM[0]}, 0x10000", f"s_add_u32 {sM}, s77, {7*16384}",
        "s_and_b32 s75, s71, 1", "s_xor_b32 s75, s75, 1", "s_lshl_b32 s75, s75, 6",
        f"s_mov_b32 {sKa}, 0x4000", f"s_mov_b32 {sCA}, s48", f"s_sub_u32 {sCB}, 30, s48",
        f"s_sub_u32 s41, {sJ}, 2", "s_lshl_b32 s41, s41, 5", f"s_add_u32 s41, s41, {sH}", "s_lshl_b32 s41, s41, 2",
        f"s_add_u32 s41, s41, {sW}", "s_lshl_b32 s41, s41, 13",
    ]
    if OPT["w2t"] > 0:
        ps += [f"s_mov_b32 s{20+i}, s{SRD_WO+i}" for i in range(3)]
    else:
        ps += ["s_sub_u32 s6, s41, 0x200000", (f"s_cmp_lt_u32 {sJ}, 4", "s_cselect_b32 s41, s41, s6") +
               tuple(f"s_cselect_b32 s{20+i}, s{SRD_W2+i}, s{SRD_WO+i}" for i in range(3))]
    if OPT["sent"]:
        ps += ex_addr()
    for r in range(4):
        m = sum(1 << l for l in range(64) if 4 * (l // 16) + r > l % 16)
        ps += [f"s_mov_b32 s{MASKS+2*r}, 0x{m & 0xffffffff:x}", f"s_mov_b32 s{MASKS+2*r+1}, 0x{m >> 32:x}"]
    assert g.after(ps, 1594) < 1765
    it = []
    LOG2E = f"0x{f2u(1.4426950408889634):x}"
    for i in range(8):
        dl, rb = divmod(i, 4)
        b = ACC0 + 8 * i
        for c in range(4):
            x0, x1 = b + 2 * c, b + 2 * c + 1
            it += [f"v_mul_f32 v20, {LOG2E}, v{x0}", "v_exp_f32 v20, v20", f"v_mul_f32 v21, {LOG2E}, v{x1}", "v_exp_f32 v21, v21",
                   "v_fma_f32 v22, v20, 0.5, 1.0", "v_fma_f32 v20, v20, v22, 1.0", "v_fma_f32 v23, v21, 0.5, 1.0",
                   "v_fma_f32 v21, v21, v23, 1.0", "v_rcp_f32 v20, v20"]
            if c or i:
                it.append(pend.pop())
            it += ["v_rcp_f32 v21, v21", f"v_fma_f32 v24, -v{x0}, v20, v{x0}"]
            if c == 0 and i:
                it.append(pst.pop())
            it.append(f"v_fma_f32 v25, -v{x1}, v21, v{x1}")
            pend = [f"v_cvt_pk_bf16_f32 v{b+c}, v24, v25"]
        pst = [I(f"buffer_store_dwordx4 {vr(b)}, {vL16}, {srd(SRD_ACT)}, s{94+rb//2} offen offset:{(2*dl+rb%2)*1024} sc1", tag="ACTst")]
    it += pend + pst
    nmish = len(it)
    QS = f"0x{f2u(1.4426950408889634 / 128 ** 0.5):x}"

    def q_epi(src, dst):
        it = []
        for c in range(4):
            it += [f"v_mul_f32 v{src+2*c}, {QS}, v{src+2*c}", f"v_mul_f32 v{src+2*c+1}, {QS}, v{src+2*c+1}",
                   f"v_cvt_pk_bf16_f32 v{dst+c}, v{src+2*c}, v{src+2*c+1}"]
        return it
    it += ["v_lshrrev_b32 v20, 3, v0", "v_and_b32 v21, 7, v0", "v_bfe_u32 v22, v0, 4, 2", "v_lshlrev_b32 v22, 1, v22",
           "v_xor_b32 v21, v21, v22", "v_lshlrev_b32 v21, 4, v21", "v_xor_b32 v21, s75, v21",
           f"v_lshl_add_u32 v{VP_DMA}, v20, 10, v21"] + [f"v_add_u32 v{VP_DMA+u}, {7168*u}, v{VP_DMA}" for u in (1, 2, 3)]
    it += ["v_min_u32 v27, 6, v0", "v_lshlrev_b32 v27, 2, v27", f"v_mov_b32 v{vMask}, 0x1c000", f"v_mov_b32 v{vBit}, 0x40004000",
           f"v_mov_b32 v{vNinf}, 0xff800000", f"v_mov_b32 v{vR0}, {vL16}"]
    it += [f"v_mov_b32 v{NMA+r}, 0" for r in range(16)] + [f"v_mov_b32 v{EX+r}, 0" for r in range(4)]
    for i in range(8):
        it += q_epi(ACC1 + 8 * i, ACC1 + 4 * i)
    it = [x if isinstance(x, I) else I(x) for x in it]
    FH = 1737
    g.sh[FH - 1].append(WAIT("ACTst"))
    g.mem[FH].append(flag_store(vOne, 78))
    g.mem[FH + 2].append(flag_store(vOne, 79))
    g.sh[1788] += [f"s_cmp_eq_u32 {sCA}, 0", "s_cbranch_scc1 L_mask0", "L_mask0_back:"]
    ool.e("L_mask0:"); ool.e(mask_ops(NMA)); ool.e("s_branch L_mask0_back")
    g.fill(it, range(1283, 1788))
    hm = [h for h in range(NH) if it[nmish - 1] in g.mem[h] + g.val[h]][0]
    assert 1675 < hm < FH - 40, hm
    assert g.after([(f"s_add_u32 s{SRD_KV}, s{SRD_KV}, {6*16384}", f"s_addc_u32 s{SRD_KV+1}, s{SRD_KV+1}, 0"),
                    f"s_lshl_b32 s7, {sJ}, 2", "s_sub_u32 s7, 58, s7", f"s_lshl_b32 s{SRD_KV+2}, s7, 14", f"s_mov_b32 m0, {sM}"], 1768) < 1786
    if OPT["stamp"] or OPT["padat"] >= 0:
        for h in (511, 767, 1023, 1279, 1535):
            q = Prog(); stamp(q); g.post[h] += q.l
    p.e(g.emit())
    stamp(p)
    mB, mA = qk_mf(JB1, True, "0"), qk_mf(JA0, True)
    p.wait("K0")
    g = Half(mB[:8] + mA[:8] + mB[8:] + mA[8:])
    qe = lambda l: sum((q_epi(grp(2, i), grp(2, i)) for i in l), [])
    g.fill(qe((2, 3, 6, 7)) + ["s_nop 0"], range(0, 16))
    g.fill(qe((0, 1, 4, 5)) + ["s_nop 0"], range(16, 24))
    g.fill(rowmax(S1), range(26, 32))
    p.e(g.emit())
    it = [f"v_sub_f32 v{NMB+r}, 0x{f2u(-SHIFT):x}, v{20+r//8}" for r in range(16)]
    it += rowmax(S0) + [f"v_add_f32 v{20+qb}, 0x{f2u(SHIFT):x}, v{20+qb}" for qb in range(2)]
    it += [f"v_sub_f32 v{S0+r}, v{S0+r}, v{20+r//8}" for r in range(16)]
    z = Gaps([f"{MF32} {ar(16*i,16)}, {vr(EX)}, {vr(EX)}, 0" for i in range(8)])
    z.spread(it, 0, 8)
    p.e(z.emit())
    p.e([f"v_sub_f32 v{NMA+r}, 0, v{20+r//8}" for r in range(16)])
    p.e(sm_split(JA0, "Y")[0])
    p.e([f"v_mov_b32 v{lreg(r//8, (r//4)%2)+r%4}, 0" for r in range(16)] + [f"v_mov_b32 v{ONES+r}, 0x3f803f80" for r in range(4)])
    if OPT["sent"]:
        p.e([f"v_mov_b32 v{32+r}, -1" for r in range(4)])
        for i in range(6):
            p.e(I(f"buffer_store_dwordx4 v[32:35], {vL16}, {srd(SRD_WS)}, s{24+i//2} offen offset:{(i%2)*1024} sc1"))
    p.wait("KV2")
    stamp(p)


def qfrag(blk, qb, ds):
    rb = 2 * blk + qb
    return ACC1 + 4 * (4 * ds + rb) if ds < 2 else grp(2, 4 * (ds - 2) + rb)


def lreg(blk, qb):
    return TP + 4 + 8 * (2 * blk + qb)


class Job:
    def __init__(self, blk, par):
        self.blk = blk
        self.S = (S0, S1)[par]
        self.P = (P0, P1)[par]
        self.NM = (NMA, NMB)[blk]
        self.O = (OA, OB)[blk]


JA0, JB1, JB0 = Job(0, 0), Job(1, 1), Job(1, 0)


def sm_ops(j):
    o = {}
    for r in range(16):
        o[f"e{r}"] = f"v_exp_f32 v{EX+r}, v{j.S+r}"
    for i in range(8):
        o[f"c{i}"] = f"v_cvt_pk_bf16_f32 v{j.P+i}, v{EX+2*i}, v{EX+2*i+1}"
    o["o0"] = f"v_or3_b32 v{vChk}, v{j.P}, v{j.P+1}, v{j.P+2}"
    o["o1"] = f"v_or3_b32 v{vChk}, v{vChk}, v{j.P+3}, v{j.P+4}"
    o["o2"] = f"v_or3_b32 v{vChk}, v{vChk}, v{j.P+5}, v{j.P+6}"
    o["o3"] = f"v_bitop3_b32 v{vChk}, v{vChk}, v{j.P+7}, v{vBit} bitop3:0xa8"
    o["k"] = f"v_cmp_ne_u32 vcc, 0, v{vChk}"
    return o


SM_PLAN = {
    "Z": ({17: "e0", 18: "e1", 19: "e2", 20: "c0", 21: "e3", 22: "e4", 24: "c1", 25: "e5", 26: "e6", 27: "e7", 28: "c2",
           29: "e8", 30: "c3", 32: "e9", 33: "e10"},
          {0: "o0", 1: "e11", 2: "c4", 3: "e12", 4: "o1", 5: "e13", 8: "c5 e14", 9: "e15", 10: "c6", 11: "o2 c7", 12: "o3 k"}),
    "W": ({16: "e0", 17: "e1", 18: "e2", 19: "e3", 20: "c0", 21: "e4", 22: "c1", 24: "e5", 25: "e6", 26: "c2", 27: "e7", 28: "e8",
           29: "e9", 30: "c3", 32: "e10", 33: "e11"},
          {0: "o0", 1: "e12", 2: "c4", 3: "e13", 4: "o1", 5: "e14", 8: "c5", 9: "e15", 10: "c6", 11: "o2 c7", 12: "o3 k"}),
    "X": ({17: "e0", 19: "e1", 21: "e2", 22: "c0", 24: "e3", 25: "e4", 26: "e5", 27: "c1 c2", 28: "e6", 29: "e7",
           30: "e8", 32: "o0 c3", 33: "e9"},
          {0: "e10", 1: "e11", 2: "c4 o1", 3: "e12", 4: "e13", 5: "e14", 6: "c5", 7: "e15", 8: "c6", 9: "o2 c7", 10: "o3", 11: "k"}),
    "Y": ({17: "e0", 18: "e1", 19: "e2", 20: "e3", 21: "e4", 22: "e5", 23: "e6", 24: "c0", 25: "e7", 26: "c1", 27: "e8",
           28: "c2", 29: "e9", 30: "c3", 31: "e10", 32: "e11", 33: "o0 c4"},
          {1: "e12", 3: "e13", 5: "e14", 8: "o1", 9: "e15", 10: "c5", 11: "c6 o2", 12: "c7 o3", 13: "k"}),
}


def sm_split(j, plan):
    o = sm_ops(j)
    return [[o[n] for h in sorted(part) for n in part[h].split()] for part in SM_PLAN[plan]]


for _p in SM_PLAN.values():
    _o = [n for part in _p for h in sorted(part) for n in part[h].split()]
    assert sorted(_o) == sorted(sm_ops(JA0))
    _dep = {f"c{i}": (f"e{2*i}", f"e{2*i+1}") for i in range(8)}
    _dep.update(o0=("c0", "c1", "c2"), o1=("o0", "c3", "c4"), o2=("o1", "c5", "c6"), o3=("o2", "c7"), k=("o3",))
    assert all(_o.index(d) < _o.index(n) for n in _dep for d in _dep[n])


def qk_mf(j, dsmajor=False, c0=None):
    idx = [(kb, qb, ds) for kb in range(2) for qb in range(2) for ds in range(4)]
    if dsmajor:
        idx.sort(key=lambda t: t[2])
    out = []
    for kb, qb, ds in idx:
        t = 8 * qb + 4 * kb
        c = (vr(j.NM + t) if c0 is None else c0) if ds == 0 else vr(j.S + t)
        out.append(f"{MF} {vr(j.S+t)}, {ar(KF+4*(4*kb+ds))}, {vr(qfrag(j.blk,qb,ds))}, {c}")
    return out


def pv_mf(j):
    out = [f"{MF} {vr(lreg(j.blk,qb))}, {vr(ONES)}, {vr(j.P+4*qb)}, {vr(lreg(j.blk,qb))}" for qb in range(2)]
    for db in range(8):
        for qb in range(2):
            o = ar(j.O + 8 * (2 * (db // 2) + qb) + 4 * (db % 2))
            out.append(f"{MF} {o}, {ar(VF+4*db)}, {vr(j.P+4*qb)}, {o}")
    return out


def rowmax(S):
    l = []
    for a, b in ((0, 1), (3, 4), (5, 6)):
        for qb in range(2):
            s = S + 8 * qb
            l.append(f"v_max3_f32 v{20+qb}, v{s+2 if a == 0 else 20+qb}, v{s+a}, v{s+b}")
    l += [f"v_max_f32 v{20+qb}, v{20+qb}, v{S+8*qb+7}" for qb in range(2)]
    for op in ("v_permlane16_swap_b32", "v_permlane32_swap_b32"):
        l += ["v_mov_b32 v22, v20", "v_mov_b32 v23, v21", "s_nop 0", f"{op} v20, v22", f"{op} v21, v23",
              "v_max_f32 v20, v20, v22", "v_max_f32 v21, v21, v23"]
    return l


RARE = {}


def rare(cur, nxt):
    fix = nxt is not None and nxt.blk == cur.blk
    name = f"L_rare_{cur.blk}_{cur.S}_{int(fix)}"
    if name in RARE:
        return name
    q = Prog()
    q.e(f"{name}:")
    q.e("s_nop 15")
    q.e(rowmax(cur.S))
    for qb in range(2):
        q.e(f"v_add_f32 v{20+qb}, 0x{f2u(SHIFT):x}, v{20+qb}\nv_max_f32 v{20+qb}, 0, v{20+qb}\nv_exp_f32 v{22+qb}, -v{20+qb}")
    for r in range(16):
        q.e(f"v_sub_f32 v{cur.NM+r}, v{cur.NM+r}, v{20+r//8}")
        q.e(f"v_sub_f32 v{cur.S+r}, v{cur.S+r}, v{20+r//8}")
        if fix:
            q.e(f"v_sub_f32 v{nxt.S+r}, v{nxt.S+r}, v{20+r//8}")
    for r in range(8):
        b = lreg(cur.blk, r // 4) + r % 4
        q.e(f"v_mul_f32 v{b}, v{b}, v{22+r//4}")
    for r in range(64):
        q.e(f"v_accvgpr_read_b32 v24, a{cur.O+r}")
        q.e(f"v_mul_f32 v24, v24, v{22+(r//8)%2}")
        q.e(f"v_accvgpr_write_b32 a{cur.O+r}, v24")
    o = sm_ops(cur)
    q.e([o[f"e{r}"] for r in range(16)] + [o[f"c{i}"] for i in range(8)])
    q.e("s_nop 1")
    q.e("s_setpc_b64 s[46:47]")
    errs = lint(q.l, name)
    assert not errs, errs
    RARE[name] = q
    return name


site_n = [0]


def step(ool, kind, extra=None, bar=("s_barrier",), ringdma=True, vmw=None, bh=0):
    cur, nxt = dict(X=(JA0, JB1), Y=(JB1, JA0), T=(JB1, JB0), Z0=(JB0, JB1), Z1=(JB1, JB0), F=(JB0, None))[kind]
    pcur = dict(X="Y", Y="X", T="X", Z0="W", Z1="Z", F="W")[kind]
    pnxt = dict(X="X", Y="Y", T="W", Z0="Z", Z1="W", F=None)[kind]
    rdV2, rdK, rdV1 = kind in ("X", "Z0", "Z1", "F"), kind in ("X", "T", "Z0", "Z1"), kind in ("Y", "T", "Z0", "Z1")
    dma = kind in ("X", "Z0", "Z1")
    rV2 = vR1 if kind == "Z1" else vR0
    rK = vR1 if kind in ("T", "Z1") else vR0
    rV1 = vR1 if kind == "Z0" else vR0
    sK = sKb if kind in ("T", "Z1") else sKa
    g = Half((qk_mf(nxt) if nxt else [None] * 16) + pv_mf(cur))
    if rdK:
        g.val[6].append(f"v_and_or_b32 v{rK}, {sK}, v{vMask}, {vL16}")
    o = sm_ops(cur)
    for h, v in SM_PLAN[pcur][1].items():
        g.val[h] += [o[n] for n in v.split()]
    if nxt:
        o = sm_ops(nxt)
        for h, v in SM_PLAN[pnxt][0].items():
            g.val[h] += [o[n] for n in v.split()]
    else:
        g.val[7].append("s_nop 0")
    n = site_n[0]
    site_n[0] += 1
    g.sh[15] += [f"s_cbranch_vccnz L_site{n}", f"L_back{n}:"]
    ool.e(f"L_site{n}:\ns_call_b64 s[46:47], {rare(cur, nxt)}\ns_branch L_back{n}")
    KH = (8, 10, 13, 13, 15, 18, 20, 22) if pcur in "ZW" else (8, 10, 15, 18, 18, 20, 20, 22) if kind == "X" else (8, 10, 12, 13, 15, 18, 20, 22)
    if rdV2:
        for f in range(4, 8):
            g.mem[2 * (f - 4)].append(f"ds_read_b128 {ar(VF+4*f)}, v{rV2} offset:{8192+1024*f}")
        g.sh[17].append("s_waitcnt lgkmcnt(%d)" % (sum(h < 17 for h in KH) if rdK else 0))
        g.sh[bh] += list(bar)
    if rdK:
        for k in range(8):
            g.mem[KH[k]].append(f"ds_read_b128 {ar(KF+4*k)}, v{rK} offset:{1024*k}")
        g.sh[33].append("s_waitcnt lgkmcnt(%d)" % (4 if rdV1 else 0))
    if rdV1:
        for f in range(4):
            g.mem[24 + 2 * f].append(f"ds_read_b128 {ar(VF+4*f)}, v{rV1} offset:{8192+1024*f}")
        if vmw != -1:
            g.sh[28].append("s_waitcnt vmcnt(%d)" % (vmw if vmw is not None else 15 if dma else 16))
    if dma and ringdma:
        for u, h in enumerate((7, 14, 23, 31)):
            g.mem[h].append(f"buffer_load_dwordx4 {vL16}, {srd(SRD_KV)}, {sK} offen offset:{u*1024} sc1 lds")
    if kind == "Y":
        g.after(["s_add_u32 m0, m0, 0x4000", "s_bitset0_b32 m0, 17", f"s_add_u32 {sKa}, {sKa}, 0x4000", f"s_sub_u32 {sCA}, {sCA}, 1"], 18)
    if kind == "X":
        g.sh[9].append(f"s_cmp_ge_u32 {sCA}, 2")
    if kind == "T":
        g.after([f"s_add_u32 {sKb}, {sKa}, 0x4000", f"s_add_u32 {sM}, m0, 0x4000", f"s_add_u32 {sKa}, {sKa}, 0x8000",
                 (f"s_sub_u32 s{SRD_KV}, s{SRD_KV}, 0x4000", f"s_subb_u32 s{SRD_KV+1}, s{SRD_KV+1}, 0"),
                 f"s_add_u32 s{SRD_KV+2}, s{SRD_KV+2}, 0x4000", f"s_bitset0_b32 {sM}, 17"], 0)
    if kind in ("Z0", "Z1"):
        if ringdma:
            g.sh[1].append(f"s_mov_b32 m0, {sM}")
        so = sKb if kind == "Z0" else sKa
        g.after([f"s_add_u32 {sM}, {sM}, 0x4000", f"s_bitset0_b32 {sM}, 17", f"s_add_u32 {so}, {so}, 0x8000"], 18)
    if kind == "Z0":
        g.sh[9].append(f"s_sub_u32 {sCB}, {sCB}, 1")
    if extra:
        extra(g)
    l = g.emit()
    cut = [i for i, x in enumerate(l) if x.text == g.mf[16]][0] + 1
    return l[:cut], l[cut:]


def mask_ops(NM):
    l = [f"v_cndmask_b32 v{NM+t+r}, v{NM+t+r}, v{vNinf}, s[{MASKS+2*r}:{MASKS+2*r+1}]" for t in (0, 12) for r in range(4)]
    return l + [f"v_mov_b32 v{NM+4+r}, v{vNinf}" for r in range(4)] + ["s_nop 1"]


def epilogue(p, blk, tag=None, gs=range(8), mems=()):
    O = (OA, OB)[blk]
    if 0 in gs:
        p.e(f"""
v_rcp_f32 v{lreg(blk,0)}, v{lreg(blk,0)}
v_rcp_f32 v{lreg(blk,1)}, v{lreg(blk,1)}
s_lshl_b32 s6, {sH}, 13
s_add_u32 s6, s6, s{50+blk}
s_add_u32 s7, s6, 4096
""")
    mems = list(mems)
    per = -(-len(mems) // len(gs))
    for i in gs:
        b = NMA + 8 * (i % 2)
        issue(p, mems[:per])
        mems = mems[per:]
        for r in range(8):
            p.e(f"v_accvgpr_read_b32 v{b+r}, a{O+8*i+r}")
        for c in range(4):
            p.e(f"v_pk_mul_f32 {vr(b+2*c,2)}, {vr(b+2*c,2)}, {vr(lreg(blk,i%2),2)} op_sel_hi:[1,0]")
        for c in range(4):
            p.e(f"v_cvt_pk_bf16_f32 v{b+c}, v{b+2*c}, v{b+2*c+1}")
        p.e(I(f"buffer_store_dwordx4 {vr(b)}, {vL16}, {srd(SRD_WS)}, s{6+i//4} offen offset:{(i%4)*1024} sc1", tag=tag))


def attention(ool, extra):
    q = Prog()

    def memx(lst, hs):
        def f(g):
            assert len(hs) == len(lst)
            for (pre, ins), h in zip(lst, hs):
                g.mem[h] += pre + [ins]
        return f

    def cbar(n):
        return [f"s_cmp_lt_u32 {sW}, {n}", f"s_cbranch_scc1 L_nb{n}", "s_barrier", f"L_nb{n}:"]
    X1, X2 = step(ool, "X")

    def exY(g):
        if OPT["wopf"]:
            g.sh[13].append(f"s_cmp_eq_u32 {sCA}, 5")
            g.sh[14] += ["s_cbranch_scc1 L_wo", "L_wo_back:"]
    Y = sum(step(ool, "Y", exY), [])
    _, X2c = step(Prog(), "X", memx([([], poll_req(27, 101, None))], (16,)))

    def exT(g):
        g.sh[30].append("s_waitcnt vmcnt(2)")
        if OPT["sent"]:
            g.mem[31].append(flag_store(vOne, 27))
        g.val[31].append(f"v_cmp_ne_u32 vcc, 1, v{vPoll}")
    T = sum(step(ool, "T", exT), [])
    pl = p_aload(0, 24)
    ool.e("L_ldA0:"); issue(ool, pl[:12]); ool.e("s_setpc_b64 s[44:45]")
    ool.e("L_ldA1:"); issue(ool, pl[12:]); ool.e("s_setpc_b64 s[44:45]")
    ldA = lambda n: [f"s_cmp_lg_u32 {sW}, {n}", f"s_cbranch_scc1 L_nl{n}", "s_call_b64 s[44:45], L_ldA0", "s_call_b64 s[44:45], L_ldA1", f"L_nl{n}:"]

    def w2_both(s):
        a, b = p_dma(s), p_dma(s)
        b[0] = (["s_add_u32 m0, m0, 0x2000", "s_xor_b32 s97, s97, 0x80"], b[0][1])
        return a + b
    Z0a, Z0b = step(ool, "Z0")
    Z1 = sum(step(ool, "Z1"), [])
    _, Z0bc = step(Prog(), "Z0", memx(p_dma(2), (16, 19, 23, 31)), ringdma=False, vmw=3)
    Z1c = sum(step(ool, "Z1", memx(p_dma(3) + p_dma(4), (7, 9, 14, 16, 19, 23, 27, 31)), bar=cbar(1), ringdma=False, vmw=-1), [])
    F = sum(step(ool, "F", memx(p_dma(5) + p_aload(24, 28), (16, 18, 20, 22, 24, 26, 28, 30)), bar=cbar(2)), [])
    for nm, seq in (("XY", X1 + X2 + Y + X1 + X2), ("XT", X1 + X2c + T + Z0a + Z0b + Z1 + Z0a + Z0bc + Z1c + F), ("TF", T + F)):
        errs = lint(seq, nm)
        assert not errs, "\n".join(errs)
    if OPT["sim"]:
        br = [I("s_cbranch_scc1 LL")]
        for nm, seq in (("XY", (X2 + Y + X1 + br) * 3), ("Z", (Z0b + Z1 + Z0a + br) * 3)):
            t, gp = simulate(seq, taken=("LL",))
            print(nm, sum(gp[67:135]), gp[67:135])
        print("X2c+T", simulate(X2c + T)[0], "Z0bc+Z1c", simulate(Z0bc + Z1c)[0], "F", simulate(F)[0])
    q.e(step(ool, "X")[0])
    q.e("s_cbranch_scc0 L_Xx")
    q.e(";LOOP\nL_X:"); q.e(X2); q.e(Y); q.e(X1)
    q.e("s_cbranch_scc1 L_X\n;ENDLOOP\nL_Xx:")
    q.e(f"s_cmp_eq_u32 {sCA}, 0\ns_cbranch_scc1 L_Xo")
    q.e(mask_ops(NMA)); q.e("s_branch L_X")
    if OPT["wopf"]:
        q.e(f"L_wo:\nbuffer_load_dword v{vDummy}, v26, s[20:23], s41 offen\ns_branch L_wo_back")
    q.e("L_Xo:")
    stamp(q, 9)
    q.e(f"s_cmp_eq_u32 {sCB}, -1\ns_cbranch_scc1 L_mB0\nL_mB0_back:")
    ool.e("L_mB0:"); ool.e(mask_ops(NMB)); ool.e("s_branch L_mB0_back")
    q.e(X2c); q.e(T)
    q.e("s_cbranch_vccnz L_pollACT\nL_pollACT_back:")
    poll_slow(ool, "L_pollACT", 27, 101)
    q.e(f"s_cmp_ge_u32 {sW}, 2\ns_cbranch_scc1 L_noA")
    e = Prog()
    e.e(sum(step(ool, "Z0"), []))
    epilogue(e, 0, gs=range(4), mems=pl[:12] + w2_both(0))
    e.e(sum(step(ool, "Z1", vmw=15 + 24), []))
    epilogue(e, 0, gs=range(4, 8), mems=pl[12:] + w2_both(1))
    errs = lint(T + e.l + Z0a, "epiA")
    assert not errs, "\n".join(errs)
    q.e(e.l)
    q.e(f"L_noA:\ns_cmp_eq_u32 {sCB}, -1\ns_cbranch_scc1 L_TF")
    ool.e("L_TF:"); issue(ool, p_dma(2) + p_dma(3) + p_dma(4)); ool.e("s_branch L_F")
    stamp(q, 10)
    q.e(step(ool, "Z0", bar=["s_barrier"] + ldA(2))[0])
    q.e("s_cbranch_scc1 L_Zx")
    for c in range(1, OPT["zc"]):
        q.e(f"s_cmp_eq_u32 {sW}, {c}\ns_cbranch_scc1 L_Z{c}")
        a, b = step(ool, "Z0", bh=2 * c)
        extra.e(f";LOOP pad\nL_Z{c}:"); extra.e(b); extra.e(sum(step(ool, "Z1", bh=2 * c), [])); extra.e(a)
        extra.e(f"s_cbranch_scc0 L_Z{c}\n;ENDLOOP\ns_branch L_Zx")
    q.e(";LOOP\nL_Z:"); q.e(Z0b); q.e(Z1); q.e(Z0a)
    q.e("s_cbranch_scc0 L_Z\n;ENDLOOP\nL_Zx:")
    stamp(q, 11)
    q.e(mask_ops(NMB)); q.e(Z0bc); q.e(Z1c)
    q.e("L_F:")
    q.e(F)
    stamp(q, 12)
    q.e(f"s_cmp_lt_u32 {sW}, 2\ns_cbranch_scc1 L_epiB")
    q.e(cbar(3))
    q.e(ldA(3))
    a, b = Prog(), Prog()
    epilogue(a, 0)
    epilogue(b, 1)
    errs = lint(F + a.l + b.l, "tail") + lint(F + b.l, "tail")
    assert not errs, "\n".join(errs)
    q.e(a.l); q.e("L_epiB:"); q.e(b.l)
    q.e("s_waitcnt vmcnt(8)")
    return q


def oproj(ool):
    p = Prog()
    pre = [I("buffer_load_dword v0, v0, s[0:3], 0", tag=f"PA{f}") for f in range(28)]
    pre += [I("s_waitcnt vmcnt(0)")]
    pre += [I("buffer_load_dword v0, v0, s[0:3], 0", tag="CTXst") for _ in range(8)]
    p.e("L_P4:")
    stamp(p, 13)
    p.e(f"""
v_lshrrev_b32 v20, 2, v0
v_lshlrev_b32 v20, 7, v20
v_and_b32 v21, 3, v0
v_lshl_add_u32 v20, v21, 3, v20
v_bfe_u32 v21, v0, 3, 2
v_lshl_add_u32 v20, v21, 5, v20
s_and_b32 s6, s{sPM[0]}, 0x10000
v_add_u32 v{VP_TR[2]}, 0x20000, v20
v_add_u32 v{VP_TR[0]}, s6, v20
""")
    for cb in range(1, 4):
        p.e(f"v_xor_b32 v{VP_TR[2]+cb}, {32*cb}, v{VP_TR[2]}")
    p.e("s_barrier")

    def rd(n):
        ks, cb = divmod(n, 8)
        win, k = divmod(P_SLOT[ks // 2], 4)
        return [I(f"ds_read_b64_tr_b16 {vr(PWF+4*(n%16)+2*j,2)}, v{VP_TR[win]+cb%4} offset:{k*16384+(cb//4)*8192+(ks%2)*4096+j*2048}",
                  tag=f"PR{n//4}") for j in range(2)]
    for n in range(8):
        p.e(rd(n))
    p.wait("PR0")
    mf = []
    for ks in range(46):
        for cb in range(8):
            for rb in range(2):
                d = vr(PACC + 16 * (cb // 2) + 8 * rb + 4 * (cb % 2))
                n = 8 * ks + cb
                mf.append(I(f"{MF} {d}, {vr(PWF+4*(n%16))}, {p_areg(2*ks+rb)}, {'0' if ks == 0 else d}", needs=[f"PR{n//4}", f"PA{2*ks+rb}"]))
    NH = len(mf)
    g = Half(mf)
    for n in range(8, NH // 2):
        g.mem[2 * (n - 8)] += rd(n)
    for h in range(8, NH, 8):
        tags = [f"PR{h//8}"] + ([f"PA{h//8+1}"] if h % 16 == 0 else [])
        g.sh[h - 1].append(WAIT(*tags))
    for b in range(2, PSLAB, 2):
        tags = [f"PW{s}" for s in (b, b + 1) if 6 <= s < PSLAB]
        if tags:
            g.sh[32 * b - 20].append(WAIT(*tags))
        g.sh[32 * b - 19].append("s_barrier")

    def slot(h):
        h |= 1
        while g.cost(h):
            h += 2
        return h
    g.fill([f"v_xor_b32 v{VP_TR[0]+cb}, {32*cb}, v{VP_TR[0]}" for cb in range(1, 4)] +
           [f"v_xor_b32 v{VP_TR[1]+cb}, 0x10000, v{VP_TR[0]+cb}" for cb in range(4)] +
           ["v_and_b32 v27, 7, v0", "v_lshlrev_b32 v27, 2, v27"], (1, 3, 7, 9, 13))
    wstart = {6: 5, 7: 29, 8: 53, 9: 77, 10: 117, 11: 141}
    for s in range(12, PSLAB):
        wstart[s] = 191 + (s - 12) * 40
    lo = -1
    for s in range(6, PSLAB):
        if s >= 10:
            assert wstart[s] > 32 * (s - 8 + s % 2) - 19, s
        for i, (pr, ins) in enumerate(p_dma(s)):
            h = slot(wstart[s] + i * (6 if s < 12 else 10))
            if pr:
                g.before(pr, h, lo + 1)
            g.mem[h].append(ins)
            lo = h
        assert lo < 32 * (s - s % 2) - 40, s
    assert g.after(flag_addr("ctxA", 64) + flag_addr("ctxB", 65) +
                   ["s_and_b32 s66, s2, 1", "s_lshl_b32 s66, s66, 5", "s_add_u32 s66, s66, s48", "s_lshl_b32 s66, s66, 2",
                    "s_lshr_b32 s67, s2, 1", "s_and_b32 s67, s67, 3", "s_add_u32 s66, s66, s67", "s_lshl_b32 s66, s66, 7",
                    f"s_add_u32 s66, s66, {CTXF}"], 6) < 56
    g.sh[60].append(WAIT("CTXst"))
    g.mem[slot(61)].append(flag_store(vOne, 64))
    g.mem[slot(61)].append(flag_store(vOne, 65))
    g.mem[slot(120)].append(poll_req(27, 66, "pollCTX"))
    g.sh[163].append(WAIT("pollCTX"))
    g.val[163].append(I(f"v_cmp_ne_u32 vcc, 1, v{vPoll}", needs=["pollCTX"]))
    g.sh[165] += ["s_cbranch_vccnz L_pollCTX", "L_pollCTX_back:"]
    poll_slow(ool, "L_pollCTX", 27, 66)
    lo = 166
    for n, (pr, ins) in enumerate(p_aload(28, 92)):
        h = slot(max(lo + 1, 8 * (28 + n) - 88))
        if pr:
            g.before(pr, h, lo + 1)
        g.mem[h].append(ins)
        lo = h
    g.fill(["v_and_b32 v20, 15, v0", "v_lshrrev_b32 v21, 4, v0", "v_lshlrev_b32 v20, 10, v20", "v_lshl_add_u32 v22, v21, 3, v20",
            "v_lshrrev_b32 v21, 5, v0", "v_lshl_add_u32 v23, v21, 4, v20", "v_bfe_u32 v21, v0, 4, 1", "v_lshl_add_u32 v23, v21, 5, v23",
            "v_and_b32 v27, 3, v0", "v_lshlrev_b32 v27, 2, v27"], range(600, 640))
    ex = ["s_and_b32 s68, s2, 1", "s_lshl_b32 s68, s68, 5", "s_add_u32 s68, s68, s48", "s_lshl_b32 s68, s68, 15",
          "s_lshr_b32 s7, s2, 6", "s_lshl_b32 s6, s7, 8", "s_add_u32 s68, s68, s6", "s_lshl_b32 s6, s67, 6", "s_add_u32 s68, s68, s6",
          "s_add_u32 s69, s68, 0x4000"]
    if not OPT["sent"]:
        ex += ["s_mov_b32 s71, s67"] + ex_addr()
    ex += ["s_and_b32 s77, s27, 0xffffff80"]
    assert g.after(ex, 500) < 640
    if OPT["sent"]:
        g.mem[slot(642)].append(poll_req(27, 77, "pollEX"))
        g.sh[701].append(WAIT("pollEX"))
        g.val[701].append(I(f"v_cmp_ne_u32 vcc, 1, v{vPoll}", needs=["pollEX"]))
        g.sh[705] += ["s_cbranch_vccnz L_pollEX", "L_pollEX_back:"]
        poll_slow(ool, "L_pollEX", 27, 77)
    for a in range(4):
        g.mem[slot(656 + 8 * a)].append(I(f"buffer_load_dwordx2 {vr(PX+2*a,2)}, v22, {srd(SRD_X)}, s{68+a//2} offen offset:{32*(a%2)}", tag="xres"))
    if OPT["stamp"]:
        q = Prog(); stamp(q, 14); g.post[162] += q.l
        q = Prog(); stamp(q, 15); g.post[166] += q.l
        q = Prog(); stamp(q, 16); g.post[223] += q.l
    p.e(g.emit())
    stamp(p, 17)
    for i in range(3):
        b = PACC + 16 * i
        for t in range(2):
            for c in range(4 * t, 4 * t + 4):
                p.e(f"v_cvt_pk_bf16_f32 v{b+c}, v{b+2*c}, v{b+2*c+1}")
            if OPT["sent"]:
                for c in range(4 * t, 4 * t + 4):
                    p.e(f"v_min_u32 v{b+c}, -2, v{b+c}")
            p.e(I(f"buffer_store_dwordx4 {vr(b+4*t)}, {vL16}, {srd(SRD_WS)}, s{72+i} offen offset:{t*1024} sc1", tag="EXst"))
    b = PACC + 48

    def addbf(src):
        for c in range(8):
            p.e(f"v_lshlrev_b32 v20, 16, v{src+c}")
            p.e(f"v_and_b32 v21, 0xffff0000, v{src+c}")
            p.e(f"v_pk_add_f32 {vr(b+2*c,2)}, {vr(b+2*c,2)}, v[20:21]")
    exld = [I(f"buffer_load_dwordx4 {vr(PR+8*i+4*t)}, {vL16}, {srd(SRD_WS)}, s{24+i} offen offset:{t*1024} sc1", tag=f"EXr{i}")
            for i in range(3) for t in range(2)]
    if OPT["sent"]:
        p.e(exld)
        p.wait("xres")
        addbf(PX)
        stamp(p, 18)
        p.e("s_mov_b32 s96, 0x40000\nL_rx:\ns_waitcnt vmcnt(0)")
        p.e(f"v_max_u32 v20, v{PR}, v{PR+1}")
        for r in range(2, 24, 2):
            p.e(f"v_max3_u32 v20, v20, v{PR+r}, v{PR+r+1}")
        p.e("v_cmp_eq_u32 vcc, -1, v20\ns_sub_u32 s96, s96, 1\ns_cbranch_vccnz L_rx_again\nL_rx_done:")
        ool.e("L_rx_again:\ns_cbranch_scc1 L_rx_done\ns_sleep 1")
        ool.e([I(x.text) for x in exld])
        ool.e("s_branch L_rx")
        stamp(p, 19)
        for i in range(3):
            addbf(PR + 8 * i)
    else:
        p.wait("xres")
        addbf(PX)
        p.wait("EXst")
        p.e(flag_store(vOne, 27))
        stamp(p, 18)
        p.e(f"""
s_mov_b32 s96, 0x40000
L_pollEX:
buffer_load_dword v{vPoll}, v27, {srd(SRD_WS)}, s77 offen sc1
s_waitcnt vmcnt(0)
v_cmp_ne_u32 vcc, 1, v{vPoll}
s_sub_u32 s96, s96, 1
s_cbranch_scc1 L_pollEX_done
s_cbranch_vccnz L_pollEX
L_pollEX_done:
""")
        stamp(p, 19)
        p.e(exld)
        for i in range(3):
            p.wait(f"EXr{i}")
            addbf(PR + 8 * i)
    for c in range(8):
        p.e(f"v_cvt_pk_bf16_f32 v{b+c}, v{b+2*c}, v{b+2*c+1}")
    p.e("s_nop 1")
    for t in range(2):
        p.e(f"v_permlane16_swap_b32 v{b+4*t}, v{b+4*t+2}")
        p.e(f"v_permlane16_swap_b32 v{b+4*t+1}, v{b+4*t+3}")
    for t in range(2):
        p.e(f"buffer_store_dwordx4 {vr(b+4*t)}, v23, {srd(SRD_OUT)}, s{68+t} offen")
    stamp(p, 20)
    rstamp(p, 61)
    stamp_flush(p)
    p.e("L_end:\ns_endpgm")
    l = resolve_waits(pre + p.l)[len(pre):]
    errs = lint(l, "oproj")
    assert not errs, "\n".join(errs)
    if OPT["sim"]:
        t, gp = simulate(l)
        print("oproj", t, sum(gp))
    return l


def kernel():
    p, ool = Prog(), Prog()
    setup(p)
    if OPT["stamp"]:
        p.e("v_mov_b32 v31, 0")
    rstamp(p, 60)
    stamp(p)
    projections(p, ool)
    head = resolve_waits(p.l)
    errs = lint(head, "head")
    assert not errs, "\n".join(errs)
    if OPT["sim"]:
        t, gp = simulate(head)
        print("head", t, [sum(gp[a:b]) for a, b in ((0, 512), (512, 768), (768, 1024), (1024, 1280), (1280, 1536), (1536, 1791), (1791, 1900))])
    extra = Prog()
    l = head + attention(ool, extra).l + oproj(ool) + [I(";PADHERE")] + ool.l + extra.l + [I("L_hot_end:")]
    l = layout(l)
    for q in RARE.values():
        l += q.l
    return text_of(l)


def sizes(l):
    import subprocess, tempfile, os
    txt = '.amdgcn_target "amdgcn-amd-amdhsa--gfx950"\n.text\n' + text_of(l) + "".join(text_of(q.l) for q in RARE.values())
    txt += "L_pad0:\nL_pad1:\nL_pad2:\nL_pad3:\ns_endpgm\n"
    d = tempfile.mkdtemp()
    open(d + "/a.s", "w").write(txt)
    subprocess.run(["clang", "-x", "assembler", "-target", "amdgcn-amd-amdhsa", "-mcpu=gfx950", "-c", d + "/a.s", "-o", d + "/a.o"], check=True)
    out = subprocess.run(["llvm-objdump", "-d", "--mcpu=gfx950", d + "/a.o"], capture_output=True, text=True, check=True).stdout
    sz = [4 * len(re.findall(r"\b[0-9A-F]{8}\b", ln.split("//")[1].split(":")[1])) for ln in out.splitlines() if "//" in ln]
    it = iter(sz)
    return [0 if x.kind == "meta" else next(it) for x in l]


def layout(l):
    sz = sizes(l)
    out, pads = [], []
    off = None
    need = False

    def pad():
        nonlocal off
        if OPT["pads"]:
            out.append(I(f"L_pad{len(pads)}:"))
            out.append(I("s_cbranch_execz PADNEXT"))
            pads.append(out[-1])
            off += 4
    for i, x in enumerate(l):
        if x.text == ";PAGE":
            out += [I("s_branch L_main"), I(".p2align 12"), I("L_main:")]
            off = 0
            pad()
            continue
        if x.text == ";PADHERE":
            pad()
            continue
        if x.text.startswith(";LOOP"):
            j = next(k for k in range(i, len(l)) if l[k].text == ";ENDLOOP")
            n = sum(sz[i:j])
            st = -(-off // 32) * 32
            if x.text == ";LOOP pad":
                o64 = -(-off // 64) * 64
                if o64 // 4096 != (o64 + 32 + n - 1) // 4096:
                    out.append(I(".p2align 12"))
                    o64 = -(-off // 4096) * 4096
                out.append(I(".p2align 6"))
                off, need = o64, False
                pad()
                out.append(I(".p2align 5"))
                off = -(-off // 32) * 32
                continue
            if need or st // 4096 != (st + n - 1) // 4096 or st // 4096 != (off - 1) // 4096:
                out.append(I(f"s_branch {l[i+1].text[:-1]}"))
                off += 4
                if not need:
                    out.append(I(".p2align 12"))
                    off = -(-off // 4096) * 4096
                need = False
                pad()
                st = -(-off // 32) * 32
            out.append(I(".p2align 5"))
            off = st
            continue
        out.append(x)
        if off is None:
            continue
        o0, off = off, off + sz[i]
        if o0 // 4096 != off // 4096:
            need = True
        if need and x.kind != "meta":
            nx = next(y for y in l[i + 1:] if y.kind != "meta")
            good = x.text.startswith("v_mfma") and not nx.text.startswith("s_")
            if good or off % 4096 >= 40:
                need = False
                pad()
    for k, x in enumerate(pads):
        x.text = "s_cbranch_execz " + (f"L_pad{k+4}" if k + 4 < len(pads) else "L_padret")
    if OPT["sim"]:
        print("code bytes after anchor", off, "pads", len(pads))
    return out


def main():
    k = kernel()
    s = f"""; layernorm + K/V/Q/MLP projections + causal attention + output projection in one launch (generated by gen/gen3.py)
; @launch grid=(256,1,1) block=(256,1,1) lds=163840
.amdgcn_target "amdgcn-amd-amdhsa--gfx950"
.text
.globl {NAME}_kernel
.p2align 12
.p2align 8
.type {NAME}_kernel,@function
{NAME}_kernel:
{k}
.section .rodata,"a"
.p2align 6
.amdhsa_kernel {NAME}_kernel
  .amdhsa_next_free_vgpr 512
  .amdhsa_next_free_sgpr 102
  .amdhsa_accum_offset 256
  .amdhsa_group_segment_fixed_size 0
  .amdhsa_kernarg_size 104
  .amdhsa_user_sgpr_count 2
  .amdhsa_user_sgpr_kernarg_segment_ptr 1
  .amdhsa_system_sgpr_workgroup_id_x 1
.end_amdhsa_kernel
"""
    open(sys.argv[1], "w").write(s)


main()
```

```python
import sys, struct, re
from asmlib import *

NAME = "parallel_sum__compressed_kv_cla__dense_activation_mish__prompt"
OPT = dict(stamp=0, thr=40, rot=7, nt=0, xnt=0, deep=1, cpf=1, wopf=1, sim=0, barh=0, pads=1, wqt=300, w2t=0, zc=4, sent=0, p2rot=7, xnsc=1, kvpad=0, xnpad=0, xnrt=0, fs=2, sigp=3, dbgno=0, n0=6, pad2=1, kvst=0, wsoff=0, cpf2=1, padat=-1, padus=0)
for a in sys.argv[2:]:
    k, v = a.split("=")
    assert k in OPT, k
    OPT[k] = int(v)


def f2u(x):
    return struct.unpack("<I", struct.pack("<f", x))[0]


KVFL = ("", "sc1", "nt", "sc1 nt")[OPT["kvst"]]
MF = "v_mfma_f32_16x16x32_bf16"
MF32 = "v_mfma_f32_32x32x16_bf16"
XN_OFF = 0
KV_OFF = 72 << 20 if OPT['kvpad'] or OPT['xnpad'] else 2 << 20
KV_HS = (1 << 20) + OPT['kvpad']
XN_RS = 32768 + OPT['xnpad']
AF_OFF = 34 << 20
AF_KS = 368
FL_OFF = 58 << 20
CTXF, EXF, KVF = FL_OFF, FL_OFF + 32768, FL_OFF + 65536
ST_OFF = 60 << 20
EX_OFF = 64 << 20
WS_BYTES = 268435456 - (OPT['wsoff'] << 20)

sW, sH, sJ = "s3", "s4", "s5"
SRD_CKV, SRD_WUK, SRD_WUV, SRD_W1, SRD_WQ, SRD_WS, SRD_X, SRD_B1, SRD_DBG, SRD_ACT = (
    8, 12, 16, 20, 24, 28, 32, 36, 40, 44)
SRD_W2, SRD_WO, SRD_OUT, SRD_KV = 8, 12, 16, 36


def srd(n):
    return f"s[{n}:{n+3}]"


def vr(b, n=4):
    return f"v[{b}:{b+n-1}]"


def ar(b, n=4):
    return f"a[{b}:{b+n-1}]"


vL16 = "v1"
VA_DMA, VW_DMA, VW1_DMA, VTR, VA_RD = 2, 6, 10, 14, 18
WF, TP, ACC0, ACC1, BIAS = 32, 64, 96, 160, 224
LDS_A = 98304
vOne, vPoll, vDummy = 28, 29, 30
S0, S1, EX, P0, P1, NMA, NMB, ONES = 192, 208, 128, 144, 152, 96, 112, 228
OA, OB, KF, VF = 0, 64, 128, 160
vR0, vR1, vMask, vChk, vBit, vNinf = 2, 3, 4, 5, 6, 7
sKa, sKb, sM, sCA, sCB = "s52", "s53", "s54", "s55", "s56"
MASKS = 64
SHIFT = float(OPT["thr"])
VP_DMA = 10
VP_TR = (224, 228, 232)
sPA, sPC, sPW2, sPWO, sPM = 57, 58, 59, 60, (61, 62, 63)
PWF, PACC, PX, PR = 64, 128, 192, 200


def mk_srd(n, lo, nbytes):
    return [f"s_mov_b32 s{n}, s{lo}", f"s_and_b32 s{n+1}, s{lo+1}, 0xffff",
            f"s_mov_b32 s{n+2}, {nbytes}", f"s_mov_b32 s{n+3}, 0x20000"]


stamp_n = [0]


pad_n = [0]


def stamp(p, idx=None):
    if OPT["padat"] >= 0:
        if idx is None:
            idx = stamp_n[0]
            stamp_n[0] += 1
        if idx == OPT["padat"]:
            n = pad_n[0]
            pad_n[0] += 1
            p.e(f"""v_readfirstlane_b32 s96, v31
L_spin{n}:
s_memrealtime s[98:99]
s_waitcnt lgkmcnt(0)
s_sub_u32 s98, s98, s96
s_cmp_lt_u32 s98, {OPT["padus"]*100}
s_cbranch_scc1 L_spin{n}""")
        return
    if not OPT["stamp"]:
        return
    if idx is None:
        idx = stamp_n[0]
        stamp_n[0] += 1
    p.e(f"s_memtime s[98:99]")
    p.e("s_waitcnt lgkmcnt(0)")
    p.e(f"v_writelane_b32 v31, s98, {idx}")


def rstamp(p, lane):
    if not OPT["stamp"]:
        return
    p.e(f"s_memrealtime s[98:99]")
    p.e("s_waitcnt lgkmcnt(0)")
    p.e(f"v_writelane_b32 v31, s98, {lane}")


def stamp_flush(p):
    if not OPT["stamp"]:
        return
    p.e("s_lshl_b32 s98, s2, 2")
    p.e(f"s_add_u32 s98, s98, {sW}")
    p.e("s_lshl_b32 s98, s98, 8")
    p.e(f"s_add_u32 s98, s98, {ST_OFF}")
    p.e(f"v_lshrrev_b32 v30, 2, {vL16}")
    p.e(f"buffer_store_dword v31, v30, {srd(SRD_WS)}, s98 offen")


def setup(p):
    p.e(f"""
s_cmp_ge_u32 s2, 256
s_cbranch_scc1 L_end
""")
    if OPT["padat"] >= 0:
        p.e("s_memrealtime s[98:99]\ns_waitcnt lgkmcnt(0)\nv_mov_b32 v31, s98")
    p.e(f"""
s_load_dwordx16 s[48:63], s[0:1], 0
s_load_dwordx8 s[64:71], s[0:1], 64
s_load_dwordx2 s[72:73], s[0:1], 96
v_lshrrev_b32 v20, 6, v0
v_and_b32 v0, 63, v0
v_readfirstlane_b32 {sW}, v20
v_lshlrev_b32 {vL16}, 4, v0
s_and_b32 s6, s2, 7
s_lshr_b32 s7, s2, 6
s_lshl_b32 s7, s7, 3
s_add_u32 {sH}, s6, s7
s_lshr_b32 {sJ}, s2, 3
s_and_b32 {sJ}, {sJ}, 7
""")
    if OPT["cpf"]:
        p.e(f"""
s_getpc_b64 s[96:97]
L_pc:
s_lshr_b32 s6, s2, 3
s_mul_i32 s6, s6, 3072
v_min_u32 v20, 23, v0
v_lshl_add_u32 v20, v20, 7, s6
v_min_u32 v20, L_hot_end-L_pc, v20
s_cmp_lg_u32 {sW}, 0
s_cbranch_scc1 L_nocpf
global_load_dword v{vDummy}, v20, s[96:97]
L_nocpf:
""")
        p.l[-2].kind = "op"
    p.e(f"""
v_lshrrev_b32 v20, 3, v0
v_and_b32 v21, 7, v0
v_lshrrev_b32 v22, 4, v0
v_xor_b32 v23, v21, v22
v_lshlrev_b32 v23, 4, v23
v_lshl_add_u32 v{VA_DMA}, v20, 10, v23
v_xor_b32 v24, 64, v{VA_DMA}
v_add_u32 v{VA_DMA+1}, {7*1024}, v24
v_add_u32 v{VA_DMA+2}, {14*1024}, v{VA_DMA}
v_add_u32 v{VA_DMA+3}, {21*1024}, v24
v_and_b32 v22, 1, v22
v_lshlrev_b32 v22, 1, v22
v_xor_b32 v23, v21, v22
v_lshlrev_b32 v23, 4, v23
v_xor_b32 v25, 64, v23
v_lshl_add_u32 v{VW_DMA}, v20, 13, v23
v_lshl_add_u32 v{VW_DMA+1}, v20, 13, v25
v_mul_u32_u24 v24, 3584, v20
v_add_u32 v{VW1_DMA}, v24, v23
v_add_u32 v{VW1_DMA+1}, v24, v25
""")
    for b, pitch in ((VW_DMA, 8192), (VW1_DMA, 3584)):
        d = 8 * pitch - 1024
        p.e(f"v_add_u32 v{b+2}, {2*d}, v{b}\nv_add_u32 v{b+3}, {3*d}, v{b+1}\nv_add_u32 v{b+1}, {d}, v{b+1}")
    p.e(f"""
v_lshrrev_b32 v20, 4, v0
v_lshlrev_b32 v20, 3, v20
v_bfe_u32 v21, v0, 2, 2
v_add_u32 v20, v20, v21
v_lshlrev_b32 v20, 7, v20
v_and_b32 v21, 3, v0
v_lshl_add_u32 v20, v21, 3, v20
v_bfe_u32 v21, v0, 3, 2
v_lshl_add_u32 v{VTR}, v21, 5, v20
""")
    for cb in range(1, 4):
        p.e(f"v_xor_b32 v{VTR+cb}, {32*cb}, v{VTR}")
    p.e(f"""
s_lshl_b32 s6, {sW}, 13
s_add_u32 s74, s6, {LDS_A}
v_and_b32 v20, 15, v0
v_lshlrev_b32 v20, 7, v20
v_add_u32 v20, s74, v20
v_bfe_u32 v21, v0, 1, 3
v_lshrrev_b32 v22, 4, v0
v_xor_b32 v21, v21, v22
v_lshl_add_u32 v{VA_RD}, v21, 4, v20
v_xor_b32 v{VA_RD+1}, 64, v{VA_RD}
""")
    p.e(f"""
s_lshl_b32 s75, {sJ}, 2
s_add_u32 s75, s75, {sW}
s_lshl_b32 s75, s75, 16
s_lshl_b32 s76, {sH}, 8
s_lshl_b32 s77, {sW}, 12
s_lshr_b32 s6, {sW}, 1
s_lshl_b32 s6, s6, 7
s_and_b32 s7, {sW}, 1
s_lshl_b32 s7, s7, 18
s_add_u32 s78, s76, s6
s_add_u32 s78, s78, s7
s_add_u32 s79, {sJ}, {sH}
s_and_b32 s79, s79, {OPT["rot"]}
s_lshl_b32 s100, s79, 19
s_lshl_b32 s101, s79, 7
v_and_b32 v20, 7, v0
v_lshrrev_b32 v21, 3, v0
v_lshlrev_b32 v21, 4, v21
v_lshl_add_u32 v20, v20, 10, v21
s_lshl_b32 s6, s2, 13
s_lshl_b32 s7, {sW}, 8
s_add_u32 s6, s6, s7
s_waitcnt lgkmcnt(0)
""")
    p.e(mk_srd(SRD_X, 48, 2048 * 1024))
    if OPT["wsoff"]:
        p.e(f"s_add_u32 s72, s72, {OPT['wsoff'] << 20}\ns_addc_u32 s73, s73, 0")


def a_dma(q):
    out = []
    for rb in range(2):
        for u in range(4):
            pre = []
            if u == 0 and rb == 0:
                pre = [f"s_add_u32 m0, s74, {(q%2)*32768}", f"s_add_u32 s80, s101, {q*128}",
                       "s_and_b32 s80, s80, 0x3ff", "s_add_u32 s80, s80, s75"]
            if u == 0 and rb == 1:
                pre = [f"s_add_u32 m0, s74, {(q%2)*32768 + 4096}", "s_add_u32 s80, s80, 32768"]
            out.append((pre, I(f"buffer_load_dwordx4 v{VA_DMA+u}, {srd(SRD_CKV)}, s80 offen offset:{u*1024} lds", tag=f"A{q}")))
    return out


def res(rb, ks):
    return ar(((rb // 2) * 32 + 2 * ks + rb % 2) * 4)


def a_reads(q):
    out = []
    for s in range(2):
        for rb in range(4):
            out.append(I(f"ds_read_b128 {res(rb, 2*q+s)}, v{VA_RD+s} offset:{(q%2)*32768 + rb*2048}",
                         tag=f"Ar{q}", needs=[f"A{q}"]))
    return out


CHUNKS = [("Vlo", SRD_WUV, 0), ("Vhi", SRD_WUV, 128), ("H", SRD_W1, 0), ("Qlo", SRD_WQ, 0), ("Qhi", SRD_WQ, 128)]
NSLAB = 28
if OPT["deep"]:
    W_ISSUE = [-1, -1, 0, 1, 2, 3, 4, 5, 6, 6, 6, 7, 7, 7, 8, 8, 9, 9, 10, 11, 17, 19, 20, 20, 21, 21, 22, 22]
else:
    W_ISSUE = [-1, -1] + list(range(26))
W_SLOT = []
_free_at = [-1] * 6 + [7, 7, 8, 8]
for _s in range(NSLAB):
    assert W_ISSUE[_s] <= max(_s - 2, -1)
    _c = [k for k in range(10) if _free_at[k] <= W_ISSUE[_s] and (_s < 24 or k >= 6) and (not 20 <= _s < 24 or k < 6)]
    _k = min(_c, key=lambda k: (_free_at[k], k))
    W_SLOT.append(_k)
    _free_at[_k] = _s + 2
WNT = " nt" if OPT["nt"] else ""
XNT = " nt" if OPT["xnt"] else ""


def w_dma(pslab):
    out = []
    slot = W_SLOT[pslab] * 16384
    if pslab < 8:
        sr, va = SRD_WUK, VW_DMA
        so = [f"s_add_u32 s81, s100, {pslab<<19}", "s_and_b32 s81, s81, 0x3fffff", "s_add_u32 s81, s81, s78"]
    else:
        c, i = divmod(pslab - 8, 4)
        nm, sr, col = CHUNKS[c]
        if nm == "H":
            va = VW1_DMA
            so = [f"s_mov_b32 s81, s{52+i}"]
        else:
            va = VW_DMA
            so = [f"s_add_u32 s81, s{60+i}, {col}"]
    for u in range(4):
        pre = [f"s_add_u32 m0, s77, {slot}"] + so if u == 0 else []
        out.append((pre, I(f"buffer_load_dwordx4 v{va+u}, {srd(sr)}, s81 offen offset:{u*1024}{' nt' if (OPT['nt'] >> pslab) & 1 else ''} lds", tag=f"W{pslab}")))
    return out


def w_read(n, j):
    slot = (W_SLOT[n // 16] * 16384) % 65536
    if n < 128:
        ks, cb = divmod(n, 8)
        off = slot + (cb // 4) * 8192 + (ks % 2) * 4096 + j * 512
    else:
        ks, cb = divmod(n, 4)
        off = slot + (ks % 4) * 4096 + j * 512
    return I(f"ds_read_b64_tr_b16 {vr(WF + 4*(n%8) + 2*j, 2)}, v{VTR + n % 4} offset:{off}", tag=f"Wr{n//2}")


def layernorm(p, mems):
    p.e(f"""
v_and_b32 v20, 7, v0
v_lshlrev_b32 v21, 4, v20
s_lshl_b32 s6, {sW}, 2
v_add_u32 v22, s6, v21
""")
    stamp(p, 21)
    p.wait("X")
    stamp(p, 22)
    for i in range(8):
        p.e(f"v_and_b32 v{41+2*i}, 0xffff0000, v{32+i}")
        p.e(f"v_lshlrev_b32 v{40+2*i}, 16, v{32+i}")
    issue(p, mems[:2])

    def reduce(v, slot):
        p.e(f"""
s_nop 1
v_add_f32_dpp {v}, {v}, {v} row_ror:8 row_mask:0xf bank_mask:0xf
v_mov_b32 v24, {v}
s_nop 1
v_permlane16_swap_b32 {v}, v24
v_add_f32 {v}, {v}, v24
v_mov_b32 v24, {v}
s_nop 1
v_permlane32_swap_b32 {v}, v24
v_add_f32 {v}, {v}, v24
""")
        p.e(I(f"ds_write_b32 v22, {v} offset:{49152 + slot*128}", tag=f"lnw{slot}"))
        p.wait(f"lnw{slot}")
        p.e("s_barrier")
        p.e(I(f"ds_read_b128 v[24:27], v21 offset:{49152 + slot*128}", tag=f"lnr{slot}"))
        p.wait(f"lnr{slot}")
        p.e(f"""
v_add_f32 v24, v24, v25
v_add_f32 v26, v26, v27
v_add_f32 {v}, v24, v26
v_mul_f32 {v}, 0x{f2u(1/512):x}, {v}
""")

    p.e("v_add_f32 v23, v40, v41")
    for i in range(2, 16):
        p.e(f"v_add_f32 v23, v23, v{40+i}")
    reduce("v23", 0)
    issue(p, mems[2:4])
    p.e("v_sub_f32 v29, v40, v23")
    p.e("v_mul_f32 v28, v29, v29")
    for i in range(1, 16):
        p.e(f"v_sub_f32 v29, v{40+i}, v23")
        p.e(f"v_fmac_f32 v28, v29, v29")
    reduce("v28", 1)
    issue(p, mems[4:])
    p.e(f"""
v_cvt_pk_bf16_f32 v24, v23, v28
v_lshlrev_b32 v23, 16, v24
v_and_b32 v28, 0xffff0000, v24
v_add_f32 v28, 0x{f2u(1e-5):x}, v28
v_cvt_pk_bf16_f32 v24, v28, v28
v_lshlrev_b32 v28, 16, v24
v_sqrt_f32 v28, v28
s_nop 0
v_cvt_pk_bf16_f32 v24, v28, v28
v_lshlrev_b32 v28, 16, v24
v_rcp_f32 v28, v28
""")
    for i in range(16):
        p.e(f"v_sub_f32 v{40+i}, v{40+i}, v23")
    for i in range(8):
        p.e(f"v_cvt_pk_bf16_f32 v24, v{40+2*i}, v{41+2*i}")
        p.e(f"v_lshlrev_b32 v25, 16, v24")
        p.e(f"v_and_b32 v26, 0xffff0000, v24")
        p.e(f"v_mul_f32 v25, v25, v28")
        p.e(f"v_mul_f32 v26, v26, v28")
        p.e(f"v_cvt_pk_bf16_f32 v{64+i}, v25, v26")
    p.e(f"""
v_bfe_u32 v24, v0, 3, 2
v_lshl_add_u32 v24, v24, 8, v21
v_lshrrev_b32 v25, 5, v0
v_lshl_add_u32 v24, v25, 11, v24
s_lshr_b32 s6, s2, 2
s_mul_i32 s6, s6, {XN_RS}
s_and_b32 s7, s2, 2
s_lshl_b32 s7, s7, 9
s_add_u32 s6, s6, s7
s_and_b32 s7, s2, 1
s_lshl_b32 s7, s7, 7
s_add_u32 s6, s6, s7
s_lshl_b32 s7, {sW}, 13
s_add_u32 s6, s6, s7
s_add_u32 s7, s6, 4096
""")
    p.e("s_mov_b32 s96, s6\ns_mov_b32 s97, s7")


def flag_addr(kind, dst):
    d = f"s{dst}"
    if kind in ("ctxA", "ctxB"):
        rb = "s48" if kind == "ctxA" else "s49"
        return [f"s_lshl_b32 {d}, {rb}, 2", f"s_lshr_b32 s7, {sH}, 3", f"s_add_u32 {d}, {d}, s7", f"s_lshl_b32 {d}, {d}, 5",
                f"s_and_b32 s7, {sH}, 7", f"s_add_u32 {d}, {d}, s7", f"s_lshl_b32 {d}, {d}, 2", f"s_add_u32 {d}, {d}, {CTXF}"]
    if kind in ("actA", "actB"):
        rb = "s48" if kind == "actA" else "s49"
        return [f"s_mul_i32 s7, {sH}, 37", "s_lshr_b32 s7, s7, 8", "s_mul_i32 s7, s7, 25", f"s_lshl_b32 {d}, {rb}, 7", f"s_add_u32 {d}, {d}, s7",
                f"s_add_u32 {d}, {d}, {sH}", f"s_lshl_b32 {d}, {d}, 2", f"s_add_u32 {d}, {d}, {CTXF + 32}"]
    if kind == "kv":
        return [f"s_lshl_b32 {d}, {sH}, 5", f"s_add_u32 {d}, {d}, s48", f"s_lshl_b32 {d}, {d}, 2", f"s_add_u32 {d}, {d}, {KVF}"]
    if kind == "ex":
        return [f"s_and_b32 {d}, s2, 1", f"s_lshl_b32 {d}, {d}, 3", f"s_add_u32 {d}, {d}, {sJ}", f"s_lshl_b32 {d}, {d}, 2",
                "s_lshr_b32 s7, s2, 6", f"s_add_u32 {d}, {d}, s7", f"s_lshl_b32 {d}, {d}, 2", f"s_add_u32 {d}, {d}, {sW}",
                f"s_lshl_b32 {d}, {d}, 7", "s_and_b32 s7, s2, 6", "s_lshl_b32 s7, s7, 1", f"s_add_u32 {d}, {d}, s7",
                f"s_add_u32 {d}, {d}, {EXF}"]
    raise Exception(kind)


def flag_store(val, s, tag=None, sr=SRD_WS):
    return I(f"buffer_store_dword v{val}, off, {srd(sr)}, s{s} sc1", tag=tag)


def poll_req(vidx, s, tag):
    return I(f"buffer_load_dword v{vPoll}, v{vidx}, {srd(SRD_WS)}, s{s} offen sc1", tag=tag)


def poll_slow(out, label, vidx, s, cmp="v_cmp_ne_u32 vcc, 1"):
    out.e(f"""
{label}:
s_mov_b32 s96, 0x40000
{label}_l:
buffer_load_dword v{vPoll}, v{vidx}, {srd(SRD_WS)}, s{s} offen sc1
s_waitcnt vmcnt(0)
{cmp}, v{vPoll}
s_sub_u32 s96, s96, 1
s_cbranch_scc1 {label}_back
s_cbranch_vccnz {label}_l
s_branch {label}_back
""")


def grp(buf, i):
    if buf == 2:
        return TP + 8 * i if i < 4 else BIAS + 8 * (i - 4)
    return buf + 8 * i


def acc(buf, vtype, cb, rb):
    if vtype:
        return grp(buf, (rb // 2) * 4 + cb) + 4 * (rb % 2)
    return grp(buf, (cb // 2) * 4 + rb) + 4 * (cb % 2)


def issue(p, lst):
    for pre, ins in lst:
        p.e(pre)
        p.e(ins)


def place(g, lst, h0, step, lo):
    prev = lo
    for i, (pre, ins) in enumerate(lst):
        h = h0 + i * step
        assert h > prev
        if pre:
            g.before(pre, h, prev + 1)
        g.mem[h].append(ins)
        prev = h
    return prev


def kv_dma(n):
    out = []
    for u in range(4):
        pre = [f"s_sub_u32 m0, s{sPM[2]}, {0x20000 - n*16384}", f"s_mov_b32 s97, {n*16384}"] if u == 0 else []
        out.append((pre, I(f"buffer_load_dwordx4 {vL16}, {srd(SRD_KV)}, s97 offen offset:{u*1024} sc1 lds", tag=f"KV{n}")))
    return out


PSLAB = 23
P_SLOT = [8, 9, 0, 1, 2, 3, 4, 5, 6, 7]
P_SLOT = [P_SLOT[s % 10] for s in range(PSLAB)]


def p_dma(s):
    win, k = divmod(P_SLOT[s], 4)
    sr, so = (SRD_W2, f"s_add_u32 s97, s{sPW2}, {s*65536}") if s < 7 else (SRD_WO, f"s_add_u32 s97, s{sPWO}, {(s-7)*65536}")
    out = []
    for u in range(4):
        pre = [f"s_add_u32 m0, s{sPM[win]}, {k*16384}", so] if u == 0 else []
        out.append((pre, I(f"buffer_load_dwordx4 v{VP_DMA+u}, {srd(sr)}, s97 offen offset:{u*1024} lds", tag=f"PW{s}")))
    return out


def p_areg(ks):
    if 16 <= ks < 24:
        return vr(32 + 4 * (ks - 16))
    return ar(128 + 4 * ((ks + 16) % 32) if ks < 16 else 128 + 4 * ((ks - 24) % 32))


def p_aload(ks0, ks1):
    out = []
    for ks in range(ks0, ks1):
        pre = []
        if ks % 4 == 0:
            pre = [f"s_add_u32 s100, s{sPA}, {ks*1024}" if ks < 28 else f"s_add_u32 s100, s{sPC}, {(ks-28)*1024}"]
        out.append((pre, I(f"buffer_load_dwordx4 {p_areg(ks)}, {vL16}, {srd(SRD_WS)}, s100 offen offset:{(ks%4)*1024} sc1", tag=f"PA{ks}")))
    return out


def ex_addr():
    ex = ["s_and_b32 s76, s2, 1", "s_lshl_b32 s76, s76, 3", f"s_add_u32 s76, s76, {sJ}", "s_lshl_b32 s76, s76, 2", "s_lshr_b32 s7, s2, 6",
          "s_add_u32 s76, s76, s7", "s_lshl_b32 s76, s76, 17", f"s_lshl_b32 s6, {sW}, 11", "s_add_u32 s76, s76, s6", f"s_add_u32 s76, s76, {EX_OFF}"]
    for i in range(3):
        ex += [f"s_xor_b32 s6, s71, {i ^ 3}", "s_lshl_b32 s7, s6, 2", "s_add_u32 s7, s7, s71", "s_lshl_b32 s7, s7, 13", f"s_add_u32 s{72+i}, s76, s7",
               "s_lshl_b32 s7, s71, 2", "s_add_u32 s7, s7, s6", "s_lshl_b32 s7, s7, 13", f"s_add_u32 s{24+i}, s76, s7"]
    return ex + flag_addr("ex", 27)


def projections(p, ool):
    p.e(I(f"buffer_load_dwordx4 v[32:35], v20, {srd(SRD_X)}, s6 offen{XNT}", tag="X"))
    p.e(I(f"buffer_load_dwordx4 v[36:39], v20, {srd(SRD_X)}, s6 offen offset:128{XNT}", tag="X"))
    p.e(mk_srd(SRD_CKV, 50, 2048 * 1024))
    p.e(mk_srd(SRD_WUK, 54, 512 * 8192))
    f0 = a_dma(0) + w_dma(0)
    issue(p, f0[:OPT["n0"]])
    p.e(mk_srd(SRD_WS, 72, WS_BYTES))
    p.e(mk_srd(SRD_WUV, 56, 512 * 8192))
    p.e(mk_srd(SRD_WQ, 52, 512 * 8192))
    p.e(mk_srd(SRD_W1, 62, 512 * 3584))
    p.e(mk_srd(SRD_B1, 64, 3584))
    p.e(mk_srd(SRD_DBG, 70, 256))
    p.e(mk_srd(SRD_ACT, 72, WS_BYTES))
    p.e(f"""
s_cmp_lt_u32 {sH}, 28
s_cselect_b32 s{SRD_W1+2}, s{SRD_W1+2}, 0
s_cselect_b32 s{SRD_ACT+2}, s{SRD_ACT+2}, 0
s_lshl_b32 s83, {sH}, 7
s_lshl_b32 s6, {sH}, 6
s_lshl_b32 s7, {sJ}, 3
s_add_u32 s6, s6, s7
s_lshl_b32 s7, {sW}, 1
s_add_u32 s6, s6, s7
s_lshl_b32 s6, s6, 14
s_add_u32 s84, s6, {KV_OFF}
s_mul_i32 s6, {sH}, {OPT['kvpad']}
s_add_u32 s84, s84, s6
""")
    for i in range(1, 8):
        p.e(f"s_add_u32 s{84+i}, s84, {i*4096}")
    p.e(f"s_lshl_b32 s6, s79, 1\ns_add_u32 s6, s6, {sW}\ns_lshl_b32 s6, s6, 5")
    for i in range(4):
        p.e(f"""
s_add_u32 s7, s6, {128*i}
s_and_b32 s7, s7, 511
s_lshl_b32 s{60+i}, s7, 13
s_add_u32 s{60+i}, s{60+i}, s76
""")
    p.e(f"s_and_b32 s79, s79, {OPT['p2rot']}\ns_lshl_b32 s6, s79, 1\ns_add_u32 s6, s6, {sW}\ns_lshl_b32 s82, s6, 5")
    for i in range(4):
        p.e(f"""
s_add_u32 s7, s82, {128*i}
s_and_b32 s7, s7, 511
s_mul_i32 s{52+i}, s7, 3584
s_add_u32 s{52+i}, s{52+i}, s83
""")
    p.e(f"""
s_lshl_b32 s70, s79, 12
s_lshl_b32 s48, {sJ}, 2
s_add_u32 s48, s48, {sW}
s_sub_u32 s49, 63, s48
s_mul_i32 s92, s48, {XN_RS}
s_mul_i32 s93, s49, {XN_RS}
s_mul_i32 s50, s48, {AF_KS*1024}
s_mul_i32 s51, s49, {AF_KS*1024}
s_add_u32 s50, s50, {AF_OFF}
s_add_u32 s51, s51, {AF_OFF}
s_lshl_b32 s6, {sH}, 12
s_add_u32 s6, s6, {256*1024}
s_add_u32 s94, s50, s6
s_add_u32 s95, s51, s6
""")
    layernorm(p, f0[OPT['n0']:])
    p.e(flag_addr("kv", 65))
    p.e(f"""
s_getreg_b32 s57, hwreg(HW_REG_XCC_ID, 0, 4)
s_lshl_b32 s64, s2, 8
s_add_u32 s64, s64, {FL_OFF}
s_and_b32 s65, s65, 0xfffffff0
s_cmp_eq_u32 {sW}, 0
s_cselect_b32 s64, s64, 0x80000000
s_cmp_eq_u32 {sW}, 1
s_cselect_b32 s65, s65, 0x80000000
s_and_b32 s71, s2, 63
s_lshl_b32 s71, s71, 2
v_mov_b32 v27, 0
v_lshlrev_b32 v26, 2, v0
v_mov_b32 v{vOne}, 1
""")
    p.e([f"v_mov_b32 v{72+r}, s57" for r in range(4)])
    first = [([], I(f"buffer_store_dwordx4 v[64:67], v24, {srd(SRD_WS)}, s96 offen sc1", tag="XNst")),
             ([], I(f"buffer_store_dwordx4 v[68:71], v24, {srd(SRD_WS)}, s97 offen sc1", tag="XNst")),
             ([], I(f"buffer_store_dword v27, v26, {srd(SRD_WS)}, s64 offen sc1", tag="XNst")),
             ([], I(f"buffer_store_dwordx4 v[72:75], off, {srd(SRD_WS)}, s65 sc1", tag="XNst"))]
    if OPT["wqt"] >= 0:
        p.e(f"""
v_bfe_u32 v25, v0, 1, 4
v_lshlrev_b32 v25, 13, v25
v_and_b32 v23, 1, v0
v_lshl_add_u32 v25, v23, 7, v25
s_lshl_b32 s56, s75, 1
s_add_u32 s56, s56, s76
""")
    stamp(p, 23)
    if OPT["pads"]:
        p.e("s_mov_b64 exec, 0")
        for w in (1, 2, 3):
            p.e(f"s_cmp_eq_u32 {sW}, {w}\ns_cbranch_scc1 L_pad{w}")
        p.e("s_branch L_pad0\nL_padret:\ns_mov_b64 exec, -1")
    p.e(";PAGE")
    FS = OPT["fs"]
    if FS == 0:
        issue(p, first)
    issue(p, a_dma(1))
    if FS < 2:
        issue(p, w_dma(1))
    stamp(p)
    p.wait("A0")
    for x in a_reads(0):
        p.e(x)
    p.wait("W0")
    p.e("s_barrier")
    for n in range(4):
        p.e(w_read(n, 0))
        p.e(w_read(n, 1))
    p.wait("Wr0", "Ar0")

    mf = []
    for ks in range(16):
        for cb in range(8):
            for rb in range(4):
                d = vr(acc(ACC0 if cb < 4 else ACC1, 0, cb % 4, rb))
                n = len(mf) // 4
                mf.append(I(f"{MF} {d}, {vr(WF+4*(n%8))}, {res(rb, ks)}, {'0' if ks == 0 else d}", needs=[f"Wr{n//2}", f"Ar{ks//2}"]))
    for ci, (nm, _, _) in enumerate(CHUNKS):
        buf = (ACC0, ACC1, ACC0, ACC1, 2)[ci]
        for ks in range(16):
            for cb in range(4):
                for rb in range(4):
                    d = c = vr(acc(buf, nm[0] == "V", cb, rb))
                    if ks == 0:
                        c = vr(BIAS + 4 * cb) if nm == "H" else "0"
                    n = len(mf) // 4
                    wf, af = vr(WF + 4 * (n % 8)), res(rb, ks)
                    a, b = (af, wf) if nm[0] == "V" else (wf, af)
                    nd = [f"Wr{n//2}"] + ([f"XN{ks}"] if nm == "H" else [])
                    mf.append(I(f"{MF} {d}, {a}, {b}, {c}", needs=nd))
    NH = len(mf)
    g = Half(mf)
    for n in range(4, NH // 4):
        for j in range(2):
            g.mem[4 * (n - 4) + 2 * j].append(w_read(n, j))
        if n % 16 >= 12 and n // 16 + 1 < NSLAB:
            dw = W_SLOT[n // 16 + 1] // 4 - W_SLOT[n // 16] // 4
            if dw:
                g.val[4 * (n - 4) + 2].append(I(f"v_add_u32 v{VTR+n%4}, 0x{(dw*65536) & 0xffffffff:x}, v{VTR+n%4}"))
    for h in range(8, NH, 8):
        tags = [f"Wr{h//8}"]
        if h < 512 and h % 64 == 0:
            tags += [f"Ar{h//64}"]
        if 1024 <= h < 1280 and h % 16 == 0:
            tags += [f"XN{(h-1024)//16}"]
        g.sh[h - 1].append(WAIT(*tags))
    for q in range(1, 8):
        h = 64 * q - 27
        g.sh[h - 1].append(WAIT(f"A{q}"))
        for i, x in enumerate(a_reads(q)):
            g.mem[h - 1 + 2 * i].append(x)
    for ps in range(1, NSLAB):
        tags = [f"W{ps}"] + (["XNst"] if ps == OPT["sigp"] else []) + (["KV0"] if ps == 27 else [])
        g.sh[64 * ps - 19].append(WAIT(*tags))
        g.sh[64 * ps - 18].append("s_barrier")
    lo = -1
    for ps in range(0, NSLAB):
        lst = []
        for sl in range(NSLAB):
            if W_ISSUE[sl] == ps:
                lst += w_dma(sl)
        if ps == 0:
            if FS == 2:
                lo = place(g, w_dma(1), 3, 2, -1)
                lo = place(g, a_dma(2) + lst, 13, 4, lo)
            else:
                lo = place(g, a_dma(2) + lst, 5, 4, -1)
        elif ps == 1:
            if FS:
                lo = place(g, first, lo + 4, 4, lo)
            lo = place(g, a_dma(3) + lst, max(lo + 4, 65), 4, lo)
        elif ps < 6:
            st = max(lo + 4, 64 * ps + 1)
            lo = place(g, a_dma(ps + 2) + lst, st, 4, lo)
        elif lst:
            lo = place(g, lst, 64 * ps - 13, 4 if len(lst) > 8 else 6, max(lo, 64 * ps - 19))
    g.after([("s_mov_b32 s7, 1", f"s_cmp_lg_u32 {sW}, 0", "s_cbranch_scc1 L_nosig", f"s_atomic_add s7, s[{SRD_DBG}:{SRD_DBG+1}], s71", "L_nosig:")],
            64 * OPT["sigp"] - 16)

    def slot(h):
        h |= 1
        while g.mem[h] or g.val[h]:
            h += 2
        return h

    def kv_store(src, blk, f):
        return I(f"buffer_store_dwordx4 {vr(src)}, {vL16}, {srd(SRD_WS)}, s{84+blk*4+f//4} offen offset:{(f%4)*1024} {KVFL}", tag="KVst")

    def cvt4(dst, src):
        return [f"v_cvt_pk_bf16_f32 v{dst+c}, v{src+2*c}, v{src+2*c+1}" for c in range(4)]

    if OPT["xnrt"]:
        for k in (96, 97):
            g.mem[slot(OPT["xnrt"])].append(I(f"buffer_load_dword v{vDummy}, v24, {srd(SRD_WS)}, s{k} offen sc1"))
    prev = 770
    for i in range(64):
        f, blk = divmod(i, 2)
        h = slot(max(2 * (392 + (33 * i) // 10), prev + 1))
        assert 768 + 16 * (f // 2 + 1) <= h < 1024 + 16 * (f // 2) - 50
        if i % 8 == 0:
            g.before(["s_add_u32 s64, s92, s70", "s_add_u32 s65, s93, s70"], h, prev + 1)
            g.after(["s_add_u32 s70, s70, 4096", "s_and_b32 s70, s70, 0x7fff"], h + 1)
        g.mem[h].append(I(f"buffer_load_dwordx4 {ar((blk*32+f)*4)}, {vL16}, {srd(SRD_WS)}, s{92 if OPT['dbgno'] == 2 else 64+blk} offen offset:{(f%4)*1024}{' sc1' if OPT['xnsc'] else ''}", tag=f"XN{f//2}"))
        prev = h
    kf = lambda i, hi: ((i % 4) // 2, (i % 2) * 4 + 2 * hi + i // 4)
    vf = lambda i, hi: (i // 4, 8 + 4 * hi + i % 4)
    it = []
    for i in range(8):
        it += cvt4(TP + 4 * i, ACC0 + 8 * i)
    g.fill(it, range(487, 512))
    tp_st = [kv_store(TP + 4 * i, *kf(i, 0)) for i in range(8)]

    def epi_inplace(buf, h0, fidx, extra):
        it, st = [], []
        for i in range(8):
            it += cvt4(buf + 8 * i, buf + 8 * i)
            st.append(kv_store(buf + 8 * i, *fidx(i)))
        st = extra[:2] + st + extra[2:]
        for n, x in enumerate(st):
            if (OPT["dbgno"] == 1 and h0 > 512) or (OPT["dbgno"] == 3 and h0 > 512 and n % 3 == 0) or (OPT["dbgno"] == 4 and h0 == 512 and n):
                continue
            g.mem[slot(h0 + 6 + (n * 240) // len(st))].append(x)
        g.fill(it, range(h0 + 2, h0 + 40))
    epi_inplace(ACC1, 512, lambda i: kf(i, 1), tp_st[:4])
    epi_inplace(ACC0, 768, lambda i: vf(i, 0), tp_st[4:6])
    epi_inplace(ACC1, 1024, lambda i: vf(i, 1), tp_st[6:])
    g.fill(["v_lshrrev_b32 v20, 4, v0", "v_lshlrev_b32 v20, 3, v20"], range(676, 680))
    for cb in range(4):
        g.mem[slot(684 + 6 * cb)].append(I(f"buffer_load_dwordx2 {vr(BIAS+4*cb+2,2)}, v20, {srd(SRD_B1)}, s83 offen offset:{32*cb}", tag="B1"))
    g.after([WAIT("B1")], 876)
    it = []
    for cb in range(4):
        b = BIAS + 4 * cb
        it += [I(f"v_lshlrev_b32 v{b}, 16, v{b+2}", needs=["B1"]), f"v_and_b32 v{b+1}, 0xffff0000, v{b+2}",
               f"v_lshlrev_b32 v{b+2}, 16, v{b+3}", f"v_and_b32 v{b+3}, 0xffff0000, v{b+3}"]
    g.fill(it, range(884, 920))
    g.mem[slot(672)].append(I(f"buffer_load_dword v{vPoll}, v26, {srd(SRD_DBG)}, 0 offen sc1", tag="pollLN"))
    g.sh[760].append(WAIT("pollLN"))
    g.val[760].append(I(f"v_cmp_gt_u32 vcc, 4, v{vPoll}", needs=["pollLN"]))
    g.sh[763] += ["s_cbranch_vccnz L_pollLN", "L_pollLN_back:"]
    ool.e(f"""
L_pollLN:
s_mov_b32 s96, 0x40000
L_pollLN_l:
s_sleep 2
buffer_load_dword v{vPoll}, v26, {srd(SRD_DBG)}, 0 offen sc1
s_waitcnt vmcnt(0)
v_cmp_gt_u32 vcc, 4, v{vPoll}
s_sub_u32 s96, s96, 1
s_cbranch_scc1 L_pollLN_back
s_cbranch_vccnz L_pollLN_l
s_branch L_pollLN_back
""")
    if OPT["p2rot"] != 7:
        l = []
        for i in range(4):
            l += [f"s_add_u32 s7, s82, {128*i}", "s_and_b32 s7, s7, 511", f"s_lshl_b32 s{60+i}, s7, 13", f"s_add_u32 s{60+i}, s{60+i}, s76"]
        assert g.after(l, 930) < 1000
    late = mk_srd(SRD_W2, 66, 1792 * 1024) + mk_srd(SRD_WO, 58, 4096 * 1024) + mk_srd(SRD_OUT, 68, 2048 * 1024)
    late += [f"s_mul_i32 s6, {sH}, {KV_HS}", "s_add_u32 s6, s6, s77", f"s_add_u32 s6, s6, {KV_OFF}", f"s_mov_b32 s{SRD_KV+2}, 0x100000",
             (f"s_add_u32 s{SRD_KV}, s72, s6", f"s_addc_u32 s{SRD_KV+1}, s73, 0"), f"s_and_b32 s{SRD_KV+1}, s{SRD_KV+1}, 0xffff"]
    late += flag_addr("kv", 82) + ["s_and_b32 s80, s82, 0xffffff80", "s_mov_b32 s71, 0"]
    if OPT["wopf"]:
        late += ["s_mul_i32 s56, s2, 7168", (f"s_cmp_eq_u32 {sW}, 2", "s_cselect_b32 s56, s56, 0x1000000")]
    assert g.after(late, 1160) < 1226
    g.fill(["v_and_b32 v27, 31, v0", "v_lshlrev_b32 v27, 2, v27", "v_lshlrev_b32 v26, 7, v0"], range(1218, 1226))
    g.mem[slot(1228)].append(poll_req(27, 80, "pollXC"))
    g.sh[1272].append(WAIT("pollXC"))
    g.fill([I(f"v_and_b32 v{vPoll}, 0xff, v{vPoll}", needs=["pollXC"]), f"v_cmp_ne_u32 vcc, s57, v{vPoll}",
            f"v_mov_b32 v{vPoll}, s57", f"v_or_b32 v{vPoll}, 0x100, v{vPoll}"], range(1272, 1277))
    g.sh[1300].append(WAIT("KVst"))
    g.sh[1301] += ["s_cbranch_vccnz L_xrel", "L_xrel_back:"]
    ool.e("L_xrel:\ns_mov_b32 s71, 1\nbuffer_wbl2 sc1\ns_waitcnt vmcnt(0)\ns_branch L_xrel_back")
    g.mem[slot(1302)].append(flag_store(vPoll, 82))
    if OPT["wopf"]:
        if OPT["w2t"] > 0:
            g.mem[slot(OPT["w2t"])].append(I(f"buffer_load_dword v{vDummy}, v26, {srd(SRD_W2)}, s56 offen", tag="wopf"))
    if OPT["wqt"] > 0:
        g.mem[slot(OPT["wqt"])].append(I(f"buffer_load_dword v{vDummy}, v25, {srd(SRD_WQ)}, s56 offen"))
    g.mem[slot(1540)].append(poll_req(27, 80, "pollKV"))
    assert g.after(flag_addr("actA", 78) + flag_addr("actB", 79) + [f"s_add_u32 s{sPM[2]}, s77, 0x20000"], 1544) < 1580
    g.sh[1586].append(WAIT("pollKV"))
    g.val[1586].append(I(f"v_cmp_gt_u32 vcc, 0x100, v{vPoll}", needs=["pollKV"]))
    g.sh[1589] += ["s_cbranch_vccnz L_pollKV", "L_pollKV_back:"]
    poll_slow(ool, "L_pollKV", 27, 80, "v_cmp_gt_u32 vcc, 0x100")
    g.sh[1592] += ["s_cmp_lg_u32 s71, 0", "s_cbranch_scc1 L_xacq", "L_xacq_back:"]
    ool.e("L_xacq:\nbuffer_inv sc1\ns_waitcnt vmcnt(0)\ns_branch L_xacq_back")
    assert W_SLOT[24:] == [6, 7, 8, 9]
    lo = 1592
    for n in range(7):
        lo = place(g, kv_dma(n), 1597 + 24 * n, 6, lo)
    for k in range(12):
        g.mem[1714 + 4 * k].append(I(f"ds_read_b128 {ar(KF+4*k)}, {vL16} offset:{k*1024}", tag="K0", needs=["KV0"]))
    ps = [
        "s_and_b32 s6, s2, 1", "s_lshl_b32 s6, s6, 5", "s_add_u32 s6, s6, s48",
        "s_lshr_b32 s71, s2, 1", "s_and_b32 s71, s71, 3",
        "s_lshl_b32 s101, s6, 2", "s_add_u32 s101, s101, s71", "s_lshl_b32 s101, s101, 7", f"s_add_u32 s101, s101, {CTXF + 32}",
        "s_mul_i32 s7, s71, 28",
        f"s_mul_i32 s6, s6, {AF_KS*1024}", f"s_add_u32 s6, s6, {AF_OFF}",
        "s_lshl_b32 s7, s7, 10", f"s_add_u32 s{sPA}, s6, s7", f"s_add_u32 s{sPA}, s{sPA}, {256*1024}",
        "s_lshl_b32 s7, s71, 16", f"s_add_u32 s{sPC}, s6, s7",
        f"s_xor_b32 s6, s71, {sW}", "s_xor_b32 s6, s6, 3", "s_lshr_b32 s6, s6, 1", "s_lshl_b32 s6, s6, 7",
        "s_lshr_b32 s7, s2, 6", "s_lshl_b32 s7, s7, 8", "s_add_u32 s6, s6, s7",
        f"s_and_b32 s7, {sW}, 1", "s_lshl_b32 s7, s7, 15", "s_add_u32 s6, s6, s7",
        f"s_mul_i32 s7, s71, {448*1024}", f"s_add_u32 s{sPW2}, s6, s7",
        "s_lshl_b32 s7, s71, 20", f"s_add_u32 s{sPWO}, s6, s7",
        f"s_and_b32 s6, {sJ}, 1", "s_lshl_b32 s6, s6, 16", f"s_add_u32 s{sPM[0]}, s77, s6",
        f"s_xor_b32 s{sPM[1]}, s{sPM[0]}, 0x10000", f"s_add_u32 {sM}, s77, {7*16384}",
        "s_and_b32 s75, s71, 1", "s_xor_b32 s75, s75, 1", "s_lshl_b32 s75, s75, 6",
        f"s_mov_b32 {sKa}, 0x4000", f"s_mov_b32 {sCA}, s48", f"s_sub_u32 {sCB}, 30, s48",
        f"s_sub_u32 s41, {sJ}, 2", "s_lshl_b32 s41, s41, 5", f"s_add_u32 s41, s41, {sH}", "s_lshl_b32 s41, s41, 2",
        f"s_add_u32 s41, s41, {sW}", "s_lshl_b32 s41, s41, 13",
    ]
    if OPT["w2t"] > 0:
        ps += [f"s_mov_b32 s{20+i}, s{SRD_WO+i}" for i in range(3)]
    else:
        ps += ["s_sub_u32 s6, s41, 0x200000", (f"s_cmp_lt_u32 {sJ}, 4", "s_cselect_b32 s41, s41, s6") +
               tuple(f"s_cselect_b32 s{20+i}, s{SRD_W2+i}, s{SRD_WO+i}" for i in range(3))]
    if OPT["sent"]:
        ps += ex_addr()
    for r in range(4):
        m = sum(1 << l for l in range(64) if 4 * (l // 16) + r > l % 16)
        ps += [f"s_mov_b32 s{MASKS+2*r}, 0x{m & 0xffffffff:x}", f"s_mov_b32 s{MASKS+2*r+1}, 0x{m >> 32:x}"]
    assert g.after(ps, 1594) < 1765
    it = []
    LOG2E = f"0x{f2u(1.4426950408889634):x}"
    for i in range(8):
        dl, rb = divmod(i, 4)
        b = ACC0 + 8 * i
        for c in range(4):
            x0, x1 = b + 2 * c, b + 2 * c + 1
            it += [f"v_mul_f32 v20, {LOG2E}, v{x0}", "v_exp_f32 v20, v20", f"v_mul_f32 v21, {LOG2E}, v{x1}", "v_exp_f32 v21, v21",
                   "v_fma_f32 v22, v20, 0.5, 1.0", "v_fma_f32 v20, v20, v22, 1.0", "v_fma_f32 v23, v21, 0.5, 1.0",
                   "v_fma_f32 v21, v21, v23, 1.0", "v_rcp_f32 v20, v20"]
            if c or i:
                it.append(pend.pop())
            it += ["v_rcp_f32 v21, v21", f"v_fma_f32 v24, -v{x0}, v20, v{x0}"]
            if c == 0 and i:
                it.append(pst.pop())
            it.append(f"v_fma_f32 v25, -v{x1}, v21, v{x1}")
            pend = [f"v_cvt_pk_bf16_f32 v{b+c}, v24, v25"]
        pst = [I(f"buffer_store_dwordx4 {vr(b)}, {vL16}, {srd(SRD_ACT)}, s{94+rb//2} offen offset:{(2*dl+rb%2)*1024} sc1", tag="ACTst")]
    it += pend + pst
    nmish = len(it)
    QS = f"0x{f2u(1.4426950408889634 / 128 ** 0.5):x}"

    def q_epi(src, dst):
        it = []
        for c in range(4):
            it += [f"v_mul_f32 v{src+2*c}, {QS}, v{src+2*c}", f"v_mul_f32 v{src+2*c+1}, {QS}, v{src+2*c+1}",
                   f"v_cvt_pk_bf16_f32 v{dst+c}, v{src+2*c}, v{src+2*c+1}"]
        return it
    it += ["v_lshrrev_b32 v20, 3, v0", "v_and_b32 v21, 7, v0", "v_bfe_u32 v22, v0, 4, 2", "v_lshlrev_b32 v22, 1, v22",
           "v_xor_b32 v21, v21, v22", "v_lshlrev_b32 v21, 4, v21", "v_xor_b32 v21, s75, v21",
           f"v_lshl_add_u32 v{VP_DMA}, v20, 10, v21"] + [f"v_add_u32 v{VP_DMA+u}, {7168*u}, v{VP_DMA}" for u in (1, 2, 3)]
    it += ["v_min_u32 v27, 6, v0", "v_lshlrev_b32 v27, 2, v27", f"v_mov_b32 v{vMask}, 0x1c000", f"v_mov_b32 v{vBit}, 0x40004000",
           f"v_mov_b32 v{vNinf}, 0xff800000", f"v_mov_b32 v{vR0}, {vL16}"]
    it += [f"v_mov_b32 v{NMA+r}, 0" for r in range(16)] + [f"v_mov_b32 v{EX+r}, 0" for r in range(4)]
    for i in range(8):
        it += q_epi(ACC1 + 8 * i, ACC1 + 4 * i)
    it = [x if isinstance(x, I) else I(x) for x in it]
    FH = 1737
    g.sh[FH - 1].append(WAIT("ACTst"))
    g.mem[FH].append(flag_store(vOne, 78, sr=SRD_ACT))
    g.mem[FH + 2].append(flag_store(vOne, 79, sr=SRD_ACT))
    g.sh[1788] += [f"s_cmp_eq_u32 {sCA}, 0", "s_cbranch_scc1 L_mask0", "L_mask0_back:"]
    ool.e("L_mask0:"); ool.e(mask_ops(NMA)); ool.e("s_branch L_mask0_back")
    g.fill(it, range(1283, 1788))
    hm = [h for h in range(NH) if it[nmish - 1] in g.mem[h] + g.val[h]][0]
    assert 1675 < hm < FH - 40, hm
    assert g.after([(f"s_add_u32 s{SRD_KV}, s{SRD_KV}, {6*16384}", f"s_addc_u32 s{SRD_KV+1}, s{SRD_KV+1}, 0"),
                    f"s_lshl_b32 s7, {sJ}, 2", "s_sub_u32 s7, 58, s7", f"s_lshl_b32 s{SRD_KV+2}, s7, 14", f"s_mov_b32 m0, {sM}"], 1768) < 1786
    if OPT["stamp"] or OPT["padat"] >= 0:
        for h in (511, 767, 1023, 1279, 1535):
            q = Prog(); stamp(q); g.post[h] += q.l
        if OPT["stamp"] == 2:
            for k in range(28):
                q = Prog(); stamp(q, 24 + k); g.post[64 * k] += q.l
    p.e(g.emit())
    stamp(p)
    mB, mA = qk_mf(JB1, True, "0"), qk_mf(JA0, True)
    p.wait("K0")
    g = Half(mB[:8] + mA[:8] + mB[8:] + mA[8:])
    qe = lambda l: sum((q_epi(grp(2, i), grp(2, i)) for i in l), [])
    g.fill(qe((2, 3, 6, 7)) + ["s_nop 0"], range(0, 16))
    g.fill(qe((0, 1, 4, 5)) + ["s_nop 0"], range(16, 24))
    g.fill(rowmax(S1), range(26, 32))
    p.e(g.emit())
    it = [f"v_sub_f32 v{NMB+r}, 0x{f2u(-SHIFT):x}, v{20+r//8}" for r in range(16)]
    it += rowmax(S0) + [f"v_add_f32 v{20+qb}, 0x{f2u(SHIFT):x}, v{20+qb}" for qb in range(2)]
    it += [f"v_sub_f32 v{S0+r}, v{S0+r}, v{20+r//8}" for r in range(16)]
    z = Gaps([f"{MF32} {ar(16*i,16)}, {vr(EX)}, {vr(EX)}, 0" for i in range(8)])
    z.spread(it, 0, 8)
    p.e(z.emit())
    p.e([f"v_sub_f32 v{NMA+r}, 0, v{20+r//8}" for r in range(16)])
    p.e(sm_split(JA0, "Y")[0])
    p.e([f"v_mov_b32 v{lreg(r//8, (r//4)%2)+r%4}, 0" for r in range(16)] + [f"v_mov_b32 v{ONES+r}, 0x3f803f80" for r in range(4)])
    if OPT["sent"]:
        p.e([f"v_mov_b32 v{32+r}, -1" for r in range(4)])
        for i in range(6):
            p.e(I(f"buffer_store_dwordx4 v[32:35], {vL16}, {srd(SRD_WS)}, s{24+i//2} offen offset:{(i%2)*1024} sc1"))
    p.wait("KV2")
    stamp(p)


def qfrag(blk, qb, ds):
    rb = 2 * blk + qb
    return ACC1 + 4 * (4 * ds + rb) if ds < 2 else grp(2, 4 * (ds - 2) + rb)


def lreg(blk, qb):
    return TP + 4 + 8 * (2 * blk + qb)


class Job:
    def __init__(self, blk, par):
        self.blk = blk
        self.S = (S0, S1)[par]
        self.P = (P0, P1)[par]
        self.NM = (NMA, NMB)[blk]
        self.O = (OA, OB)[blk]


JA0, JB1, JB0 = Job(0, 0), Job(1, 1), Job(1, 0)


def sm_ops(j):
    o = {}
    for r in range(16):
        o[f"e{r}"] = f"v_exp_f32 v{EX+r}, v{j.S+r}"
    for i in range(8):
        o[f"c{i}"] = f"v_cvt_pk_bf16_f32 v{j.P+i}, v{EX+2*i}, v{EX+2*i+1}"
    o["o0"] = f"v_or3_b32 v{vChk}, v{j.P}, v{j.P+1}, v{j.P+2}"
    o["o1"] = f"v_or3_b32 v{vChk}, v{vChk}, v{j.P+3}, v{j.P+4}"
    o["o2"] = f"v_or3_b32 v{vChk}, v{vChk}, v{j.P+5}, v{j.P+6}"
    o["o3"] = f"v_bitop3_b32 v{vChk}, v{vChk}, v{j.P+7}, v{vBit} bitop3:0xa8"
    o["k"] = f"v_cmp_ne_u32 vcc, 0, v{vChk}"
    return o


SM_PLAN = {
    "Z": ({17: "e0", 18: "e1", 19: "e2", 20: "c0", 21: "e3", 22: "e4", 24: "c1", 25: "e5", 26: "e6", 27: "e7", 28: "c2",
           29: "e8", 30: "c3", 32: "e9", 33: "e10"},
          {0: "o0", 1: "e11", 2: "c4", 3: "e12", 4: "o1", 5: "e13", 8: "c5 e14", 9: "e15", 10: "c6", 11: "o2 c7", 12: "o3 k"}),
    "W": ({16: "e0", 17: "e1", 18: "e2", 19: "e3", 20: "c0", 21: "e4", 22: "c1", 24: "e5", 25: "e6", 26: "c2", 27: "e7", 28: "e8",
           29: "e9", 30: "c3", 32: "e10", 33: "e11"},
          {0: "o0", 1: "e12", 2: "c4", 3: "e13", 4: "o1", 5: "e14", 8: "c5", 9: "e15", 10: "c6", 11: "o2 c7", 12: "o3 k"}),
    "X": ({17: "e0", 19: "e1", 21: "e2", 22: "c0", 24: "e3", 25: "e4", 26: "e5", 27: "c1 c2", 28: "e6", 29: "e7",
           30: "e8", 32: "o0 c3", 33: "e9"},
          {0: "e10", 1: "e11", 2: "c4 o1", 3: "e12", 4: "e13", 5: "e14", 6: "c5", 7: "e15", 8: "c6", 9: "o2 c7", 10: "o3", 11: "k"}),
    "Y": ({17: "e0", 18: "e1", 19: "e2", 20: "e3", 21: "e4", 22: "e5", 23: "e6", 24: "c0", 25: "e7", 26: "c1", 27: "e8",
           28: "c2", 29: "e9", 30: "c3", 31: "e10", 32: "e11", 33: "o0 c4"},
          {1: "e12", 3: "e13", 5: "e14", 8: "o1", 9: "e15", 10: "c5", 11: "c6 o2", 12: "c7 o3", 13: "k"}),
}


def sm_split(j, plan):
    o = sm_ops(j)
    return [[o[n] for h in sorted(part) for n in part[h].split()] for part in SM_PLAN[plan]]


for _p in SM_PLAN.values():
    _o = [n for part in _p for h in sorted(part) for n in part[h].split()]
    assert sorted(_o) == sorted(sm_ops(JA0))
    _dep = {f"c{i}": (f"e{2*i}", f"e{2*i+1}") for i in range(8)}
    _dep.update(o0=("c0", "c1", "c2"), o1=("o0", "c3", "c4"), o2=("o1", "c5", "c6"), o3=("o2", "c7"), k=("o3",))
    assert all(_o.index(d) < _o.index(n) for n in _dep for d in _dep[n])


def qk_mf(j, dsmajor=False, c0=None):
    idx = [(kb, qb, ds) for kb in range(2) for qb in range(2) for ds in range(4)]
    if dsmajor:
        idx.sort(key=lambda t: t[2])
    out = []
    for kb, qb, ds in idx:
        t = 8 * qb + 4 * kb
        c = (vr(j.NM + t) if c0 is None else c0) if ds == 0 else vr(j.S + t)
        out.append(f"{MF} {vr(j.S+t)}, {ar(KF+4*(4*kb+ds))}, {vr(qfrag(j.blk,qb,ds))}, {c}")
    return out


def pv_mf(j):
    out = [f"{MF} {vr(lreg(j.blk,qb))}, {vr(ONES)}, {vr(j.P+4*qb)}, {vr(lreg(j.blk,qb))}" for qb in range(2)]
    for db in range(8):
        for qb in range(2):
            o = ar(j.O + 8 * (2 * (db // 2) + qb) + 4 * (db % 2))
            out.append(f"{MF} {o}, {ar(VF+4*db)}, {vr(j.P+4*qb)}, {o}")
    return out


def rowmax(S):
    l = []
    for a, b in ((0, 1), (3, 4), (5, 6)):
        for qb in range(2):
            s = S + 8 * qb
            l.append(f"v_max3_f32 v{20+qb}, v{s+2 if a == 0 else 20+qb}, v{s+a}, v{s+b}")
    l += [f"v_max_f32 v{20+qb}, v{20+qb}, v{S+8*qb+7}" for qb in range(2)]
    for op in ("v_permlane16_swap_b32", "v_permlane32_swap_b32"):
        l += ["v_mov_b32 v22, v20", "v_mov_b32 v23, v21", "s_nop 0", f"{op} v20, v22", f"{op} v21, v23",
              "v_max_f32 v20, v20, v22", "v_max_f32 v21, v21, v23"]
    return l


RARE = {}


def rare(cur, nxt):
    fix = nxt is not None and nxt.blk == cur.blk
    name = f"L_rare_{cur.blk}_{cur.S}_{int(fix)}"
    if name in RARE:
        return name
    q = Prog()
    q.e(f"{name}:")
    q.e("s_nop 15")
    q.e(rowmax(cur.S))
    for qb in range(2):
        q.e(f"v_add_f32 v{20+qb}, 0x{f2u(SHIFT):x}, v{20+qb}\nv_max_f32 v{20+qb}, 0, v{20+qb}\nv_exp_f32 v{22+qb}, -v{20+qb}")
    for r in range(16):
        q.e(f"v_sub_f32 v{cur.NM+r}, v{cur.NM+r}, v{20+r//8}")
        q.e(f"v_sub_f32 v{cur.S+r}, v{cur.S+r}, v{20+r//8}")
        if fix:
            q.e(f"v_sub_f32 v{nxt.S+r}, v{nxt.S+r}, v{20+r//8}")
    for r in range(8):
        b = lreg(cur.blk, r // 4) + r % 4
        q.e(f"v_mul_f32 v{b}, v{b}, v{22+r//4}")
    for r in range(64):
        q.e(f"v_accvgpr_read_b32 v24, a{cur.O+r}")
        q.e(f"v_mul_f32 v24, v24, v{22+(r//8)%2}")
        q.e(f"v_accvgpr_write_b32 a{cur.O+r}, v24")
    o = sm_ops(cur)
    q.e([o[f"e{r}"] for r in range(16)] + [o[f"c{i}"] for i in range(8)])
    q.e("s_nop 1")
    q.e("s_setpc_b64 s[46:47]")
    errs = lint(q.l, name)
    assert not errs, errs
    RARE[name] = q
    return name


site_n = [0]


def step(ool, kind, extra=None, bar=("s_barrier",), ringdma=True, vmw=None, bh=0):
    cur, nxt = dict(X=(JA0, JB1), Y=(JB1, JA0), T=(JB1, JB0), Z0=(JB0, JB1), Z1=(JB1, JB0), F=(JB0, None))[kind]
    pcur = dict(X="Y", Y="X", T="X", Z0="W", Z1="Z", F="W")[kind]
    pnxt = dict(X="X", Y="Y", T="W", Z0="Z", Z1="W", F=None)[kind]
    rdV2, rdK, rdV1 = kind in ("X", "Z0", "Z1", "F"), kind in ("X", "T", "Z0", "Z1"), kind in ("Y", "T", "Z0", "Z1")
    dma = kind in ("X", "Z0", "Z1")
    rV2 = vR1 if kind == "Z1" else vR0
    rK = vR1 if kind in ("T", "Z1") else vR0
    rV1 = vR1 if kind == "Z0" else vR0
    sK = sKb if kind in ("T", "Z1") else sKa
    g = Half((qk_mf(nxt) if nxt else [None] * 16) + pv_mf(cur))
    if rdK:
        g.val[6].append(f"v_and_or_b32 v{rK}, {sK}, v{vMask}, {vL16}")
    o = sm_ops(cur)
    for h, v in SM_PLAN[pcur][1].items():
        g.val[h] += [o[n] for n in v.split()]
    if nxt:
        o = sm_ops(nxt)
        for h, v in SM_PLAN[pnxt][0].items():
            g.val[h] += [o[n] for n in v.split()]
    else:
        g.val[7].append("s_nop 0")
    n = site_n[0]
    site_n[0] += 1
    g.sh[15] += [f"s_cbranch_vccnz L_site{n}", f"L_back{n}:"]
    ool.e(f"L_site{n}:\ns_call_b64 s[46:47], {rare(cur, nxt)}\ns_branch L_back{n}")
    KH = (8, 10, 13, 13, 15, 18, 20, 22) if pcur in "ZW" else (8, 10, 15, 18, 18, 20, 20, 22) if kind == "X" else (8, 10, 12, 13, 15, 18, 20, 22)
    if rdV2:
        for f in range(4, 8):
            g.mem[2 * (f - 4)].append(f"ds_read_b128 {ar(VF+4*f)}, v{rV2} offset:{8192+1024*f}")
        g.sh[17].append("s_waitcnt lgkmcnt(%d)" % (sum(h < 17 for h in KH) if rdK else 0))
        g.sh[bh] += list(bar)
    if rdK:
        for k in range(8):
            g.mem[KH[k]].append(f"ds_read_b128 {ar(KF+4*k)}, v{rK} offset:{1024*k}")
        g.sh[33].append("s_waitcnt lgkmcnt(%d)" % (4 if rdV1 else 0))
    if rdV1:
        for f in range(4):
            g.mem[24 + 2 * f].append(f"ds_read_b128 {ar(VF+4*f)}, v{rV1} offset:{8192+1024*f}")
        if vmw != -1:
            g.sh[28].append("s_waitcnt vmcnt(%d)" % (vmw if vmw is not None else 15 if dma else 16))
    if dma and ringdma:
        for u, h in enumerate((7, 14, 23, 31)):
            g.mem[h].append(f"buffer_load_dwordx4 {vL16}, {srd(SRD_KV)}, {sK} offen offset:{u*1024} sc1 lds")
    if kind == "Y":
        g.after(["s_add_u32 m0, m0, 0x4000", "s_bitset0_b32 m0, 17", f"s_add_u32 {sKa}, {sKa}, 0x4000", f"s_sub_u32 {sCA}, {sCA}, 1"], 18)
    if kind == "X":
        g.sh[9].append(f"s_cmp_ge_u32 {sCA}, 2")
    if kind == "T":
        g.after([f"s_add_u32 {sKb}, {sKa}, 0x4000", f"s_add_u32 {sM}, m0, 0x4000", f"s_add_u32 {sKa}, {sKa}, 0x8000",
                 (f"s_sub_u32 s{SRD_KV}, s{SRD_KV}, 0x4000", f"s_subb_u32 s{SRD_KV+1}, s{SRD_KV+1}, 0"),
                 f"s_add_u32 s{SRD_KV+2}, s{SRD_KV+2}, 0x4000", f"s_bitset0_b32 {sM}, 17"], 0)
    if kind in ("Z0", "Z1"):
        if ringdma:
            g.sh[1].append(f"s_mov_b32 m0, {sM}")
        so = sKb if kind == "Z0" else sKa
        g.after([f"s_add_u32 {sM}, {sM}, 0x4000", f"s_bitset0_b32 {sM}, 17", f"s_add_u32 {so}, {so}, 0x8000"], 18)
    if kind == "Z0":
        g.sh[9].append(f"s_sub_u32 {sCB}, {sCB}, 1")
    if extra:
        extra(g)
    l = g.emit()
    cut = [i for i, x in enumerate(l) if x.text == g.mf[16]][0] + 1
    return l[:cut], l[cut:]


def mask_ops(NM):
    l = [f"v_cndmask_b32 v{NM+t+r}, v{NM+t+r}, v{vNinf}, s[{MASKS+2*r}:{MASKS+2*r+1}]" for t in (0, 12) for r in range(4)]
    return l + [f"v_mov_b32 v{NM+4+r}, v{vNinf}" for r in range(4)] + ["s_nop 1"]


def epilogue(p, blk, tag=None, gs=range(8), mems=()):
    O = (OA, OB)[blk]
    if 0 in gs:
        p.e(f"""
v_rcp_f32 v{lreg(blk,0)}, v{lreg(blk,0)}
v_rcp_f32 v{lreg(blk,1)}, v{lreg(blk,1)}
s_lshl_b32 s6, {sH}, 13
s_add_u32 s6, s6, s{50+blk}
s_add_u32 s7, s6, 4096
""")
    mems = list(mems)
    per = -(-len(mems) // len(gs))
    for i in gs:
        b = NMA + 8 * (i % 2)
        issue(p, mems[:per])
        mems = mems[per:]
        for r in range(8):
            p.e(f"v_accvgpr_read_b32 v{b+r}, a{O+8*i+r}")
        for c in range(4):
            p.e(f"v_pk_mul_f32 {vr(b+2*c,2)}, {vr(b+2*c,2)}, {vr(lreg(blk,i%2),2)} op_sel_hi:[1,0]")
        for c in range(4):
            p.e(f"v_cvt_pk_bf16_f32 v{b+c}, v{b+2*c}, v{b+2*c+1}")
        p.e(I(f"buffer_store_dwordx4 {vr(b)}, {vL16}, {srd(SRD_WS)}, s{6+i//4} offen offset:{(i%4)*1024} sc1", tag=tag))


def attention(ool, extra):
    q = Prog()

    def memx(lst, hs):
        def f(g):
            assert len(hs) == len(lst)
            for (pre, ins), h in zip(lst, hs):
                g.mem[h] += pre + [ins]
        return f

    def cbar(n):
        return [f"s_cmp_lt_u32 {sW}, {n}", f"s_cbranch_scc1 L_nb{n}", "s_barrier", f"L_nb{n}:"]
    X1, X2 = step(ool, "X")

    def exY(g):
        if OPT["wopf"]:
            g.sh[13].append(f"s_cmp_eq_u32 {sCA}, 5")
            g.sh[14] += ["s_cbranch_scc1 L_wo", "L_wo_back:"]
    Y = sum(step(ool, "Y", exY), [])
    _, X2c = step(Prog(), "X", memx([([], poll_req(27, 101, None))], (16,)))

    def exT(g):
        g.sh[30].append("s_waitcnt vmcnt(2)")
        if OPT["sent"]:
            g.mem[31].append(flag_store(vOne, 27))
        g.val[31].append(f"v_cmp_ne_u32 vcc, 1, v{vPoll}")
    T = sum(step(ool, "T", exT), [])
    pl = p_aload(0, 24)
    ool.e("L_ldA0:"); issue(ool, pl[:12]); ool.e("s_setpc_b64 s[44:45]")
    ool.e("L_ldA1:"); issue(ool, pl[12:]); ool.e("s_setpc_b64 s[44:45]")
    ldA = lambda n: [f"s_cmp_lg_u32 {sW}, {n}", f"s_cbranch_scc1 L_nl{n}", "s_call_b64 s[44:45], L_ldA0", "s_call_b64 s[44:45], L_ldA1", f"L_nl{n}:"]

    def w2_both(s):
        a, b = p_dma(s), p_dma(s)
        b[0] = (["s_add_u32 m0, m0, 0x2000", "s_xor_b32 s97, s97, 0x80"], b[0][1])
        return a + b
    Z0a, Z0b = step(ool, "Z0")
    Z1 = sum(step(ool, "Z1"), [])
    _, Z0bc = step(Prog(), "Z0", memx(p_dma(2), (16, 19, 23, 31)), ringdma=False, vmw=3)
    Z1c = sum(step(ool, "Z1", memx(p_dma(3) + p_dma(4), (7, 9, 14, 16, 19, 23, 27, 31)), bar=cbar(1), ringdma=False, vmw=-1), [])
    F = sum(step(ool, "F", memx(p_dma(5) + p_aload(24, 28), (16, 18, 20, 22, 24, 26, 28, 30)), bar=cbar(2)), [])
    for nm, seq in (("XY", X1 + X2 + Y + X1 + X2), ("XT", X1 + X2c + T + Z0a + Z0b + Z1 + Z0a + Z0bc + Z1c + F), ("TF", T + F)):
        errs = lint(seq, nm)
        assert not errs, "\n".join(errs)
    if OPT["sim"]:
        br = [I("s_cbranch_scc1 LL")]
        for nm, seq in (("XY", (X2 + Y + X1 + br) * 3), ("Z", (Z0b + Z1 + Z0a + br) * 3)):
            t, gp = simulate(seq, taken=("LL",))
            print(nm, sum(gp[67:135]), gp[67:135])
        print("X2c+T", simulate(X2c + T)[0], "Z0bc+Z1c", simulate(Z0bc + Z1c)[0], "F", simulate(F)[0])
    q.e(step(ool, "X")[0])
    q.e("s_cbranch_scc0 L_Xx")
    q.e(";LOOP\nL_X:"); q.e(X2); q.e(Y); q.e(X1)
    q.e("s_cbranch_scc1 L_X\n;ENDLOOP\nL_Xx:")
    q.e(f"s_cmp_eq_u32 {sCA}, 0\ns_cbranch_scc1 L_Xo")
    q.e(mask_ops(NMA)); q.e("s_branch L_X")
    if OPT["wopf"]:
        q.e(f"L_wo:\nbuffer_load_dword v{vDummy}, v26, s[20:23], s41 offen\ns_branch L_wo_back")
    q.e("L_Xo:")
    stamp(q, 9)
    q.e(f"s_cmp_eq_u32 {sCB}, -1\ns_cbranch_scc1 L_mB0\nL_mB0_back:")
    ool.e("L_mB0:"); ool.e(mask_ops(NMB)); ool.e("s_branch L_mB0_back")
    q.e(X2c); q.e(T)
    q.e("s_cbranch_vccnz L_pollACT\nL_pollACT_back:")
    poll_slow(ool, "L_pollACT", 27, 101)
    q.e(f"s_cmp_ge_u32 {sW}, 2\ns_cbranch_scc1 L_noA")
    e = Prog()
    e.e(sum(step(ool, "Z0"), []))
    epilogue(e, 0, gs=range(4), mems=pl[:12] + w2_both(0))
    e.e(sum(step(ool, "Z1", vmw=15 + 24), []))
    epilogue(e, 0, gs=range(4, 8), mems=pl[12:] + w2_both(1))
    errs = lint(T + e.l + Z0a, "epiA")
    assert not errs, "\n".join(errs)
    q.e(e.l)
    q.e(f"L_noA:\ns_cmp_eq_u32 {sCB}, -1\ns_cbranch_scc1 L_TF")
    ool.e("L_TF:"); issue(ool, p_dma(2) + p_dma(3) + p_dma(4)); ool.e("s_branch L_F")
    stamp(q, 10)
    q.e(step(ool, "Z0", bar=["s_barrier"] + ldA(2))[0])
    q.e("s_cbranch_scc1 L_Zx")
    for c in range(1, OPT["zc"]):
        q.e(f"s_cmp_eq_u32 {sW}, {c}\ns_cbranch_scc1 L_Z{c}")
        a, b = step(ool, "Z0", bh=2 * c)
        extra.e(f";LOOP pad\nL_Z{c}:"); extra.e(b); extra.e(sum(step(ool, "Z1", bh=2 * c), [])); extra.e(a)
        extra.e(f"s_cbranch_scc0 L_Z{c}\n;ENDLOOP\ns_branch L_Zx")
    q.e(";LOOP\nL_Z:"); q.e(Z0b); q.e(Z1); q.e(Z0a)
    q.e("s_cbranch_scc0 L_Z\n;ENDLOOP\nL_Zx:")
    stamp(q, 11)
    q.e(mask_ops(NMB)); q.e(Z0bc); q.e(Z1c)
    q.e("L_F:")
    q.e(F)
    stamp(q, 12)
    q.e(f"s_cmp_lt_u32 {sW}, 2\ns_cbranch_scc1 L_epiB")
    q.e(cbar(3))
    q.e(ldA(3))
    a, b = Prog(), Prog()
    epilogue(a, 0)
    epilogue(b, 1)
    errs = lint(F + a.l + b.l, "tail") + lint(F + b.l, "tail")
    assert not errs, "\n".join(errs)
    q.e(a.l); q.e("L_epiB:"); q.e(b.l)
    if OPT["pads"] and OPT["pad2"]:
        q.e(f"s_cmp_lt_u32 {sW}, 2\ns_cbranch_scc1 L_nopad2\ns_mov_b64 exec, 0\ns_cmp_eq_u32 {sW}, 2\ns_cbranch_scc1 L_qad1\ns_branch L_qad0")
        q.e("L_qadret:\ns_mov_b64 exec, -1\nL_nopad2:")
    q.e("s_waitcnt vmcnt(8)")
    return q


def oproj(ool):
    p = Prog()
    pre = [I("buffer_load_dword v0, v0, s[0:3], 0", tag=f"PA{f}") for f in range(28)]
    pre += [I("s_waitcnt vmcnt(0)")]
    pre += [I("buffer_load_dword v0, v0, s[0:3], 0", tag="CTXst") for _ in range(8)]
    p.e("L_P4:")
    stamp(p, 13)
    p.e(f"""
v_lshrrev_b32 v20, 2, v0
v_lshlrev_b32 v20, 7, v20
v_and_b32 v21, 3, v0
v_lshl_add_u32 v20, v21, 3, v20
v_bfe_u32 v21, v0, 3, 2
v_lshl_add_u32 v20, v21, 5, v20
s_and_b32 s6, s{sPM[0]}, 0x10000
v_add_u32 v{VP_TR[2]}, 0x20000, v20
v_add_u32 v{VP_TR[0]}, s6, v20
""")
    for cb in range(1, 4):
        p.e(f"v_xor_b32 v{VP_TR[2]+cb}, {32*cb}, v{VP_TR[2]}")
    p.e("s_barrier")

    def rd(n):
        ks, cb = divmod(n, 8)
        win, k = divmod(P_SLOT[ks // 2], 4)
        return [I(f"ds_read_b64_tr_b16 {vr(PWF+4*(n%16)+2*j,2)}, v{VP_TR[win]+cb%4} offset:{k*16384+(cb//4)*8192+(ks%2)*4096+j*2048}",
                  tag=f"PR{n//4}") for j in range(2)]
    for n in range(8):
        p.e(rd(n))
    p.wait("PR0")
    mf = []
    for ks in range(46):
        for cb in range(8):
            for rb in range(2):
                d = vr(PACC + 16 * (cb // 2) + 8 * rb + 4 * (cb % 2))
                n = 8 * ks + cb
                mf.append(I(f"{MF} {d}, {vr(PWF+4*(n%16))}, {p_areg(2*ks+rb)}, {'0' if ks == 0 else d}", needs=[f"PR{n//4}", f"PA{2*ks+rb}"]))
    NH = len(mf)
    g = Half(mf)
    for n in range(8, NH // 2):
        g.mem[2 * (n - 8)] += rd(n)
    for h in range(8, NH, 8):
        tags = [f"PR{h//8}"] + ([f"PA{h//8+1}"] if h % 16 == 0 else [])
        g.sh[h - 1].append(WAIT(*tags))
    for b in range(2, PSLAB, 2):
        tags = [f"PW{s}" for s in (b, b + 1) if 6 <= s < PSLAB]
        if tags:
            g.sh[32 * b - 20].append(WAIT(*tags))
        g.sh[32 * b - 19].append("s_barrier")

    def slot(h):
        h |= 1
        while g.cost(h):
            h += 2
        return h
    g.fill([f"v_xor_b32 v{VP_TR[0]+cb}, {32*cb}, v{VP_TR[0]}" for cb in range(1, 4)] +
           [f"v_xor_b32 v{VP_TR[1]+cb}, 0x10000, v{VP_TR[0]+cb}" for cb in range(4)] +
           ["v_and_b32 v27, 7, v0", "v_lshlrev_b32 v27, 2, v27"], (1, 3, 7, 9, 13))
    wstart = {6: 5, 7: 29, 8: 53, 9: 77, 10: 117, 11: 141}
    for s in range(12, PSLAB):
        wstart[s] = 191 + (s - 12) * 40
    lo = -1
    for s in range(6, PSLAB):
        if s >= 10:
            assert wstart[s] > 32 * (s - 8 + s % 2) - 19, s
        for i, (pr, ins) in enumerate(p_dma(s)):
            h = slot(wstart[s] + i * (6 if s < 12 else 10))
            if pr:
                g.before(pr, h, lo + 1)
            g.mem[h].append(ins)
            lo = h
        assert lo < 32 * (s - s % 2) - 40, s
    assert g.after(flag_addr("ctxA", 64) + flag_addr("ctxB", 65) +
                   ["s_and_b32 s66, s2, 1", "s_lshl_b32 s66, s66, 5", "s_add_u32 s66, s66, s48", "s_lshl_b32 s66, s66, 2",
                    "s_lshr_b32 s67, s2, 1", "s_and_b32 s67, s67, 3", "s_add_u32 s66, s66, s67", "s_lshl_b32 s66, s66, 7",
                    f"s_add_u32 s66, s66, {CTXF}"], 6) < 56
    g.sh[60].append(WAIT("CTXst"))
    g.mem[slot(61)].append(flag_store(vOne, 64))
    g.mem[slot(61)].append(flag_store(vOne, 65))
    g.mem[slot(120)].append(poll_req(27, 66, "pollCTX"))
    g.sh[163].append(WAIT("pollCTX"))
    g.val[163].append(I(f"v_cmp_ne_u32 vcc, 1, v{vPoll}", needs=["pollCTX"]))
    g.sh[165] += ["s_cbranch_vccnz L_pollCTX", "L_pollCTX_back:"]
    poll_slow(ool, "L_pollCTX", 27, 66)
    lo = 166
    for n, (pr, ins) in enumerate(p_aload(28, 92)):
        h = slot(max(lo + 1, 8 * (28 + n) - 88))
        if pr:
            g.before(pr, h, lo + 1)
        g.mem[h].append(ins)
        lo = h
    g.fill(["v_and_b32 v20, 15, v0", "v_lshrrev_b32 v21, 4, v0", "v_lshlrev_b32 v20, 10, v20", "v_lshl_add_u32 v22, v21, 3, v20",
            "v_lshrrev_b32 v21, 5, v0", "v_lshl_add_u32 v23, v21, 4, v20", "v_bfe_u32 v21, v0, 4, 1", "v_lshl_add_u32 v23, v21, 5, v23",
            "v_and_b32 v27, 3, v0", "v_lshlrev_b32 v27, 2, v27"], range(600, 640))
    ex = ["s_and_b32 s68, s2, 1", "s_lshl_b32 s68, s68, 5", "s_add_u32 s68, s68, s48", "s_lshl_b32 s68, s68, 15",
          "s_lshr_b32 s7, s2, 6", "s_lshl_b32 s6, s7, 8", "s_add_u32 s68, s68, s6", "s_lshl_b32 s6, s67, 6", "s_add_u32 s68, s68, s6",
          "s_add_u32 s69, s68, 0x4000"]
    if not OPT["sent"]:
        ex += ["s_mov_b32 s71, s67"] + ex_addr()
    ex += ["s_and_b32 s77, s27, 0xffffff80"]
    assert g.after(ex, 500) < 640
    if OPT["sent"]:
        g.mem[slot(642)].append(poll_req(27, 77, "pollEX"))
        g.sh[701].append(WAIT("pollEX"))
        g.val[701].append(I(f"v_cmp_ne_u32 vcc, 1, v{vPoll}", needs=["pollEX"]))
        g.sh[705] += ["s_cbranch_vccnz L_pollEX", "L_pollEX_back:"]
        poll_slow(ool, "L_pollEX", 27, 77)
    for a in range(4):
        g.mem[slot(656 + 8 * a)].append(I(f"buffer_load_dwordx2 {vr(PX+2*a,2)}, v22, {srd(SRD_X)}, s{68+a//2} offen offset:{32*(a%2)}", tag="xres"))
    if OPT["stamp"]:
        q = Prog(); stamp(q, 14); g.post[162] += q.l
        q = Prog(); stamp(q, 15); g.post[166] += q.l
        q = Prog(); stamp(q, 16); g.post[223] += q.l
    p.e(g.emit())
    stamp(p, 17)
    for i in range(3):
        b = PACC + 16 * i
        for t in range(2):
            for c in range(4 * t, 4 * t + 4):
                p.e(f"v_cvt_pk_bf16_f32 v{b+c}, v{b+2*c}, v{b+2*c+1}")
            if OPT["sent"]:
                for c in range(4 * t, 4 * t + 4):
                    p.e(f"v_min_u32 v{b+c}, -2, v{b+c}")
            p.e(I(f"buffer_store_dwordx4 {vr(b+4*t)}, {vL16}, {srd(SRD_WS)}, s{72+i} offen offset:{t*1024} sc1", tag="EXst"))
    b = PACC + 48

    def addbf(src):
        for c in range(8):
            p.e(f"v_lshlrev_b32 v20, 16, v{src+c}")
            p.e(f"v_and_b32 v21, 0xffff0000, v{src+c}")
            p.e(f"v_pk_add_f32 {vr(b+2*c,2)}, {vr(b+2*c,2)}, v[20:21]")
    exld = [I(f"buffer_load_dwordx4 {vr(PR+8*i+4*t)}, {vL16}, {srd(SRD_WS)}, s{24+i} offen offset:{t*1024} sc1", tag=f"EXr{i}")
            for i in range(3) for t in range(2)]
    if OPT["sent"]:
        p.e(exld)
        p.wait("xres")
        addbf(PX)
        stamp(p, 18)
        p.e("s_mov_b32 s96, 0x40000\nL_rx:\ns_waitcnt vmcnt(0)")
        p.e(f"v_max_u32 v20, v{PR}, v{PR+1}")
        for r in range(2, 24, 2):
            p.e(f"v_max3_u32 v20, v20, v{PR+r}, v{PR+r+1}")
        p.e("v_cmp_eq_u32 vcc, -1, v20\ns_sub_u32 s96, s96, 1\ns_cbranch_vccnz L_rx_again\nL_rx_done:")
        ool.e("L_rx_again:\ns_cbranch_scc1 L_rx_done\ns_sleep 1")
        ool.e([I(x.text) for x in exld])
        ool.e("s_branch L_rx")
        stamp(p, 19)
        for i in range(3):
            addbf(PR + 8 * i)
    else:
        p.wait("xres")
        addbf(PX)
        p.wait("EXst")
        p.e(flag_store(vOne, 27))
        stamp(p, 18)
        p.e(f"""
s_mov_b32 s96, 0x40000
L_pollEX:
buffer_load_dword v{vPoll}, v27, {srd(SRD_WS)}, s77 offen sc1
s_waitcnt vmcnt(0)
v_cmp_ne_u32 vcc, 1, v{vPoll}
s_sub_u32 s96, s96, 1
s_cbranch_scc1 L_pollEX_done
s_cbranch_vccnz L_pollEX
L_pollEX_done:
""")
        stamp(p, 19)
        p.e(exld)
        for i in range(3):
            p.wait(f"EXr{i}")
            addbf(PR + 8 * i)
    for c in range(8):
        p.e(f"v_cvt_pk_bf16_f32 v{b+c}, v{b+2*c}, v{b+2*c+1}")
    p.e("s_nop 1")
    for t in range(2):
        p.e(f"v_permlane16_swap_b32 v{b+4*t}, v{b+4*t+2}")
        p.e(f"v_permlane16_swap_b32 v{b+4*t+1}, v{b+4*t+3}")
    for t in range(2):
        p.e(f"buffer_store_dwordx4 {vr(b+4*t)}, v23, {srd(SRD_OUT)}, s{68+t} offen")
    stamp(p, 20)
    rstamp(p, 61)
    stamp_flush(p)
    p.e("L_end:\ns_endpgm")
    l = resolve_waits(pre + p.l)[len(pre):]
    errs = lint(l, "oproj")
    assert not errs, "\n".join(errs)
    if OPT["sim"]:
        t, gp = simulate(l)
        print("oproj", t, sum(gp))
    return l


def kernel():
    p, ool = Prog(), Prog()
    setup(p)
    if OPT["stamp"]:
        p.e("v_mov_b32 v31, 0")
    rstamp(p, 60)
    stamp(p)
    projections(p, ool)
    head = resolve_waits(p.l)
    errs = lint(head, "head")
    assert not errs, "\n".join(errs)
    if OPT["sim"]:
        t, gp = simulate(head)
        print("head", t, [sum(gp[a:b]) for a, b in ((0, 512), (512, 768), (768, 1024), (1024, 1280), (1280, 1536), (1536, 1791), (1791, 1900))])
    extra = Prog()
    l = head + attention(ool, extra).l + oproj(ool) + [I(";PADHERE")] + ool.l + extra.l + [I("L_hot_end:")]
    l = layout(l)
    for q in RARE.values():
        l += q.l
    return text_of(l)


def sizes(l):
    import subprocess, tempfile, os
    txt = '.amdgcn_target "amdgcn-amd-amdhsa--gfx950"\n.text\n' + text_of(l) + "".join(text_of(q.l) for q in RARE.values())
    txt += "L_pad0:\nL_pad1:\nL_pad2:\nL_pad3:\nL_qad0:\nL_qad1:\ns_endpgm\n"
    d = tempfile.mkdtemp()
    open(d + "/a.s", "w").write(txt)
    subprocess.run(["clang", "-x", "assembler", "-target", "amdgcn-amd-amdhsa", "-mcpu=gfx950", "-c", d + "/a.s", "-o", d + "/a.o"], check=True)
    out = subprocess.run(["llvm-objdump", "-d", "--mcpu=gfx950", d + "/a.o"], capture_output=True, text=True, check=True).stdout
    sz = [4 * len(re.findall(r"\b[0-9A-F]{8}\b", ln.split("//")[1].split(":")[1])) for ln in out.splitlines() if "//" in ln]
    it = iter(sz)
    return [0 if x.kind == "meta" else next(it) for x in l]


def layout(l):
    sz = sizes(l)
    out, pads, qads = [], [], []
    stage2 = False
    off = None
    need = False

    def pad():
        nonlocal off
        if OPT["pads"]:
            lst, nm = (qads, "qad") if stage2 else (pads, "pad")
            out.append(I(f"L_{nm}{len(lst)}:"))
            out.append(I("s_cbranch_execz PADNEXT"))
            lst.append(out[-1])
            off += 4
    for i, x in enumerate(l):
        if x.text == ";PAGE":
            out += [I("s_branch L_main"), I(".p2align 12"), I("L_main:")]
            off = 0
            pad()
            continue
        if x.text in ("L_P4:", "L_end:"):
            stage2 = OPT["pad2"] and x.text == "L_P4:"
        if x.text == ";PADHERE":
            pad()
            continue
        if x.text.startswith(";LOOP"):
            j = next(k for k in range(i, len(l)) if l[k].text == ";ENDLOOP")
            n = sum(sz[i:j])
            st = -(-off // 32) * 32
            if x.text == ";LOOP pad":
                o64 = -(-off // 64) * 64
                if o64 // 4096 != (o64 + 32 + n - 1) // 4096:
                    out.append(I(".p2align 12"))
                    o64 = -(-off // 4096) * 4096
                out.append(I(".p2align 6"))
                off, need = o64, False
                pad()
                out.append(I(".p2align 5"))
                off = -(-off // 32) * 32
                continue
            if need or st // 4096 != (st + n - 1) // 4096 or st // 4096 != (off - 1) // 4096:
                out.append(I(f"s_branch {l[i+1].text[:-1]}"))
                off += 4
                if not need:
                    out.append(I(".p2align 12"))
                    off = -(-off // 4096) * 4096
                need = False
                pad()
                st = -(-off // 32) * 32
            out.append(I(".p2align 5"))
            off = st
            continue
        out.append(x)
        if off is None:
            continue
        o0, off = off, off + sz[i]
        if o0 // 4096 != off // 4096:
            need = True
        if need and x.kind != "meta":
            nx = next(y for y in l[i + 1:] if y.kind != "meta")
            good = x.text.startswith("v_mfma") and not nx.text.startswith("s_")
            if good or off % 4096 >= 40:
                need = False
                pad()
    for k, x in enumerate(pads):
        x.text = "s_cbranch_execz " + (f"L_pad{k+4}" if k + 4 < len(pads) else "L_padret")
    for k, x in enumerate(qads):
        x.text = "s_cbranch_execz " + (f"L_qad{k+2}" if k + 2 < len(qads) else "L_qadret")
    if OPT["sim"]:
        print("code bytes after anchor", off, "pads", len(pads), len(qads))
    return out


def main():
    k = kernel()
    s = f"""; layernorm + K/V/Q/MLP projections + causal attention + output projection in one launch (generated by gen/gen3.py)
; @launch grid=(256,1,1) block=(256,1,1) lds=163840
.amdgcn_target "amdgcn-amd-amdhsa--gfx950"
.text
.globl {NAME}_kernel
.p2align 12
.p2align 8
.type {NAME}_kernel,@function
{NAME}_kernel:
{k}
.section .rodata,"a"
.p2align 6
.amdhsa_kernel {NAME}_kernel
  .amdhsa_next_free_vgpr 512
  .amdhsa_next_free_sgpr 102
  .amdhsa_accum_offset 256
  .amdhsa_group_segment_fixed_size 0
  .amdhsa_kernarg_size 104
  .amdhsa_user_sgpr_count 2
  .amdhsa_user_sgpr_kernarg_segment_ptr 1
  .amdhsa_system_sgpr_workgroup_id_x 1
.end_amdhsa_kernel
"""
    open(sys.argv[1], "w").write(s)


main()
```

```python
import sys, struct, re
from asmlib import *

NAME = "parallel_sum__compressed_kv_cla__dense_activation_mish__prompt"
OPT = dict(stamp=0, thr=40, rot=7, nt=0, xnt=0, deep=1, cpf=1, wopf=1, sim=0, barh=0, pads=1, wqt=300, w2t=0, zc=4, sent=0, p2rot=7, xnsc=1, kvpad=0, xnpad=0, xnrt=0, sigp=4, dbgno=0, n0=6, pad2=0, lnh=90, ordp=1, orda=1, ones4=1, bko=0, exo=0, pk=4, pkc=0, ctxa=1, peel=1, bar2=1, slph=-2, slpn=8, slpj=0, kvst=0, wsoff=0, cpf2=1, padat=-1, padus=0)
for a in sys.argv[2:]:
    k, v = a.split("=")
    assert k in OPT, k
    OPT[k] = int(v)


def f2u(x):
    return struct.unpack("<I", struct.pack("<f", x))[0]


KVFL = ("", "sc1", "nt", "sc1 nt")[OPT["kvst"]]
MF = "v_mfma_f32_16x16x32_bf16"
MF32 = "v_mfma_f32_32x32x16_bf16"
XN_OFF = 0
KV_OFF = 72 << 20 if OPT['kvpad'] or OPT['xnpad'] else 2 << 20
KV_HS = (1 << 20) + OPT['kvpad']
XN_RS = 32768 + OPT['xnpad']
AF_OFF = 34 << 20
AF_KS = 368
FL_OFF = 58 << 20
CTXF, EXF, KVF = FL_OFF, FL_OFF + 32768, FL_OFF + 65536
ST_OFF = 60 << 20
EX_OFF = 64 << 20
WS_BYTES = 268435456 - (OPT['wsoff'] << 20)

sW, sH, sJ = "s3", "s4", "s5"
SRD_CKV, SRD_WUK, SRD_WUV, SRD_W1, SRD_WQ, SRD_WS, SRD_X, SRD_B1, SRD_DBG, SRD_ACT = (
    8, 12, 16, 20, 24, 28, 32, 36, 40, 44)
SRD_W2, SRD_WO, SRD_OUT, SRD_KV = 8, 12, 16, 36


def srd(n):
    return f"s[{n}:{n+3}]"


def vr(b, n=4):
    return f"v[{b}:{b+n-1}]"


def ar(b, n=4):
    return f"a[{b}:{b+n-1}]"


vL16 = "v1"
VA_DMA, VW_DMA, VW1_DMA, VTR, VA_RD = 2, 6, 10, 14, 18
WF, TP, ACC0, ACC1, BIAS = 32, 64, 96, 160, 224
LDS_A = 98304
vOne, vPoll, vDummy = 28, 29, 30
S0, S1, EX, P0, P1, NMA, NMB, ONES = 192, 208, 128, 144, 152, 96, 112, 228
OA, OB, KF, VF = 0, 64, 128, 160
vR0, vR1, vMask, vChk, vBit, vNinf = 2, 3, 4, 5, 6, 7
sKa, sKb, sM, sCA, sCB = "s52", "s53", "s54", "s55", "s56"
MASKS = 64
SHIFT = float(OPT["thr"])
VP_DMA = 10
VP_TR = (200, 204, 208)
sPA, sPC, sPW2, sPWO, sPM = 57, 58, 59, 60, (61, 62, 63)
PWF, PACC, PX, PR = 64, 128, 192, 200


def mk_srd(n, lo, nbytes):
    return [f"s_mov_b32 s{n}, s{lo}", f"s_and_b32 s{n+1}, s{lo+1}, 0xffff",
            f"s_mov_b32 s{n+2}, {nbytes}", f"s_mov_b32 s{n+3}, 0x20000"]


stamp_n = [0]


pad_n = [0]


def stamp(p, idx=None):
    if OPT["padat"] >= 0:
        if idx is None:
            idx = stamp_n[0]
            stamp_n[0] += 1
        if idx == OPT["padat"]:
            n = pad_n[0]
            pad_n[0] += 1
            p.e(f"""v_readfirstlane_b32 s96, v31
L_spin{n}:
s_memrealtime s[98:99]
s_waitcnt lgkmcnt(0)
s_sub_u32 s98, s98, s96
s_cmp_lt_u32 s98, {OPT["padus"]*100}
s_cbranch_scc1 L_spin{n}""")
        return
    if OPT["stamp"] in (0, 3):
        return
    if idx is None:
        idx = stamp_n[0]
        stamp_n[0] += 1
    p.e(f"s_memtime s[98:99]")
    p.e("s_waitcnt lgkmcnt(0)")
    p.e(f"v_writelane_b32 v31, s98, {idx}")


def rstamp(p, lane):
    if not OPT["stamp"]:
        return
    p.e(f"s_memrealtime s[98:99]")
    p.e("s_waitcnt lgkmcnt(0)")
    p.e(f"v_writelane_b32 v31, s98, {lane}")


def stamp_flush(p):
    if not OPT["stamp"]:
        return
    p.e("s_lshl_b32 s98, s2, 2")
    p.e(f"s_add_u32 s98, s98, {sW}")
    p.e("s_lshl_b32 s98, s98, 8")
    p.e(f"s_add_u32 s98, s98, {ST_OFF}")
    p.e(f"v_lshrrev_b32 v30, 2, {vL16}")
    p.e(f"buffer_store_dword v31, v30, {srd(SRD_WS)}, s98 offen")


def setup(p):
    p.e(f"""
s_cmp_ge_u32 s2, 256
s_cbranch_scc1 L_end
""")
    if OPT["padat"] >= 0:
        p.e("s_memrealtime s[98:99]\ns_waitcnt lgkmcnt(0)\nv_mov_b32 v31, s98")
    p.e(f"""
s_load_dwordx16 s[48:63], s[0:1], 0
s_load_dwordx8 s[64:71], s[0:1], 64
s_load_dwordx2 s[72:73], s[0:1], 96
v_lshrrev_b32 v20, 6, v0
v_and_b32 v0, 63, v0
v_readfirstlane_b32 {sW}, v20
v_lshlrev_b32 {vL16}, 4, v0
s_and_b32 s6, s2, 7
s_lshr_b32 s7, s2, 6
s_lshl_b32 s7, s7, 3
s_add_u32 {sH}, s6, s7
s_lshr_b32 {sJ}, s2, 3
s_and_b32 {sJ}, {sJ}, 7
""")
    if OPT["cpf"]:
        p.e(f"""
s_getpc_b64 s[96:97]
L_pc:
s_lshr_b32 s6, s2, 3
s_mul_i32 s6, s6, 3072
v_min_u32 v20, 23, v0
v_lshl_add_u32 v20, v20, 7, s6
v_min_u32 v20, L_hot_end-L_pc, v20
s_cmp_lg_u32 {sW}, 0
s_cbranch_scc1 L_nocpf
global_load_dword v{vDummy}, v20, s[96:97]
L_nocpf:
""")
        p.l[-2].kind = "op"
    p.e(f"""
v_lshrrev_b32 v20, 3, v0
v_and_b32 v21, 7, v0
v_lshrrev_b32 v22, 4, v0
v_xor_b32 v23, v21, v22
v_lshlrev_b32 v23, 4, v23
v_lshl_add_u32 v{VA_DMA}, v20, 10, v23
v_xor_b32 v24, 64, v{VA_DMA}
v_add_u32 v{VA_DMA+1}, {7*1024}, v24
v_add_u32 v{VA_DMA+2}, {14*1024}, v{VA_DMA}
v_add_u32 v{VA_DMA+3}, {21*1024}, v24
v_and_b32 v22, 1, v22
v_lshlrev_b32 v22, 1, v22
v_xor_b32 v23, v21, v22
v_lshlrev_b32 v23, 4, v23
v_xor_b32 v25, 64, v23
v_lshl_add_u32 v{VW_DMA}, v20, 13, v23
v_lshl_add_u32 v{VW_DMA+1}, v20, 13, v25
v_mul_u32_u24 v24, 3584, v20
v_add_u32 v{VW1_DMA}, v24, v23
v_add_u32 v{VW1_DMA+1}, v24, v25
""")
    for b, pitch in ((VW_DMA, 8192), (VW1_DMA, 3584)):
        d = 8 * pitch - 1024
        p.e(f"v_add_u32 v{b+2}, {2*d}, v{b}\nv_add_u32 v{b+3}, {3*d}, v{b+1}\nv_add_u32 v{b+1}, {d}, v{b+1}")
    p.e(f"""
v_lshrrev_b32 v20, 4, v0
v_lshlrev_b32 v20, 3, v20
v_bfe_u32 v21, v0, 2, 2
v_add_u32 v20, v20, v21
v_lshlrev_b32 v20, 7, v20
v_and_b32 v21, 3, v0
v_lshl_add_u32 v20, v21, 3, v20
v_bfe_u32 v21, v0, 3, 2
v_lshl_add_u32 v{VTR}, v21, 5, v20
""")
    for cb in range(1, 4):
        p.e(f"v_xor_b32 v{VTR+cb}, {32*cb}, v{VTR}")
    p.e(f"""
s_lshl_b32 s6, {sW}, 13
s_add_u32 s74, s6, {LDS_A}
v_and_b32 v20, 15, v0
v_lshlrev_b32 v20, 7, v20
v_add_u32 v20, s74, v20
v_bfe_u32 v21, v0, 1, 3
v_lshrrev_b32 v22, 4, v0
v_xor_b32 v21, v21, v22
v_lshl_add_u32 v{VA_RD}, v21, 4, v20
v_xor_b32 v{VA_RD+1}, 64, v{VA_RD}
""")
    p.e(f"""
s_lshl_b32 s75, {sJ}, 2
s_add_u32 s75, s75, {sW}
s_lshl_b32 s75, s75, 16
s_lshl_b32 s76, {sH}, 8
s_lshl_b32 s77, {sW}, 12
s_lshr_b32 s6, {sW}, 1
s_lshl_b32 s6, s6, 7
s_and_b32 s7, {sW}, 1
s_lshl_b32 s7, s7, 18
s_add_u32 s78, s76, s6
s_add_u32 s78, s78, s7
s_add_u32 s79, {sJ}, {sH}
s_and_b32 s79, s79, {OPT["rot"]}
s_lshl_b32 s100, s79, 19
s_lshl_b32 s101, s79, 7
v_and_b32 v20, 7, v0
v_lshrrev_b32 v21, 3, v0
v_lshlrev_b32 v21, 4, v21
v_lshl_add_u32 v20, v20, 10, v21
s_lshl_b32 s6, s2, 13
s_lshl_b32 s7, {sW}, 8
s_add_u32 s6, s6, s7
s_waitcnt lgkmcnt(0)
""")
    if OPT["wsoff"]:
        p.e(f"s_add_u32 s72, s72, {OPT['wsoff'] << 20}\ns_addc_u32 s73, s73, 0")


def a_dma(q):
    out = []
    for rb in range(2):
        for u in range(4):
            pre = []
            if u == 0 and rb == 0:
                pre = [f"s_add_u32 m0, s74, {(q%2)*32768}", f"s_add_u32 s80, s101, {q*128}",
                       "s_and_b32 s80, s80, 0x3ff", "s_add_u32 s80, s80, s75"]
            if u == 0 and rb == 1:
                pre = [f"s_add_u32 m0, s74, {(q%2)*32768 + 4096}", "s_add_u32 s80, s80, 32768"]
            out.append((pre, I(f"buffer_load_dwordx4 v{VA_DMA+u}, {srd(SRD_CKV)}, s80 offen offset:{u*1024} lds", tag=f"A{q}")))
    return out


def res(rb, ks):
    return ar(((rb // 2) * 32 + 2 * ks + rb % 2) * 4)


def a_reads(q):
    out = []
    for s in range(2):
        for rb in range(4):
            out.append(I(f"ds_read_b128 {res(rb, 2*q+s)}, v{VA_RD+s} offset:{(q%2)*32768 + rb*2048}",
                         tag=f"Ar{q}", needs=[f"A{q}"]))
    return out


CHUNKS = [("Vlo", SRD_WUV, 0), ("Vhi", SRD_WUV, 128), ("H", SRD_W1, 0), ("Qlo", SRD_WQ, 0), ("Qhi", SRD_WQ, 128)]
NSLAB = 28
if OPT["deep"]:
    W_ISSUE = [-1, -1, 0, 1, 2, 3, 4, 5, 6, 6, 6, 7, 7, 7, 8, 8, 9, 9, 10, 11, 17, 19, 20, 20, 21, 21, 22, 22]
else:
    W_ISSUE = [-1, -1] + list(range(26))
W_SLOT = []
NOBAR = (13, 14, 15, 16, 18, 23, 26) if OPT["bar2"] else ()
_free_at = [-1] * 6 + [7, 7, 8, 8]
for _s in range(NSLAB):
    assert W_ISSUE[_s] <= max(_s - 2, -1)
    _c = [k for k in range(10) if _free_at[k] <= W_ISSUE[_s] and (_s < 24 or k >= 6) and (not 20 <= _s < 24 or k < 6)]
    _k = min(_c, key=lambda k: (_free_at[k], k))
    W_SLOT.append(_k)
    _free_at[_k] = _s + 2
WNT = " nt" if OPT["nt"] else ""
XNT = " nt" if OPT["xnt"] else ""


def w_dma(pslab):
    out = []
    slot = W_SLOT[pslab] * 16384
    if pslab < 8:
        sr, va = SRD_WUK, VW_DMA
        so = [f"s_add_u32 s81, s100, {pslab<<19}", "s_and_b32 s81, s81, 0x3fffff", "s_add_u32 s81, s81, s78"]
    else:
        c, i = divmod(pslab - 8, 4)
        nm, sr, col = CHUNKS[c]
        if nm == "H":
            va = VW1_DMA
            so = [f"s_mov_b32 s81, s{52+i}"]
        else:
            va = VW_DMA
            so = [f"s_add_u32 s81, s{60+i}, {col}"]
    for u in range(4):
        pre = [f"s_add_u32 m0, s77, {slot}"] + so if u == 0 else []
        out.append((pre, I(f"buffer_load_dwordx4 v{va+u}, {srd(sr)}, s81 offen offset:{u*1024}{' nt' if (OPT['nt'] >> pslab) & 1 else ''} lds", tag=f"W{pslab}")))
    return out


def w_read(n, j):
    slot = (W_SLOT[n // 16] * 16384) % 65536
    kk, cb = n % 2, (n // 2) % (8 if n < 128 else 4)
    if n < 128:
        off = slot + (cb // 4) * 8192 + kk * 4096 + j * 512
    else:
        off = slot + (2 * ((n // 8) % 2) + kk) * 4096 + j * 512
    return I(f"ds_read_b64_tr_b16 {vr(WF + 4*(n%8) + 2*j, 2)}, v{VTR + cb % 4} offset:{off}", tag=f"Wr{n//2}")


def walk(cb, nrb):
    out = []
    for pos in range(nrb):
        rb = nrb - 1 - pos if cb % 2 else pos
        for i in range(2):
            out.append((rb, i ^ (pos % 2), i == 0))
    if not OPT["ordp"]:
        out = [(rb, kk, kk == 0) for kk in range(2) for rb in range(nrb)]
    return out


LX, LU, LT = 224, 232, 76
LN_LDS = 5 * 16384


def layernorm(p):
    t, mean, var = LT, f"v{LT+4}", f"v{LT+5}"
    p.wait("X")
    for i in range(8):
        p.e(f"v_and_b32 v{LU+1+2*i}, 0xffff0000, v{LX+i}")
        p.e(f"v_lshlrev_b32 v{LU+2*i}, 16, v{LX+i}")

    def reduce(v, slot):
        p.e(f"""
s_nop 1
v_add_f32_dpp {v}, {v}, {v} row_ror:8 row_mask:0xf bank_mask:0xf
v_mov_b32 v{t}, {v}
s_nop 1
v_permlane16_swap_b32 {v}, v{t}
v_add_f32 {v}, {v}, v{t}
v_mov_b32 v{t}, {v}
s_nop 1
v_permlane32_swap_b32 {v}, v{t}
v_add_f32 {v}, {v}, v{t}
""")
        p.e(I(f"ds_write_b32 v22, {v} offset:{slot*128}", tag=f"lnw{slot}"))
        p.wait(f"lnw{slot}")
        p.e("s_barrier")
        p.e(I(f"ds_read_b128 {vr(t)}, v21 offset:{slot*128}", tag=f"lnr{slot}"))
        p.wait(f"lnr{slot}")
        p.e(f"""
v_add_f32 v{t}, v{t}, v{t+1}
v_add_f32 v{t+2}, v{t+2}, v{t+3}
v_add_f32 {v}, v{t}, v{t+2}
v_mul_f32 {v}, 0x{f2u(1/512):x}, {v}
""")

    p.e(f"v_add_f32 {mean}, v{LU}, v{LU+1}")
    for i in range(2, 16):
        p.e(f"v_add_f32 {mean}, {mean}, v{LU+i}")
    reduce(mean, 0)
    p.e(f"v_sub_f32 v{t}, v{LU}, {mean}")
    p.e(f"v_mul_f32 {var}, v{t}, v{t}")
    for i in range(1, 16):
        p.e(f"v_sub_f32 v{t}, v{LU+i}, {mean}")
        p.e(f"v_fmac_f32 {var}, v{t}, v{t}")
    reduce(var, 1)
    tail = f"""
v_cvt_pk_bf16_f32 v{t}, {mean}, {var}
v_lshlrev_b32 {mean}, 16, v{t}
v_and_b32 {var}, 0xffff0000, v{t}
v_add_f32 {var}, 0x{f2u(1e-5):x}, {var}
v_cvt_pk_bf16_f32 v{t}, {var}, {var}
v_lshlrev_b32 {var}, 16, v{t}
v_sqrt_f32 {var}, {var}
v_sub_f32 v{LU}, v{LU}, {mean}
v_cvt_pk_bf16_f32 v{t}, {var}, {var}
v_lshlrev_b32 {var}, 16, v{t}
v_rcp_f32 {var}, {var}
""".strip().split("\n")
    for i in range(1, 16):
        tail.append(f"v_sub_f32 v{LU+i}, v{LU+i}, {mean}")
    for i in range(8):
        tail += [f"v_cvt_pk_bf16_f32 v{t}, v{LU+2*i}, v{LU+1+2*i}", f"v_lshlrev_b32 v{t+1}, 16, v{t}", f"v_and_b32 v{t+2}, 0xffff0000, v{t}",
                 f"v_mul_f32 v{t+1}, v{t+1}, {var}", f"v_mul_f32 v{t+2}, v{t+2}, {var}", f"v_cvt_pk_bf16_f32 v{64+i}, v{t+1}, v{t+2}"]
    return tail


def flag_addr(kind, dst):
    d = f"s{dst}"
    if kind in ("ctxA", "ctxB"):
        rb = "s48" if kind == "ctxA" else "s49"
        return [f"s_lshl_b32 {d}, {rb}, 2", f"s_lshr_b32 s7, {sH}, 3", f"s_add_u32 {d}, {d}, s7", f"s_lshl_b32 {d}, {d}, 5",
                f"s_and_b32 s7, {sH}, 7", f"s_add_u32 {d}, {d}, s7", f"s_lshl_b32 {d}, {d}, 2", f"s_add_u32 {d}, {d}, {CTXF}"]
    if kind in ("actA", "actB"):
        rb = "s48" if kind == "actA" else "s49"
        return [f"s_mul_i32 s7, {sH}, 37", "s_lshr_b32 s7, s7, 8", "s_mul_i32 s7, s7, 25", f"s_lshl_b32 {d}, {rb}, 7", f"s_add_u32 {d}, {d}, s7",
                f"s_add_u32 {d}, {d}, {sH}", f"s_lshl_b32 {d}, {d}, 2", f"s_add_u32 {d}, {d}, {CTXF + 32}"]
    if kind == "kv":
        return [f"s_lshl_b32 {d}, {sH}, 5", f"s_add_u32 {d}, {d}, s48", f"s_lshl_b32 {d}, {d}, 2", f"s_add_u32 {d}, {d}, {KVF}"]
    if kind == "ex":
        return [f"s_and_b32 {d}, s2, 1", f"s_lshl_b32 {d}, {d}, 3", f"s_add_u32 {d}, {d}, {sJ}", f"s_lshl_b32 {d}, {d}, 2",
                "s_lshr_b32 s7, s2, 6", f"s_add_u32 {d}, {d}, s7", f"s_lshl_b32 {d}, {d}, 2", f"s_add_u32 {d}, {d}, {sW}",
                f"s_lshl_b32 {d}, {d}, 7", "s_and_b32 s7, s2, 6", "s_lshl_b32 s7, s7, 1", f"s_add_u32 {d}, {d}, s7",
                f"s_add_u32 {d}, {d}, {EXF}"]
    raise Exception(kind)


def flag_store(val, s, tag=None, sr=SRD_WS):
    return I(f"buffer_store_dword v{val}, off, {srd(sr)}, s{s} sc1", tag=tag)


def poll_req(vidx, s, tag):
    return I(f"buffer_load_dword v{vPoll}, v{vidx}, {srd(SRD_WS)}, s{s} offen sc1", tag=tag)


def spin_ld(vidx, s, k):
    if k == 2:
        return f"v_mov_b32 v{vPoll}, 0\nbuffer_atomic_or v{vPoll}, v{vidx}, {srd(SRD_WS)}, s{s} offen sc0"
    return f"buffer_load_dword v{vPoll}, v{vidx}, {srd(SRD_WS)}, s{s} offen " + ("sc1", "sc1 nt", "", "sc0 sc1")[k]


def poll_slow(out, label, vidx, s, cmp="v_cmp_ne_u32 vcc, 1"):
    out.e(f"""
{label}:
s_mov_b32 s96, 0x40000
{label}_l:
{"s_sleep %d" % OPT["bko"] if OPT["bko"] else ""}
{spin_ld(vidx, s, OPT["pkc"])}
s_waitcnt vmcnt(0)
{cmp}, v{vPoll}
s_sub_u32 s96, s96, 1
s_cbranch_scc1 {label}_back
s_cbranch_vccnz {label}_l
s_branch {label}_back
""")


def grp(buf, i):
    if buf == 2:
        return TP + 8 * i if i < 4 else BIAS + 8 * (i - 4)
    return buf + 8 * i


def acc(buf, vtype, cb, rb):
    if vtype:
        return grp(buf, (rb // 2) * 4 + cb) + 4 * (rb % 2)
    return grp(buf, (cb // 2) * 4 + rb) + 4 * (cb % 2)


def issue(p, lst):
    for pre, ins in lst:
        p.e(pre)
        p.e(ins)


def place(g, lst, h0, step, lo):
    prev = lo
    for i, (pre, ins) in enumerate(lst):
        h = h0 + i * step
        assert h > prev
        if pre:
            g.before(pre, h, prev + 1)
        g.mem[h].append(ins)
        prev = h
    return prev


def kv_dma(n):
    out = []
    for u in range(4):
        pre = [f"s_sub_u32 m0, s{sPM[2]}, {0x20000 - n*16384}", f"s_mov_b32 s97, {n*16384}"] if u == 0 else []
        out.append((pre, I(f"buffer_load_dwordx4 {vL16}, {srd(SRD_KV)}, s97 offen offset:{u*1024} sc1 lds", tag=f"KV{n}")))
    return out


PSLAB = 23
P_SLOT = [8, 9, 0, 1, 2, 3, 4, 5, 6, 7]
P_SLOT = [P_SLOT[s % 10] for s in range(PSLAB)]


def p_dma(s):
    win, k = divmod(P_SLOT[s], 4)
    sr, so = (SRD_W2, f"s_add_u32 s97, s{sPW2}, {s*65536}") if s < 7 else (SRD_WO, f"s_add_u32 s97, s{sPWO}, {(s-7)*65536}")
    out = []
    for u in range(4):
        pre = [f"s_add_u32 m0, s{sPM[win]}, {k*16384}", so] if u == 0 else []
        out.append((pre, I(f"buffer_load_dwordx4 v{VP_DMA+u}, {srd(sr)}, s97 offen offset:{u*1024} lds", tag=f"PW{s}")))
    return out


def p_areg(ks):
    if 16 <= ks < 24:
        return vr(32 + 4 * (ks - 16))
    if 24 <= ks < 28:
        return vr((224, 232, 236, 244)[ks - 24])
    return ar(128 + 4 * ((ks + 16) % 32) if ks < 16 else 128 + 4 * ((ks - 24) % 32))


def p_aload(ks0, ks1):
    out = []
    for ks in range(ks0, ks1):
        pre = []
        if ks % 4 == 0:
            pre = [f"s_add_u32 s100, s{sPA}, {ks*1024}" if ks < 28 else f"s_add_u32 s100, s{sPC}, {(ks-28)*1024}"]
        out.append((pre, I(f"buffer_load_dwordx4 {p_areg(ks)}, {vL16}, {srd(SRD_WS)}, s100 offen offset:{(ks%4)*1024} sc1", tag=f"PA{ks}")))
    return out


def ex_addr():
    ex = ["s_and_b32 s76, s2, 1", "s_lshl_b32 s76, s76, 3", f"s_add_u32 s76, s76, {sJ}", "s_lshl_b32 s76, s76, 2", "s_lshr_b32 s7, s2, 6",
          "s_add_u32 s76, s76, s7", "s_lshl_b32 s76, s76, 17", f"s_lshl_b32 s6, {sW}, 11", "s_add_u32 s76, s76, s6", f"s_add_u32 s76, s76, {EX_OFF}"]
    for i in range(3):
        ex += [f"s_xor_b32 s6, s71, {i ^ 3}", "s_lshl_b32 s7, s6, 2", "s_add_u32 s7, s7, s71", "s_lshl_b32 s7, s7, 13", f"s_add_u32 s{72+i}, s76, s7",
               "s_lshl_b32 s7, s71, 2", "s_add_u32 s7, s7, s6", "s_lshl_b32 s7, s7, 13", f"s_add_u32 s{24+i}, s76, s7"]
    return ex + flag_addr("ex", 27)


def slp():
    if OPT["slpj"]:
        return [f"s_and_b32 s98, s2, {OPT['slpj']}", "s_cbranch_scc0 L_noslp", f"s_sleep {OPT['slpn']}", "L_noslp:"]
    return [f"s_sleep {OPT['slpn']}"]


def projections(p, ool):
    if OPT["slph"] == -1:
        p.e(slp())
    p.e(mk_srd(SRD_CKV, 50, 2048 * 1024))
    issue(p, a_dma(0))
    p.e("s_mov_b32 s96, s6")
    p.e(mk_srd(SRD_X, 48, 2048 * 1024))
    p.e(mk_srd(SRD_WUK, 54, 512 * 8192))
    p.e(mk_srd(SRD_WS, 72, WS_BYTES))
    p.e(mk_srd(SRD_WUV, 56, 512 * 8192))
    p.e(mk_srd(SRD_WQ, 52, 512 * 8192))
    p.e(mk_srd(SRD_W1, 62, 512 * 3584))
    p.e(mk_srd(SRD_B1, 64, 3584))
    p.e(mk_srd(SRD_DBG, 70, 256))
    p.e(mk_srd(SRD_ACT, 72, WS_BYTES))
    p.e(f"""
s_cmp_lt_u32 {sH}, 28
s_cselect_b32 s{SRD_W1+2}, s{SRD_W1+2}, 0
s_cselect_b32 s{SRD_ACT+2}, s{SRD_ACT+2}, 0
s_lshl_b32 s83, {sH}, 7
s_lshl_b32 s6, {sH}, 6
s_lshl_b32 s7, {sJ}, 3
s_add_u32 s6, s6, s7
s_lshl_b32 s7, {sW}, 1
s_add_u32 s6, s6, s7
s_lshl_b32 s6, s6, 14
s_add_u32 s84, s6, {KV_OFF}
s_mul_i32 s6, {sH}, {OPT['kvpad']}
s_add_u32 s84, s84, s6
""")
    for i in range(1, 8):
        p.e(f"s_add_u32 s{84+i}, s84, {i*4096}")
    p.e(f"s_lshl_b32 s6, s79, 1\ns_add_u32 s6, s6, {sW}\ns_lshl_b32 s6, s6, 5")
    for i in range(4):
        p.e(f"""
s_add_u32 s7, s6, {128*i}
s_and_b32 s7, s7, 511
s_lshl_b32 s{60+i}, s7, 13
s_add_u32 s{60+i}, s{60+i}, s76
""")
    p.e(f"s_and_b32 s79, s79, {OPT['p2rot']}\ns_lshl_b32 s6, s79, 1\ns_add_u32 s6, s6, {sW}\ns_lshl_b32 s82, s6, 5")
    for i in range(4):
        p.e(f"""
s_add_u32 s7, s82, {128*i}
s_and_b32 s7, s7, 511
s_mul_i32 s{52+i}, s7, 3584
s_add_u32 s{52+i}, s{52+i}, s83
""")
    p.e(f"""
s_lshl_b32 s70, s79, 12
s_lshl_b32 s48, {sJ}, 2
s_add_u32 s48, s48, {sW}
s_sub_u32 s49, 63, s48
s_mul_i32 s92, s48, {XN_RS}
s_mul_i32 s93, s49, {XN_RS}
s_mul_i32 s50, s48, {AF_KS*1024}
s_mul_i32 s51, s49, {AF_KS*1024}
s_add_u32 s50, s50, {AF_OFF}
s_add_u32 s51, s51, {AF_OFF}
s_lshl_b32 s6, {sH}, 12
s_add_u32 s6, s6, {256*1024}
s_add_u32 s94, s50, s6
s_add_u32 s95, s51, s6
""")
    stamp(p, 21)
    issue(p, w_dma(0))
    p.e(I(f"buffer_load_dwordx4 {vr(LX)}, v20, {srd(SRD_X)}, s96 offen", tag="X"))
    p.e(I(f"buffer_load_dwordx4 {vr(LX+4)}, v20, {srd(SRD_X)}, s96 offen offset:128", tag="X"))
    stamp(p, 22)
    p.e(f"""
v_and_b32 v21, 7, v0
v_lshlrev_b32 v21, 4, v21
v_bfe_u32 v24, v0, 3, 2
v_lshl_add_u32 v24, v24, 8, v21
v_lshrrev_b32 v25, 5, v0
v_lshl_add_u32 v24, v25, 11, v24
v_add_u32 v21, {LN_LDS}, v21
s_lshl_b32 s6, {sW}, 2
v_add_u32 v22, s6, v21
s_lshr_b32 s6, s2, 2
s_mul_i32 s6, s6, {XN_RS}
s_and_b32 s7, s2, 2
s_lshl_b32 s7, s7, 9
s_add_u32 s6, s6, s7
s_and_b32 s7, s2, 1
s_lshl_b32 s7, s7, 7
s_add_u32 s6, s6, s7
s_lshl_b32 s7, {sW}, 13
s_add_u32 s96, s6, s7
s_add_u32 s97, s96, 4096
""")
    p.e(flag_addr("kv", 65))
    p.e(f"""
s_getreg_b32 s57, hwreg(HW_REG_XCC_ID, 0, 4)
s_lshl_b32 s64, s2, 8
s_add_u32 s64, s64, {FL_OFF}
s_and_b32 s65, s65, 0xfffffff0
s_cmp_eq_u32 {sW}, 0
s_cselect_b32 s64, s64, 0x80000000
s_cmp_eq_u32 {sW}, 1
s_cselect_b32 s65, s65, 0x80000000
s_and_b32 s71, s2, 63
s_lshl_b32 s71, s71, 2
v_mov_b32 v27, 0
v_lshlrev_b32 v26, 2, v0
v_mov_b32 v{vOne}, 1
""")
    p.e([f"v_mov_b32 v{72+r}, s57" for r in range(4)])
    first = [([], I(f"buffer_store_dwordx4 v[64:67], v24, {srd(SRD_WS)}, s96 offen sc1", tag="XNst")),
             ([], I(f"buffer_store_dwordx4 v[68:71], v24, {srd(SRD_WS)}, s97 offen sc1", tag="XNst")),
             ([], I(f"buffer_store_dword v27, v26, {srd(SRD_WS)}, s64 offen sc1", tag="XNst")),
             ([], I(f"buffer_store_dwordx4 v[72:75], off, {srd(SRD_WS)}, s65 sc1", tag="XNst"))]
    if OPT["wqt"] >= 0:
        p.e(f"""
v_bfe_u32 v25, v0, 1, 4
v_lshlrev_b32 v25, 13, v25
v_and_b32 v23, 1, v0
v_lshl_add_u32 v25, v23, 7, v25
s_lshl_b32 s56, s75, 1
s_add_u32 s56, s56, s76
""")
    stamp(p, 23)
    if OPT["pads"]:
        p.e("s_mov_b64 exec, 0")
        for w in (1, 2, 3):
            p.e(f"s_cmp_eq_u32 {sW}, {w}\ns_cbranch_scc1 L_pad{w}")
        p.e("s_branch L_pad0\nL_padret:\ns_mov_b64 exec, -1")
    p.e(";PAGE")
    issue(p, a_dma(1))
    stamp(p)
    p.wait("A0")
    for x in a_reads(0):
        p.e(x)
    p.wait("W0")
    p.e("s_barrier")
    for n in range(4):
        p.e(w_read(n, 0))
        p.e(w_read(n, 1))
    p.wait("Wr0", "Ar0")

    mf = []
    for kg in range(8):
        for cb in range(8):
            m = len(mf) // 8
            for rb, kk, f1 in walk(cb, 4):
                d = vr(acc(ACC0 if cb < 4 else ACC1, 0, cb % 4, rb))
                mf.append(I(f"{MF} {d}, {vr(WF+4*((2*m+kk)%8))}, {res(rb, 2*kg+kk)}, {'0' if kg == 0 and f1 else d}", needs=[f"Wr{m}", f"Ar{kg}"]))
    for ci, (nm, _, _) in enumerate(CHUNKS):
        buf = (ACC0, ACC1, ACC0, ACC1, 2)[ci]
        for kg in range(8):
            for cb in range(4):
                m = len(mf) // 8
                for rb, kk, f1 in walk(cb, 4):
                    d = c = vr(acc(buf, nm[0] == "V", cb, rb))
                    if kg == 0 and f1:
                        c = vr(BIAS + 4 * cb) if nm == "H" else "0"
                    wf, af = vr(WF + 4 * ((2 * m + kk) % 8)), res(rb, 2 * kg + kk)
                    a, b = (af, wf) if nm[0] == "V" else (wf, af)
                    nd = [f"Wr{m}"] + ([f"XN{kg}"] if nm == "H" else [])
                    mf.append(I(f"{MF} {d}, {a}, {b}, {c}", needs=nd))
    NH = len(mf)
    g = Half(mf)
    for n in range(4, NH // 4):
        for j in range(2):
            g.mem[4 * (n - 4) + 2 * j].append(w_read(n, j))
        if n % 16 >= 8 and n % 2 and n // 16 + 1 < NSLAB:
            dw = W_SLOT[n // 16 + 1] // 4 - W_SLOT[n // 16] // 4
            if dw:
                g.val[4 * (n - 4) + 2].append(I(f"v_add_u32 v{VTR+(n//2)%4}, 0x{(dw*65536) & 0xffffffff:x}, v{VTR+(n//2)%4}"))
    for h in range(8, NH, 8):
        tags = [f"Wr{h//8}"]
        if h < 512 and h % 64 == 0:
            tags += [f"Ar{h//64}"]
        if 1024 <= h < 1280 and h % 32 == 0:
            tags += [f"XN{(h-1024)//32}"]
        g.sh[h - 1].append(WAIT(*tags))
    for q in range(1, 8):
        h = 64 * q - 27
        g.sh[h - 1].append(WAIT(f"A{q}"))
        for i, x in enumerate(a_reads(q)):
            g.mem[h - 1 + 2 * i].append(x)
    for ps in range(1, NSLAB):
        if ps in NOBAR:
            assert ps not in W_ISSUE
            continue
        nx = ps + 1
        while nx in NOBAR:
            assert W_ISSUE[nx] <= ps - 2
            nx += 1
        tags = [f"W{k}" for k in range(ps, nx)] + (["XNst"] if ps == OPT["sigp"] else []) + (["KV0"] if ps == 27 else [])
        g.sh[64 * ps - 19].append(WAIT(*tags))
        g.sh[64 * ps - 18].append("s_barrier")
    lo = -1
    for ps in range(0, NSLAB):
        lst = []
        for sl in range(NSLAB):
            if W_ISSUE[sl] == ps:
                lst += w_dma(sl)
        if ps == 0:
            lo = place(g, w_dma(1), 3, 2, -1)
            lo = place(g, a_dma(2) + lst, 13, 4, lo)
        elif ps < 6:
            st = max(lo + 4, 64 * ps + 1)
            lo = place(g, a_dma(ps + 2) + lst, st, 4, lo)
        elif lst:
            lo = place(g, lst, 64 * ps - 13, 4 if len(lst) > 8 else 6, max(lo, 64 * ps - 19))
    g.after([("s_mov_b32 s7, 1", f"s_cmp_lg_u32 {sW}, 0", "s_cbranch_scc1 L_nosig", f"s_atomic_add s7, s[{SRD_DBG}:{SRD_DBG+1}], s71", "L_nosig:")],
            64 * OPT["sigp"] - 16)

    def slot(h):
        h |= 1
        while g.mem[h] or g.val[h]:
            h += 2
        return h

    def kv_store(src, blk, f):
        return I(f"buffer_store_dwordx4 {vr(src)}, {vL16}, {srd(SRD_WS)}, s{84+blk*4+f//4} offen offset:{(f%4)*1024} {KVFL}", tag="KVst")

    def cvt4(dst, src):
        return [f"v_cvt_pk_bf16_f32 v{dst+c}, v{src+2*c}, v{src+2*c+1}" for c in range(4)]

    q = Prog()
    tail = layernorm(q)
    LH = OPT["lnh"]
    g.post[LH] += q.l
    hl = g.fill(tail, range(LH + 1, LH + 90), dense=True)
    assert W_SLOT[5] == 5 and hl + 20 < 64 * OPT["sigp"] - 50, hl
    for _, x in first:
        hl = slot(hl + 1)
        g.mem[hl].append(x)
    if OPT["slph"] >= 0:
        g.post[OPT["slph"]] += slp()
    if OPT["xnrt"]:
        for k in (96, 97):
            g.mem[slot(OPT["xnrt"])].append(I(f"buffer_load_dword v{vDummy}, v24, {srd(SRD_WS)}, s{k} offen sc1"))
    prev = 770
    for i in range(64):
        f, blk = divmod(i, 2)
        h = slot(max(800 + (62 * i) // 10, prev + 1))
        assert 768 + 32 * (f // 4 + 1) <= h < 1024 + 32 * (f // 4) - 48
        if i % 8 == 0:
            g.before(["s_add_u32 s64, s92, s70", "s_add_u32 s65, s93, s70"], h, prev + 1)
            g.after(["s_add_u32 s70, s70, 4096", "s_and_b32 s70, s70, 0x7fff"], h + 1)
        g.mem[h].append(I(f"buffer_load_dwordx4 {ar((blk*32+f)*4)}, {vL16}, {srd(SRD_WS)}, s{92 if OPT['dbgno'] == 2 else 64+blk} offen offset:{(f%4)*1024}{' sc1' if OPT['xnsc'] else ''}", tag=f"XN{f//4}"))
        prev = h
    kf = lambda i, hi: ((i % 4) // 2, (i % 2) * 4 + 2 * hi + i // 4)
    vf = lambda i, hi: (i // 4, 8 + 4 * hi + i % 4)
    it = []
    for i in range(8):
        it += cvt4(TP + 4 * i, ACC0 + 8 * i)
    g.fill(it, range(476, 512))
    tp_st = [kv_store(TP + 4 * i, *kf(i, 0)) for i in range(8)]

    def epi_inplace(buf, h0, fidx, extra):
        it, st = [], []
        for i in range(8):
            it += cvt4(buf + 8 * i, buf + 8 * i)
            st.append(kv_store(buf + 8 * i, *fidx(i)))
        st = extra[:2] + st + extra[2:]
        for n, x in enumerate(st):
            if (OPT["dbgno"] == 1 and h0 > 512) or (OPT["dbgno"] == 3 and h0 > 512 and n % 3 == 0) or (OPT["dbgno"] == 4 and h0 == 512 and n):
                continue
            g.mem[slot(h0 + 6 + (n * 240) // len(st))].append(x)
        g.fill(it, range(h0 + 2, h0 + 40))
    epi_inplace(ACC1, 512, lambda i: kf(i, 1), tp_st[:4])
    epi_inplace(ACC0, 768, lambda i: vf(i, 0), tp_st[4:6])
    epi_inplace(ACC1, 1024, lambda i: vf(i, 1), tp_st[6:])
    g.fill(["v_lshrrev_b32 v20, 4, v0", "v_lshlrev_b32 v20, 3, v20"], range(676, 680))
    for cb in range(4):
        g.mem[slot(684 + 6 * cb)].append(I(f"buffer_load_dwordx2 {vr(BIAS+4*cb+2,2)}, v20, {srd(SRD_B1)}, s83 offen offset:{32*cb}", tag="B1"))
    g.after([WAIT("B1")], 876)
    it = []
    for cb in range(4):
        b = BIAS + 4 * cb
        it += [I(f"v_lshlrev_b32 v{b}, 16, v{b+2}", needs=["B1"]), f"v_and_b32 v{b+1}, 0xffff0000, v{b+2}",
               f"v_lshlrev_b32 v{b+2}, 16, v{b+3}", f"v_and_b32 v{b+3}, 0xffff0000, v{b+3}"]
    g.fill(it, range(884, 920))
    g.mem[slot(672)].append(I(f"buffer_load_dword v{vPoll}, v26, {srd(SRD_DBG)}, 0 offen sc1", tag="pollLN"))
    g.sh[760].append(WAIT("pollLN"))
    g.val[760].append(I(f"v_cmp_gt_u32 vcc, 4, v{vPoll}", needs=["pollLN"]))
    g.sh[763] += ["s_cbranch_vccnz L_pollLN", "L_pollLN_back:"]
    ool.e(f"""
L_pollLN:
s_mov_b32 s96, 0x40000
L_pollLN_l:
s_sleep 2
buffer_load_dword v{vPoll}, v26, {srd(SRD_DBG)}, 0 offen sc1
s_waitcnt vmcnt(0)
v_cmp_gt_u32 vcc, 4, v{vPoll}
s_sub_u32 s96, s96, 1
s_cbranch_scc1 L_pollLN_back
s_cbranch_vccnz L_pollLN_l
s_branch L_pollLN_back
""")
    if OPT["p2rot"] != 7:
        l = []
        for i in range(4):
            l += [f"s_add_u32 s7, s82, {128*i}", "s_and_b32 s7, s7, 511", f"s_lshl_b32 s{60+i}, s7, 13", f"s_add_u32 s{60+i}, s{60+i}, s76"]
        assert g.after(l, 930) < 1000
    late = mk_srd(SRD_W2, 66, 1792 * 1024) + mk_srd(SRD_WO, 58, 4096 * 1024) + mk_srd(SRD_OUT, 68, 2048 * 1024)
    late += [f"s_mul_i32 s6, {sH}, {KV_HS}", "s_add_u32 s6, s6, s77", f"s_add_u32 s6, s6, {KV_OFF}", f"s_mov_b32 s{SRD_KV+2}, 0x100000",
             (f"s_add_u32 s{SRD_KV}, s72, s6", f"s_addc_u32 s{SRD_KV+1}, s73, 0"), f"s_and_b32 s{SRD_KV+1}, s{SRD_KV+1}, 0xffff"]
    late += flag_addr("kv", 82) + ["s_and_b32 s80, s82, 0xffffff80", "s_mov_b32 s71, 0"]
    if OPT["wopf"]:
        late += ["s_mul_i32 s56, s2, 7168", (f"s_cmp_eq_u32 {sW}, 2", "s_cselect_b32 s56, s56, 0x1000000")]
    assert g.after(late, 1160) < 1226
    g.fill(["v_and_b32 v27, 31, v0", "v_lshlrev_b32 v27, 2, v27", "v_lshlrev_b32 v26, 7, v0"], range(1218, 1226))
    g.mem[slot(1228)].append(poll_req(27, 80, "pollXC"))
    g.sh[1272].append(WAIT("pollXC"))
    g.fill([I(f"v_and_b32 v{vPoll}, 0xff, v{vPoll}", needs=["pollXC"]), f"v_cmp_ne_u32 vcc, s57, v{vPoll}",
            f"v_mov_b32 v{vPoll}, s57", f"v_or_b32 v{vPoll}, 0x100, v{vPoll}"], range(1272, 1277))
    g.sh[1300].append(WAIT("KVst"))
    g.sh[1301] += ["s_cbranch_vccnz L_xrel", "L_xrel_back:"]
    ool.e("L_xrel:\ns_mov_b32 s71, 1\nbuffer_wbl2 sc1\ns_waitcnt vmcnt(0)\ns_branch L_xrel_back")
    g.mem[slot(1302)].append(flag_store(vPoll, 82))
    if OPT["wopf"]:
        if OPT["w2t"] > 0:
            g.mem[slot(OPT["w2t"])].append(I(f"buffer_load_dword v{vDummy}, v26, {srd(SRD_W2)}, s56 offen", tag="wopf"))
    if OPT["wqt"] > 0:
        g.mem[slot(OPT["wqt"])].append(I(f"buffer_load_dword v{vDummy}, v25, {srd(SRD_WQ)}, s56 offen"))
    g.mem[slot(1540)].append(poll_req(27, 80, "pollKV"))
    assert g.after(flag_addr("actA", 78) + flag_addr("actB", 79) + [f"s_add_u32 s{sPM[2]}, s77, 0x20000"], 1544) < 1580
    g.sh[1586].append(WAIT("pollKV"))
    g.val[1586].append(I(f"v_cmp_gt_u32 vcc, 0x100, v{vPoll}", needs=["pollKV"]))
    g.sh[1589] += ["s_cbranch_vccnz L_pollKV", "L_pollKV_back:"]
    poll_slow(ool, "L_pollKV", 27, 80, "v_cmp_gt_u32 vcc, 0x100")
    g.sh[1592] += ["s_cmp_lg_u32 s71, 0", "s_cbranch_scc1 L_xacq", "L_xacq_back:"]
    ool.e("L_xacq:\nbuffer_inv sc1\ns_waitcnt vmcnt(0)\ns_branch L_xacq_back")
    assert W_SLOT[24:] == [6, 7, 8, 9]
    lo = 1592
    for n in range(7):
        lo = place(g, kv_dma(n), 1597 + 24 * n, 6, lo)
    for k in range(12):
        g.mem[1714 + 4 * k].append(I(f"ds_read_b128 {ar(KF+4*k)}, {vL16} offset:{k*1024}", tag="K0", needs=["KV0"]))
    ps = [
        "s_and_b32 s6, s2, 1", "s_lshl_b32 s6, s6, 5", "s_add_u32 s6, s6, s48",
        "s_lshr_b32 s71, s2, 1", "s_and_b32 s71, s71, 3",
        "s_lshl_b32 s101, s6, 2", "s_add_u32 s101, s101, s71", "s_lshl_b32 s101, s101, 7", f"s_add_u32 s101, s101, {CTXF + 32}",
        "s_mul_i32 s7, s71, 28",
        f"s_mul_i32 s6, s6, {AF_KS*1024}", f"s_add_u32 s6, s6, {AF_OFF}",
        "s_lshl_b32 s7, s7, 10", f"s_add_u32 s{sPA}, s6, s7", f"s_add_u32 s{sPA}, s{sPA}, {256*1024}",
        "s_lshl_b32 s7, s71, 16", f"s_add_u32 s{sPC}, s6, s7",
        f"s_xor_b32 s6, s71, {sW}", "s_xor_b32 s6, s6, 3", "s_lshr_b32 s6, s6, 1", "s_lshl_b32 s6, s6, 7",
        "s_lshr_b32 s7, s2, 6", "s_lshl_b32 s7, s7, 8", "s_add_u32 s6, s6, s7",
        f"s_and_b32 s7, {sW}, 1", "s_lshl_b32 s7, s7, 15", "s_add_u32 s6, s6, s7",
        f"s_mul_i32 s7, s71, {448*1024}", f"s_add_u32 s{sPW2}, s6, s7",
        "s_lshl_b32 s7, s71, 20", f"s_add_u32 s{sPWO}, s6, s7",
        f"s_and_b32 s6, {sJ}, 1", "s_lshl_b32 s6, s6, 16", f"s_add_u32 s{sPM[0]}, s77, s6",
        f"s_xor_b32 s{sPM[1]}, s{sPM[0]}, 0x10000", f"s_add_u32 {sM}, s77, {7*16384}",
        "s_and_b32 s75, s71, 1", "s_xor_b32 s75, s75, 1", "s_lshl_b32 s75, s75, 6",
        f"s_mov_b32 {sKa}, 0x4000", f"s_mov_b32 {sCA}, s48", f"s_sub_u32 {sCB}, 30, s48",
        f"s_sub_u32 s41, {sJ}, 2", "s_lshl_b32 s41, s41, 5", f"s_add_u32 s41, s41, {sH}", "s_lshl_b32 s41, s41, 2",
        f"s_add_u32 s41, s41, {sW}", "s_lshl_b32 s41, s41, 13",
    ]
    if OPT["w2t"] > 0:
        ps += [f"s_mov_b32 s{20+i}, s{SRD_WO+i}" for i in range(3)]
    else:
        ps += ["s_sub_u32 s6, s41, 0x200000", (f"s_cmp_lt_u32 {sJ}, 4", "s_cselect_b32 s41, s41, s6") +
               tuple(f"s_cselect_b32 s{20+i}, s{SRD_W2+i}, s{SRD_WO+i}" for i in range(3))]
    if OPT["sent"]:
        ps += ex_addr()
    for r in range(4):
        m = sum(1 << l for l in range(64) if 4 * (l // 16) + r > l % 16)
        ps += [f"s_mov_b32 s{MASKS+2*r}, 0x{m & 0xffffffff:x}", f"s_mov_b32 s{MASKS+2*r+1}, 0x{m >> 32:x}"]
    assert g.after(ps, 1594) < 1765
    it = []
    LOG2E = f"0x{f2u(1.4426950408889634):x}"
    for i in range(8):
        dl, rb = divmod(i, 4)
        b = ACC0 + 8 * i
        for c in range(4):
            x0, x1 = b + 2 * c, b + 2 * c + 1
            it += [f"v_mul_f32 v20, {LOG2E}, v{x0}", "v_exp_f32 v20, v20", f"v_mul_f32 v21, {LOG2E}, v{x1}", "v_exp_f32 v21, v21",
                   "v_fma_f32 v22, v20, 0.5, 1.0", "v_fma_f32 v20, v20, v22, 1.0", "v_fma_f32 v23, v21, 0.5, 1.0",
                   "v_fma_f32 v21, v21, v23, 1.0", "v_rcp_f32 v20, v20"]
            if c or i:
                it.append(pend.pop())
            it += ["v_rcp_f32 v21, v21", f"v_fma_f32 v24, -v{x0}, v20, v{x0}"]
            if c == 0 and i:
                it.append(pst.pop())
            it.append(f"v_fma_f32 v25, -v{x1}, v21, v{x1}")
            pend = [f"v_cvt_pk_bf16_f32 v{b+c}, v24, v25"]
        pst = [I(f"buffer_store_dwordx4 {vr(b)}, {vL16}, {srd(SRD_ACT)}, s{94+rb//2} offen offset:{(2*dl+rb%2)*1024} sc1", tag="ACTst")]
    it += pend + pst
    nmish = len(it)
    QS = f"0x{f2u(1.4426950408889634 / 128 ** 0.5):x}"

    def q_epi(src, dst):
        it = []
        for c in range(4):
            it += [f"v_mul_f32 v{src+2*c}, {QS}, v{src+2*c}", f"v_mul_f32 v{src+2*c+1}, {QS}, v{src+2*c+1}",
                   f"v_cvt_pk_bf16_f32 v{dst+c}, v{src+2*c}, v{src+2*c+1}"]
        return it
    it += ["v_lshrrev_b32 v20, 3, v0", "v_and_b32 v21, 7, v0", "v_bfe_u32 v22, v0, 4, 2", "v_lshlrev_b32 v22, 1, v22",
           "v_xor_b32 v21, v21, v22", "v_lshlrev_b32 v21, 4, v21", "v_xor_b32 v21, s75, v21",
           f"v_lshl_add_u32 v{VP_DMA}, v20, 10, v21"] + [f"v_add_u32 v{VP_DMA+u}, {7168*u}, v{VP_DMA}" for u in (1, 2, 3)]
    it += ["v_min_u32 v27, 6, v0", "v_lshlrev_b32 v27, 2, v27", f"v_mov_b32 v{vMask}, 0x1c000", f"v_mov_b32 v{vBit}, 0x40004000",
           f"v_mov_b32 v{vNinf}, 0xff800000", f"v_mov_b32 v{vR0}, {vL16}"]
    it += ["v_and_b32 v25, 3, v0", "v_add_u32 v25, -1, v25", "v_ashrrev_i32 v25, 31, v25", "v_and_b32 v25, 0x3f803f80, v25"]
    it += [f"v_mov_b32 v{NMA+r}, 0" for r in range(16)] + [f"v_mov_b32 v{EX+r}, 0" for r in range(4)]
    for i in range(8):
        it += q_epi(ACC1 + 8 * i, ACC1 + 4 * i)
    it = [x if isinstance(x, I) else I(x) for x in it]
    FH = 1737
    g.sh[FH - 1].append(WAIT("ACTst"))
    g.mem[FH].append(flag_store(vOne, 78, sr=SRD_ACT))
    g.mem[FH + 2].append(flag_store(vOne, 79, sr=SRD_ACT))
    g.sh[1788] += [f"s_cmp_eq_u32 {sCA}, 0", "s_cbranch_scc1 L_mask0", "L_mask0_back:"]
    ool.e("L_mask0:"); ool.e(mask_ops(NMA)); ool.e("s_branch L_mask0_back")
    g.fill(it, range(1283, 1788))
    hm = [h for h in range(NH) if it[nmish - 1] in g.mem[h] + g.val[h]][0]
    assert 1675 < hm < FH - 40, hm
    assert g.after([(f"s_add_u32 s{SRD_KV}, s{SRD_KV}, {6*16384}", f"s_addc_u32 s{SRD_KV+1}, s{SRD_KV+1}, 0"),
                    f"s_lshl_b32 s7, {sJ}, 2", "s_sub_u32 s7, 58, s7", f"s_lshl_b32 s{SRD_KV+2}, s7, 14", f"s_mov_b32 m0, {sM}"], 1768) < 1786
    if OPT["stamp"] or OPT["padat"] >= 0:
        for h in (511, 767, 1023, 1279, 1535):
            q = Prog(); stamp(q); g.post[h] += q.l
        if OPT["stamp"] == 2:
            for k in range(28):
                q = Prog(); stamp(q, 24 + k); g.post[64 * k] += q.l
    p.e(g.emit())
    stamp(p)
    mB, mA = qk_mf(JB1, True, "0"), qk_mf(JA0, True)
    p.wait("K0")
    g = Half(mB[:8] + mA[:8] + mB[8:] + mA[8:])
    qe = lambda l: sum((q_epi(grp(2, i), grp(2, i)) for i in l), [])
    g.fill(qe((2, 3, 6, 7)) + ["s_nop 0"], range(0, 16))
    g.fill(qe((0, 1, 4, 5)) + ["s_nop 0"], range(16, 24))
    g.fill(rowmax(S1), range(26, 32))
    p.e(g.emit())
    it = [f"v_sub_f32 v{NMB+r}, 0x{f2u(-SHIFT):x}, v{20+r//8}" for r in range(16)]
    it += rowmax(S0) + [f"v_add_f32 v{20+qb}, 0x{f2u(SHIFT):x}, v{20+qb}" for qb in range(2)]
    it += [f"v_sub_f32 v{S0+r}, v{S0+r}, v{20+r//8}" for r in range(16)]
    z = Gaps([f"{MF32} {ar(16*i,16)}, {vr(EX)}, {vr(EX)}, 0" for i in range(8)])
    z.spread(it, 0, 8)
    p.e(z.emit())
    p.e([f"v_sub_f32 v{NMA+r}, 0, v{20+r//8}" for r in range(16)])
    p.e(sm_split(JA0, "Y")[0])
    p.e([f"v_mov_b32 v{lreg(r//8, (r//4)%2)+r%4}, 0" for r in range(16)] +
        ([f"v_mov_b32 v{ONES+r}, v25" for r in range(4)] if OPT["ones4"] else [f"v_mov_b32 v{ONES+r}, 0x3f803f80" for r in range(4)]))
    if OPT["sent"]:
        p.e([f"v_mov_b32 v{32+r}, -1" for r in range(4)])
        for i in range(6):
            p.e(I(f"buffer_store_dwordx4 v[32:35], {vL16}, {srd(SRD_WS)}, s{24+i//2} offen offset:{(i%2)*1024} sc1"))
    p.wait("KV2")
    stamp(p)


def qfrag(blk, qb, ds):
    rb = 2 * blk + qb
    return ACC1 + 4 * (4 * ds + rb) if ds < 2 else grp(2, 4 * (ds - 2) + rb)


def lreg(blk, qb):
    return TP + 4 + 8 * (2 * blk + qb)


class Job:
    def __init__(self, blk, par):
        self.blk = blk
        self.S = (S0, S1)[par]
        self.P = (P0, P1)[par]
        self.NM = (NMA, NMB)[blk]
        self.O = (OA, OB)[blk]


JA0, JB1, JB0 = Job(0, 0), Job(1, 1), Job(1, 0)


def sm_ops(j):
    o = {}
    for r in range(16):
        o[f"e{r}"] = f"v_exp_f32 v{EX+r}, v{j.S+r}"
    for i in range(8):
        o[f"c{i}"] = f"v_cvt_pk_bf16_f32 v{j.P+i}, v{EX+2*i}, v{EX+2*i+1}"
    o["o0"] = f"v_or3_b32 v{vChk}, v{j.P}, v{j.P+1}, v{j.P+2}"
    o["o1"] = f"v_or3_b32 v{vChk}, v{vChk}, v{j.P+3}, v{j.P+4}"
    o["o2"] = f"v_or3_b32 v{vChk}, v{vChk}, v{j.P+5}, v{j.P+6}"
    o["o3"] = f"v_bitop3_b32 v{vChk}, v{vChk}, v{j.P+7}, v{vBit} bitop3:0xa8"
    o["k"] = f"v_cmp_ne_u32 vcc, 0, v{vChk}"
    return o


SM_PLAN = {
    "Z": ({17: "e0", 18: "e1", 19: "e2", 20: "c0", 21: "e3", 22: "e4", 24: "c1", 25: "e5", 26: "e6", 27: "e7", 28: "c2",
           29: "e8", 30: "c3", 32: "e9", 33: "e10"},
          {0: "o0", 1: "e11", 2: "c4", 3: "e12", 4: "o1", 5: "e13", 8: "c5 e14", 9: "e15", 10: "c6", 11: "o2 c7", 12: "o3 k"}),
    "W": ({16: "e0", 17: "e1", 18: "e2", 19: "e3", 20: "c0", 21: "e4", 22: "c1", 24: "e5", 25: "e6", 26: "c2", 27: "e7", 28: "e8",
           29: "e9", 30: "c3", 32: "e10", 33: "e11"},
          {0: "o0", 1: "e12", 2: "c4", 3: "e13", 4: "o1", 5: "e14", 8: "c5", 9: "e15", 10: "c6", 11: "o2 c7", 12: "o3 k"}),
    "X": ({17: "e0", 19: "e1", 21: "e2", 22: "c0", 24: "e3", 25: "e4", 26: "e5", 27: "c1 c2", 28: "e6", 29: "e7",
           30: "e8", 32: "o0 c3", 33: "e9"},
          {0: "e10", 1: "e11", 2: "c4 o1", 3: "e12", 4: "e13", 5: "e14", 6: "c5", 7: "e15", 8: "c6", 9: "o2 c7", 10: "o3", 11: "k"}),
    "Y": ({17: "e0", 18: "e1", 19: "e2", 20: "e3", 21: "e4", 22: "e5", 23: "e6", 24: "c0", 25: "e7", 26: "c1", 27: "e8",
           28: "c2", 29: "e9", 30: "c3", 31: "e10", 32: "e11", 33: "o0 c4"},
          {1: "e12", 3: "e13", 5: "e14", 8: "o1", 9: "e15", 10: "c5", 11: "c6 o2", 12: "c7 o3", 13: "k"}),
}


def sm_split(j, plan):
    o = sm_ops(j)
    return [[o[n] for h in sorted(part) for n in part[h].split()] for part in SM_PLAN[plan]]


for _p in SM_PLAN.values():
    _o = [n for part in _p for h in sorted(part) for n in part[h].split()]
    assert sorted(_o) == sorted(sm_ops(JA0))
    _dep = {f"c{i}": (f"e{2*i}", f"e{2*i+1}") for i in range(8)}
    _dep.update(o0=("c0", "c1", "c2"), o1=("o0", "c3", "c4"), o2=("o1", "c5", "c6"), o3=("o2", "c7"), k=("o3",))
    assert all(_o.index(d) < _o.index(n) for n in _dep for d in _dep[n])


def qk_mf(j, dsmajor=False, c0=None):
    idx = [(kb, qb, ds) for kb in range(2) for qb in range(2) for ds in range(4)]
    if dsmajor:
        idx.sort(key=lambda t: t[2])
    elif OPT["orda"]:
        idx = [(kb, qb, ds if qb == kb else 3 - ds) for kb, qb in ((0, 0), (0, 1), (1, 1), (1, 0)) for ds in range(4)]
    out, seen = [], set()
    for kb, qb, ds in idx:
        t = 8 * qb + 4 * kb
        c = vr(j.S + t) if t in seen else (vr(j.NM + t) if c0 is None else c0)
        seen.add(t)
        out.append(f"{MF} {vr(j.S+t)}, {ar(KF+4*(4*kb+ds))}, {vr(qfrag(j.blk,qb,ds))}, {c}")
    return out


def pv_mf(j):
    sn = OPT["orda"]
    out = [f"{MF} {vr(lreg(j.blk,qb))}, {vr(ONES)}, {vr(j.P+4*qb)}, {vr(lreg(j.blk,qb))}" for qb in ((1, 0) if sn else (0, 1))]
    for db in range(8):
        for qb in ((1, 0) if sn and db % 2 else (0, 1)):
            o = ar(j.O + 8 * (2 * (db // 2) + qb) + 4 * (db % 2))
            out.append(f"{MF} {o}, {ar(VF+4*db)}, {vr(j.P+4*qb)}, {o}")
    return out


def rowmax(S):
    l = []
    for a, b in ((0, 1), (3, 4), (5, 6)):
        for qb in range(2):
            s = S + 8 * qb
            l.append(f"v_max3_f32 v{20+qb}, v{s+2 if a == 0 else 20+qb}, v{s+a}, v{s+b}")
    l += [f"v_max_f32 v{20+qb}, v{20+qb}, v{S+8*qb+7}" for qb in range(2)]
    for op in ("v_permlane16_swap_b32", "v_permlane32_swap_b32"):
        l += ["v_mov_b32 v22, v20", "v_mov_b32 v23, v21", "s_nop 0", f"{op} v20, v22", f"{op} v21, v23",
              "v_max_f32 v20, v20, v22", "v_max_f32 v21, v21, v23"]
    return l


RARE = {}


def rare(cur, nxt):
    fix = nxt is not None and nxt.blk == cur.blk
    name = f"L_rare_{cur.blk}_{cur.S}_{int(fix)}"
    if name in RARE:
        return name
    q = Prog()
    q.e(f"{name}:")
    q.e("s_nop 15")
    q.e(rowmax(cur.S))
    for qb in range(2):
        q.e(f"v_add_f32 v{20+qb}, 0x{f2u(SHIFT):x}, v{20+qb}\nv_max_f32 v{20+qb}, 0, v{20+qb}\nv_exp_f32 v{22+qb}, -v{20+qb}")
    for r in range(16):
        q.e(f"v_sub_f32 v{cur.NM+r}, v{cur.NM+r}, v{20+r//8}")
        q.e(f"v_sub_f32 v{cur.S+r}, v{cur.S+r}, v{20+r//8}")
        if fix:
            q.e(f"v_sub_f32 v{nxt.S+r}, v{nxt.S+r}, v{20+r//8}")
    for r in range(8):
        b = lreg(cur.blk, r // 4) + r % 4
        q.e(f"v_mul_f32 v{b}, v{b}, v{22+r//4}")
    for r in range(64):
        q.e(f"v_accvgpr_read_b32 v24, a{cur.O+r}")
        q.e(f"v_mul_f32 v24, v24, v{22+(r//8)%2}")
        q.e(f"v_accvgpr_write_b32 a{cur.O+r}, v24")
    o = sm_ops(cur)
    q.e([o[f"e{r}"] for r in range(16)] + [o[f"c{i}"] for i in range(8)])
    q.e("s_nop 1")
    q.e("s_setpc_b64 s[46:47]")
    errs = lint(q.l, name)
    assert not errs, errs
    RARE[name] = q
    return name


site_n = [0]


def step(ool, kind, extra=None, bar=("s_barrier",), ringdma=True, vmw=None, bh=0):
    cur, nxt = dict(X=(JA0, JB1), Y=(JB1, JA0), T=(JB1, JB0), Z0=(JB0, JB1), Z1=(JB1, JB0), F=(JB0, None))[kind]
    pcur = dict(X="Y", Y="X", T="X", Z0="W", Z1="Z", F="W")[kind]
    pnxt = dict(X="X", Y="Y", T="W", Z0="Z", Z1="W", F=None)[kind]
    rdV2, rdK, rdV1 = kind in ("X", "Z0", "Z1", "F"), kind in ("X", "T", "Z0", "Z1"), kind in ("Y", "T", "Z0", "Z1")
    dma = kind in ("X", "Z0", "Z1")
    rV2 = vR1 if kind == "Z1" else vR0
    rK = vR1 if kind in ("T", "Z1") else vR0
    rV1 = vR1 if kind == "Z0" else vR0
    sK = sKb if kind in ("T", "Z1") else sKa
    g = Half((qk_mf(nxt) if nxt else [None] * 16) + pv_mf(cur))
    if rdK:
        g.val[6].append(f"v_and_or_b32 v{rK}, {sK}, v{vMask}, {vL16}")
    o = sm_ops(cur)
    for h, v in SM_PLAN[pcur][1].items():
        g.val[h] += [o[n] for n in v.split()]
    if nxt:
        o = sm_ops(nxt)
        for h, v in SM_PLAN[pnxt][0].items():
            g.val[h] += [o[n] for n in v.split()]
    else:
        g.val[7].append("s_nop 0")
    n = site_n[0]
    site_n[0] += 1
    g.sh[15] += [f"s_cbranch_vccnz L_site{n}", f"L_back{n}:"]
    ool.e(f"L_site{n}:\ns_call_b64 s[46:47], {rare(cur, nxt)}\ns_branch L_back{n}")
    KH = (8, 10, 13, 13, 15, 18, 20, 22) if pcur in "ZW" else (8, 10, 15, 18, 18, 20, 20, 22) if kind == "X" else (8, 10, 12, 13, 15, 18, 20, 22)
    if rdV2:
        for f in range(4, 8):
            g.mem[2 * (f - 4)].append(f"ds_read_b128 {ar(VF+4*f)}, v{rV2} offset:{8192+1024*f}")
        g.sh[17].append("s_waitcnt lgkmcnt(%d)" % (sum(h < 17 for h in KH) if rdK else 0))
        g.sh[bh] += list(bar)
    if rdK:
        for k in range(8):
            g.mem[KH[k]].append(f"ds_read_b128 {ar(KF+4*k)}, v{rK} offset:{1024*k}")
        g.sh[33].append("s_waitcnt lgkmcnt(%d)" % (4 if rdV1 else 0))
    if rdV1:
        for f in range(4):
            g.mem[24 + 2 * f].append(f"ds_read_b128 {ar(VF+4*f)}, v{rV1} offset:{8192+1024*f}")
        if vmw != -1:
            g.sh[28].append("s_waitcnt vmcnt(%d)" % (vmw if vmw is not None else 15 if dma else 16))
    if dma and ringdma:
        for u, h in enumerate((7, 14, 23, 31)):
            g.mem[h].append(f"buffer_load_dwordx4 {vL16}, {srd(SRD_KV)}, {sK} offen offset:{u*1024} sc1 lds")
    if kind == "Y":
        g.after([f"s_add_u32 {sM}, {sM}, 0x4000", f"s_bitset0_b32 {sM}, 17", f"s_add_u32 {sKa}, {sKa}, 0x4000", f"s_sub_u32 {sCA}, {sCA}, 1",
                 f"s_cmp_lt_u32 {sKa}, s{SRD_KV+2}", f"s_cselect_b32 m0, {sM}, 0x30000"], 18)
    if kind == "X":
        g.sh[9].append(f"s_cmp_ge_u32 {sCA}, 2")
    if kind == "T":
        g.after([f"s_add_u32 {sKb}, {sKa}, 0x4000", f"s_add_u32 {sM}, {sM}, 0x4000", f"s_add_u32 {sKa}, {sKa}, 0x8000",
                 (f"s_sub_u32 s{SRD_KV}, s{SRD_KV}, 0x4000", f"s_subb_u32 s{SRD_KV+1}, s{SRD_KV+1}, 0"),
                 f"s_add_u32 s{SRD_KV+2}, s{SRD_KV+2}, 0x4000", f"s_bitset0_b32 {sM}, 17"], 0)
    if kind in ("Z0", "Z1"):
        if ringdma:
            g.sh[1].append(f"s_cmp_lt_u32 {sK}, s{SRD_KV+2}")
            g.sh[3].append(f"s_cselect_b32 m0, {sM}, 0x30000")
        so = sKb if kind == "Z0" else sKa
        g.after([f"s_add_u32 {sM}, {sM}, 0x4000", f"s_bitset0_b32 {sM}, 17", f"s_add_u32 {so}, {so}, 0x8000"], 18)
    if kind == "Z0":
        g.sh[9].append(f"s_sub_u32 {sCB}, {sCB}, 1")
    if extra:
        extra(g)
    l = g.emit()
    cut = [i for i, x in enumerate(l) if x.text == g.mf[16]][0] + 1
    return l[:cut], l[cut:]


def mask_ops(NM):
    l = [f"v_cndmask_b32 v{NM+t+r}, v{NM+t+r}, v{vNinf}, s[{MASKS+2*r}:{MASKS+2*r+1}]" for t in (0, 12) for r in range(4)]
    return l + [f"v_mov_b32 v{NM+4+r}, v{vNinf}" for r in range(4)] + ["s_nop 1"]


def epilogue(p, blk, tag=None, gs=range(8), mems=()):
    O = (OA, OB)[blk]
    if 0 in gs:
        p.e(f"""
v_rcp_f32 v{lreg(blk,0)}, v{lreg(blk,0)}
v_rcp_f32 v{lreg(blk,1)}, v{lreg(blk,1)}
s_lshl_b32 s6, {sH}, 13
s_add_u32 s6, s6, s{50+blk}
s_add_u32 s7, s6, 4096
""")
    mems = list(mems)
    per = -(-len(mems) // len(gs))
    for i in gs:
        b = NMA + 8 * (i % 2)
        issue(p, mems[:per])
        mems = mems[per:]
        for r in range(8):
            p.e(f"v_accvgpr_read_b32 v{b+r}, a{O+8*i+r}")
        for c in range(4):
            p.e(f"v_pk_mul_f32 {vr(b+2*c,2)}, {vr(b+2*c,2)}, {vr(lreg(blk,i%2),2)} op_sel_hi:[1,0]")
        for c in range(4):
            p.e(f"v_cvt_pk_bf16_f32 v{b+c}, v{b+2*c}, v{b+2*c+1}")
        p.e(I(f"buffer_store_dwordx4 {vr(b)}, {vL16}, {srd(SRD_WS)}, s{6+i//4} offen offset:{(i%4)*1024} sc1", tag=tag))


def attention(ool, extra):
    q = Prog()

    def memx(lst, hs):
        def f(g):
            assert len(hs) == len(lst)
            for (pre, ins), h in zip(lst, hs):
                g.mem[h] += pre + [ins]
        return f

    def cbar(n):
        return [f"s_cmp_lt_u32 {sW}, {n}", f"s_cbranch_scc1 L_nb{n}", "s_barrier", f"L_nb{n}:"]
    X1, X2 = step(ool, "X")

    def exY(g):
        if OPT["wopf"]:
            g.sh[13].append(f"s_cmp_eq_u32 {sCA}, 5")
            g.sh[14] += ["s_cbranch_scc1 L_wo", "L_wo_back:"]
    Y = sum(step(ool, "Y", exY), [])
    _, X2c = step(Prog(), "X", memx([([f"v_mov_b32 v{vPoll}, 0", "s_mov_b64 exec, 0x7f", f"buffer_atomic_or v{vPoll}, v27, {srd(SRD_WS)}, s101 offen sc0"],
                                      "s_mov_b64 exec, -1")], (16,)))

    def exT(g):
        g.sh[30].append("s_waitcnt vmcnt(2)")
        if OPT["sent"]:
            g.mem[31].append(flag_store(vOne, 27))
        g.val[31].append(f"v_cmp_ne_u32 vcc, 1, v{vPoll}")
    T = sum(step(ool, "T", exT), [])
    pl = p_aload(0, 28)
    if not OPT["peel"]:
        ool.e("L_ldA:\ns_waitcnt vmcnt(24)"); issue(ool, pl); ool.e("s_setpc_b64 s[44:45]")
    ldA = lambda n: [f"s_cmp_lg_u32 {sW}, {n}", f"s_cbranch_scc1 L_nl{n}", "s_call_b64 s[44:45], L_ldA", f"L_nl{n}:"]

    def w2_both(s):
        a, b = p_dma(s), p_dma(s)
        b[0] = (["s_xor_b32 m0, m0, 0x2000", "s_xor_b32 s97, s97, 0x80"], b[0][1])
        return a + b
    Z0a, Z0b = step(ool, "Z0")
    Z1 = sum(step(ool, "Z1"), [])
    _, Z0bc = step(Prog(), "Z0", ringdma=False, vmw=2)
    Z1c = sum(step(ool, "Z1", bar=cbar(1), ringdma=False, vmw=-1), [])
    F = sum(step(ool, "F", bar=cbar(2)), [])
    for nm, seq in (("XY", X1 + X2 + Y + X1 + X2), ("XT", X1 + X2c + T + Z0a + Z0b + Z1 + Z0a + Z0bc + Z1c + F), ("TF", T + F)):
        errs = lint(seq, nm)
        assert not errs, "\n".join(errs)
    if OPT["sim"]:
        br = [I("s_cbranch_scc1 LL")]
        for nm, seq in (("XY", (X2 + Y + X1 + br) * 3), ("Z", (Z0b + Z1 + Z0a + br) * 3)):
            t, gp = simulate(seq, taken=("LL",))
            print(nm, sum(gp[67:135]), gp[67:135])
        print("X2c+T", simulate(X2c + T)[0], "Z0bc+Z1c", simulate(Z0bc + Z1c)[0], "F", simulate(F)[0])
    q.e(step(ool, "X")[0])
    q.e("s_cbranch_scc0 L_Xx")
    q.e(";LOOP\nL_X:"); q.e(X2); q.e(Y); q.e(X1)
    q.e("s_cbranch_scc1 L_X\n;ENDLOOP\nL_Xx:")
    q.e(f"s_cmp_eq_u32 {sCA}, 0\ns_cbranch_scc1 L_Xo")
    q.e(mask_ops(NMA)); q.e("s_branch L_X")
    if OPT["wopf"]:
        q.e(f"L_wo:\nbuffer_load_dword v{vDummy}, v26, s[20:23], s41 offen\ns_branch L_wo_back")
    q.e("L_Xo:")
    stamp(q, 9)
    q.e(f"s_cmp_eq_u32 {sCB}, -1\ns_cbranch_scc1 L_mB0\nL_mB0_back:")
    ool.e("L_mB0:"); ool.e(mask_ops(NMB)); ool.e("s_branch L_mB0_back")
    q.e(X2c); q.e(T)
    q.e("s_and_b32 s96, vcc_lo, 0x7f\ns_cbranch_scc1 L_pollACT\nL_pollACT_back:")
    poll_slow(ool, "L_pollACT", 27, 101)
    PE = OPT["peel"]
    q.e(f"s_cmp_ge_u32 s48, 30\ns_cbranch_scc1 L_noA" if PE else f"s_cmp_ge_u32 {sW}, 2\ns_cbranch_scc1 L_noA")

    def w01(k):
        t = Prog()
        t.e(f"s_cmp_ge_u32 {sW}, 2\ns_cbranch_scc1 L_w01_{k}")
        issue(t, w2_both(k))
        t.e(f"L_w01_{k}:")
        return t.l
    e = Prog()
    e.e(sum(step(ool, "Z0"), []))
    epilogue(e, 0, gs=range(4), mems=pl[:16])
    e.e(w01(0))
    e.e(sum(step(ool, "Z1", vmw=31), []))
    epilogue(e, 0, gs=range(4, 8), mems=pl[16:])
    e.e(w01(1))
    errs = lint(T + e.l + Z0a, "epiA")
    assert not errs, "\n".join(errs)
    q.e(e.l)
    q.e(f"L_noA:\ns_cmp_eq_u32 {sCB}, -1\ns_cbranch_scc1 L_F")
    stamp(q, 10)
    q.e(step(ool, "Z0", bar=["s_barrier"] + ([] if PE else ldA(2)))[0])
    q.e("s_cbranch_scc1 L_Zx")
    for c in range(1, OPT["zc"]):
        q.e(f"s_cmp_eq_u32 {sW}, {c}\ns_cbranch_scc1 L_Z{c}")
        a, b = step(ool, "Z0", bh=2 * c)
        extra.e(f";LOOP pad\nL_Z{c}:"); extra.e(b); extra.e(sum(step(ool, "Z1", bh=2 * c), [])); extra.e(a)
        extra.e(f"s_cbranch_scc0 L_Z{c}\n;ENDLOOP\ns_branch L_Zx")
    q.e(";LOOP\nL_Z:"); q.e(Z0b); q.e(Z1); q.e(Z0a)
    q.e("s_cbranch_scc0 L_Z\n;ENDLOOP\nL_Zx:")
    stamp(q, 11)
    q.e(mask_ops(NMB)); q.e(Z0bc); q.e(Z1c)
    q.e("L_F:")
    q.e(F)
    stamp(q, 12)
    q.e(f"s_cmp_lt_u32 {sW}, 2\ns_cbranch_scc1 L_epiB")
    q.e(cbar(3))
    a, b = Prog(), Prog()
    if PE:
        issue(a, w2_both(2) + w2_both(3) + w2_both(4) + w2_both(5))
        a.e("s_cmp_lt_u32 s48, 30\ns_cbranch_scc1 L_epiB\ns_waitcnt vmcnt(16)")
        epilogue(a, 0, mems=pl)
    else:
        epilogue(a, 0, mems=w2_both(2) + w2_both(3) + w2_both(4) + w2_both(5))
        a.e(ldA(3))
    epilogue(b, 1)
    errs = lint(F + a.l + b.l, "tail") + lint(F + b.l, "tail")
    assert not errs, "\n".join(errs)
    q.e(a.l); q.e("L_epiB:"); q.e(b.l)
    if OPT["pads"] and OPT["pad2"]:
        q.e(f"s_cmp_lt_u32 {sW}, 2\ns_cbranch_scc1 L_nopad2\ns_mov_b64 exec, 0\ns_cmp_eq_u32 {sW}, 2\ns_cbranch_scc1 L_qad1\ns_branch L_qad0")
        q.e("L_qadret:\ns_mov_b64 exec, -1\nL_nopad2:")
    q.e("s_waitcnt vmcnt(8)")
    return q


def oproj(ool):
    p = Prog()
    pre = [I("buffer_load_dword v0, v0, s[0:3], 0", tag=f"PA{f}") for f in range(28)]
    pre += [I("s_waitcnt vmcnt(0)")]
    pre += [I("buffer_load_dword v0, v0, s[0:3], 0", tag="CTXst") for _ in range(8)]
    p.e("L_P4:")
    stamp(p, 13)
    p.e(f"""
v_lshrrev_b32 v20, 2, v0
v_lshlrev_b32 v20, 7, v20
v_and_b32 v21, 3, v0
v_lshl_add_u32 v20, v21, 3, v20
v_bfe_u32 v21, v0, 3, 2
v_lshl_add_u32 v20, v21, 5, v20
s_and_b32 s6, s{sPM[0]}, 0x10000
v_add_u32 v{VP_TR[2]}, 0x20000, v20
v_add_u32 v{VP_TR[0]}, s6, v20
""")
    for cb in range(1, 4):
        p.e(f"v_xor_b32 v{VP_TR[2]+cb}, {32*cb}, v{VP_TR[2]}")
    p.e("s_barrier")

    def rd(n):
        kk, cb = n % 2, (n // 2) % 8
        win, k = divmod(P_SLOT[n // 16], 4)
        return [I(f"ds_read_b64_tr_b16 {vr(PWF+4*(n%16)+2*j,2)}, v{VP_TR[win]+cb%4} offset:{k*16384+(cb//4)*8192+kk*4096+j*2048}",
                  tag=f"PR{n//4}") for j in range(2)]
    for n in range(8):
        p.e(rd(n))
    p.wait("PR0")
    mf = []
    for kg in range(23):
        for cb in range(8):
            for rb, kk, f1 in walk(cb, 2):
                d = vr(PACC + 16 * (cb // 2) + 8 * rb + 4 * (cb % 2))
                n, f = 16 * kg + 2 * cb + kk, 4 * kg + 2 * kk + rb
                mf.append(I(f"{MF} {d}, {vr(PWF+4*(n%16))}, {p_areg(f)}, {'0' if kg == 0 and f1 else d}", needs=[f"PR{n//4}", f"PA{f}"]))
    NH = len(mf)
    g = Half(mf)
    for n in range(8, NH // 2):
        g.mem[2 * (n - 8)] += rd(n)
    for h in range(8, NH, 8):
        tags = [f"PR{h//8}"] + ([f"PA{h//8+3}"] if h % 32 == 0 else [])
        g.sh[h - 1].append(WAIT(*tags))
    for b in range(2, PSLAB, 2):
        tags = [f"PW{s}" for s in (b, b + 1) if 6 <= s < PSLAB]
        if tags:
            g.sh[32 * b - 20].append(WAIT(*tags))
        g.sh[32 * b - 19].append("s_barrier")

    def slot(h):
        h |= 1
        while g.cost(h):
            h += 2
        return h
    g.fill([f"v_xor_b32 v{VP_TR[0]+cb}, {32*cb}, v{VP_TR[0]}" for cb in range(1, 4)] +
           [f"v_xor_b32 v{VP_TR[1]+cb}, 0x10000, v{VP_TR[0]+cb}" for cb in range(4)] +
           ["v_and_b32 v27, 7, v0", "v_lshlrev_b32 v27, 2, v27"], (1, 3, 7, 9, 13))
    wstart = {6: 5, 7: 29, 8: 53, 9: 77, 10: 117, 11: 141}
    for s in range(12, PSLAB):
        wstart[s] = 191 + (s - 12) * 40
    lo = -1
    for s in range(6, PSLAB):
        if s >= 10:
            assert wstart[s] > 32 * (s - 8 + s % 2) - 19, s
        for i, (pr, ins) in enumerate(p_dma(s)):
            h = slot(wstart[s] + i * (6 if s < 12 else 10))
            if pr:
                g.before(pr, h, lo + 1)
            g.mem[h].append(ins)
            lo = h
        assert lo < 32 * (s - s % 2) - 40, s
    assert g.after(flag_addr("ctxA", 64) + flag_addr("ctxB", 65) +
                   ["s_and_b32 s66, s2, 1", "s_lshl_b32 s66, s66, 5", "s_add_u32 s66, s66, s48", "s_lshl_b32 s66, s66, 2",
                    "s_lshr_b32 s67, s2, 1", "s_and_b32 s67, s67, 3", "s_add_u32 s66, s66, s67", "s_lshl_b32 s66, s66, 7",
                    f"s_add_u32 s66, s66, {CTXF}"], 6) < 56
    g.sh[60].append(WAIT("CTXst"))
    g.mem[slot(61)].append(flag_store(vOne, 64))
    g.mem[slot(61)].append(flag_store(vOne, 65))
    if OPT["ctxa"]:
        g.val[slot(112)].append(I(f"v_mov_b32 v{vPoll}, 0"))
        g.mem[slot(120)] += ["s_mov_b64 exec, 0xff",
                             I(f"buffer_atomic_or v{vPoll}, v27, {srd(SRD_WS)}, s66 offen sc0", tag="pollCTX"), "s_mov_b64 exec, -1"]
        g.sh[163].append(WAIT("pollCTX"))
        g.val[163].append(I(f"v_cmp_ne_u32 vcc, 1, v{vPoll}", needs=["pollCTX"]))
        g.sh[165] += ["s_and_b32 s96, vcc_lo, 0xff", "s_cbranch_scc1 L_pollCTX", "L_pollCTX_back:"]
        ool.e(f"""
L_pollCTX:
s_mov_b32 s96, 0x40000
s_mov_b64 exec, 0xff
L_pollCTX_l:
v_mov_b32 v{vPoll}, 0
buffer_atomic_or v{vPoll}, v27, {srd(SRD_WS)}, s66 offen sc0
s_waitcnt vmcnt(0)
v_cmp_ne_u32 vcc, 1, v{vPoll}
s_sub_u32 s96, s96, 1
s_cbranch_scc1 L_pollCTX_x
s_cbranch_vccnz L_pollCTX_l
L_pollCTX_x:
s_mov_b64 exec, -1
s_branch L_pollCTX_back
""")
    else:
        g.mem[slot(120)].append(poll_req(27, 66, "pollCTX"))
        g.sh[163].append(WAIT("pollCTX"))
        g.val[163].append(I(f"v_cmp_ne_u32 vcc, 1, v{vPoll}", needs=["pollCTX"]))
        g.sh[165] += ["s_cbranch_vccnz L_pollCTX", "L_pollCTX_back:"]
        poll_slow(ool, "L_pollCTX", 27, 66)
    lo = 166
    for n, (pr, ins) in enumerate(p_aload(28, 92)):
        h = slot(max(lo + 1, 8 * (28 + n) - 100))
        if pr:
            g.before(pr, h, lo + 1)
        g.mem[h].append(ins)
        lo = h
    g.fill(["v_and_b32 v20, 15, v0", "v_lshrrev_b32 v21, 4, v0", "v_lshlrev_b32 v20, 10, v20", "v_lshl_add_u32 v22, v21, 3, v20",
            "v_lshrrev_b32 v21, 5, v0", "v_lshl_add_u32 v23, v21, 4, v20", "v_bfe_u32 v21, v0, 4, 1", "v_lshl_add_u32 v23, v21, 5, v23",
            "v_min_u32 v27, 2, v0", "v_xor_b32 v27, 3, v27", "v_xor_b32 v27, s67, v27", "v_lshlrev_b32 v27, 2, v27"], range(600, 640))
    ex = ["s_and_b32 s68, s2, 1", "s_lshl_b32 s68, s68, 5", "s_add_u32 s68, s68, s48", "s_lshl_b32 s68, s68, 15",
          "s_lshr_b32 s7, s2, 6", "s_lshl_b32 s6, s7, 8", "s_add_u32 s68, s68, s6", "s_lshl_b32 s6, s67, 6", "s_add_u32 s68, s68, s6",
          "s_add_u32 s69, s68, 0x4000"]
    if not OPT["sent"]:
        ex += ["s_mov_b32 s71, s67"] + ex_addr()
    ex += ["s_and_b32 s77, s27, 0xffffff80"]
    assert g.after(ex, 500) < 640
    if OPT["sent"]:
        g.mem[slot(642)].append(poll_req(27, 77, "pollEX"))
        g.sh[701].append(WAIT("pollEX"))
        g.val[701].append(I(f"v_cmp_ne_u32 vcc, 1, v{vPoll}", needs=["pollEX"]))
        g.sh[705] += ["s_cbranch_vccnz L_pollEX", "L_pollEX_back:"]
        poll_slow(ool, "L_pollEX", 27, 77)
    for a in range(4):
        g.mem[slot(656 + 8 * a)].append(I(f"buffer_load_dwordx2 {vr(PX+2*a,2)}, v22, {srd(SRD_X)}, s{68+a//2} offen offset:{32*(a%2)}", tag="xres"))
    if OPT["stamp"]:
        q = Prog(); stamp(q, 14); g.post[162] += q.l
        q = Prog(); stamp(q, 15); g.post[166] += q.l
        q = Prog(); stamp(q, 16); g.post[223] += q.l
    p.e(g.emit())
    stamp(p, 17)
    for i in range(3):
        b = PACC + 16 * i
        for t in range(2):
            for c in range(4 * t, 4 * t + 4):
                p.e(f"v_cvt_pk_bf16_f32 v{b+c}, v{b+2*c}, v{b+2*c+1}")
            if OPT["sent"]:
                for c in range(4 * t, 4 * t + 4):
                    p.e(f"v_min_u32 v{b+c}, -2, v{b+c}")
            p.e(I(f"buffer_store_dwordx4 {vr(b+4*t)}, {vL16}, {srd(SRD_WS)}, s{72+i} offen offset:{t*1024} sc1", tag="EXst"))
    b = PACC + 48

    def addbf(src):
        for c in range(8):
            p.e(f"v_lshlrev_b32 v20, 16, v{src+c}")
            p.e(f"v_and_b32 v21, 0xffff0000, v{src+c}")
            p.e(f"v_pk_add_f32 {vr(b+2*c,2)}, {vr(b+2*c,2)}, v[20:21]")
    exld = [I(f"buffer_load_dwordx4 {vr(PR+8*i+4*t)}, {vL16}, {srd(SRD_WS)}, s{24+i} offen offset:{t*1024} sc1", tag=f"EXr{i}")
            for i in range(3) for t in range(2)]
    if OPT["sent"]:
        p.e(exld)
        p.wait("xres")
        addbf(PX)
        stamp(p, 18)
        p.e("s_mov_b32 s96, 0x40000\nL_rx:\ns_waitcnt vmcnt(0)")
        p.e(f"v_max_u32 v20, v{PR}, v{PR+1}")
        for r in range(2, 24, 2):
            p.e(f"v_max3_u32 v20, v20, v{PR+r}, v{PR+r+1}")
        p.e("v_cmp_eq_u32 vcc, -1, v20\ns_sub_u32 s96, s96, 1\ns_cbranch_vccnz L_rx_again\nL_rx_done:")
        ool.e("L_rx_again:\ns_cbranch_scc1 L_rx_done\ns_sleep 1")
        ool.e([I(x.text) for x in exld])
        ool.e("s_branch L_rx")
        stamp(p, 19)
        for i in range(3):
            addbf(PR + 8 * i)
    else:
        p.wait("xres")
        addbf(PX)
        p.wait("EXst")
        if OPT["pk"] == 4:
            stamp(p, 18)
            p.e(f"""
s_mov_b32 s96, 0x40000
s_mov_b64 exec, 1
v_mov_b32 v{vPoll}, 1
buffer_atomic_add v{vPoll}, off, {srd(SRD_WS)}, s77 sc0
s_waitcnt vmcnt(0)
v_cmp_gt_u32 vcc, 3, v{vPoll}
s_cbranch_vccz L_pollEX_done
L_pollEX:
v_mov_b32 v{vPoll}, 0
buffer_atomic_add v{vPoll}, off, {srd(SRD_WS)}, s77 sc0
s_waitcnt vmcnt(0)
v_cmp_gt_u32 vcc, 4, v{vPoll}
s_sub_u32 s96, s96, 1
s_cbranch_scc1 L_pollEX_done
s_cbranch_vccnz L_pollEX
L_pollEX_done:
s_mov_b64 exec, -1
""")
        else:
            p.e(flag_store(vOne, 27))
            stamp(p, 18)
            p.e(f"""
s_mov_b32 s96, 0x40000
{"s_mov_b64 exec, 7" if OPT["pk"] == 2 else ""}
L_pollEX:
{spin_ld(27, 77, OPT["pk"])}
s_waitcnt vmcnt(0)
v_cmp_ne_u32 vcc, 1, v{vPoll}
s_sub_u32 s96, s96, 1
s_cbranch_scc1 L_pollEX_done
s_cbranch_vccnz L_pollEX
L_pollEX_done:
{"s_mov_b64 exec, -1" if OPT["pk"] == 2 else ""}
""")
        stamp(p, 19)
        p.e(exld)
        for i in range(3):
            p.wait(f"EXr{i}")
            addbf(PR + 8 * i)
    for c in range(8):
        p.e(f"v_cvt_pk_bf16_f32 v{b+c}, v{b+2*c}, v{b+2*c+1}")
    p.e("s_nop 1")
    for t in range(2):
        p.e(f"v_permlane16_swap_b32 v{b+4*t}, v{b+4*t+2}")
        p.e(f"v_permlane16_swap_b32 v{b+4*t+1}, v{b+4*t+3}")
    for t in range(2):
        p.e(f"buffer_store_dwordx4 {vr(b+4*t)}, v23, {srd(SRD_OUT)}, s{68+t} offen")
    stamp(p, 20)
    rstamp(p, 61)
    stamp_flush(p)
    p.e("L_end:\ns_endpgm")
    l = resolve_waits(pre + p.l)[len(pre):]
    errs = lint(l, "oproj")
    assert not errs, "\n".join(errs)
    if OPT["sim"]:
        t, gp = simulate(l)
        print("oproj", t, sum(gp))
    return l


def kernel():
    p, ool = Prog(), Prog()
    setup(p)
    if OPT["stamp"]:
        p.e("v_mov_b32 v31, 0")
    rstamp(p, 60)
    stamp(p)
    projections(p, ool)
    head = resolve_waits(p.l)
    errs = lint(head, "head")
    assert not errs, "\n".join(errs)
    if OPT["sim"]:
        t, gp = simulate(head)
        print("head", t, [sum(gp[a:b]) for a, b in ((0, 512), (512, 768), (768, 1024), (1024, 1280), (1280, 1536), (1536, 1791), (1791, 1900))])
    extra = Prog()
    l = head + attention(ool, extra).l + oproj(ool) + [I(";PADHERE")] + ool.l + extra.l + [I("L_hot_end:")]
    l = layout(l)
    for q in RARE.values():
        l += q.l
    return text_of(l)


def sizes(l):
    import subprocess, tempfile, os
    txt = '.amdgcn_target "amdgcn-amd-amdhsa--gfx950"\n.text\n' + text_of(l) + "".join(text_of(q.l) for q in RARE.values())
    txt += "L_pad0:\nL_pad1:\nL_pad2:\nL_pad3:\nL_qad0:\nL_qad1:\ns_endpgm\n"
    d = tempfile.mkdtemp()
    open(d + "/a.s", "w").write(txt)
    subprocess.run(["clang", "-x", "assembler", "-target", "amdgcn-amd-amdhsa", "-mcpu=gfx950", "-c", d + "/a.s", "-o", d + "/a.o"], check=True)
    out = subprocess.run(["llvm-objdump", "-d", "--mcpu=gfx950", d + "/a.o"], capture_output=True, text=True, check=True).stdout
    sz = [4 * len(re.findall(r"\b[0-9A-F]{8}\b", ln.split("//")[1].split(":")[1])) for ln in out.splitlines() if "//" in ln]
    it = iter(sz)
    return [0 if x.kind == "meta" else next(it) for x in l]


def layout(l):
    sz = sizes(l)
    out, pads, qads = [], [], []
    stage2 = False
    off = None
    need = False

    def pad():
        nonlocal off
        if OPT["pads"]:
            lst, nm = (qads, "qad") if stage2 else (pads, "pad")
            out.append(I(f"L_{nm}{len(lst)}:"))
            out.append(I("s_cbranch_execz PADNEXT"))
            lst.append(out[-1])
            off += 4
    for i, x in enumerate(l):
        if x.text == ";PAGE":
            out += [I("s_branch L_main"), I(".p2align 12"), I("L_main:")]
            off = 0
            pad()
            continue
        if x.text in ("L_P4:", "L_end:"):
            stage2 = OPT["pad2"] and x.text == "L_P4:"
        if x.text == ";PADHERE":
            pad()
            continue
        if x.text.startswith(";LOOP"):
            j = next(k for k in range(i, len(l)) if l[k].text == ";ENDLOOP")
            n = sum(sz[i:j])
            st = -(-off // 32) * 32
            if x.text == ";LOOP pad":
                o64 = -(-off // 64) * 64
                if o64 // 4096 != (o64 + 32 + n - 1) // 4096:
                    out.append(I(".p2align 12"))
                    o64 = -(-off // 4096) * 4096
                out.append(I(".p2align 6"))
                off, need = o64, False
                pad()
                out.append(I(".p2align 5"))
                off = -(-off // 32) * 32
                continue
            if need or st // 4096 != (st + n - 1) // 4096 or st // 4096 != (off - 1) // 4096:
                out.append(I(f"s_branch {l[i+1].text[:-1]}"))
                off += 4
                if not need:
                    out.append(I(".p2align 12"))
                    off = -(-off // 4096) * 4096
                need = False
                pad()
                st = -(-off // 32) * 32
            out.append(I(".p2align 5"))
            off = st
            continue
        out.append(x)
        if off is None:
            continue
        o0, off = off, off + sz[i]
        if o0 // 4096 != off // 4096:
            need = True
        if need and x.kind != "meta":
            nx = next(y for y in l[i + 1:] if y.kind != "meta")
            good = x.text.startswith("v_mfma") and not nx.text.startswith("s_")
            if good or off % 4096 >= 40:
                need = False
                pad()
    for k, x in enumerate(pads):
        x.text = "s_cbranch_execz " + (f"L_pad{k+4}" if k + 4 < len(pads) else "L_padret")
    for k, x in enumerate(qads):
        x.text = "s_cbranch_execz " + (f"L_qad{k+2}" if k + 2 < len(qads) else "L_qadret")
    if OPT["sim"]:
        print("code bytes after anchor", off, "pads", len(pads), len(qads))
    return out


def main():
    k = kernel()
    s = f"""; layernorm + K/V/Q/MLP projections + causal attention + output projection in one launch (generated by gen/gen3.py)
; @launch grid=(256,1,1) block=(256,1,1) lds=163840
.amdgcn_target "amdgcn-amd-amdhsa--gfx950"
.text
.globl {NAME}_kernel
.p2align 12
.p2align 8
.type {NAME}_kernel,@function
{NAME}_kernel:
{k}
.section .rodata,"a"
.p2align 6
.amdhsa_kernel {NAME}_kernel
  .amdhsa_next_free_vgpr 512
  .amdhsa_next_free_sgpr 102
  .amdhsa_accum_offset 256
  .amdhsa_group_segment_fixed_size 0
  .amdhsa_kernarg_size 104
  .amdhsa_user_sgpr_count 2
  .amdhsa_user_sgpr_kernarg_segment_ptr 1
  .amdhsa_system_sgpr_workgroup_id_x 1
.end_amdhsa_kernel
"""
    open(sys.argv[1], "w").write(s)


main()
```

```python
import sys, struct, re
from asmlib import *

NAME = "parallel_sum__compressed_kv_cla__dense_activation_mish__prompt"
OPT = dict(stamp=0, thr=40, rot=7, nt=0, xnt=0, deep=1, cpf=1, wopf=1, sim=0, barh=0, pads=1, wqt=300, w2t=0, zc=4, sent=0, p2rot=7, xnsc=1, kvpad=0, xnpad=0, xnrt=0, sigp=4, dbgno=0, n0=6, pad2=0, lnh=90, ordp=1, orda=1, ones4=1, bko=0, exo=0, pk=4, pkc=0, ctxa=1, peel=1, probe=0, lnb=0, bar2=1, slph=-2, slpn=8, slpj=0, kvst=0, wsoff=0, cpf2=1, padat=-1, padus=0)
for a in sys.argv[2:]:
    k, v = a.split("=")
    assert k in OPT, k
    OPT[k] = int(v)


def f2u(x):
    return struct.unpack("<I", struct.pack("<f", x))[0]


KVFL = ("", "sc1", "nt", "sc1 nt")[OPT["kvst"]]
MF = "v_mfma_f32_16x16x32_bf16"
MF32 = "v_mfma_f32_32x32x16_bf16"
XN_OFF = 0
KV_OFF = 72 << 20 if OPT['kvpad'] or OPT['xnpad'] else 2 << 20
KV_HS = (1 << 20) + OPT['kvpad']
XN_RS = 32768 + OPT['xnpad']
AF_OFF = 34 << 20
AF_KS = 368
FL_OFF = 58 << 20
CTXF, EXF, KVF = FL_OFF, FL_OFF + 32768, FL_OFF + 65536
ST_OFF = 60 << 20
EX_OFF = 64 << 20
WS_BYTES = 268435456 - (OPT['wsoff'] << 20)

sW, sH, sJ = "s3", "s4", "s5"
SRD_CKV, SRD_WUK, SRD_WUV, SRD_W1, SRD_WQ, SRD_WS, SRD_X, SRD_B1, SRD_DBG, SRD_ACT = (
    8, 12, 16, 20, 24, 28, 32, 36, 40, 44)
SRD_W2, SRD_WO, SRD_OUT, SRD_KV = 8, 12, 16, 36


def srd(n):
    return f"s[{n}:{n+3}]"


def vr(b, n=4):
    return f"v[{b}:{b+n-1}]"


def ar(b, n=4):
    return f"a[{b}:{b+n-1}]"


vL16 = "v1"
VA_DMA, VW_DMA, VW1_DMA, VTR, VA_RD = 2, 6, 10, 14, 18
WF, TP, ACC0, ACC1, BIAS = 32, 64, 96, 160, 224
LDS_A = 98304
vOne, vPoll, vDummy = 28, 29, 30
S0, S1, EX, P0, P1, NMA, NMB, ONES = 192, 208, 128, 144, 152, 96, 112, 228
OA, OB, KF, VF = 0, 64, 128, 160
vR0, vR1, vMask, vChk, vBit, vNinf = 2, 3, 4, 5, 6, 7
sKa, sKb, sM, sCA, sCB = "s52", "s53", "s54", "s55", "s56"
MASKS = 64
SHIFT = float(OPT["thr"])
VP_DMA = 10
VP_TR = (200, 204, 208)
sPA, sPC, sPW2, sPWO, sPM = 57, 58, 59, 60, (61, 62, 63)
PWF, PACC, PX, PR = 64, 128, 192, 200


def mk_srd(n, lo, nbytes):
    return [f"s_mov_b32 s{n}, s{lo}", f"s_and_b32 s{n+1}, s{lo+1}, 0xffff",
            f"s_mov_b32 s{n+2}, {nbytes}", f"s_mov_b32 s{n+3}, 0x20000"]


stamp_n = [0]


pad_n = [0]


def stamp(p, idx=None):
    if OPT["padat"] >= 0:
        if idx is None:
            idx = stamp_n[0]
            stamp_n[0] += 1
        if idx == OPT["padat"]:
            n = pad_n[0]
            pad_n[0] += 1
            p.e(f"""v_readfirstlane_b32 s96, v31
L_spin{n}:
s_memrealtime s[98:99]
s_waitcnt lgkmcnt(0)
s_sub_u32 s98, s98, s96
s_cmp_lt_u32 s98, {OPT["padus"]*100}
s_cbranch_scc1 L_spin{n}""")
        return
    if OPT["stamp"] == 0:
        return
    if idx is None:
        idx = stamp_n[0]
        stamp_n[0] += 1
    if OPT["stamp"] == 3 and idx not in (3, 5):
        return
    p.e(f"s_memtime s[98:99]")
    p.e("s_waitcnt lgkmcnt(0)")
    p.e(f"v_writelane_b32 v31, s98, {idx}")


def rstamp(p, lane):
    if not OPT["stamp"]:
        return
    p.e(f"s_memrealtime s[98:99]")
    p.e("s_waitcnt lgkmcnt(0)")
    p.e(f"v_writelane_b32 v31, s98, {lane}")


def stamp_flush(p):
    if not OPT["stamp"]:
        return
    p.e("s_lshl_b32 s98, s2, 2")
    p.e(f"s_add_u32 s98, s98, {sW}")
    p.e("s_lshl_b32 s98, s98, 8")
    p.e(f"s_add_u32 s98, s98, {ST_OFF}")
    p.e(f"v_lshrrev_b32 v30, 2, {vL16}")
    p.e(f"buffer_store_dword v31, v30, {srd(SRD_WS)}, s98 offen")


def setup(p):
    p.e(f"""
s_cmp_ge_u32 s2, 256
s_cbranch_scc1 L_end
""")
    if OPT["padat"] >= 0:
        p.e("s_memrealtime s[98:99]\ns_waitcnt lgkmcnt(0)\nv_mov_b32 v31, s98")
    p.e(f"""
s_load_dwordx16 s[48:63], s[0:1], 0
s_load_dwordx8 s[64:71], s[0:1], 64
s_load_dwordx2 s[72:73], s[0:1], 96
v_lshrrev_b32 v20, 6, v0
v_and_b32 v0, 63, v0
v_readfirstlane_b32 {sW}, v20
v_lshlrev_b32 {vL16}, 4, v0
s_and_b32 s6, s2, 7
s_lshr_b32 s7, s2, 6
s_lshl_b32 s7, s7, 3
s_add_u32 {sH}, s6, s7
s_lshr_b32 {sJ}, s2, 3
s_and_b32 {sJ}, {sJ}, 7
""")
    if OPT["cpf"]:
        p.e(f"""
s_getpc_b64 s[96:97]
L_pc:
s_lshr_b32 s6, s2, 3
s_mul_i32 s6, s6, 3072
v_min_u32 v20, 23, v0
v_lshl_add_u32 v20, v20, 7, s6
v_min_u32 v20, L_hot_end-L_pc, v20
s_cmp_lg_u32 {sW}, 0
s_cbranch_scc1 L_nocpf
global_load_dword v{vDummy}, v20, s[96:97]
L_nocpf:
""")
        p.l[-2].kind = "op"
    p.e(f"""
v_lshrrev_b32 v20, 3, v0
v_and_b32 v21, 7, v0
v_lshrrev_b32 v22, 4, v0
v_xor_b32 v23, v21, v22
v_lshlrev_b32 v23, 4, v23
v_lshl_add_u32 v{VA_DMA}, v20, 10, v23
v_xor_b32 v24, 64, v{VA_DMA}
v_add_u32 v{VA_DMA+1}, {7*1024}, v24
v_add_u32 v{VA_DMA+2}, {14*1024}, v{VA_DMA}
v_add_u32 v{VA_DMA+3}, {21*1024}, v24
v_and_b32 v22, 1, v22
v_lshlrev_b32 v22, 1, v22
v_xor_b32 v23, v21, v22
v_lshlrev_b32 v23, 4, v23
v_xor_b32 v25, 64, v23
v_lshl_add_u32 v{VW_DMA}, v20, 13, v23
v_lshl_add_u32 v{VW_DMA+1}, v20, 13, v25
v_mul_u32_u24 v24, 3584, v20
v_add_u32 v{VW1_DMA}, v24, v23
v_add_u32 v{VW1_DMA+1}, v24, v25
""")
    for b, pitch in ((VW_DMA, 8192), (VW1_DMA, 3584)):
        d = 8 * pitch - 1024
        p.e(f"v_add_u32 v{b+2}, {2*d}, v{b}\nv_add_u32 v{b+3}, {3*d}, v{b+1}\nv_add_u32 v{b+1}, {d}, v{b+1}")
    p.e(f"""
v_lshrrev_b32 v20, 4, v0
v_lshlrev_b32 v20, 3, v20
v_bfe_u32 v21, v0, 2, 2
v_add_u32 v20, v20, v21
v_lshlrev_b32 v20, 7, v20
v_and_b32 v21, 3, v0
v_lshl_add_u32 v20, v21, 3, v20
v_bfe_u32 v21, v0, 3, 2
v_lshl_add_u32 v{VTR}, v21, 5, v20
""")
    for cb in range(1, 4):
        p.e(f"v_xor_b32 v{VTR+cb}, {32*cb}, v{VTR}")
    p.e(f"""
s_lshl_b32 s6, {sW}, 13
s_add_u32 s74, s6, {LDS_A}
v_and_b32 v20, 15, v0
v_lshlrev_b32 v20, 7, v20
v_add_u32 v20, s74, v20
v_bfe_u32 v21, v0, 1, 3
v_lshrrev_b32 v22, 4, v0
v_xor_b32 v21, v21, v22
v_lshl_add_u32 v{VA_RD}, v21, 4, v20
v_xor_b32 v{VA_RD+1}, 64, v{VA_RD}
""")
    p.e(f"""
s_lshl_b32 s75, {sJ}, 2
s_add_u32 s75, s75, {sW}
s_lshl_b32 s75, s75, 16
s_lshl_b32 s76, {sH}, 8
s_lshl_b32 s77, {sW}, 12
s_lshr_b32 s6, {sW}, 1
s_lshl_b32 s6, s6, 7
s_and_b32 s7, {sW}, 1
s_lshl_b32 s7, s7, 18
s_add_u32 s78, s76, s6
s_add_u32 s78, s78, s7
s_add_u32 s79, {sJ}, {sH}
s_and_b32 s79, s79, {OPT["rot"]}
s_lshl_b32 s100, s79, 19
s_lshl_b32 s101, s79, 7
v_and_b32 v20, 7, v0
v_lshrrev_b32 v21, 3, v0
v_lshlrev_b32 v21, 4, v21
v_lshl_add_u32 v20, v20, 10, v21
s_lshl_b32 s6, s2, 13
s_lshl_b32 s7, {sW}, 8
s_add_u32 s6, s6, s7
s_waitcnt lgkmcnt(0)
""")
    if OPT["wsoff"]:
        p.e(f"s_add_u32 s72, s72, {OPT['wsoff'] << 20}\ns_addc_u32 s73, s73, 0")


def a_dma(q):
    out = []
    for rb in range(2):
        for u in range(4):
            pre = []
            if u == 0 and rb == 0:
                pre = [f"s_add_u32 m0, s74, {(q%2)*32768}", f"s_add_u32 s80, s101, {q*128}",
                       "s_and_b32 s80, s80, 0x3ff", "s_add_u32 s80, s80, s75"]
            if u == 0 and rb == 1:
                pre = [f"s_add_u32 m0, s74, {(q%2)*32768 + 4096}", "s_add_u32 s80, s80, 32768"]
            out.append((pre, I(f"buffer_load_dwordx4 v{VA_DMA+u}, {srd(SRD_CKV)}, s80 offen offset:{u*1024} lds", tag=f"A{q}")))
    return out


def res(rb, ks):
    return ar(((rb // 2) * 32 + 2 * ks + rb % 2) * 4)


def a_reads(q):
    out = []
    for s in range(2):
        for rb in range(4):
            out.append(I(f"ds_read_b128 {res(rb, 2*q+s)}, v{VA_RD+s} offset:{(q%2)*32768 + rb*2048}",
                         tag=f"Ar{q}", needs=[f"A{q}"]))
    return out


CHUNKS = [("Vlo", SRD_WUV, 0), ("Vhi", SRD_WUV, 128), ("H", SRD_W1, 0), ("Qlo", SRD_WQ, 0), ("Qhi", SRD_WQ, 128)]
NSLAB = 28
if OPT["deep"]:
    W_ISSUE = [-1, -1, 0, 1, 2, 3, 4, 5, 6, 6, 6, 7, 7, 7, 8, 8, 9, 9, 10, 11, 17, 19, 20, 20, 21, 21, 22, 22]
else:
    W_ISSUE = [-1, -1] + list(range(26))
W_SLOT = []
NOBAR = (13, 14, 15, 16, 18, 23, 26) if OPT["bar2"] else ()
_free_at = [-1] * 6 + [7, 7, 8, 8]
for _s in range(NSLAB):
    assert W_ISSUE[_s] <= max(_s - 2, -1)
    _c = [k for k in range(10) if _free_at[k] <= W_ISSUE[_s] and (_s < 24 or k >= 6) and (not 20 <= _s < 24 or k < 6)]
    _k = min(_c, key=lambda k: (_free_at[k], k))
    W_SLOT.append(_k)
    _free_at[_k] = _s + 2
WNT = " nt" if OPT["nt"] else ""
XNT = " nt" if OPT["xnt"] else ""


def w_dma(pslab):
    out = []
    slot = W_SLOT[pslab] * 16384
    if pslab < 8:
        sr, va = SRD_WUK, VW_DMA
        so = [f"s_add_u32 s81, s100, {pslab<<19}", "s_and_b32 s81, s81, 0x3fffff", "s_add_u32 s81, s81, s78"]
    else:
        c, i = divmod(pslab - 8, 4)
        nm, sr, col = CHUNKS[c]
        if nm == "H":
            va = VW1_DMA
            so = [f"s_mov_b32 s81, s{52+i}"]
        else:
            va = VW_DMA
            so = [f"s_add_u32 s81, s{60+i}, {col}"]
    for u in range(4):
        pre = [f"s_add_u32 m0, s77, {slot}"] + so if u == 0 else []
        out.append((pre, I(f"buffer_load_dwordx4 v{va+u}, {srd(sr)}, s81 offen offset:{u*1024}{' nt' if (OPT['nt'] >> pslab) & 1 else ''} lds", tag=f"W{pslab}")))
    return out


def w_read(n, j):
    slot = (W_SLOT[n // 16] * 16384) % 65536
    kk, cb = n % 2, (n // 2) % (8 if n < 128 else 4)
    if n < 128:
        off = slot + (cb // 4) * 8192 + kk * 4096 + j * 512
    else:
        off = slot + (2 * ((n // 8) % 2) + kk) * 4096 + j * 512
    return I(f"ds_read_b64_tr_b16 {vr(WF + 4*(n%8) + 2*j, 2)}, v{VTR + cb % 4} offset:{off}", tag=f"Wr{n//2}")


def walk(cb, nrb):
    out = []
    for pos in range(nrb):
        rb = nrb - 1 - pos if cb % 2 else pos
        for i in range(2):
            out.append((rb, i ^ (pos % 2), i == 0))
    if not OPT["ordp"]:
        out = [(rb, kk, kk == 0) for kk in range(2) for rb in range(nrb)]
    return out


LX, LU, LT = 224, 232, 76
LN_LDS = 5 * 16384


def layernorm(p):
    t, mean, var = LT, f"v{LT+4}", f"v{LT+5}"
    p.wait("X")
    for i in range(8):
        p.e(f"v_and_b32 v{LU+1+2*i}, 0xffff0000, v{LX+i}")
        p.e(f"v_lshlrev_b32 v{LU+2*i}, 16, v{LX+i}")

    def reduce(v, slot):
        p.e(f"""
s_nop 1
v_add_f32_dpp {v}, {v}, {v} row_ror:8 row_mask:0xf bank_mask:0xf
v_mov_b32 v{t}, {v}
s_nop 1
v_permlane16_swap_b32 {v}, v{t}
v_add_f32 {v}, {v}, v{t}
v_mov_b32 v{t}, {v}
s_nop 1
v_permlane32_swap_b32 {v}, v{t}
v_add_f32 {v}, {v}, v{t}
""")
        p.e(I(f"ds_write_b32 v22, {v} offset:{slot*128}", tag=f"lnw{slot}"))
        p.wait(f"lnw{slot}")
        p.e("s_barrier")
        p.e(I(f"ds_read_b128 {vr(t)}, v21 offset:{slot*128}", tag=f"lnr{slot}"))
        p.wait(f"lnr{slot}")
        p.e(f"""
v_add_f32 v{t}, v{t}, v{t+1}
v_add_f32 v{t+2}, v{t+2}, v{t+3}
v_add_f32 {v}, v{t}, v{t+2}
v_mul_f32 {v}, 0x{f2u(1/512):x}, {v}
""")

    p.e(f"v_add_f32 {mean}, v{LU}, v{LU+1}")
    for i in range(2, 16):
        p.e(f"v_add_f32 {mean}, {mean}, v{LU+i}")
    reduce(mean, 0)
    p.e(";CUT")
    p.e(f"v_sub_f32 v{t}, v{LU}, {mean}")
    p.e(f"v_mul_f32 {var}, v{t}, v{t}")
    for i in range(1, 16):
        p.e(f"v_sub_f32 v{t}, v{LU+i}, {mean}")
        p.e(f"v_fmac_f32 {var}, v{t}, v{t}")
    reduce(var, 1)
    tail = f"""
v_cvt_pk_bf16_f32 v{t}, {mean}, {var}
v_lshlrev_b32 {mean}, 16, v{t}
v_and_b32 {var}, 0xffff0000, v{t}
v_add_f32 {var}, 0x{f2u(1e-5):x}, {var}
v_cvt_pk_bf16_f32 v{t}, {var}, {var}
v_lshlrev_b32 {var}, 16, v{t}
v_sqrt_f32 {var}, {var}
v_sub_f32 v{LU}, v{LU}, {mean}
v_cvt_pk_bf16_f32 v{t}, {var}, {var}
v_lshlrev_b32 {var}, 16, v{t}
v_rcp_f32 {var}, {var}
""".strip().split("\n")
    for i in range(1, 16):
        tail.append(f"v_sub_f32 v{LU+i}, v{LU+i}, {mean}")
    for i in range(8):
        tail += [f"v_cvt_pk_bf16_f32 v{t}, v{LU+2*i}, v{LU+1+2*i}", f"v_lshlrev_b32 v{t+1}, 16, v{t}", f"v_and_b32 v{t+2}, 0xffff0000, v{t}",
                 f"v_mul_f32 v{t+1}, v{t+1}, {var}", f"v_mul_f32 v{t+2}, v{t+2}, {var}", f"v_cvt_pk_bf16_f32 v{64+i}, v{t+1}, v{t+2}"]
    return tail


def flag_addr(kind, dst):
    d = f"s{dst}"
    if kind in ("ctxA", "ctxB"):
        rb = "s48" if kind == "ctxA" else "s49"
        return [f"s_lshl_b32 {d}, {rb}, 2", f"s_lshr_b32 s7, {sH}, 3", f"s_add_u32 {d}, {d}, s7", f"s_lshl_b32 {d}, {d}, 5",
                f"s_and_b32 s7, {sH}, 7", f"s_add_u32 {d}, {d}, s7", f"s_lshl_b32 {d}, {d}, 2", f"s_add_u32 {d}, {d}, {CTXF}"]
    if kind in ("actA", "actB"):
        rb = "s48" if kind == "actA" else "s49"
        return [f"s_mul_i32 s7, {sH}, 37", "s_lshr_b32 s7, s7, 8", "s_mul_i32 s7, s7, 25", f"s_lshl_b32 {d}, {rb}, 7", f"s_add_u32 {d}, {d}, s7",
                f"s_add_u32 {d}, {d}, {sH}", f"s_lshl_b32 {d}, {d}, 2", f"s_add_u32 {d}, {d}, {CTXF + 32}"]
    if kind == "kv":
        return [f"s_lshl_b32 {d}, {sH}, 5", f"s_add_u32 {d}, {d}, s48", f"s_lshl_b32 {d}, {d}, 2", f"s_add_u32 {d}, {d}, {KVF}"]
    if kind == "ex":
        return [f"s_and_b32 {d}, s2, 1", f"s_lshl_b32 {d}, {d}, 3", f"s_add_u32 {d}, {d}, {sJ}", f"s_lshl_b32 {d}, {d}, 2",
                "s_lshr_b32 s7, s2, 6", f"s_add_u32 {d}, {d}, s7", f"s_lshl_b32 {d}, {d}, 2", f"s_add_u32 {d}, {d}, {sW}",
                f"s_lshl_b32 {d}, {d}, 7", "s_and_b32 s7, s2, 6", "s_lshl_b32 s7, s7, 1", f"s_add_u32 {d}, {d}, s7",
                f"s_add_u32 {d}, {d}, {EXF}"]
    raise Exception(kind)


def flag_store(val, s, tag=None, sr=SRD_WS):
    return I(f"buffer_store_dword v{val}, off, {srd(sr)}, s{s} sc1", tag=tag)


def poll_req(vidx, s, tag):
    return I(f"buffer_load_dword v{vPoll}, v{vidx}, {srd(SRD_WS)}, s{s} offen sc1", tag=tag)


def spin_ld(vidx, s, k):
    if k == 2:
        return f"v_mov_b32 v{vPoll}, 0\nbuffer_atomic_or v{vPoll}, v{vidx}, {srd(SRD_WS)}, s{s} offen sc0"
    return f"buffer_load_dword v{vPoll}, v{vidx}, {srd(SRD_WS)}, s{s} offen " + ("sc1", "sc1 nt", "", "sc0 sc1")[k]


def poll_slow(out, label, vidx, s, cmp="v_cmp_ne_u32 vcc, 1"):
    out.e(f"""
{label}:
s_mov_b32 s96, 0x40000
{label}_l:
{"s_sleep %d" % OPT["bko"] if OPT["bko"] else ""}
{spin_ld(vidx, s, OPT["pkc"])}
s_waitcnt vmcnt(0)
{cmp}, v{vPoll}
s_sub_u32 s96, s96, 1
s_cbranch_scc1 {label}_back
s_cbranch_vccnz {label}_l
s_branch {label}_back
""")


def grp(buf, i):
    if buf == 2:
        return TP + 8 * i if i < 4 else BIAS + 8 * (i - 4)
    return buf + 8 * i


def acc(buf, vtype, cb, rb):
    if vtype:
        return grp(buf, (rb // 2) * 4 + cb) + 4 * (rb % 2)
    return grp(buf, (cb // 2) * 4 + rb) + 4 * (cb % 2)


def issue(p, lst):
    for pre, ins in lst:
        p.e(pre)
        p.e(ins)


def place(g, lst, h0, step, lo):
    prev = lo
    for i, (pre, ins) in enumerate(lst):
        h = h0 + i * step
        assert h > prev
        if pre:
            g.before(pre, h, prev + 1)
        g.mem[h].append(ins)
        prev = h
    return prev


def kv_dma(n):
    out = []
    for u in range(4):
        pre = [f"s_sub_u32 m0, s{sPM[2]}, {0x20000 - n*16384}", f"s_mov_b32 s97, {n*16384}"] if u == 0 else []
        out.append((pre, I(f"buffer_load_dwordx4 {vL16}, {srd(SRD_KV)}, s97 offen offset:{u*1024} sc1 lds", tag=f"KV{n}")))
    return out


PSLAB = 23
P_SLOT = [8, 9, 0, 1, 2, 3, 4, 5, 6, 7]
P_SLOT = [P_SLOT[s % 10] for s in range(PSLAB)]


def p_dma(s):
    win, k = divmod(P_SLOT[s], 4)
    sr, so = (SRD_W2, f"s_add_u32 s97, s{sPW2}, {s*65536}") if s < 7 else (SRD_WO, f"s_add_u32 s97, s{sPWO}, {(s-7)*65536}")
    out = []
    for u in range(4):
        pre = [f"s_add_u32 m0, s{sPM[win]}, {k*16384}", so] if u == 0 else []
        out.append((pre, I(f"buffer_load_dwordx4 v{VP_DMA+u}, {srd(sr)}, s97 offen offset:{u*1024} lds", tag=f"PW{s}")))
    return out


def p_areg(ks):
    if 16 <= ks < 24:
        return vr(32 + 4 * (ks - 16))
    if 24 <= ks < 28:
        return vr((224, 232, 236, 244)[ks - 24])
    return ar(128 + 4 * ((ks + 16) % 32) if ks < 16 else 128 + 4 * ((ks - 24) % 32))


def p_aload(ks0, ks1):
    out = []
    for ks in range(ks0, ks1):
        pre = []
        if ks % 4 == 0:
            pre = [f"s_add_u32 s100, s{sPA}, {ks*1024}" if ks < 28 else f"s_add_u32 s100, s{sPC}, {(ks-28)*1024}"]
        out.append((pre, I(f"buffer_load_dwordx4 {p_areg(ks)}, {vL16}, {srd(SRD_WS)}, s100 offen offset:{(ks%4)*1024} sc1", tag=f"PA{ks}")))
    return out


def ex_addr():
    ex = ["s_and_b32 s76, s2, 1", "s_lshl_b32 s76, s76, 3", f"s_add_u32 s76, s76, {sJ}", "s_lshl_b32 s76, s76, 2", "s_lshr_b32 s7, s2, 6",
          "s_add_u32 s76, s76, s7", "s_lshl_b32 s76, s76, 17", f"s_lshl_b32 s6, {sW}, 11", "s_add_u32 s76, s76, s6", f"s_add_u32 s76, s76, {EX_OFF}"]
    for i in range(3):
        ex += [f"s_xor_b32 s6, s71, {i ^ 3}", "s_lshl_b32 s7, s6, 2", "s_add_u32 s7, s7, s71", "s_lshl_b32 s7, s7, 13", f"s_add_u32 s{72+i}, s76, s7",
               "s_lshl_b32 s7, s71, 2", "s_add_u32 s7, s7, s6", "s_lshl_b32 s7, s7, 13", f"s_add_u32 s{24+i}, s76, s7"]
    return ex + flag_addr("ex", 27)


def slp():
    if OPT["slpj"]:
        return [f"s_and_b32 s98, s2, {OPT['slpj']}", "s_cbranch_scc0 L_noslp", f"s_sleep {OPT['slpn']}", "L_noslp:"]
    return [f"s_sleep {OPT['slpn']}"]


def projections(p, ool):
    if OPT["slph"] == -1:
        p.e(slp())
    p.e(mk_srd(SRD_CKV, 50, 2048 * 1024))
    issue(p, a_dma(0))
    p.e("s_mov_b32 s96, s6")
    p.e(mk_srd(SRD_X, 48, 2048 * 1024))
    p.e(mk_srd(SRD_WUK, 54, 512 * 8192))
    p.e(mk_srd(SRD_WS, 72, WS_BYTES))
    p.e(mk_srd(SRD_WUV, 56, 512 * 8192))
    p.e(mk_srd(SRD_WQ, 52, 512 * 8192))
    p.e(mk_srd(SRD_W1, 62, 512 * 3584))
    p.e(mk_srd(SRD_B1, 64, 3584))
    p.e(mk_srd(SRD_DBG, 70, 256))
    p.e(mk_srd(SRD_ACT, 72, WS_BYTES))
    p.e(f"""
s_cmp_lt_u32 {sH}, 28
s_cselect_b32 s{SRD_W1+2}, s{SRD_W1+2}, 0
s_cselect_b32 s{SRD_ACT+2}, s{SRD_ACT+2}, 0
s_lshl_b32 s83, {sH}, 7
s_lshl_b32 s6, {sH}, 6
s_lshl_b32 s7, {sJ}, 3
s_add_u32 s6, s6, s7
s_lshl_b32 s7, {sW}, 1
s_add_u32 s6, s6, s7
s_lshl_b32 s6, s6, 14
s_add_u32 s84, s6, {KV_OFF}
s_mul_i32 s6, {sH}, {OPT['kvpad']}
s_add_u32 s84, s84, s6
""")
    for i in range(1, 8):
        p.e(f"s_add_u32 s{84+i}, s84, {i*4096}")
    p.e(f"s_lshl_b32 s6, s79, 1\ns_add_u32 s6, s6, {sW}\ns_lshl_b32 s6, s6, 5")
    for i in range(4):
        p.e(f"""
s_add_u32 s7, s6, {128*i}
s_and_b32 s7, s7, 511
s_lshl_b32 s{60+i}, s7, 13
s_add_u32 s{60+i}, s{60+i}, s76
""")
    p.e(f"s_and_b32 s79, s79, {OPT['p2rot']}\ns_lshl_b32 s6, s79, 1\ns_add_u32 s6, s6, {sW}\ns_lshl_b32 s82, s6, 5")
    for i in range(4):
        p.e(f"""
s_add_u32 s7, s82, {128*i}
s_and_b32 s7, s7, 511
s_mul_i32 s{52+i}, s7, 3584
s_add_u32 s{52+i}, s{52+i}, s83
""")
    p.e(f"""
s_lshl_b32 s70, s79, 12
s_lshl_b32 s48, {sJ}, 2
s_add_u32 s48, s48, {sW}
s_sub_u32 s49, 63, s48
s_mul_i32 s92, s48, {XN_RS}
s_mul_i32 s93, s49, {XN_RS}
s_mul_i32 s50, s48, {AF_KS*1024}
s_mul_i32 s51, s49, {AF_KS*1024}
s_add_u32 s50, s50, {AF_OFF}
s_add_u32 s51, s51, {AF_OFF}
s_lshl_b32 s6, {sH}, 12
s_add_u32 s6, s6, {256*1024}
s_add_u32 s94, s50, s6
s_add_u32 s95, s51, s6
""")
    stamp(p, 21)
    issue(p, w_dma(0))
    p.e(I(f"buffer_load_dwordx4 {vr(LX)}, v20, {srd(SRD_X)}, s96 offen", tag="X"))
    p.e(I(f"buffer_load_dwordx4 {vr(LX+4)}, v20, {srd(SRD_X)}, s96 offen offset:128", tag="X"))
    stamp(p, 22)
    p.e(f"""
v_and_b32 v21, 7, v0
v_lshlrev_b32 v21, 4, v21
v_bfe_u32 v24, v0, 3, 2
v_lshl_add_u32 v24, v24, 8, v21
v_lshrrev_b32 v25, 5, v0
v_lshl_add_u32 v24, v25, 11, v24
v_add_u32 v21, {LN_LDS}, v21
s_lshl_b32 s6, {sW}, 2
v_add_u32 v22, s6, v21
s_lshr_b32 s6, s2, 2
s_mul_i32 s6, s6, {XN_RS}
s_and_b32 s7, s2, 2
s_lshl_b32 s7, s7, 9
s_add_u32 s6, s6, s7
s_and_b32 s7, s2, 1
s_lshl_b32 s7, s7, 7
s_add_u32 s6, s6, s7
s_lshl_b32 s7, {sW}, 13
s_add_u32 s96, s6, s7
s_add_u32 s97, s96, 4096
""")
    p.e(flag_addr("kv", 65))
    p.e(f"""
s_getreg_b32 s57, hwreg(HW_REG_XCC_ID, 0, 4)
s_lshl_b32 s64, s2, 8
s_add_u32 s64, s64, {FL_OFF}
s_and_b32 s65, s65, 0xfffffff0
s_cmp_eq_u32 {sW}, 0
s_cselect_b32 s64, s64, 0x80000000
s_cmp_eq_u32 {sW}, 1
s_cselect_b32 s65, s65, 0x80000000
s_and_b32 s71, s2, 63
s_lshl_b32 s71, s71, 2
v_mov_b32 v27, 0
v_lshlrev_b32 v26, 2, v0
v_mov_b32 v{vOne}, 1
""")
    p.e([f"v_mov_b32 v{72+r}, s57" for r in range(4)])
    first = [([], I(f"buffer_store_dwordx4 v[64:67], v24, {srd(SRD_WS)}, s96 offen sc1", tag="XNst")),
             ([], I(f"buffer_store_dwordx4 v[68:71], v24, {srd(SRD_WS)}, s97 offen sc1", tag="XNst")),
             ([], I(f"buffer_store_dword v27, v26, {srd(SRD_WS)}, s64 offen sc1", tag="XNst")),
             ([], I(f"buffer_store_dwordx4 v[72:75], off, {srd(SRD_WS)}, s65 sc1", tag="XNst"))]
    if OPT["wqt"] >= 0:
        p.e(f"""
v_bfe_u32 v25, v0, 1, 4
v_lshlrev_b32 v25, 13, v25
v_and_b32 v23, 1, v0
v_lshl_add_u32 v25, v23, 7, v25
s_lshl_b32 s56, s75, 1
s_add_u32 s56, s56, s76
""")
    stamp(p, 23)
    if OPT["pads"]:
        p.e("s_mov_b64 exec, 0")
        for w in (1, 2, 3):
            p.e(f"s_cmp_eq_u32 {sW}, {w}\ns_cbranch_scc1 L_pad{w}")
        p.e("s_branch L_pad0\nL_padret:\ns_mov_b64 exec, -1")
    p.e(";PAGE")
    issue(p, a_dma(1))
    stamp(p)
    p.wait("A0")
    for x in a_reads(0):
        p.e(x)
    p.wait("W0")
    p.e("s_barrier")
    for n in range(4):
        p.e(w_read(n, 0))
        p.e(w_read(n, 1))
    p.wait("Wr0", "Ar0")

    mf = []
    for kg in range(8):
        for cb in range(8):
            m = len(mf) // 8
            for rb, kk, f1 in walk(cb, 4):
                d = vr(acc(ACC0 if cb < 4 else ACC1, 0, cb % 4, rb))
                mf.append(I(f"{MF} {d}, {vr(WF+4*((2*m+kk)%8))}, {res(rb, 2*kg+kk)}, {'0' if kg == 0 and f1 else d}", needs=[f"Wr{m}", f"Ar{kg}"]))
    for ci, (nm, _, _) in enumerate(CHUNKS):
        buf = (ACC0, ACC1, ACC0, ACC1, 2)[ci]
        for kg in range(8):
            for cb in range(4):
                m = len(mf) // 8
                for rb, kk, f1 in walk(cb, 4):
                    d = c = vr(acc(buf, nm[0] == "V", cb, rb))
                    if kg == 0 and f1:
                        c = vr(BIAS + 4 * cb) if nm == "H" else "0"
                    wf, af = vr(WF + 4 * ((2 * m + kk) % 8)), res(rb, 2 * kg + kk)
                    a, b = (af, wf) if nm[0] == "V" else (wf, af)
                    nd = [f"Wr{m}"] + ([f"XN{kg}"] if nm == "H" else [])
                    mf.append(I(f"{MF} {d}, {a}, {b}, {c}", needs=nd))
    NH = len(mf)
    g = Half(mf)
    for n in range(4, NH // 4):
        for j in range(2):
            g.mem[4 * (n - 4) + 2 * j].append(w_read(n, j))
        if n % 16 >= 8 and n % 2 and n // 16 + 1 < NSLAB:
            dw = W_SLOT[n // 16 + 1] // 4 - W_SLOT[n // 16] // 4
            if dw:
                g.val[4 * (n - 4) + 2].append(I(f"v_add_u32 v{VTR+(n//2)%4}, 0x{(dw*65536) & 0xffffffff:x}, v{VTR+(n//2)%4}"))
    for h in range(8, NH, 8):
        tags = [f"Wr{h//8}"]
        if h < 512 and h % 64 == 0:
            tags += [f"Ar{h//64}"]
        if 1024 <= h < 1280 and h % 32 == 0:
            tags += [f"XN{(h-1024)//32}"]
        g.sh[h - 1].append(WAIT(*tags))
    for q in range(1, 8):
        h = 64 * q - 27
        g.sh[h - 1].append(WAIT(f"A{q}"))
        for i, x in enumerate(a_reads(q)):
            g.mem[h - 1 + 2 * i].append(x)
    for ps in range(1, NSLAB):
        if ps in NOBAR:
            assert ps not in W_ISSUE
            continue
        nx = ps + 1
        while nx in NOBAR:
            assert W_ISSUE[nx] <= ps - 2
            nx += 1
        tags = [f"W{k}" for k in range(ps, nx)] + (["XNst"] if ps == OPT["sigp"] else []) + (["KV0"] if ps == 27 else [])
        g.sh[64 * ps - 19].append(WAIT(*tags))
        g.sh[64 * ps - 18].append("s_barrier")
    lo = -1
    for ps in range(0, NSLAB):
        lst = []
        for sl in range(NSLAB):
            if W_ISSUE[sl] == ps:
                lst += w_dma(sl)
        if ps == 0:
            lo = place(g, w_dma(1), 3, 2, -1)
            lo = place(g, a_dma(2) + lst, 13, 4, lo)
        elif ps < 6:
            st = max(lo + 4, 64 * ps + 1)
            lo = place(g, a_dma(ps + 2) + lst, st, 4, lo)
        elif lst:
            lo = place(g, lst, 64 * ps - 13, 4 if len(lst) > 8 else 6, max(lo, 64 * ps - 19))
    g.after([("s_mov_b32 s7, 1", f"s_cmp_lg_u32 {sW}, 0", "s_cbranch_scc1 L_nosig", f"s_atomic_add s7, s[{SRD_DBG}:{SRD_DBG+1}], s71", "L_nosig:")],
            64 * OPT["sigp"] - 16)

    def slot(h):
        h |= 1
        while g.mem[h] or g.val[h]:
            h += 2
        return h

    def kv_store(src, blk, f):
        return I(f"buffer_store_dwordx4 {vr(src)}, {vL16}, {srd(SRD_WS)}, s{84+blk*4+f//4} offen offset:{(f%4)*1024} {KVFL}", tag="KVst")

    def cvt4(dst, src):
        return [f"v_cvt_pk_bf16_f32 v{dst+c}, v{src+2*c}, v{src+2*c+1}" for c in range(4)]

    q = Prog()
    tail = layernorm(q)
    LH = OPT["lnh"]
    cut = [x.text for x in q.l].index(";CUT")
    LB = OPT["lnb"]
    g.post[LH] += q.l[:cut]
    g.post[LH + LB] += q.l[cut + 1:]
    if LB:
        hl = LH + 2 * LB
        g.post[hl] += [I(x) for x in tail]
    else:
        hl = g.fill(tail, range(LH + 1, LH + 90), dense=True)
    assert LH + LB < 64 * 3 - 20
    assert W_SLOT[5] == 5 and hl + 20 < 64 * OPT["sigp"] - 50, hl
    for _, x in first:
        hl = slot(hl + 1)
        g.mem[hl].append(x)
    if OPT["probe"]:
        for k, h in enumerate((450, 765, 1500)):
            q = Prog()
            q.e("s_waitcnt vmcnt(0)")
            q.e(f"s_lshl_b32 s96, s2, 13\ns_lshl_b32 s97, {sW}, 11\ns_add_u32 s96, s96, s97\ns_add_u32 s96, s96, {k*512}\ns_xor_b32 s96, s96, 0x54000\ns_add_u32 s97, s96, {120<<20}")
            stamp(q, 24 + 4 * k)
            q.e(f"buffer_load_dword v{vDummy}, off, {srd(SRD_WS)}, s96 sc1\ns_waitcnt vmcnt(0)")
            stamp(q, 25 + 4 * k)
            q.e(f"buffer_store_dwordx4 v[0:3], {vL16}, {srd(SRD_WS)}, s97 offen sc1\ns_waitcnt vmcnt(0)")
            stamp(q, 26 + 4 * k)
            q.e(f"buffer_load_dword v{vDummy}, off, {srd(SRD_WS)}, s97 sc1\ns_waitcnt vmcnt(0)")
            stamp(q, 27 + 4 * k)
            g.post[h] += q.l
    if OPT["slph"] >= 0:
        g.post[OPT["slph"]] += slp()
    if OPT["xnrt"]:
        for k in (96, 97):
            g.mem[slot(OPT["xnrt"])].append(I(f"buffer_load_dword v{vDummy}, v24, {srd(SRD_WS)}, s{k} offen sc1"))
    prev = 770
    for i in range(64):
        f, blk = divmod(i, 2)
        h = slot(max(800 + (62 * i) // 10, prev + 1))
        assert 768 + 32 * (f // 4 + 1) <= h < 1024 + 32 * (f // 4) - 48
        if i % 8 == 0:
            g.before(["s_add_u32 s64, s92, s70", "s_add_u32 s65, s93, s70"], h, prev + 1)
            g.after(["s_add_u32 s70, s70, 4096", "s_and_b32 s70, s70, 0x7fff"], h + 1)
        g.mem[h].append(I(f"buffer_load_dwordx4 {ar((blk*32+f)*4)}, {vL16}, {srd(SRD_WS)}, s{92 if OPT['dbgno'] == 2 else 64+blk} offen offset:{(f%4)*1024}{' sc1' if OPT['xnsc'] else ''}", tag=f"XN{f//4}"))
        prev = h
    kf = lambda i, hi: ((i % 4) // 2, (i % 2) * 4 + 2 * hi + i // 4)
    vf = lambda i, hi: (i // 4, 8 + 4 * hi + i % 4)
    it = []
    for i in range(8):
        it += cvt4(TP + 4 * i, ACC0 + 8 * i)
    g.fill(it, range(476, 512))
    tp_st = [kv_store(TP + 4 * i, *kf(i, 0)) for i in range(8)]

    def epi_inplace(buf, h0, fidx, extra):
        it, st = [], []
        for i in range(8):
            it += cvt4(buf + 8 * i, buf + 8 * i)
            st.append(kv_store(buf + 8 * i, *fidx(i)))
        st = extra[:2] + st + extra[2:]
        for n, x in enumerate(st):
            if (OPT["dbgno"] == 1 and h0 > 512) or (OPT["dbgno"] == 3 and h0 > 512 and n % 3 == 0) or (OPT["dbgno"] == 4 and h0 == 512 and n):
                continue
            g.mem[slot(h0 + 6 + (n * 240) // len(st))].append(x)
        g.fill(it, range(h0 + 2, h0 + 40))
    epi_inplace(ACC1, 512, lambda i: kf(i, 1), tp_st[:4])
    epi_inplace(ACC0, 768, lambda i: vf(i, 0), tp_st[4:6])
    epi_inplace(ACC1, 1024, lambda i: vf(i, 1), tp_st[6:])
    g.fill(["v_lshrrev_b32 v20, 4, v0", "v_lshlrev_b32 v20, 3, v20"], range(676, 680))
    for cb in range(4):
        g.mem[slot(684 + 6 * cb)].append(I(f"buffer_load_dwordx2 {vr(BIAS+4*cb+2,2)}, v20, {srd(SRD_B1)}, s83 offen offset:{32*cb}", tag="B1"))
    g.after([WAIT("B1")], 876)
    it = []
    for cb in range(4):
        b = BIAS + 4 * cb
        it += [I(f"v_lshlrev_b32 v{b}, 16, v{b+2}", needs=["B1"]), f"v_and_b32 v{b+1}, 0xffff0000, v{b+2}",
               f"v_lshlrev_b32 v{b+2}, 16, v{b+3}", f"v_and_b32 v{b+3}, 0xffff0000, v{b+3}"]
    g.fill(it, range(884, 920))
    g.mem[slot(672)].append(I(f"buffer_load_dword v{vPoll}, v26, {srd(SRD_DBG)}, 0 offen sc1", tag="pollLN"))
    g.sh[760].append(WAIT("pollLN"))
    g.val[760].append(I(f"v_cmp_gt_u32 vcc, 4, v{vPoll}", needs=["pollLN"]))
    g.sh[763] += ["s_cbranch_vccnz L_pollLN", "L_pollLN_back:"]
    ool.e(f"""
L_pollLN:
s_mov_b32 s96, 0x40000
L_pollLN_l:
s_sleep 2
buffer_load_dword v{vPoll}, v26, {srd(SRD_DBG)}, 0 offen sc1
s_waitcnt vmcnt(0)
v_cmp_gt_u32 vcc, 4, v{vPoll}
s_sub_u32 s96, s96, 1
s_cbranch_scc1 L_pollLN_back
s_cbranch_vccnz L_pollLN_l
s_branch L_pollLN_back
""")
    if OPT["p2rot"] != 7:
        l = []
        for i in range(4):
            l += [f"s_add_u32 s7, s82, {128*i}", "s_and_b32 s7, s7, 511", f"s_lshl_b32 s{60+i}, s7, 13", f"s_add_u32 s{60+i}, s{60+i}, s76"]
        assert g.after(l, 930) < 1000
    late = mk_srd(SRD_W2, 66, 1792 * 1024) + mk_srd(SRD_WO, 58, 4096 * 1024) + mk_srd(SRD_OUT, 68, 2048 * 1024)
    late += [f"s_mul_i32 s6, {sH}, {KV_HS}", "s_add_u32 s6, s6, s77", f"s_add_u32 s6, s6, {KV_OFF}", f"s_mov_b32 s{SRD_KV+2}, 0x100000",
             (f"s_add_u32 s{SRD_KV}, s72, s6", f"s_addc_u32 s{SRD_KV+1}, s73, 0"), f"s_and_b32 s{SRD_KV+1}, s{SRD_KV+1}, 0xffff"]
    late += flag_addr("kv", 82) + ["s_and_b32 s80, s82, 0xffffff80", "s_mov_b32 s71, 0"]
    if OPT["wopf"]:
        late += ["s_mul_i32 s56, s2, 7168", (f"s_cmp_eq_u32 {sW}, 2", "s_cselect_b32 s56, s56, 0x1000000")]
    assert g.after(late, 1160) < 1226
    g.fill(["v_and_b32 v27, 31, v0", "v_lshlrev_b32 v27, 2, v27", "v_lshlrev_b32 v26, 7, v0"], range(1218, 1226))
    g.mem[slot(1228)].append(poll_req(27, 80, "pollXC"))
    g.sh[1272].append(WAIT("pollXC"))
    g.fill([I(f"v_and_b32 v{vPoll}, 0xff, v{vPoll}", needs=["pollXC"]), f"v_cmp_ne_u32 vcc, s57, v{vPoll}",
            f"v_mov_b32 v{vPoll}, s57", f"v_or_b32 v{vPoll}, 0x100, v{vPoll}"], range(1272, 1277))
    g.sh[1300].append(WAIT("KVst"))
    g.sh[1301] += ["s_cbranch_vccnz L_xrel", "L_xrel_back:"]
    ool.e("L_xrel:\ns_mov_b32 s71, 1\nbuffer_wbl2 sc1\ns_waitcnt vmcnt(0)\ns_branch L_xrel_back")
    g.mem[slot(1302)].append(flag_store(vPoll, 82))
    if OPT["wopf"]:
        if OPT["w2t"] > 0:
            g.mem[slot(OPT["w2t"])].append(I(f"buffer_load_dword v{vDummy}, v26, {srd(SRD_W2)}, s56 offen", tag="wopf"))
    if OPT["wqt"] > 0:
        g.mem[slot(OPT["wqt"])].append(I(f"buffer_load_dword v{vDummy}, v25, {srd(SRD_WQ)}, s56 offen"))
    g.mem[slot(1540)].append(poll_req(27, 80, "pollKV"))
    assert g.after(flag_addr("actA", 78) + flag_addr("actB", 79) + [f"s_add_u32 s{sPM[2]}, s77, 0x20000"], 1544) < 1580
    g.sh[1586].append(WAIT("pollKV"))
    g.val[1586].append(I(f"v_cmp_gt_u32 vcc, 0x100, v{vPoll}", needs=["pollKV"]))
    g.sh[1589] += ["s_cbranch_vccnz L_pollKV", "L_pollKV_back:"]
    poll_slow(ool, "L_pollKV", 27, 80, "v_cmp_gt_u32 vcc, 0x100")
    g.sh[1592] += ["s_cmp_lg_u32 s71, 0", "s_cbranch_scc1 L_xacq", "L_xacq_back:"]
    ool.e("L_xacq:\nbuffer_inv sc1\ns_waitcnt vmcnt(0)\ns_branch L_xacq_back")
    assert W_SLOT[24:] == [6, 7, 8, 9]
    lo = 1592
    for n in range(7):
        lo = place(g, kv_dma(n), 1597 + 24 * n, 6, lo)
    for k in range(12):
        g.mem[1714 + 4 * k].append(I(f"ds_read_b128 {ar(KF+4*k)}, {vL16} offset:{k*1024}", tag="K0", needs=["KV0"]))
    ps = [
        "s_and_b32 s6, s2, 1", "s_lshl_b32 s6, s6, 5", "s_add_u32 s6, s6, s48",
        "s_lshr_b32 s71, s2, 1", "s_and_b32 s71, s71, 3",
        "s_lshl_b32 s101, s6, 2", "s_add_u32 s101, s101, s71", "s_lshl_b32 s101, s101, 7", f"s_add_u32 s101, s101, {CTXF + 32}",
        "s_mul_i32 s7, s71, 28",
        f"s_mul_i32 s6, s6, {AF_KS*1024}", f"s_add_u32 s6, s6, {AF_OFF}",
        "s_lshl_b32 s7, s7, 10", f"s_add_u32 s{sPA}, s6, s7", f"s_add_u32 s{sPA}, s{sPA}, {256*1024}",
        "s_lshl_b32 s7, s71, 16", f"s_add_u32 s{sPC}, s6, s7",
        f"s_xor_b32 s6, s71, {sW}", "s_xor_b32 s6, s6, 3", "s_lshr_b32 s6, s6, 1", "s_lshl_b32 s6, s6, 7",
        "s_lshr_b32 s7, s2, 6", "s_lshl_b32 s7, s7, 8", "s_add_u32 s6, s6, s7",
        f"s_and_b32 s7, {sW}, 1", "s_lshl_b32 s7, s7, 15", "s_add_u32 s6, s6, s7",
        f"s_mul_i32 s7, s71, {448*1024}", f"s_add_u32 s{sPW2}, s6, s7",
        "s_lshl_b32 s7, s71, 20", f"s_add_u32 s{sPWO}, s6, s7",
        f"s_and_b32 s6, {sJ}, 1", "s_lshl_b32 s6, s6, 16", f"s_add_u32 s{sPM[0]}, s77, s6",
        f"s_xor_b32 s{sPM[1]}, s{sPM[0]}, 0x10000", f"s_add_u32 {sM}, s77, {7*16384}",
        "s_and_b32 s75, s71, 1", "s_xor_b32 s75, s75, 1", "s_lshl_b32 s75, s75, 6",
        f"s_mov_b32 {sKa}, 0x4000", f"s_mov_b32 {sCA}, s48", f"s_sub_u32 {sCB}, 30, s48",
        f"s_sub_u32 s41, {sJ}, 2", "s_lshl_b32 s41, s41, 5", f"s_add_u32 s41, s41, {sH}", "s_lshl_b32 s41, s41, 2",
        f"s_add_u32 s41, s41, {sW}", "s_lshl_b32 s41, s41, 13",
    ]
    if OPT["w2t"] > 0:
        ps += [f"s_mov_b32 s{20+i}, s{SRD_WO+i}" for i in range(3)]
    else:
        ps += ["s_sub_u32 s6, s41, 0x200000", (f"s_cmp_lt_u32 {sJ}, 4", "s_cselect_b32 s41, s41, s6") +
               tuple(f"s_cselect_b32 s{20+i}, s{SRD_W2+i}, s{SRD_WO+i}" for i in range(3))]
    if OPT["sent"]:
        ps += ex_addr()
    for r in range(4):
        m = sum(1 << l for l in range(64) if 4 * (l // 16) + r > l % 16)
        ps += [f"s_mov_b32 s{MASKS+2*r}, 0x{m & 0xffffffff:x}", f"s_mov_b32 s{MASKS+2*r+1}, 0x{m >> 32:x}"]
    assert g.after(ps, 1594) < 1765
    it = []
    LOG2E = f"0x{f2u(1.4426950408889634):x}"
    for i in range(8):
        dl, rb = divmod(i, 4)
        b = ACC0 + 8 * i
        for c in range(4):
            x0, x1 = b + 2 * c, b + 2 * c + 1
            it += [f"v_mul_f32 v20, {LOG2E}, v{x0}", "v_exp_f32 v20, v20", f"v_mul_f32 v21, {LOG2E}, v{x1}", "v_exp_f32 v21, v21",
                   "v_fma_f32 v22, v20, 0.5, 1.0", "v_fma_f32 v20, v20, v22, 1.0", "v_fma_f32 v23, v21, 0.5, 1.0",
                   "v_fma_f32 v21, v21, v23, 1.0", "v_rcp_f32 v20, v20"]
            if c or i:
                it.append(pend.pop())
            it += ["v_rcp_f32 v21, v21", f"v_fma_f32 v24, -v{x0}, v20, v{x0}"]
            if c == 0 and i:
                it.append(pst.pop())
            it.append(f"v_fma_f32 v25, -v{x1}, v21, v{x1}")
            pend = [f"v_cvt_pk_bf16_f32 v{b+c}, v24, v25"]
        pst = [I(f"buffer_store_dwordx4 {vr(b)}, {vL16}, {srd(SRD_ACT)}, s{94+rb//2} offen offset:{(2*dl+rb%2)*1024} sc1", tag="ACTst")]
    it += pend + pst
    nmish = len(it)
    QS = f"0x{f2u(1.4426950408889634 / 128 ** 0.5):x}"

    def q_epi(src, dst):
        it = []
        for c in range(4):
            it += [f"v_mul_f32 v{src+2*c}, {QS}, v{src+2*c}", f"v_mul_f32 v{src+2*c+1}, {QS}, v{src+2*c+1}",
                   f"v_cvt_pk_bf16_f32 v{dst+c}, v{src+2*c}, v{src+2*c+1}"]
        return it
    it += ["v_lshrrev_b32 v20, 3, v0", "v_and_b32 v21, 7, v0", "v_bfe_u32 v22, v0, 4, 2", "v_lshlrev_b32 v22, 1, v22",
           "v_xor_b32 v21, v21, v22", "v_lshlrev_b32 v21, 4, v21", "v_xor_b32 v21, s75, v21",
           f"v_lshl_add_u32 v{VP_DMA}, v20, 10, v21"] + [f"v_add_u32 v{VP_DMA+u}, {7168*u}, v{VP_DMA}" for u in (1, 2, 3)]
    it += ["v_min_u32 v27, 6, v0", "v_lshlrev_b32 v27, 2, v27", f"v_mov_b32 v{vMask}, 0x1c000", f"v_mov_b32 v{vBit}, 0x40004000",
           f"v_mov_b32 v{vNinf}, 0xff800000", f"v_mov_b32 v{vR0}, {vL16}"]
    it += ["v_and_b32 v25, 3, v0", "v_add_u32 v25, -1, v25", "v_ashrrev_i32 v25, 31, v25", "v_and_b32 v25, 0x3f803f80, v25"]
    it += [f"v_mov_b32 v{NMA+r}, 0" for r in range(16)] + [f"v_mov_b32 v{EX+r}, 0" for r in range(4)]
    for i in range(8):
        it += q_epi(ACC1 + 8 * i, ACC1 + 4 * i)
    it = [x if isinstance(x, I) else I(x) for x in it]
    FH = 1737
    g.sh[FH - 1].append(WAIT("ACTst"))
    g.mem[FH].append(flag_store(vOne, 78, sr=SRD_ACT))
    g.mem[FH + 2].append(flag_store(vOne, 79, sr=SRD_ACT))
    g.sh[1788] += [f"s_cmp_eq_u32 {sCA}, 0", "s_cbranch_scc1 L_mask0", "L_mask0_back:"]
    ool.e("L_mask0:"); ool.e(mask_ops(NMA)); ool.e("s_branch L_mask0_back")
    g.fill(it, range(1283, 1788))
    hm = [h for h in range(NH) if it[nmish - 1] in g.mem[h] + g.val[h]][0]
    assert 1675 < hm < FH - 40, hm
    assert g.after([(f"s_add_u32 s{SRD_KV}, s{SRD_KV}, {6*16384}", f"s_addc_u32 s{SRD_KV+1}, s{SRD_KV+1}, 0"),
                    f"s_lshl_b32 s7, {sJ}, 2", "s_sub_u32 s7, 58, s7", f"s_lshl_b32 s{SRD_KV+2}, s7, 14", f"s_mov_b32 m0, {sM}"], 1768) < 1786
    if OPT["stamp"] or OPT["padat"] >= 0:
        for h in (511, 767, 1023, 1279, 1535):
            q = Prog(); stamp(q); g.post[h] += q.l
        if OPT["stamp"] == 2:
            for k in range(28):
                q = Prog(); stamp(q, 24 + k); g.post[64 * k] += q.l
    p.e(g.emit())
    stamp(p)
    mB, mA = qk_mf(JB1, True, "0"), qk_mf(JA0, True)
    p.wait("K0")
    g = Half(mB[:8] + mA[:8] + mB[8:] + mA[8:])
    qe = lambda l: sum((q_epi(grp(2, i), grp(2, i)) for i in l), [])
    g.fill(qe((2, 3, 6, 7)) + ["s_nop 0"], range(0, 16))
    g.fill(qe((0, 1, 4, 5)) + ["s_nop 0"], range(16, 24))
    g.fill(rowmax(S1), range(26, 32))
    p.e(g.emit())
    it = [f"v_sub_f32 v{NMB+r}, 0x{f2u(-SHIFT):x}, v{20+r//8}" for r in range(16)]
    it += rowmax(S0) + [f"v_add_f32 v{20+qb}, 0x{f2u(SHIFT):x}, v{20+qb}" for qb in range(2)]
    it += [f"v_sub_f32 v{S0+r}, v{S0+r}, v{20+r//8}" for r in range(16)]
    z = Gaps([f"{MF32} {ar(16*i,16)}, {vr(EX)}, {vr(EX)}, 0" for i in range(8)])
    z.spread(it, 0, 8)
    p.e(z.emit())
    p.e([f"v_sub_f32 v{NMA+r}, 0, v{20+r//8}" for r in range(16)])
    p.e(sm_split(JA0, "Y")[0])
    p.e([f"v_mov_b32 v{lreg(r//8, (r//4)%2)+r%4}, 0" for r in range(16)] +
        ([f"v_mov_b32 v{ONES+r}, v25" for r in range(4)] if OPT["ones4"] else [f"v_mov_b32 v{ONES+r}, 0x3f803f80" for r in range(4)]))
    if OPT["sent"]:
        p.e([f"v_mov_b32 v{32+r}, -1" for r in range(4)])
        for i in range(6):
            p.e(I(f"buffer_store_dwordx4 v[32:35], {vL16}, {srd(SRD_WS)}, s{24+i//2} offen offset:{(i%2)*1024} sc1"))
    p.wait("KV2")
    stamp(p)


def qfrag(blk, qb, ds):
    rb = 2 * blk + qb
    return ACC1 + 4 * (4 * ds + rb) if ds < 2 else grp(2, 4 * (ds - 2) + rb)


def lreg(blk, qb):
    return TP + 4 + 8 * (2 * blk + qb)


class Job:
    def __init__(self, blk, par):
        self.blk = blk
        self.S = (S0, S1)[par]
        self.P = (P0, P1)[par]
        self.NM = (NMA, NMB)[blk]
        self.O = (OA, OB)[blk]


JA0, JB1, JB0 = Job(0, 0), Job(1, 1), Job(1, 0)


def sm_ops(j):
    o = {}
    for r in range(16):
        o[f"e{r}"] = f"v_exp_f32 v{EX+r}, v{j.S+r}"
    for i in range(8):
        o[f"c{i}"] = f"v_cvt_pk_bf16_f32 v{j.P+i}, v{EX+2*i}, v{EX+2*i+1}"
    o["o0"] = f"v_or3_b32 v{vChk}, v{j.P}, v{j.P+1}, v{j.P+2}"
    o["o1"] = f"v_or3_b32 v{vChk}, v{vChk}, v{j.P+3}, v{j.P+4}"
    o["o2"] = f"v_or3_b32 v{vChk}, v{vChk}, v{j.P+5}, v{j.P+6}"
    o["o3"] = f"v_bitop3_b32 v{vChk}, v{vChk}, v{j.P+7}, v{vBit} bitop3:0xa8"
    o["k"] = f"v_cmp_ne_u32 vcc, 0, v{vChk}"
    return o


SM_PLAN = {
    "Z": ({17: "e0", 18: "e1", 19: "e2", 20: "c0", 21: "e3", 22: "e4", 24: "c1", 25: "e5", 26: "e6", 27: "e7", 28: "c2",
           29: "e8", 30: "c3", 32: "e9", 33: "e10"},
          {0: "o0", 1: "e11", 2: "c4", 3: "e12", 4: "o1", 5: "e13", 8: "c5 e14", 9: "e15", 10: "c6", 11: "o2 c7", 12: "o3 k"}),
    "W": ({16: "e0", 17: "e1", 18: "e2", 19: "e3", 20: "c0", 21: "e4", 22: "c1", 24: "e5", 25: "e6", 26: "c2", 27: "e7", 28: "e8",
           29: "e9", 30: "c3", 32: "e10", 33: "e11"},
          {0: "o0", 1: "e12", 2: "c4", 3: "e13", 4: "o1", 5: "e14", 8: "c5", 9: "e15", 10: "c6", 11: "o2 c7", 12: "o3 k"}),
    "X": ({17: "e0", 19: "e1", 21: "e2", 22: "c0", 24: "e3", 25: "e4", 26: "e5", 27: "c1 c2", 28: "e6", 29: "e7",
           30: "e8", 32: "o0 c3", 33: "e9"},
          {0: "e10", 1: "e11", 2: "c4 o1", 3: "e12", 4: "e13", 5: "e14", 6: "c5", 7: "e15", 8: "c6", 9: "o2 c7", 10: "o3", 11: "k"}),
    "Y": ({17: "e0", 18: "e1", 19: "e2", 20: "e3", 21: "e4", 22: "e5", 23: "e6", 24: "c0", 25: "e7", 26: "c1", 27: "e8",
           28: "c2", 29: "e9", 30: "c3", 31: "e10", 32: "e11", 33: "o0 c4"},
          {1: "e12", 3: "e13", 5: "e14", 8: "o1", 9: "e15", 10: "c5", 11: "c6 o2", 12: "c7 o3", 13: "k"}),
}


def sm_split(j, plan):
    o = sm_ops(j)
    return [[o[n] for h in sorted(part) for n in part[h].split()] for part in SM_PLAN[plan]]


for _p in SM_PLAN.values():
    _o = [n for part in _p for h in sorted(part) for n in part[h].split()]
    assert sorted(_o) == sorted(sm_ops(JA0))
    _dep = {f"c{i}": (f"e{2*i}", f"e{2*i+1}") for i in range(8)}
    _dep.update(o0=("c0", "c1", "c2"), o1=("o0", "c3", "c4"), o2=("o1", "c5", "c6"), o3=("o2", "c7"), k=("o3",))
    assert all(_o.index(d) < _o.index(n) for n in _dep for d in _dep[n])


def qk_mf(j, dsmajor=False, c0=None):
    idx = [(kb, qb, ds) for kb in range(2) for qb in range(2) for ds in range(4)]
    if dsmajor:
        idx.sort(key=lambda t: t[2])
    elif OPT["orda"]:
        idx = [(kb, qb, ds if qb == kb else 3 - ds) for kb, qb in ((0, 0), (0, 1), (1, 1), (1, 0)) for ds in range(4)]
    out, seen = [], set()
    for kb, qb, ds in idx:
        t = 8 * qb + 4 * kb
        c = vr(j.S + t) if t in seen else (vr(j.NM + t) if c0 is None else c0)
        seen.add(t)
        out.append(f"{MF} {vr(j.S+t)}, {ar(KF+4*(4*kb+ds))}, {vr(qfrag(j.blk,qb,ds))}, {c}")
    return out


def pv_mf(j):
    sn = OPT["orda"]
    out = [f"{MF} {vr(lreg(j.blk,qb))}, {vr(ONES)}, {vr(j.P+4*qb)}, {vr(lreg(j.blk,qb))}" for qb in ((1, 0) if sn else (0, 1))]
    for db in range(8):
        for qb in ((1, 0) if sn and db % 2 else (0, 1)):
            o = ar(j.O + 8 * (2 * (db // 2) + qb) + 4 * (db % 2))
            out.append(f"{MF} {o}, {ar(VF+4*db)}, {vr(j.P+4*qb)}, {o}")
    return out


def rowmax(S):
    l = []
    for a, b in ((0, 1), (3, 4), (5, 6)):
        for qb in range(2):
            s = S + 8 * qb
            l.append(f"v_max3_f32 v{20+qb}, v{s+2 if a == 0 else 20+qb}, v{s+a}, v{s+b}")
    l += [f"v_max_f32 v{20+qb}, v{20+qb}, v{S+8*qb+7}" for qb in range(2)]
    for op in ("v_permlane16_swap_b32", "v_permlane32_swap_b32"):
        l += ["v_mov_b32 v22, v20", "v_mov_b32 v23, v21", "s_nop 0", f"{op} v20, v22", f"{op} v21, v23",
              "v_max_f32 v20, v20, v22", "v_max_f32 v21, v21, v23"]
    return l


RARE = {}


def rare(cur, nxt):
    fix = nxt is not None and nxt.blk == cur.blk
    name = f"L_rare_{cur.blk}_{cur.S}_{int(fix)}"
    if name in RARE:
        return name
    q = Prog()
    q.e(f"{name}:")
    q.e("s_nop 15")
    q.e(rowmax(cur.S))
    for qb in range(2):
        q.e(f"v_add_f32 v{20+qb}, 0x{f2u(SHIFT):x}, v{20+qb}\nv_max_f32 v{20+qb}, 0, v{20+qb}\nv_exp_f32 v{22+qb}, -v{20+qb}")
    for r in range(16):
        q.e(f"v_sub_f32 v{cur.NM+r}, v{cur.NM+r}, v{20+r//8}")
        q.e(f"v_sub_f32 v{cur.S+r}, v{cur.S+r}, v{20+r//8}")
        if fix:
            q.e(f"v_sub_f32 v{nxt.S+r}, v{nxt.S+r}, v{20+r//8}")
    for r in range(8):
        b = lreg(cur.blk, r // 4) + r % 4
        q.e(f"v_mul_f32 v{b}, v{b}, v{22+r//4}")
    for r in range(64):
        q.e(f"v_accvgpr_read_b32 v24, a{cur.O+r}")
        q.e(f"v_mul_f32 v24, v24, v{22+(r//8)%2}")
        q.e(f"v_accvgpr_write_b32 a{cur.O+r}, v24")
    o = sm_ops(cur)
    q.e([o[f"e{r}"] for r in range(16)] + [o[f"c{i}"] for i in range(8)])
    q.e("s_nop 1")
    q.e("s_setpc_b64 s[46:47]")
    errs = lint(q.l, name)
    assert not errs, errs
    RARE[name] = q
    return name


site_n = [0]


def step(ool, kind, extra=None, bar=("s_barrier",), ringdma=True, vmw=None, bh=0):
    cur, nxt = dict(X=(JA0, JB1), Y=(JB1, JA0), T=(JB1, JB0), Z0=(JB0, JB1), Z1=(JB1, JB0), F=(JB0, None))[kind]
    pcur = dict(X="Y", Y="X", T="X", Z0="W", Z1="Z", F="W")[kind]
    pnxt = dict(X="X", Y="Y", T="W", Z0="Z", Z1="W", F=None)[kind]
    rdV2, rdK, rdV1 = kind in ("X", "Z0", "Z1", "F"), kind in ("X", "T", "Z0", "Z1"), kind in ("Y", "T", "Z0", "Z1")
    dma = kind in ("X", "Z0", "Z1")
    rV2 = vR1 if kind == "Z1" else vR0
    rK = vR1 if kind in ("T", "Z1") else vR0
    rV1 = vR1 if kind == "Z0" else vR0
    sK = sKb if kind in ("T", "Z1") else sKa
    g = Half((qk_mf(nxt) if nxt else [None] * 16) + pv_mf(cur))
    if rdK:
        g.val[6].append(f"v_and_or_b32 v{rK}, {sK}, v{vMask}, {vL16}")
    o = sm_ops(cur)
    for h, v in SM_PLAN[pcur][1].items():
        g.val[h] += [o[n] for n in v.split()]
    if nxt:
        o = sm_ops(nxt)
        for h, v in SM_PLAN[pnxt][0].items():
            g.val[h] += [o[n] for n in v.split()]
    else:
        g.val[7].append("s_nop 0")
    n = site_n[0]
    site_n[0] += 1
    g.sh[15] += [f"s_cbranch_vccnz L_site{n}", f"L_back{n}:"]
    ool.e(f"L_site{n}:\ns_call_b64 s[46:47], {rare(cur, nxt)}\ns_branch L_back{n}")
    KH = (8, 10, 13, 13, 15, 18, 20, 22) if pcur in "ZW" else (8, 10, 15, 18, 18, 20, 20, 22) if kind == "X" else (8, 10, 12, 13, 15, 18, 20, 22)
    if rdV2:
        for f in range(4, 8):
            g.mem[2 * (f - 4)].append(f"ds_read_b128 {ar(VF+4*f)}, v{rV2} offset:{8192+1024*f}")
        g.sh[17].append("s_waitcnt lgkmcnt(%d)" % (sum(h < 17 for h in KH) if rdK else 0))
        g.sh[bh] += list(bar)
    if rdK:
        for k in range(8):
            g.mem[KH[k]].append(f"ds_read_b128 {ar(KF+4*k)}, v{rK} offset:{1024*k}")
        g.sh[33].append("s_waitcnt lgkmcnt(%d)" % (4 if rdV1 else 0))
    if rdV1:
        for f in range(4):
            g.mem[24 + 2 * f].append(f"ds_read_b128 {ar(VF+4*f)}, v{rV1} offset:{8192+1024*f}")
        if vmw != -1:
            g.sh[28].append("s_waitcnt vmcnt(%d)" % (vmw if vmw is not None else 15 if dma else 16))
    if dma and ringdma:
        for u, h in enumerate((7, 14, 23, 31)):
            g.mem[h].append(f"buffer_load_dwordx4 {vL16}, {srd(SRD_KV)}, {sK} offen offset:{u*1024} sc1 lds")
    if kind == "Y":
        g.after([f"s_add_u32 {sM}, {sM}, 0x4000", f"s_bitset0_b32 {sM}, 17", f"s_add_u32 {sKa}, {sKa}, 0x4000", f"s_sub_u32 {sCA}, {sCA}, 1",
                 f"s_cmp_lt_u32 {sKa}, s{SRD_KV+2}", f"s_cselect_b32 m0, {sM}, 0x30000"], 18)
    if kind == "X":
        g.sh[9].append(f"s_cmp_ge_u32 {sCA}, 2")
    if kind == "T":
        g.after([f"s_add_u32 {sKb}, {sKa}, 0x4000", f"s_add_u32 {sM}, {sM}, 0x4000", f"s_add_u32 {sKa}, {sKa}, 0x8000",
                 (f"s_sub_u32 s{SRD_KV}, s{SRD_KV}, 0x4000", f"s_subb_u32 s{SRD_KV+1}, s{SRD_KV+1}, 0"),
                 f"s_add_u32 s{SRD_KV+2}, s{SRD_KV+2}, 0x4000", f"s_bitset0_b32 {sM}, 17"], 0)
    if kind in ("Z0", "Z1"):
        if ringdma:
            g.sh[1].append(f"s_cmp_lt_u32 {sK}, s{SRD_KV+2}")
            g.sh[3].append(f"s_cselect_b32 m0, {sM}, 0x30000")
        so = sKb if kind == "Z0" else sKa
        g.after([f"s_add_u32 {sM}, {sM}, 0x4000", f"s_bitset0_b32 {sM}, 17", f"s_add_u32 {so}, {so}, 0x8000"], 18)
    if kind == "Z0":
        g.sh[9].append(f"s_sub_u32 {sCB}, {sCB}, 1")
    if extra:
        extra(g)
    l = g.emit()
    cut = [i for i, x in enumerate(l) if x.text == g.mf[16]][0] + 1
    return l[:cut], l[cut:]


def mask_ops(NM):
    l = [f"v_cndmask_b32 v{NM+t+r}, v{NM+t+r}, v{vNinf}, s[{MASKS+2*r}:{MASKS+2*r+1}]" for t in (0, 12) for r in range(4)]
    return l + [f"v_mov_b32 v{NM+4+r}, v{vNinf}" for r in range(4)] + ["s_nop 1"]


def epilogue(p, blk, tag=None, gs=range(8), mems=()):
    O = (OA, OB)[blk]
    if 0 in gs:
        p.e(f"""
v_rcp_f32 v{lreg(blk,0)}, v{lreg(blk,0)}
v_rcp_f32 v{lreg(blk,1)}, v{lreg(blk,1)}
s_lshl_b32 s6, {sH}, 13
s_add_u32 s6, s6, s{50+blk}
s_add_u32 s7, s6, 4096
""")
    mems = list(mems)
    per = -(-len(mems) // len(gs))
    for i in gs:
        b = NMA + 8 * (i % 2)
        issue(p, mems[:per])
        mems = mems[per:]
        for r in range(8):
            p.e(f"v_accvgpr_read_b32 v{b+r}, a{O+8*i+r}")
        for c in range(4):
            p.e(f"v_pk_mul_f32 {vr(b+2*c,2)}, {vr(b+2*c,2)}, {vr(lreg(blk,i%2),2)} op_sel_hi:[1,0]")
        for c in range(4):
            p.e(f"v_cvt_pk_bf16_f32 v{b+c}, v{b+2*c}, v{b+2*c+1}")
        p.e(I(f"buffer_store_dwordx4 {vr(b)}, {vL16}, {srd(SRD_WS)}, s{6+i//4} offen offset:{(i%4)*1024} sc1", tag=tag))


def attention(ool, extra):
    q = Prog()

    def memx(lst, hs):
        def f(g):
            assert len(hs) == len(lst)
            for (pre, ins), h in zip(lst, hs):
                g.mem[h] += pre + [ins]
        return f

    def cbar(n):
        return [f"s_cmp_lt_u32 {sW}, {n}", f"s_cbranch_scc1 L_nb{n}", "s_barrier", f"L_nb{n}:"]
    X1, X2 = step(ool, "X")

    def exY(g):
        if OPT["wopf"]:
            g.sh[13].append(f"s_cmp_eq_u32 {sCA}, 5")
            g.sh[14] += ["s_cbranch_scc1 L_wo", "L_wo_back:"]
    Y = sum(step(ool, "Y", exY), [])
    _, X2c = step(Prog(), "X", memx([([f"v_mov_b32 v{vPoll}, 0", "s_mov_b64 exec, 0x7f", f"buffer_atomic_or v{vPoll}, v27, {srd(SRD_WS)}, s101 offen sc0"],
                                      "s_mov_b64 exec, -1")], (16,)))

    def exT(g):
        g.sh[30].append("s_waitcnt vmcnt(2)")
        if OPT["sent"]:
            g.mem[31].append(flag_store(vOne, 27))
        g.val[31].append(f"v_cmp_ne_u32 vcc, 1, v{vPoll}")
    T = sum(step(ool, "T", exT), [])
    pl = p_aload(0, 28)
    if not OPT["peel"]:
        ool.e("L_ldA:\ns_waitcnt vmcnt(24)"); issue(ool, pl); ool.e("s_setpc_b64 s[44:45]")
    ldA = lambda n: [f"s_cmp_lg_u32 {sW}, {n}", f"s_cbranch_scc1 L_nl{n}", "s_call_b64 s[44:45], L_ldA", f"L_nl{n}:"]

    def w2_both(s):
        a, b = p_dma(s), p_dma(s)
        b[0] = (["s_xor_b32 m0, m0, 0x2000", "s_xor_b32 s97, s97, 0x80"], b[0][1])
        return a + b
    Z0a, Z0b = step(ool, "Z0")
    Z1 = sum(step(ool, "Z1"), [])
    _, Z0bc = step(Prog(), "Z0", ringdma=False, vmw=2)
    Z1c = sum(step(ool, "Z1", bar=cbar(1), ringdma=False, vmw=-1), [])
    F = sum(step(ool, "F", bar=cbar(2)), [])
    for nm, seq in (("XY", X1 + X2 + Y + X1 + X2), ("XT", X1 + X2c + T + Z0a + Z0b + Z1 + Z0a + Z0bc + Z1c + F), ("TF", T + F)):
        errs = lint(seq, nm)
        assert not errs, "\n".join(errs)
    if OPT["sim"]:
        br = [I("s_cbranch_scc1 LL")]
        for nm, seq in (("XY", (X2 + Y + X1 + br) * 3), ("Z", (Z0b + Z1 + Z0a + br) * 3)):
            t, gp = simulate(seq, taken=("LL",))
            print(nm, sum(gp[67:135]), gp[67:135])
        print("X2c+T", simulate(X2c + T)[0], "Z0bc+Z1c", simulate(Z0bc + Z1c)[0], "F", simulate(F)[0])
    q.e(step(ool, "X")[0])
    q.e("s_cbranch_scc0 L_Xx")
    q.e(";LOOP\nL_X:"); q.e(X2); q.e(Y); q.e(X1)
    q.e("s_cbranch_scc1 L_X\n;ENDLOOP\nL_Xx:")
    q.e(f"s_cmp_eq_u32 {sCA}, 0\ns_cbranch_scc1 L_Xo")
    q.e(mask_ops(NMA)); q.e("s_branch L_X")
    if OPT["wopf"]:
        q.e(f"L_wo:\nbuffer_load_dword v{vDummy}, v26, s[20:23], s41 offen\ns_branch L_wo_back")
    q.e("L_Xo:")
    stamp(q, 9)
    q.e(f"s_cmp_eq_u32 {sCB}, -1\ns_cbranch_scc1 L_mB0\nL_mB0_back:")
    ool.e("L_mB0:"); ool.e(mask_ops(NMB)); ool.e("s_branch L_mB0_back")
    q.e(X2c); q.e(T)
    q.e("s_and_b32 s96, vcc_lo, 0x7f\ns_cbranch_scc1 L_pollACT\nL_pollACT_back:")
    poll_slow(ool, "L_pollACT", 27, 101)
    PE = OPT["peel"]
    q.e(f"s_cmp_ge_u32 s48, 30\ns_cbranch_scc1 L_noA" if PE else f"s_cmp_ge_u32 {sW}, 2\ns_cbranch_scc1 L_noA")

    def w01(k):
        t = Prog()
        t.e(f"s_cmp_ge_u32 {sW}, 2\ns_cbranch_scc1 L_w01_{k}")
        issue(t, w2_both(k))
        t.e(f"L_w01_{k}:")
        return t.l
    e = Prog()
    e.e(sum(step(ool, "Z0"), []))
    epilogue(e, 0, gs=range(4), mems=pl[:16])
    e.e(w01(0))
    e.e(sum(step(ool, "Z1", vmw=31), []))
    epilogue(e, 0, gs=range(4, 8), mems=pl[16:])
    e.e(w01(1))
    errs = lint(T + e.l + Z0a, "epiA")
    assert not errs, "\n".join(errs)
    q.e(e.l)
    q.e(f"L_noA:\ns_cmp_eq_u32 {sCB}, -1\ns_cbranch_scc1 L_F")
    stamp(q, 10)
    q.e(step(ool, "Z0", bar=["s_barrier"] + ([] if PE else ldA(2)))[0])
    q.e("s_cbranch_scc1 L_Zx")
    for c in range(1, OPT["zc"]):
        q.e(f"s_cmp_eq_u32 {sW}, {c}\ns_cbranch_scc1 L_Z{c}")
        a, b = step(ool, "Z0", bh=2 * c)
        extra.e(f";LOOP pad\nL_Z{c}:"); extra.e(b); extra.e(sum(step(ool, "Z1", bh=2 * c), [])); extra.e(a)
        extra.e(f"s_cbranch_scc0 L_Z{c}\n;ENDLOOP\ns_branch L_Zx")
    q.e(";LOOP\nL_Z:"); q.e(Z0b); q.e(Z1); q.e(Z0a)
    q.e("s_cbranch_scc0 L_Z\n;ENDLOOP\nL_Zx:")
    stamp(q, 11)
    q.e(mask_ops(NMB)); q.e(Z0bc); q.e(Z1c)
    q.e("L_F:")
    q.e(F)
    stamp(q, 12)
    q.e(f"s_cmp_lt_u32 {sW}, 2\ns_cbranch_scc1 L_epiB")
    q.e(cbar(3))
    a, b = Prog(), Prog()
    if PE:
        issue(a, w2_both(2) + w2_both(3) + w2_both(4) + w2_both(5))
        a.e("s_cmp_lt_u32 s48, 30\ns_cbranch_scc1 L_epiB\ns_waitcnt vmcnt(16)")
        epilogue(a, 0, mems=pl)
    else:
        epilogue(a, 0, mems=w2_both(2) + w2_both(3) + w2_both(4) + w2_both(5))
        a.e(ldA(3))
    epilogue(b, 1)
    errs = lint(F + a.l + b.l, "tail") + lint(F + b.l, "tail")
    assert not errs, "\n".join(errs)
    q.e(a.l); q.e("L_epiB:"); q.e(b.l)
    if OPT["pads"] and OPT["pad2"]:
        q.e(f"s_cmp_lt_u32 {sW}, 2\ns_cbranch_scc1 L_nopad2\ns_mov_b64 exec, 0\ns_cmp_eq_u32 {sW}, 2\ns_cbranch_scc1 L_qad1\ns_branch L_qad0")
        q.e("L_qadret:\ns_mov_b64 exec, -1\nL_nopad2:")
    q.e("s_waitcnt vmcnt(8)")
    return q


def oproj(ool):
    p = Prog()
    pre = [I("buffer_load_dword v0, v0, s[0:3], 0", tag=f"PA{f}") for f in range(28)]
    pre += [I("s_waitcnt vmcnt(0)")]
    pre += [I("buffer_load_dword v0, v0, s[0:3], 0", tag="CTXst") for _ in range(8)]
    p.e("L_P4:")
    stamp(p, 13)
    p.e(f"""
v_lshrrev_b32 v20, 2, v0
v_lshlrev_b32 v20, 7, v20
v_and_b32 v21, 3, v0
v_lshl_add_u32 v20, v21, 3, v20
v_bfe_u32 v21, v0, 3, 2
v_lshl_add_u32 v20, v21, 5, v20
s_and_b32 s6, s{sPM[0]}, 0x10000
v_add_u32 v{VP_TR[2]}, 0x20000, v20
v_add_u32 v{VP_TR[0]}, s6, v20
""")
    for cb in range(1, 4):
        p.e(f"v_xor_b32 v{VP_TR[2]+cb}, {32*cb}, v{VP_TR[2]}")
    p.e("s_barrier")

    def rd(n):
        kk, cb = n % 2, (n // 2) % 8
        win, k = divmod(P_SLOT[n // 16], 4)
        return [I(f"ds_read_b64_tr_b16 {vr(PWF+4*(n%16)+2*j,2)}, v{VP_TR[win]+cb%4} offset:{k*16384+(cb//4)*8192+kk*4096+j*2048}",
                  tag=f"PR{n//4}") for j in range(2)]
    for n in range(8):
        p.e(rd(n))
    p.wait("PR0")
    mf = []
    for kg in range(23):
        for cb in range(8):
            for rb, kk, f1 in walk(cb, 2):
                d = vr(PACC + 16 * (cb // 2) + 8 * rb + 4 * (cb % 2))
                n, f = 16 * kg + 2 * cb + kk, 4 * kg + 2 * kk + rb
                mf.append(I(f"{MF} {d}, {vr(PWF+4*(n%16))}, {p_areg(f)}, {'0' if kg == 0 and f1 else d}", needs=[f"PR{n//4}", f"PA{f}"]))
    NH = len(mf)
    g = Half(mf)
    for n in range(8, NH // 2):
        g.mem[2 * (n - 8)] += rd(n)
    for h in range(8, NH, 8):
        tags = [f"PR{h//8}"] + ([f"PA{h//8+3}"] if h % 32 == 0 else [])
        g.sh[h - 1].append(WAIT(*tags))
    for b in range(2, PSLAB, 2):
        tags = [f"PW{s}" for s in (b, b + 1) if 6 <= s < PSLAB]
        if tags:
            g.sh[32 * b - 20].append(WAIT(*tags))
        g.sh[32 * b - 19].append("s_barrier")

    def slot(h):
        h |= 1
        while g.cost(h):
            h += 2
        return h
    g.fill([f"v_xor_b32 v{VP_TR[0]+cb}, {32*cb}, v{VP_TR[0]}" for cb in range(1, 4)] +
           [f"v_xor_b32 v{VP_TR[1]+cb}, 0x10000, v{VP_TR[0]+cb}" for cb in range(4)] +
           ["v_and_b32 v27, 7, v0", "v_lshlrev_b32 v27, 2, v27"], (1, 3, 7, 9, 13))
    wstart = {6: 5, 7: 29, 8: 53, 9: 77, 10: 117, 11: 141}
    for s in range(12, PSLAB):
        wstart[s] = 191 + (s - 12) * 40
    lo = -1
    for s in range(6, PSLAB):
        if s >= 10:
            assert wstart[s] > 32 * (s - 8 + s % 2) - 19, s
        for i, (pr, ins) in enumerate(p_dma(s)):
            h = slot(wstart[s] + i * (6 if s < 12 else 10))
            if pr:
                g.before(pr, h, lo + 1)
            g.mem[h].append(ins)
            lo = h
        assert lo < 32 * (s - s % 2) - 40, s
    assert g.after(flag_addr("ctxA", 64) + flag_addr("ctxB", 65) +
                   ["s_and_b32 s66, s2, 1", "s_lshl_b32 s66, s66, 5", "s_add_u32 s66, s66, s48", "s_lshl_b32 s66, s66, 2",
                    "s_lshr_b32 s67, s2, 1", "s_and_b32 s67, s67, 3", "s_add_u32 s66, s66, s67", "s_lshl_b32 s66, s66, 7",
                    f"s_add_u32 s66, s66, {CTXF}"], 6) < 56
    g.sh[60].append(WAIT("CTXst"))
    g.mem[slot(61)].append(flag_store(vOne, 64))
    g.mem[slot(61)].append(flag_store(vOne, 65))
    if OPT["ctxa"]:
        g.val[slot(112)].append(I(f"v_mov_b32 v{vPoll}, 0"))
        g.mem[slot(120)] += ["s_mov_b64 exec, 0xff",
                             I(f"buffer_atomic_or v{vPoll}, v27, {srd(SRD_WS)}, s66 offen sc0", tag="pollCTX"), "s_mov_b64 exec, -1"]
        g.sh[163].append(WAIT("pollCTX"))
        g.val[163].append(I(f"v_cmp_ne_u32 vcc, 1, v{vPoll}", needs=["pollCTX"]))
        g.sh[165] += ["s_and_b32 s96, vcc_lo, 0xff", "s_cbranch_scc1 L_pollCTX", "L_pollCTX_back:"]
        ool.e(f"""
L_pollCTX:
s_mov_b32 s96, 0x40000
s_mov_b64 exec, 0xff
L_pollCTX_l:
v_mov_b32 v{vPoll}, 0
buffer_atomic_or v{vPoll}, v27, {srd(SRD_WS)}, s66 offen sc0
s_waitcnt vmcnt(0)
v_cmp_ne_u32 vcc, 1, v{vPoll}
s_sub_u32 s96, s96, 1
s_cbranch_scc1 L_pollCTX_x
s_cbranch_vccnz L_pollCTX_l
L_pollCTX_x:
s_mov_b64 exec, -1
s_branch L_pollCTX_back
""")
    else:
        g.mem[slot(120)].append(poll_req(27, 66, "pollCTX"))
        g.sh[163].append(WAIT("pollCTX"))
        g.val[163].append(I(f"v_cmp_ne_u32 vcc, 1, v{vPoll}", needs=["pollCTX"]))
        g.sh[165] += ["s_cbranch_vccnz L_pollCTX", "L_pollCTX_back:"]
        poll_slow(ool, "L_pollCTX", 27, 66)
    lo = 166
    for n, (pr, ins) in enumerate(p_aload(28, 92)):
        h = slot(max(lo + 1, 8 * (28 + n) - 100))
        if pr:
            g.before(pr, h, lo + 1)
        g.mem[h].append(ins)
        lo = h
    g.fill(["v_and_b32 v20, 15, v0", "v_lshrrev_b32 v21, 4, v0", "v_lshlrev_b32 v20, 10, v20", "v_lshl_add_u32 v22, v21, 3, v20",
            "v_lshrrev_b32 v21, 5, v0", "v_lshl_add_u32 v23, v21, 4, v20", "v_bfe_u32 v21, v0, 4, 1", "v_lshl_add_u32 v23, v21, 5, v23",
            "v_min_u32 v27, 2, v0", "v_xor_b32 v27, 3, v27", "v_xor_b32 v27, s67, v27", "v_lshlrev_b32 v27, 2, v27"], range(600, 640))
    ex = ["s_and_b32 s68, s2, 1", "s_lshl_b32 s68, s68, 5", "s_add_u32 s68, s68, s48", "s_lshl_b32 s68, s68, 15",
          "s_lshr_b32 s7, s2, 6", "s_lshl_b32 s6, s7, 8", "s_add_u32 s68, s68, s6", "s_lshl_b32 s6, s67, 6", "s_add_u32 s68, s68, s6",
          "s_add_u32 s69, s68, 0x4000"]
    if not OPT["sent"]:
        ex += ["s_mov_b32 s71, s67"] + ex_addr()
    ex += ["s_and_b32 s77, s27, 0xffffff80"]
    assert g.after(ex, 500) < 640
    if OPT["sent"]:
        g.mem[slot(642)].append(poll_req(27, 77, "pollEX"))
        g.sh[701].append(WAIT("pollEX"))
        g.val[701].append(I(f"v_cmp_ne_u32 vcc, 1, v{vPoll}", needs=["pollEX"]))
        g.sh[705] += ["s_cbranch_vccnz L_pollEX", "L_pollEX_back:"]
        poll_slow(ool, "L_pollEX", 27, 77)
    for a in range(4):
        g.mem[slot(656 + 8 * a)].append(I(f"buffer_load_dwordx2 {vr(PX+2*a,2)}, v22, {srd(SRD_X)}, s{68+a//2} offen offset:{32*(a%2)}", tag="xres"))
    if OPT["stamp"]:
        q = Prog(); stamp(q, 14); g.post[162] += q.l
        q = Prog(); stamp(q, 15); g.post[166] += q.l
        q = Prog(); stamp(q, 16); g.post[223] += q.l
    p.e(g.emit())
    stamp(p, 17)
    for i in range(3):
        b = PACC + 16 * i
        for t in range(2):
            for c in range(4 * t, 4 * t + 4):
                p.e(f"v_cvt_pk_bf16_f32 v{b+c}, v{b+2*c}, v{b+2*c+1}")
            if OPT["sent"]:
                for c in range(4 * t, 4 * t + 4):
                    p.e(f"v_min_u32 v{b+c}, -2, v{b+c}")
            p.e(I(f"buffer_store_dwordx4 {vr(b+4*t)}, {vL16}, {srd(SRD_WS)}, s{72+i} offen offset:{t*1024} sc1", tag="EXst"))
    b = PACC + 48

    def addbf(src):
        for c in range(8):
            p.e(f"v_lshlrev_b32 v20, 16, v{src+c}")
            p.e(f"v_and_b32 v21, 0xffff0000, v{src+c}")
            p.e(f"v_pk_add_f32 {vr(b+2*c,2)}, {vr(b+2*c,2)}, v[20:21]")
    exld = [I(f"buffer_load_dwordx4 {vr(PR+8*i+4*t)}, {vL16}, {srd(SRD_WS)}, s{24+i} offen offset:{t*1024} sc1", tag=f"EXr{i}")
            for i in range(3) for t in range(2)]
    if OPT["sent"]:
        p.e(exld)
        p.wait("xres")
        addbf(PX)
        stamp(p, 18)
        p.e("s_mov_b32 s96, 0x40000\nL_rx:\ns_waitcnt vmcnt(0)")
        p.e(f"v_max_u32 v20, v{PR}, v{PR+1}")
        for r in range(2, 24, 2):
            p.e(f"v_max3_u32 v20, v20, v{PR+r}, v{PR+r+1}")
        p.e("v_cmp_eq_u32 vcc, -1, v20\ns_sub_u32 s96, s96, 1\ns_cbranch_vccnz L_rx_again\nL_rx_done:")
        ool.e("L_rx_again:\ns_cbranch_scc1 L_rx_done\ns_sleep 1")
        ool.e([I(x.text) for x in exld])
        ool.e("s_branch L_rx")
        stamp(p, 19)
        for i in range(3):
            addbf(PR + 8 * i)
    else:
        p.wait("xres")
        addbf(PX)
        p.wait("EXst")
        if OPT["pk"] == 4:
            stamp(p, 18)
            p.e(f"""
s_mov_b32 s96, 0x40000
s_mov_b64 exec, 1
v_mov_b32 v{vPoll}, 1
buffer_atomic_add v{vPoll}, off, {srd(SRD_WS)}, s77 sc0
s_waitcnt vmcnt(0)
v_cmp_gt_u32 vcc, 3, v{vPoll}
s_cbranch_vccz L_pollEX_done
L_pollEX:
v_mov_b32 v{vPoll}, 0
buffer_atomic_add v{vPoll}, off, {srd(SRD_WS)}, s77 sc0
s_waitcnt vmcnt(0)
v_cmp_gt_u32 vcc, 4, v{vPoll}
s_sub_u32 s96, s96, 1
s_cbranch_scc1 L_pollEX_done
s_cbranch_vccnz L_pollEX
L_pollEX_done:
s_mov_b64 exec, -1
""")
        else:
            p.e(flag_store(vOne, 27))
            stamp(p, 18)
            p.e(f"""
s_mov_b32 s96, 0x40000
{"s_mov_b64 exec, 7" if OPT["pk"] == 2 else ""}
L_pollEX:
{spin_ld(27, 77, OPT["pk"])}
s_waitcnt vmcnt(0)
v_cmp_ne_u32 vcc, 1, v{vPoll}
s_sub_u32 s96, s96, 1
s_cbranch_scc1 L_pollEX_done
s_cbranch_vccnz L_pollEX
L_pollEX_done:
{"s_mov_b64 exec, -1" if OPT["pk"] == 2 else ""}
""")
        stamp(p, 19)
        p.e(exld)
        for i in range(3):
            p.wait(f"EXr{i}")
            addbf(PR + 8 * i)
    for c in range(8):
        p.e(f"v_cvt_pk_bf16_f32 v{b+c}, v{b+2*c}, v{b+2*c+1}")
    p.e("s_nop 1")
    for t in range(2):
        p.e(f"v_permlane16_swap_b32 v{b+4*t}, v{b+4*t+2}")
        p.e(f"v_permlane16_swap_b32 v{b+4*t+1}, v{b+4*t+3}")
    for t in range(2):
        p.e(f"buffer_store_dwordx4 {vr(b+4*t)}, v23, {srd(SRD_OUT)}, s{68+t} offen")
    stamp(p, 20)
    rstamp(p, 61)
    stamp_flush(p)
    p.e("L_end:\ns_endpgm")
    l = resolve_waits(pre + p.l)[len(pre):]
    errs = lint(l, "oproj")
    assert not errs, "\n".join(errs)
    if OPT["sim"]:
        t, gp = simulate(l)
        print("oproj", t, sum(gp))
    return l


def kernel():
    p, ool = Prog(), Prog()
    setup(p)
    if OPT["stamp"]:
        p.e("v_mov_b32 v31, 0")
    rstamp(p, 60)
    stamp(p)
    projections(p, ool)
    head = resolve_waits(p.l)
    errs = lint(head, "head")
    assert not errs, "\n".join(errs)
    if OPT["sim"]:
        t, gp = simulate(head)
        print("head", t, [sum(gp[a:b]) for a, b in ((0, 512), (512, 768), (768, 1024), (1024, 1280), (1280, 1536), (1536, 1791), (1791, 1900))])
    extra = Prog()
    l = head + attention(ool, extra).l + oproj(ool) + [I(";PADHERE")] + ool.l + extra.l + [I("L_hot_end:")]
    l = layout(l)
    for q in RARE.values():
        l += q.l
    return text_of(l)


def sizes(l):
    import subprocess, tempfile, os
    txt = '.amdgcn_target "amdgcn-amd-amdhsa--gfx950"\n.text\n' + text_of(l) + "".join(text_of(q.l) for q in RARE.values())
    txt += "L_pad0:\nL_pad1:\nL_pad2:\nL_pad3:\nL_qad0:\nL_qad1:\ns_endpgm\n"
    d = tempfile.mkdtemp()
    open(d + "/a.s", "w").write(txt)
    subprocess.run(["clang", "-x", "assembler", "-target", "amdgcn-amd-amdhsa", "-mcpu=gfx950", "-c", d + "/a.s", "-o", d + "/a.o"], check=True)
    out = subprocess.run(["llvm-objdump", "-d", "--mcpu=gfx950", d + "/a.o"], capture_output=True, text=True, check=True).stdout
    sz = [4 * len(re.findall(r"\b[0-9A-F]{8}\b", ln.split("//")[1].split(":")[1])) for ln in out.splitlines() if "//" in ln]
    it = iter(sz)
    return [0 if x.kind == "meta" else next(it) for x in l]


def layout(l):
    sz = sizes(l)
    out, pads, qads = [], [], []
    stage2 = False
    off = None
    need = False

    def pad():
        nonlocal off
        if OPT["pads"]:
            lst, nm = (qads, "qad") if stage2 else (pads, "pad")
            out.append(I(f"L_{nm}{len(lst)}:"))
            out.append(I("s_cbranch_execz PADNEXT"))
            lst.append(out[-1])
            off += 4
    for i, x in enumerate(l):
        if x.text == ";PAGE":
            out += [I("s_branch L_main"), I(".p2align 12"), I("L_main:")]
            off = 0
            pad()
            continue
        if x.text in ("L_P4:", "L_end:"):
            stage2 = OPT["pad2"] and x.text == "L_P4:"
        if x.text == ";PADHERE":
            pad()
            continue
        if x.text.startswith(";LOOP"):
            j = next(k for k in range(i, len(l)) if l[k].text == ";ENDLOOP")
            n = sum(sz[i:j])
            st = -(-off // 32) * 32
            if x.text == ";LOOP pad":
                o64 = -(-off // 64) * 64
                if o64 // 4096 != (o64 + 32 + n - 1) // 4096:
                    out.append(I(".p2align 12"))
                    o64 = -(-off // 4096) * 4096
                out.append(I(".p2align 6"))
                off, need = o64, False
                pad()
                out.append(I(".p2align 5"))
                off = -(-off // 32) * 32
                continue
            if need or st // 4096 != (st + n - 1) // 4096 or st // 4096 != (off - 1) // 4096:
                out.append(I(f"s_branch {l[i+1].text[:-1]}"))
                off += 4
                if not need:
                    out.append(I(".p2align 12"))
                    off = -(-off // 4096) * 4096
                need = False
                pad()
                st = -(-off // 32) * 32
            out.append(I(".p2align 5"))
            off = st
            continue
        out.append(x)
        if off is None:
            continue
        o0, off = off, off + sz[i]
        if o0 // 4096 != off // 4096:
            need = True
        if need and x.kind != "meta":
            nx = next(y for y in l[i + 1:] if y.kind != "meta")
            good = x.text.startswith("v_mfma") and not nx.text.startswith("s_")
            if good or off % 4096 >= 40:
                need = False
                pad()
    for k, x in enumerate(pads):
        x.text = "s_cbranch_execz " + (f"L_pad{k+4}" if k + 4 < len(pads) else "L_padret")
    for k, x in enumerate(qads):
        x.text = "s_cbranch_execz " + (f"L_qad{k+2}" if k + 2 < len(qads) else "L_qadret")
    if OPT["sim"]:
        print("code bytes after anchor", off, "pads", len(pads), len(qads))
    return out


def main():
    k = kernel()
    s = f"""; layernorm + K/V/Q/MLP projections + causal attention + output projection in one launch (generated by gen/gen3.py)
; @launch grid=(256,1,1) block=(256,1,1) lds=163840
.amdgcn_target "amdgcn-amd-amdhsa--gfx950"
.text
.globl {NAME}_kernel
.p2align 12
.p2align 8
.type {NAME}_kernel,@function
{NAME}_kernel:
{k}
.section .rodata,"a"
.p2align 6
.amdhsa_kernel {NAME}_kernel
  .amdhsa_next_free_vgpr 512
  .amdhsa_next_free_sgpr 102
  .amdhsa_accum_offset 256
  .amdhsa_group_segment_fixed_size 0
  .amdhsa_kernarg_size 104
  .amdhsa_user_sgpr_count 2
  .amdhsa_user_sgpr_kernarg_segment_ptr 1
  .amdhsa_system_sgpr_workgroup_id_x 1
.end_amdhsa_kernel
"""
    open(sys.argv[1], "w").write(s)


main()
```

```python
import sys, struct, re
from asmlib import *

NAME = "parallel_sum__compressed_kv_cla__dense_activation_mish__prompt"
OPT = dict(stamp=0, thr=40, rot=7, nt=0, xnt=0, deep=1, cpf=1, wopf=1, sim=0, barh=0, pads=1, wqt=300, w2t=0, zc=4, sent=0, p2rot=7, xnsc=1, kvpad=0, xnpad=0, xnrt=0, sigp=4, dbgno=0, n0=6, pad2=0, lnh=90, ordp=1, orda=1, ones4=1, bko=0, exo=0, pk=4, pkc=0, ctxa=1, peel=1, probe=0, lnb=0, plh=672, bar2=1, slph=-2, slpn=8, slpj=0, kvst=0, wsoff=0, cpf2=1, padat=-1, padus=0)
for a in sys.argv[2:]:
    k, v = a.split("=")
    assert k in OPT, k
    OPT[k] = int(v)


def f2u(x):
    return struct.unpack("<I", struct.pack("<f", x))[0]


KVFL = ("", "sc1", "nt", "sc1 nt")[OPT["kvst"]]
MF = "v_mfma_f32_16x16x32_bf16"
MF32 = "v_mfma_f32_32x32x16_bf16"
XN_OFF = 0
KV_OFF = 72 << 20 if OPT['kvpad'] or OPT['xnpad'] else 2 << 20
KV_HS = (1 << 20) + OPT['kvpad']
XN_RS = 32768 + OPT['xnpad']
AF_OFF = 34 << 20
AF_KS = 368
FL_OFF = 58 << 20
CTXF, EXF, KVF = FL_OFF, FL_OFF + 32768, FL_OFF + 65536
ST_OFF = 60 << 20
EX_OFF = 64 << 20
WS_BYTES = 268435456 - (OPT['wsoff'] << 20)

sW, sH, sJ = "s3", "s4", "s5"
SRD_CKV, SRD_WUK, SRD_WUV, SRD_W1, SRD_WQ, SRD_WS, SRD_X, SRD_B1, SRD_DBG, SRD_ACT = (
    8, 12, 16, 20, 24, 28, 32, 36, 40, 44)
SRD_W2, SRD_WO, SRD_OUT, SRD_KV = 8, 12, 16, 36


def srd(n):
    return f"s[{n}:{n+3}]"


def vr(b, n=4):
    return f"v[{b}:{b+n-1}]"


def ar(b, n=4):
    return f"a[{b}:{b+n-1}]"


vL16 = "v1"
VA_DMA, VW_DMA, VW1_DMA, VTR, VA_RD = 2, 6, 10, 14, 18
WF, TP, ACC0, ACC1, BIAS = 32, 64, 96, 160, 224
LDS_A = 98304
vOne, vPoll, vDummy = 28, 29, 30
S0, S1, EX, P0, P1, NMA, NMB, ONES = 192, 208, 128, 144, 152, 96, 112, 228
OA, OB, KF, VF = 0, 64, 128, 160
vR0, vR1, vMask, vChk, vBit, vNinf = 2, 3, 4, 5, 6, 7
sKa, sKb, sM, sCA, sCB = "s52", "s53", "s54", "s55", "s56"
MASKS = 64
SHIFT = float(OPT["thr"])
VP_DMA = 10
VP_TR = (200, 204, 208)
sPA, sPC, sPW2, sPWO, sPM = 57, 58, 59, 60, (61, 62, 63)
PWF, PACC, PX, PR = 64, 128, 192, 200


def mk_srd(n, lo, nbytes):
    return [f"s_mov_b32 s{n}, s{lo}", f"s_and_b32 s{n+1}, s{lo+1}, 0xffff",
            f"s_mov_b32 s{n+2}, {nbytes}", f"s_mov_b32 s{n+3}, 0x20000"]


stamp_n = [0]


pad_n = [0]


def stamp(p, idx=None):
    if OPT["padat"] >= 0:
        if idx is None:
            idx = stamp_n[0]
            stamp_n[0] += 1
        if idx == OPT["padat"]:
            n = pad_n[0]
            pad_n[0] += 1
            p.e(f"""v_readfirstlane_b32 s96, v31
L_spin{n}:
s_memrealtime s[98:99]
s_waitcnt lgkmcnt(0)
s_sub_u32 s98, s98, s96
s_cmp_lt_u32 s98, {OPT["padus"]*100}
s_cbranch_scc1 L_spin{n}""")
        return
    if OPT["stamp"] == 0:
        return
    if idx is None:
        idx = stamp_n[0]
        stamp_n[0] += 1
    if OPT["stamp"] == 3 and idx not in (3, 5):
        return
    p.e(f"s_memtime s[98:99]")
    p.e("s_waitcnt lgkmcnt(0)")
    p.e(f"v_writelane_b32 v31, s98, {idx}")


def rstamp(p, lane):
    if not OPT["stamp"]:
        return
    p.e(f"s_memrealtime s[98:99]")
    p.e("s_waitcnt lgkmcnt(0)")
    p.e(f"v_writelane_b32 v31, s98, {lane}")


def stamp_flush(p):
    if not OPT["stamp"]:
        return
    p.e("s_lshl_b32 s98, s2, 2")
    p.e(f"s_add_u32 s98, s98, {sW}")
    p.e("s_lshl_b32 s98, s98, 8")
    p.e(f"s_add_u32 s98, s98, {ST_OFF}")
    p.e(f"v_lshrrev_b32 v30, 2, {vL16}")
    p.e(f"buffer_store_dword v31, v30, {srd(SRD_WS)}, s98 offen")


def setup(p):
    p.e(f"""
s_cmp_ge_u32 s2, 256
s_cbranch_scc1 L_end
""")
    if OPT["padat"] >= 0:
        p.e("s_memrealtime s[98:99]\ns_waitcnt lgkmcnt(0)\nv_mov_b32 v31, s98")
    p.e(f"""
s_load_dwordx16 s[48:63], s[0:1], 0
s_load_dwordx8 s[64:71], s[0:1], 64
s_load_dwordx2 s[72:73], s[0:1], 96
v_lshrrev_b32 v20, 6, v0
v_and_b32 v0, 63, v0
v_readfirstlane_b32 {sW}, v20
v_lshlrev_b32 {vL16}, 4, v0
s_and_b32 s6, s2, 7
s_lshr_b32 s7, s2, 6
s_lshl_b32 s7, s7, 3
s_add_u32 {sH}, s6, s7
s_lshr_b32 {sJ}, s2, 3
s_and_b32 {sJ}, {sJ}, 7
""")
    if OPT["cpf"]:
        p.e(f"""
s_getpc_b64 s[96:97]
L_pc:
s_lshr_b32 s6, s2, 3
s_mul_i32 s6, s6, 3072
v_min_u32 v20, 23, v0
v_lshl_add_u32 v20, v20, 7, s6
v_min_u32 v20, L_hot_end-L_pc, v20
s_cmp_lg_u32 {sW}, 0
s_cbranch_scc1 L_nocpf
global_load_dword v{vDummy}, v20, s[96:97]
L_nocpf:
""")
        p.l[-2].kind = "op"
    p.e(f"""
v_lshrrev_b32 v20, 3, v0
v_and_b32 v21, 7, v0
v_lshrrev_b32 v22, 4, v0
v_xor_b32 v23, v21, v22
v_lshlrev_b32 v23, 4, v23
v_lshl_add_u32 v{VA_DMA}, v20, 10, v23
v_xor_b32 v24, 64, v{VA_DMA}
v_add_u32 v{VA_DMA+1}, {7*1024}, v24
v_add_u32 v{VA_DMA+2}, {14*1024}, v{VA_DMA}
v_add_u32 v{VA_DMA+3}, {21*1024}, v24
v_and_b32 v22, 1, v22
v_lshlrev_b32 v22, 1, v22
v_xor_b32 v23, v21, v22
v_lshlrev_b32 v23, 4, v23
v_xor_b32 v25, 64, v23
v_lshl_add_u32 v{VW_DMA}, v20, 13, v23
v_lshl_add_u32 v{VW_DMA+1}, v20, 13, v25
v_mul_u32_u24 v24, 3584, v20
v_add_u32 v{VW1_DMA}, v24, v23
v_add_u32 v{VW1_DMA+1}, v24, v25
""")
    for b, pitch in ((VW_DMA, 8192), (VW1_DMA, 3584)):
        d = 8 * pitch - 1024
        p.e(f"v_add_u32 v{b+2}, {2*d}, v{b}\nv_add_u32 v{b+3}, {3*d}, v{b+1}\nv_add_u32 v{b+1}, {d}, v{b+1}")
    p.e(f"""
v_lshrrev_b32 v20, 4, v0
v_lshlrev_b32 v20, 3, v20
v_bfe_u32 v21, v0, 2, 2
v_add_u32 v20, v20, v21
v_lshlrev_b32 v20, 7, v20
v_and_b32 v21, 3, v0
v_lshl_add_u32 v20, v21, 3, v20
v_bfe_u32 v21, v0, 3, 2
v_lshl_add_u32 v{VTR}, v21, 5, v20
""")
    for cb in range(1, 4):
        p.e(f"v_xor_b32 v{VTR+cb}, {32*cb}, v{VTR}")
    p.e(f"""
s_lshl_b32 s6, {sW}, 13
s_add_u32 s74, s6, {LDS_A}
v_and_b32 v20, 15, v0
v_lshlrev_b32 v20, 7, v20
v_add_u32 v20, s74, v20
v_bfe_u32 v21, v0, 1, 3
v_lshrrev_b32 v22, 4, v0
v_xor_b32 v21, v21, v22
v_lshl_add_u32 v{VA_RD}, v21, 4, v20
v_xor_b32 v{VA_RD+1}, 64, v{VA_RD}
""")
    p.e(f"""
s_lshl_b32 s75, {sJ}, 2
s_add_u32 s75, s75, {sW}
s_lshl_b32 s75, s75, 16
s_lshl_b32 s76, {sH}, 8
s_lshl_b32 s77, {sW}, 12
s_lshr_b32 s6, {sW}, 1
s_lshl_b32 s6, s6, 7
s_and_b32 s7, {sW}, 1
s_lshl_b32 s7, s7, 18
s_add_u32 s78, s76, s6
s_add_u32 s78, s78, s7
s_add_u32 s79, {sJ}, {sH}
s_and_b32 s79, s79, {OPT["rot"]}
s_lshl_b32 s100, s79, 19
s_lshl_b32 s101, s79, 7
v_and_b32 v20, 7, v0
v_lshrrev_b32 v21, 3, v0
v_lshlrev_b32 v21, 4, v21
v_lshl_add_u32 v20, v20, 10, v21
s_lshl_b32 s6, s2, 13
s_lshl_b32 s7, {sW}, 8
s_add_u32 s6, s6, s7
s_waitcnt lgkmcnt(0)
""")
    if OPT["wsoff"]:
        p.e(f"s_add_u32 s72, s72, {OPT['wsoff'] << 20}\ns_addc_u32 s73, s73, 0")


def a_dma(q):
    out = []
    for rb in range(2):
        for u in range(4):
            pre = []
            if u == 0 and rb == 0:
                pre = [f"s_add_u32 m0, s74, {(q%2)*32768}", f"s_add_u32 s80, s101, {q*128}",
                       "s_and_b32 s80, s80, 0x3ff", "s_add_u32 s80, s80, s75"]
            if u == 0 and rb == 1:
                pre = [f"s_add_u32 m0, s74, {(q%2)*32768 + 4096}", "s_add_u32 s80, s80, 32768"]
            out.append((pre, I(f"buffer_load_dwordx4 v{VA_DMA+u}, {srd(SRD_CKV)}, s80 offen offset:{u*1024} lds", tag=f"A{q}")))
    return out


def res(rb, ks):
    return ar(((rb // 2) * 32 + 2 * ks + rb % 2) * 4)


def a_reads(q):
    out = []
    for s in range(2):
        for rb in range(4):
            out.append(I(f"ds_read_b128 {res(rb, 2*q+s)}, v{VA_RD+s} offset:{(q%2)*32768 + rb*2048}",
                         tag=f"Ar{q}", needs=[f"A{q}"]))
    return out


CHUNKS = [("Vlo", SRD_WUV, 0), ("Vhi", SRD_WUV, 128), ("H", SRD_W1, 0), ("Qlo", SRD_WQ, 0), ("Qhi", SRD_WQ, 128)]
NSLAB = 28
if OPT["deep"]:
    W_ISSUE = [-1, -1, 0, 1, 2, 3, 4, 5, 6, 6, 6, 7, 7, 7, 8, 8, 9, 9, 10, 11, 17, 19, 20, 20, 21, 21, 22, 22]
else:
    W_ISSUE = [-1, -1] + list(range(26))
W_SLOT = []
NOBAR = (13, 14, 15, 16, 18, 23, 26) if OPT["bar2"] else ()
_free_at = [-1] * 6 + [7, 7, 8, 8]
for _s in range(NSLAB):
    assert W_ISSUE[_s] <= max(_s - 2, -1)
    _c = [k for k in range(10) if _free_at[k] <= W_ISSUE[_s] and (_s < 24 or k >= 6) and (not 20 <= _s < 24 or k < 6)]
    _k = min(_c, key=lambda k: (_free_at[k], k))
    W_SLOT.append(_k)
    _free_at[_k] = _s + 2
WNT = " nt" if OPT["nt"] else ""
XNT = " nt" if OPT["xnt"] else ""


def w_dma(pslab):
    out = []
    slot = W_SLOT[pslab] * 16384
    if pslab < 8:
        sr, va = SRD_WUK, VW_DMA
        so = [f"s_add_u32 s81, s100, {pslab<<19}", "s_and_b32 s81, s81, 0x3fffff", "s_add_u32 s81, s81, s78"]
    else:
        c, i = divmod(pslab - 8, 4)
        nm, sr, col = CHUNKS[c]
        if nm == "H":
            va = VW1_DMA
            so = [f"s_mov_b32 s81, s{52+i}"]
        else:
            va = VW_DMA
            so = [f"s_add_u32 s81, s{60+i}, {col}"]
    for u in range(4):
        pre = [f"s_add_u32 m0, s77, {slot}"] + so if u == 0 else []
        out.append((pre, I(f"buffer_load_dwordx4 v{va+u}, {srd(sr)}, s81 offen offset:{u*1024}{' nt' if (OPT['nt'] >> pslab) & 1 else ''} lds", tag=f"W{pslab}")))
    return out


def w_read(n, j):
    slot = (W_SLOT[n // 16] * 16384) % 65536
    kk, cb = n % 2, (n // 2) % (8 if n < 128 else 4)
    if n < 128:
        off = slot + (cb // 4) * 8192 + kk * 4096 + j * 512
    else:
        off = slot + (2 * ((n // 8) % 2) + kk) * 4096 + j * 512
    return I(f"ds_read_b64_tr_b16 {vr(WF + 4*(n%8) + 2*j, 2)}, v{VTR + cb % 4} offset:{off}", tag=f"Wr{n//2}")


def walk(cb, nrb):
    out = []
    for pos in range(nrb):
        rb = nrb - 1 - pos if cb % 2 else pos
        for i in range(2):
            out.append((rb, i ^ (pos % 2), i == 0))
    if not OPT["ordp"]:
        out = [(rb, kk, kk == 0) for kk in range(2) for rb in range(nrb)]
    return out


LX, LU, LT = 224, 232, 76
LN_LDS = 5 * 16384


def layernorm(p):
    t, mean, var = LT, f"v{LT+4}", f"v{LT+5}"
    p.wait("X")
    for i in range(8):
        p.e(f"v_and_b32 v{LU+1+2*i}, 0xffff0000, v{LX+i}")
        p.e(f"v_lshlrev_b32 v{LU+2*i}, 16, v{LX+i}")

    def reduce(v, slot):
        p.e(f"""
s_nop 1
v_add_f32_dpp {v}, {v}, {v} row_ror:8 row_mask:0xf bank_mask:0xf
v_mov_b32 v{t}, {v}
s_nop 1
v_permlane16_swap_b32 {v}, v{t}
v_add_f32 {v}, {v}, v{t}
v_mov_b32 v{t}, {v}
s_nop 1
v_permlane32_swap_b32 {v}, v{t}
v_add_f32 {v}, {v}, v{t}
""")
        p.e(I(f"ds_write_b32 v22, {v} offset:{slot*128}", tag=f"lnw{slot}"))
        p.wait(f"lnw{slot}")
        p.e("s_barrier")
        p.e(I(f"ds_read_b128 {vr(t)}, v21 offset:{slot*128}", tag=f"lnr{slot}"))
        p.wait(f"lnr{slot}")
        p.e(f"""
v_add_f32 v{t}, v{t}, v{t+1}
v_add_f32 v{t+2}, v{t+2}, v{t+3}
v_add_f32 {v}, v{t}, v{t+2}
v_mul_f32 {v}, 0x{f2u(1/512):x}, {v}
""")

    p.e(f"v_add_f32 {mean}, v{LU}, v{LU+1}")
    for i in range(2, 16):
        p.e(f"v_add_f32 {mean}, {mean}, v{LU+i}")
    reduce(mean, 0)
    p.e(";CUT")
    p.e(f"v_sub_f32 v{t}, v{LU}, {mean}")
    p.e(f"v_mul_f32 {var}, v{t}, v{t}")
    for i in range(1, 16):
        p.e(f"v_sub_f32 v{t}, v{LU+i}, {mean}")
        p.e(f"v_fmac_f32 {var}, v{t}, v{t}")
    reduce(var, 1)
    tail = f"""
v_cvt_pk_bf16_f32 v{t}, {mean}, {var}
v_lshlrev_b32 {mean}, 16, v{t}
v_and_b32 {var}, 0xffff0000, v{t}
v_add_f32 {var}, 0x{f2u(1e-5):x}, {var}
v_cvt_pk_bf16_f32 v{t}, {var}, {var}
v_lshlrev_b32 {var}, 16, v{t}
v_sqrt_f32 {var}, {var}
v_sub_f32 v{LU}, v{LU}, {mean}
v_cvt_pk_bf16_f32 v{t}, {var}, {var}
v_lshlrev_b32 {var}, 16, v{t}
v_rcp_f32 {var}, {var}
""".strip().split("\n")
    for i in range(1, 16):
        tail.append(f"v_sub_f32 v{LU+i}, v{LU+i}, {mean}")
    for i in range(8):
        tail += [f"v_cvt_pk_bf16_f32 v{t}, v{LU+2*i}, v{LU+1+2*i}", f"v_lshlrev_b32 v{t+1}, 16, v{t}", f"v_and_b32 v{t+2}, 0xffff0000, v{t}",
                 f"v_mul_f32 v{t+1}, v{t+1}, {var}", f"v_mul_f32 v{t+2}, v{t+2}, {var}", f"v_cvt_pk_bf16_f32 v{64+i}, v{t+1}, v{t+2}"]
    return tail


def flag_addr(kind, dst):
    d = f"s{dst}"
    if kind in ("ctxA", "ctxB"):
        rb = "s48" if kind == "ctxA" else "s49"
        return [f"s_lshl_b32 {d}, {rb}, 2", f"s_lshr_b32 s7, {sH}, 3", f"s_add_u32 {d}, {d}, s7", f"s_lshl_b32 {d}, {d}, 5",
                f"s_and_b32 s7, {sH}, 7", f"s_add_u32 {d}, {d}, s7", f"s_lshl_b32 {d}, {d}, 2", f"s_add_u32 {d}, {d}, {CTXF}"]
    if kind in ("actA", "actB"):
        rb = "s48" if kind == "actA" else "s49"
        return [f"s_mul_i32 s7, {sH}, 37", "s_lshr_b32 s7, s7, 8", "s_mul_i32 s7, s7, 25", f"s_lshl_b32 {d}, {rb}, 7", f"s_add_u32 {d}, {d}, s7",
                f"s_add_u32 {d}, {d}, {sH}", f"s_lshl_b32 {d}, {d}, 2", f"s_add_u32 {d}, {d}, {CTXF + 32}"]
    if kind == "kv":
        return [f"s_lshl_b32 {d}, {sH}, 5", f"s_add_u32 {d}, {d}, s48", f"s_lshl_b32 {d}, {d}, 2", f"s_add_u32 {d}, {d}, {KVF}"]
    if kind == "ex":
        return [f"s_and_b32 {d}, s2, 1", f"s_lshl_b32 {d}, {d}, 3", f"s_add_u32 {d}, {d}, {sJ}", f"s_lshl_b32 {d}, {d}, 2",
                "s_lshr_b32 s7, s2, 6", f"s_add_u32 {d}, {d}, s7", f"s_lshl_b32 {d}, {d}, 2", f"s_add_u32 {d}, {d}, {sW}",
                f"s_lshl_b32 {d}, {d}, 7", "s_and_b32 s7, s2, 6", "s_lshl_b32 s7, s7, 1", f"s_add_u32 {d}, {d}, s7",
                f"s_add_u32 {d}, {d}, {EXF}"]
    raise Exception(kind)


def flag_store(val, s, tag=None, sr=SRD_WS):
    return I(f"buffer_store_dword v{val}, off, {srd(sr)}, s{s} sc1", tag=tag)


def poll_req(vidx, s, tag):
    return I(f"buffer_load_dword v{vPoll}, v{vidx}, {srd(SRD_WS)}, s{s} offen sc1", tag=tag)


def spin_ld(vidx, s, k):
    if k == 2:
        return f"v_mov_b32 v{vPoll}, 0\nbuffer_atomic_or v{vPoll}, v{vidx}, {srd(SRD_WS)}, s{s} offen sc0"
    return f"buffer_load_dword v{vPoll}, v{vidx}, {srd(SRD_WS)}, s{s} offen " + ("sc1", "sc1 nt", "", "sc0 sc1")[k]


def poll_slow(out, label, vidx, s, cmp="v_cmp_ne_u32 vcc, 1"):
    out.e(f"""
{label}:
s_mov_b32 s96, 0x40000
{label}_l:
{"s_sleep %d" % OPT["bko"] if OPT["bko"] else ""}
{spin_ld(vidx, s, OPT["pkc"])}
s_waitcnt vmcnt(0)
{cmp}, v{vPoll}
s_sub_u32 s96, s96, 1
s_cbranch_scc1 {label}_back
s_cbranch_vccnz {label}_l
s_branch {label}_back
""")


def grp(buf, i):
    if buf == 2:
        return TP + 8 * i if i < 4 else BIAS + 8 * (i - 4)
    return buf + 8 * i


def acc(buf, vtype, cb, rb):
    if vtype:
        return grp(buf, (rb // 2) * 4 + cb) + 4 * (rb % 2)
    return grp(buf, (cb // 2) * 4 + rb) + 4 * (cb % 2)


def issue(p, lst):
    for pre, ins in lst:
        p.e(pre)
        p.e(ins)


def place(g, lst, h0, step, lo):
    prev = lo
    for i, (pre, ins) in enumerate(lst):
        h = h0 + i * step
        assert h > prev
        if pre:
            g.before(pre, h, prev + 1)
        g.mem[h].append(ins)
        prev = h
    return prev


def kv_dma(n):
    out = []
    for u in range(4):
        pre = [f"s_sub_u32 m0, s{sPM[2]}, {0x20000 - n*16384}", f"s_mov_b32 s97, {n*16384}"] if u == 0 else []
        out.append((pre, I(f"buffer_load_dwordx4 {vL16}, {srd(SRD_KV)}, s97 offen offset:{u*1024} sc1 lds", tag=f"KV{n}")))
    return out


PSLAB = 23
P_SLOT = [8, 9, 0, 1, 2, 3, 4, 5, 6, 7]
P_SLOT = [P_SLOT[s % 10] for s in range(PSLAB)]


def p_dma(s):
    win, k = divmod(P_SLOT[s], 4)
    sr, so = (SRD_W2, f"s_add_u32 s97, s{sPW2}, {s*65536}") if s < 7 else (SRD_WO, f"s_add_u32 s97, s{sPWO}, {(s-7)*65536}")
    out = []
    for u in range(4):
        pre = [f"s_add_u32 m0, s{sPM[win]}, {k*16384}", so] if u == 0 else []
        out.append((pre, I(f"buffer_load_dwordx4 v{VP_DMA+u}, {srd(sr)}, s97 offen offset:{u*1024} lds", tag=f"PW{s}")))
    return out


def p_areg(ks):
    if 16 <= ks < 24:
        return vr(32 + 4 * (ks - 16))
    if 24 <= ks < 28:
        return vr((224, 232, 236, 244)[ks - 24])
    return ar(128 + 4 * ((ks + 16) % 32) if ks < 16 else 128 + 4 * ((ks - 24) % 32))


def p_aload(ks0, ks1):
    out = []
    for ks in range(ks0, ks1):
        pre = []
        if ks % 4 == 0:
            pre = [f"s_add_u32 s100, s{sPA}, {ks*1024}" if ks < 28 else f"s_add_u32 s100, s{sPC}, {(ks-28)*1024}"]
        out.append((pre, I(f"buffer_load_dwordx4 {p_areg(ks)}, {vL16}, {srd(SRD_WS)}, s100 offen offset:{(ks%4)*1024} sc1", tag=f"PA{ks}")))
    return out


def ex_addr():
    ex = ["s_and_b32 s76, s2, 1", "s_lshl_b32 s76, s76, 3", f"s_add_u32 s76, s76, {sJ}", "s_lshl_b32 s76, s76, 2", "s_lshr_b32 s7, s2, 6",
          "s_add_u32 s76, s76, s7", "s_lshl_b32 s76, s76, 17", f"s_lshl_b32 s6, {sW}, 11", "s_add_u32 s76, s76, s6", f"s_add_u32 s76, s76, {EX_OFF}"]
    for i in range(3):
        ex += [f"s_xor_b32 s6, s71, {i ^ 3}", "s_lshl_b32 s7, s6, 2", "s_add_u32 s7, s7, s71", "s_lshl_b32 s7, s7, 13", f"s_add_u32 s{72+i}, s76, s7",
               "s_lshl_b32 s7, s71, 2", "s_add_u32 s7, s7, s6", "s_lshl_b32 s7, s7, 13", f"s_add_u32 s{24+i}, s76, s7"]
    return ex + flag_addr("ex", 27)


def slp():
    if OPT["slpj"]:
        return [f"s_and_b32 s98, s2, {OPT['slpj']}", "s_cbranch_scc0 L_noslp", f"s_sleep {OPT['slpn']}", "L_noslp:"]
    return [f"s_sleep {OPT['slpn']}"]


def projections(p, ool):
    if OPT["slph"] == -1:
        p.e(slp())
    p.e(mk_srd(SRD_CKV, 50, 2048 * 1024))
    issue(p, a_dma(0))
    p.e("s_mov_b32 s96, s6")
    p.e(mk_srd(SRD_X, 48, 2048 * 1024))
    p.e(mk_srd(SRD_WUK, 54, 512 * 8192))
    p.e(mk_srd(SRD_WS, 72, WS_BYTES))
    p.e(mk_srd(SRD_WUV, 56, 512 * 8192))
    p.e(mk_srd(SRD_WQ, 52, 512 * 8192))
    p.e(mk_srd(SRD_W1, 62, 512 * 3584))
    p.e(mk_srd(SRD_B1, 64, 3584))
    p.e(mk_srd(SRD_DBG, 70, 256))
    p.e(mk_srd(SRD_ACT, 72, WS_BYTES))
    p.e(f"""
s_cmp_lt_u32 {sH}, 28
s_cselect_b32 s{SRD_W1+2}, s{SRD_W1+2}, 0
s_cselect_b32 s{SRD_ACT+2}, s{SRD_ACT+2}, 0
s_lshl_b32 s83, {sH}, 7
s_lshl_b32 s6, {sH}, 6
s_lshl_b32 s7, {sJ}, 3
s_add_u32 s6, s6, s7
s_lshl_b32 s7, {sW}, 1
s_add_u32 s6, s6, s7
s_lshl_b32 s6, s6, 14
s_add_u32 s84, s6, {KV_OFF}
s_mul_i32 s6, {sH}, {OPT['kvpad']}
s_add_u32 s84, s84, s6
""")
    for i in range(1, 8):
        p.e(f"s_add_u32 s{84+i}, s84, {i*4096}")
    p.e(f"s_lshl_b32 s6, s79, 1\ns_add_u32 s6, s6, {sW}\ns_lshl_b32 s6, s6, 5")
    for i in range(4):
        p.e(f"""
s_add_u32 s7, s6, {128*i}
s_and_b32 s7, s7, 511
s_lshl_b32 s{60+i}, s7, 13
s_add_u32 s{60+i}, s{60+i}, s76
""")
    p.e(f"s_and_b32 s79, s79, {OPT['p2rot']}\ns_lshl_b32 s6, s79, 1\ns_add_u32 s6, s6, {sW}\ns_lshl_b32 s82, s6, 5")
    for i in range(4):
        p.e(f"""
s_add_u32 s7, s82, {128*i}
s_and_b32 s7, s7, 511
s_mul_i32 s{52+i}, s7, 3584
s_add_u32 s{52+i}, s{52+i}, s83
""")
    p.e(f"""
s_lshl_b32 s70, s79, 12
s_lshl_b32 s48, {sJ}, 2
s_add_u32 s48, s48, {sW}
s_sub_u32 s49, 63, s48
s_mul_i32 s92, s48, {XN_RS}
s_mul_i32 s93, s49, {XN_RS}
s_mul_i32 s50, s48, {AF_KS*1024}
s_mul_i32 s51, s49, {AF_KS*1024}
s_add_u32 s50, s50, {AF_OFF}
s_add_u32 s51, s51, {AF_OFF}
s_lshl_b32 s6, {sH}, 12
s_add_u32 s6, s6, {256*1024}
s_add_u32 s94, s50, s6
s_add_u32 s95, s51, s6
""")
    stamp(p, 21)
    issue(p, w_dma(0))
    p.e(I(f"buffer_load_dwordx4 {vr(LX)}, v20, {srd(SRD_X)}, s96 offen", tag="X"))
    p.e(I(f"buffer_load_dwordx4 {vr(LX+4)}, v20, {srd(SRD_X)}, s96 offen offset:128", tag="X"))
    stamp(p, 22)
    p.e(f"""
v_and_b32 v21, 7, v0
v_lshlrev_b32 v21, 4, v21
v_bfe_u32 v24, v0, 3, 2
v_lshl_add_u32 v24, v24, 8, v21
v_lshrrev_b32 v25, 5, v0
v_lshl_add_u32 v24, v25, 11, v24
v_add_u32 v21, {LN_LDS}, v21
s_lshl_b32 s6, {sW}, 2
v_add_u32 v22, s6, v21
s_lshr_b32 s6, s2, 2
s_mul_i32 s6, s6, {XN_RS}
s_and_b32 s7, s2, 2
s_lshl_b32 s7, s7, 9
s_add_u32 s6, s6, s7
s_and_b32 s7, s2, 1
s_lshl_b32 s7, s7, 7
s_add_u32 s6, s6, s7
s_lshl_b32 s7, {sW}, 13
s_add_u32 s96, s6, s7
s_add_u32 s97, s96, 4096
""")
    p.e(flag_addr("kv", 65))
    p.e(f"""
s_getreg_b32 s57, hwreg(HW_REG_XCC_ID, 0, 4)
s_lshl_b32 s64, s2, 8
s_add_u32 s64, s64, {FL_OFF}
s_and_b32 s65, s65, 0xfffffff0
s_cmp_eq_u32 {sW}, 0
s_cselect_b32 s64, s64, 0x80000000
s_cmp_eq_u32 {sW}, 1
s_cselect_b32 s65, s65, 0x80000000
s_and_b32 s71, s2, 63
s_lshl_b32 s71, s71, 2
v_mov_b32 v27, 0
v_lshlrev_b32 v26, 2, v0
v_mov_b32 v{vOne}, 1
""")
    p.e([f"v_mov_b32 v{72+r}, s57" for r in range(4)])
    first = [([], I(f"buffer_store_dwordx4 v[64:67], v24, {srd(SRD_WS)}, s96 offen sc1", tag="XNst")),
             ([], I(f"buffer_store_dwordx4 v[68:71], v24, {srd(SRD_WS)}, s97 offen sc1", tag="XNst")),
             ([], I(f"buffer_store_dword v27, v26, {srd(SRD_WS)}, s64 offen sc1", tag="XNst")),
             ([], I(f"buffer_store_dwordx4 v[72:75], off, {srd(SRD_WS)}, s65 sc1", tag="XNst"))]
    if OPT["wqt"] >= 0:
        p.e(f"""
v_bfe_u32 v25, v0, 1, 4
v_lshlrev_b32 v25, 13, v25
v_and_b32 v23, 1, v0
v_lshl_add_u32 v25, v23, 7, v25
s_lshl_b32 s56, s75, 1
s_add_u32 s56, s56, s76
""")
    stamp(p, 23)
    if OPT["pads"]:
        p.e("s_mov_b64 exec, 0")
        for w in (1, 2, 3):
            p.e(f"s_cmp_eq_u32 {sW}, {w}\ns_cbranch_scc1 L_pad{w}")
        p.e("s_branch L_pad0\nL_padret:\ns_mov_b64 exec, -1")
    p.e(";PAGE")
    issue(p, a_dma(1))
    stamp(p)
    p.wait("A0")
    for x in a_reads(0):
        p.e(x)
    p.wait("W0")
    p.e("s_barrier")
    for n in range(4):
        p.e(w_read(n, 0))
        p.e(w_read(n, 1))
    p.wait("Wr0", "Ar0")

    mf = []
    for kg in range(8):
        for cb in range(8):
            m = len(mf) // 8
            for rb, kk, f1 in walk(cb, 4):
                d = vr(acc(ACC0 if cb < 4 else ACC1, 0, cb % 4, rb))
                mf.append(I(f"{MF} {d}, {vr(WF+4*((2*m+kk)%8))}, {res(rb, 2*kg+kk)}, {'0' if kg == 0 and f1 else d}", needs=[f"Wr{m}", f"Ar{kg}"]))
    for ci, (nm, _, _) in enumerate(CHUNKS):
        buf = (ACC0, ACC1, ACC0, ACC1, 2)[ci]
        for kg in range(8):
            for cb in range(4):
                m = len(mf) // 8
                for rb, kk, f1 in walk(cb, 4):
                    d = c = vr(acc(buf, nm[0] == "V", cb, rb))
                    if kg == 0 and f1:
                        c = vr(BIAS + 4 * cb) if nm == "H" else "0"
                    wf, af = vr(WF + 4 * ((2 * m + kk) % 8)), res(rb, 2 * kg + kk)
                    a, b = (af, wf) if nm[0] == "V" else (wf, af)
                    nd = [f"Wr{m}"] + ([f"XN{kg}"] if nm == "H" else [])
                    mf.append(I(f"{MF} {d}, {a}, {b}, {c}", needs=nd))
    NH = len(mf)
    g = Half(mf)
    for n in range(4, NH // 4):
        for j in range(2):
            g.mem[4 * (n - 4) + 2 * j].append(w_read(n, j))
        if n % 16 >= 8 and n % 2 and n // 16 + 1 < NSLAB:
            dw = W_SLOT[n // 16 + 1] // 4 - W_SLOT[n // 16] // 4
            if dw:
                g.val[4 * (n - 4) + 2].append(I(f"v_add_u32 v{VTR+(n//2)%4}, 0x{(dw*65536) & 0xffffffff:x}, v{VTR+(n//2)%4}"))
    for h in range(8, NH, 8):
        tags = [f"Wr{h//8}"]
        if h < 512 and h % 64 == 0:
            tags += [f"Ar{h//64}"]
        if 1024 <= h < 1280 and h % 32 == 0:
            tags += [f"XN{(h-1024)//32}"]
        g.sh[h - 1].append(WAIT(*tags))
    for q in range(1, 8):
        h = 64 * q - 27
        g.sh[h - 1].append(WAIT(f"A{q}"))
        for i, x in enumerate(a_reads(q)):
            g.mem[h - 1 + 2 * i].append(x)
    for ps in range(1, NSLAB):
        if ps in NOBAR:
            assert ps not in W_ISSUE
            continue
        nx = ps + 1
        while nx in NOBAR:
            assert W_ISSUE[nx] <= ps - 2
            nx += 1
        tags = [f"W{k}" for k in range(ps, nx)] + (["XNst"] if ps == OPT["sigp"] else []) + (["KV0"] if ps == 27 else [])
        g.sh[64 * ps - 19].append(WAIT(*tags))
        g.sh[64 * ps - 18].append("s_barrier")
    lo = -1
    for ps in range(0, NSLAB):
        lst = []
        for sl in range(NSLAB):
            if W_ISSUE[sl] == ps:
                lst += w_dma(sl)
        if ps == 0:
            lo = place(g, w_dma(1), 3, 2, -1)
            lo = place(g, a_dma(2) + lst, 13, 4, lo)
        elif ps < 6:
            st = max(lo + 4, 64 * ps + 1)
            lo = place(g, a_dma(ps + 2) + lst, st, 4, lo)
        elif lst:
            lo = place(g, lst, 64 * ps - 13, 4 if len(lst) > 8 else 6, max(lo, 64 * ps - 19))
    g.after([("s_mov_b32 s7, 1", f"s_cmp_lg_u32 {sW}, 0", "s_cbranch_scc1 L_nosig", f"s_atomic_add s7, s[{SRD_DBG}:{SRD_DBG+1}], s71", "L_nosig:")],
            64 * OPT["sigp"] - 16)

    def slot(h):
        h |= 1
        while g.mem[h] or g.val[h]:
            h += 2
        return h

    def kv_store(src, blk, f):
        return I(f"buffer_store_dwordx4 {vr(src)}, {vL16}, {srd(SRD_WS)}, s{84+blk*4+f//4} offen offset:{(f%4)*1024} {KVFL}", tag="KVst")

    def cvt4(dst, src):
        return [f"v_cvt_pk_bf16_f32 v{dst+c}, v{src+2*c}, v{src+2*c+1}" for c in range(4)]

    q = Prog()
    tail = layernorm(q)
    LH = OPT["lnh"]
    cut = [x.text for x in q.l].index(";CUT")
    LB = OPT["lnb"]
    g.post[LH] += q.l[:cut]
    g.post[LH + LB] += q.l[cut + 1:]
    if LB:
        hl = LH + 2 * LB
        g.post[hl] += [I(x) for x in tail]
    else:
        hl = g.fill(tail, range(LH + 1, LH + 90), dense=True)
    assert LH + LB < 64 * 3 - 20
    assert W_SLOT[5] == 5 and hl + 20 < 64 * OPT["sigp"] - 40, hl
    for _, x in first:
        hl = slot(hl + 1)
        g.mem[hl].append(x)
    if OPT["probe"]:
        for k, h in enumerate((450, 765, 1500)):
            q = Prog()
            q.e("s_waitcnt vmcnt(0)")
            q.e(f"s_lshl_b32 s96, s2, 13\ns_lshl_b32 s97, {sW}, 11\ns_add_u32 s96, s96, s97\ns_add_u32 s96, s96, {k*512}\ns_xor_b32 s96, s96, 0x54000\ns_add_u32 s97, s96, {120<<20}")
            stamp(q, 24 + 4 * k)
            q.e(f"buffer_load_dword v{vDummy}, off, {srd(SRD_WS)}, s96 sc1\ns_waitcnt vmcnt(0)")
            stamp(q, 25 + 4 * k)
            q.e(f"buffer_store_dwordx4 v[0:3], {vL16}, {srd(SRD_WS)}, s97 offen sc1\ns_waitcnt vmcnt(0)")
            stamp(q, 26 + 4 * k)
            q.e(f"buffer_load_dword v{vDummy}, off, {srd(SRD_WS)}, s97 sc1\ns_waitcnt vmcnt(0)")
            stamp(q, 27 + 4 * k)
            g.post[h] += q.l
    if OPT["slph"] >= 0:
        g.post[OPT["slph"]] += slp()
    if OPT["xnrt"]:
        for k in (96, 97):
            g.mem[slot(OPT["xnrt"])].append(I(f"buffer_load_dword v{vDummy}, v24, {srd(SRD_WS)}, s{k} offen sc1"))
    prev = 795
    for i in range(64):
        f, blk = divmod(i, 2)
        h = slot(max(800 + (62 * i) // 10, prev + 1))
        assert 768 + 32 * (f // 4 + 1) <= h < 1024 + 32 * (f // 4) - 48
        if i % 8 == 0:
            g.before(["s_add_u32 s64, s92, s70", "s_add_u32 s65, s93, s70"], h, prev + 1)
            g.after(["s_add_u32 s70, s70, 4096", "s_and_b32 s70, s70, 0x7fff"], h + 1)
        g.mem[h].append(I(f"buffer_load_dwordx4 {ar((blk*32+f)*4)}, {vL16}, {srd(SRD_WS)}, s{92 if OPT['dbgno'] == 2 else 64+blk} offen offset:{(f%4)*1024}{' sc1' if OPT['xnsc'] else ''}", tag=f"XN{f//4}"))
        prev = h
    kf = lambda i, hi: ((i % 4) // 2, (i % 2) * 4 + 2 * hi + i // 4)
    vf = lambda i, hi: (i // 4, 8 + 4 * hi + i % 4)
    it = []
    for i in range(8):
        it += cvt4(TP + 4 * i, ACC0 + 8 * i)
    g.fill(it, range(476, 512))
    tp_st = [kv_store(TP + 4 * i, *kf(i, 0)) for i in range(8)]

    def epi_inplace(buf, h0, fidx, extra):
        it, st = [], []
        for i in range(8):
            it += cvt4(buf + 8 * i, buf + 8 * i)
            st.append(kv_store(buf + 8 * i, *fidx(i)))
        st = extra[:2] + st + extra[2:]
        for n, x in enumerate(st):
            if (OPT["dbgno"] == 1 and h0 > 512) or (OPT["dbgno"] == 3 and h0 > 512 and n % 3 == 0) or (OPT["dbgno"] == 4 and h0 == 512 and n):
                continue
            g.mem[slot(h0 + 6 + (n * 240) // len(st))].append(x)
        g.fill(it, range(h0 + 2, h0 + 40))
    epi_inplace(ACC1, 512, lambda i: kf(i, 1), tp_st[:4])
    epi_inplace(ACC0, 768, lambda i: vf(i, 0), tp_st[4:6])
    epi_inplace(ACC1, 1024, lambda i: vf(i, 1), tp_st[6:])
    g.fill(["v_lshrrev_b32 v20, 4, v0", "v_lshlrev_b32 v20, 3, v20"], range(676, 680))
    for cb in range(4):
        g.mem[slot(684 + 6 * cb)].append(I(f"buffer_load_dwordx2 {vr(BIAS+4*cb+2,2)}, v20, {srd(SRD_B1)}, s83 offen offset:{32*cb}", tag="B1"))
    g.after([WAIT("B1")], 876)
    it = []
    for cb in range(4):
        b = BIAS + 4 * cb
        it += [I(f"v_lshlrev_b32 v{b}, 16, v{b+2}", needs=["B1"]), f"v_and_b32 v{b+1}, 0xffff0000, v{b+2}",
               f"v_lshlrev_b32 v{b+2}, 16, v{b+3}", f"v_and_b32 v{b+3}, 0xffff0000, v{b+3}"]
    g.fill(it, range(884, 920))
    g.mem[slot(OPT["plh"])].append(I(f"buffer_load_dword v{vPoll}, v26, {srd(SRD_DBG)}, 0 offen sc1", tag="pollLN"))
    PC = 760 if OPT["plh"] < 700 else 792
    g.sh[PC].append(WAIT("pollLN"))
    g.val[PC].append(I(f"v_cmp_gt_u32 vcc, 4, v{vPoll}", needs=["pollLN"]))
    g.sh[PC + 3] += ["s_cbranch_vccnz L_pollLN", "L_pollLN_back:"]
    ool.e(f"""
L_pollLN:
s_mov_b32 s96, 0x40000
L_pollLN_l:
s_sleep 2
buffer_load_dword v{vPoll}, v26, {srd(SRD_DBG)}, 0 offen sc1
s_waitcnt vmcnt(0)
v_cmp_gt_u32 vcc, 4, v{vPoll}
s_sub_u32 s96, s96, 1
s_cbranch_scc1 L_pollLN_back
s_cbranch_vccnz L_pollLN_l
s_branch L_pollLN_back
""")
    if OPT["p2rot"] != 7:
        l = []
        for i in range(4):
            l += [f"s_add_u32 s7, s82, {128*i}", "s_and_b32 s7, s7, 511", f"s_lshl_b32 s{60+i}, s7, 13", f"s_add_u32 s{60+i}, s{60+i}, s76"]
        assert g.after(l, 930) < 1000
    late = mk_srd(SRD_W2, 66, 1792 * 1024) + mk_srd(SRD_WO, 58, 4096 * 1024) + mk_srd(SRD_OUT, 68, 2048 * 1024)
    late += [f"s_mul_i32 s6, {sH}, {KV_HS}", "s_add_u32 s6, s6, s77", f"s_add_u32 s6, s6, {KV_OFF}", f"s_mov_b32 s{SRD_KV+2}, 0x100000",
             (f"s_add_u32 s{SRD_KV}, s72, s6", f"s_addc_u32 s{SRD_KV+1}, s73, 0"), f"s_and_b32 s{SRD_KV+1}, s{SRD_KV+1}, 0xffff"]
    late += flag_addr("kv", 82) + ["s_and_b32 s80, s82, 0xffffff80", "s_mov_b32 s71, 0"]
    if OPT["wopf"]:
        late += ["s_mul_i32 s56, s2, 7168", (f"s_cmp_eq_u32 {sW}, 2", "s_cselect_b32 s56, s56, 0x1000000")]
    assert g.after(late, 1160) < 1226
    g.fill(["v_and_b32 v27, 31, v0", "v_lshlrev_b32 v27, 2, v27", "v_lshlrev_b32 v26, 7, v0"], range(1218, 1226))
    g.mem[slot(1228)].append(poll_req(27, 80, "pollXC"))
    g.sh[1272].append(WAIT("pollXC"))
    g.fill([I(f"v_and_b32 v{vPoll}, 0xff, v{vPoll}", needs=["pollXC"]), f"v_cmp_ne_u32 vcc, s57, v{vPoll}",
            f"v_mov_b32 v{vPoll}, s57", f"v_or_b32 v{vPoll}, 0x100, v{vPoll}"], range(1272, 1277))
    g.sh[1300].append(WAIT("KVst"))
    g.sh[1301] += ["s_cbranch_vccnz L_xrel", "L_xrel_back:"]
    ool.e("L_xrel:\ns_mov_b32 s71, 1\nbuffer_wbl2 sc1\ns_waitcnt vmcnt(0)\ns_branch L_xrel_back")
    g.mem[slot(1302)].append(flag_store(vPoll, 82))
    if OPT["wopf"]:
        if OPT["w2t"] > 0:
            g.mem[slot(OPT["w2t"])].append(I(f"buffer_load_dword v{vDummy}, v26, {srd(SRD_W2)}, s56 offen", tag="wopf"))
    if OPT["wqt"] > 0:
        g.mem[slot(OPT["wqt"])].append(I(f"buffer_load_dword v{vDummy}, v25, {srd(SRD_WQ)}, s56 offen"))
    g.mem[slot(1540)].append(poll_req(27, 80, "pollKV"))
    assert g.after(flag_addr("actA", 78) + flag_addr("actB", 79) + [f"s_add_u32 s{sPM[2]}, s77, 0x20000"], 1544) < 1580
    g.sh[1586].append(WAIT("pollKV"))
    g.val[1586].append(I(f"v_cmp_gt_u32 vcc, 0x100, v{vPoll}", needs=["pollKV"]))
    g.sh[1589] += ["s_cbranch_vccnz L_pollKV", "L_pollKV_back:"]
    poll_slow(ool, "L_pollKV", 27, 80, "v_cmp_gt_u32 vcc, 0x100")
    g.sh[1592] += ["s_cmp_lg_u32 s71, 0", "s_cbranch_scc1 L_xacq", "L_xacq_back:"]
    ool.e("L_xacq:\nbuffer_inv sc1\ns_waitcnt vmcnt(0)\ns_branch L_xacq_back")
    assert W_SLOT[24:] == [6, 7, 8, 9]
    lo = 1592
    for n in range(7):
        lo = place(g, kv_dma(n), 1597 + 24 * n, 6, lo)
    for k in range(12):
        g.mem[1714 + 4 * k].append(I(f"ds_read_b128 {ar(KF+4*k)}, {vL16} offset:{k*1024}", tag="K0", needs=["KV0"]))
    ps = [
        "s_and_b32 s6, s2, 1", "s_lshl_b32 s6, s6, 5", "s_add_u32 s6, s6, s48",
        "s_lshr_b32 s71, s2, 1", "s_and_b32 s71, s71, 3",
        "s_lshl_b32 s101, s6, 2", "s_add_u32 s101, s101, s71", "s_lshl_b32 s101, s101, 7", f"s_add_u32 s101, s101, {CTXF + 32}",
        "s_mul_i32 s7, s71, 28",
        f"s_mul_i32 s6, s6, {AF_KS*1024}", f"s_add_u32 s6, s6, {AF_OFF}",
        "s_lshl_b32 s7, s7, 10", f"s_add_u32 s{sPA}, s6, s7", f"s_add_u32 s{sPA}, s{sPA}, {256*1024}",
        "s_lshl_b32 s7, s71, 16", f"s_add_u32 s{sPC}, s6, s7",
        f"s_xor_b32 s6, s71, {sW}", "s_xor_b32 s6, s6, 3", "s_lshr_b32 s6, s6, 1", "s_lshl_b32 s6, s6, 7",
        "s_lshr_b32 s7, s2, 6", "s_lshl_b32 s7, s7, 8", "s_add_u32 s6, s6, s7",
        f"s_and_b32 s7, {sW}, 1", "s_lshl_b32 s7, s7, 15", "s_add_u32 s6, s6, s7",
        f"s_mul_i32 s7, s71, {448*1024}", f"s_add_u32 s{sPW2}, s6, s7",
        "s_lshl_b32 s7, s71, 20", f"s_add_u32 s{sPWO}, s6, s7",
        f"s_and_b32 s6, {sJ}, 1", "s_lshl_b32 s6, s6, 16", f"s_add_u32 s{sPM[0]}, s77, s6",
        f"s_xor_b32 s{sPM[1]}, s{sPM[0]}, 0x10000", f"s_add_u32 {sM}, s77, {7*16384}",
        "s_and_b32 s75, s71, 1", "s_xor_b32 s75, s75, 1", "s_lshl_b32 s75, s75, 6",
        f"s_mov_b32 {sKa}, 0x4000", f"s_mov_b32 {sCA}, s48", f"s_sub_u32 {sCB}, 30, s48",
        f"s_sub_u32 s41, {sJ}, 2", "s_lshl_b32 s41, s41, 5", f"s_add_u32 s41, s41, {sH}", "s_lshl_b32 s41, s41, 2",
        f"s_add_u32 s41, s41, {sW}", "s_lshl_b32 s41, s41, 13",
    ]
    if OPT["w2t"] > 0:
        ps += [f"s_mov_b32 s{20+i}, s{SRD_WO+i}" for i in range(3)]
    else:
        ps += ["s_sub_u32 s6, s41, 0x200000", (f"s_cmp_lt_u32 {sJ}, 4", "s_cselect_b32 s41, s41, s6") +
               tuple(f"s_cselect_b32 s{20+i}, s{SRD_W2+i}, s{SRD_WO+i}" for i in range(3))]
    if OPT["sent"]:
        ps += ex_addr()
    for r in range(4):
        m = sum(1 << l for l in range(64) if 4 * (l // 16) + r > l % 16)
        ps += [f"s_mov_b32 s{MASKS+2*r}, 0x{m & 0xffffffff:x}", f"s_mov_b32 s{MASKS+2*r+1}, 0x{m >> 32:x}"]
    assert g.after(ps, 1594) < 1765
    it = []
    LOG2E = f"0x{f2u(1.4426950408889634):x}"
    for i in range(8):
        dl, rb = divmod(i, 4)
        b = ACC0 + 8 * i
        for c in range(4):
            x0, x1 = b + 2 * c, b + 2 * c + 1
            it += [f"v_mul_f32 v20, {LOG2E}, v{x0}", "v_exp_f32 v20, v20", f"v_mul_f32 v21, {LOG2E}, v{x1}", "v_exp_f32 v21, v21",
                   "v_fma_f32 v22, v20, 0.5, 1.0", "v_fma_f32 v20, v20, v22, 1.0", "v_fma_f32 v23, v21, 0.5, 1.0",
                   "v_fma_f32 v21, v21, v23, 1.0", "v_rcp_f32 v20, v20"]
            if c or i:
                it.append(pend.pop())
            it += ["v_rcp_f32 v21, v21", f"v_fma_f32 v24, -v{x0}, v20, v{x0}"]
            if c == 0 and i:
                it.append(pst.pop())
            it.append(f"v_fma_f32 v25, -v{x1}, v21, v{x1}")
            pend = [f"v_cvt_pk_bf16_f32 v{b+c}, v24, v25"]
        pst = [I(f"buffer_store_dwordx4 {vr(b)}, {vL16}, {srd(SRD_ACT)}, s{94+rb//2} offen offset:{(2*dl+rb%2)*1024} sc1", tag="ACTst")]
    it += pend + pst
    nmish = len(it)
    QS = f"0x{f2u(1.4426950408889634 / 128 ** 0.5):x}"

    def q_epi(src, dst):
        it = []
        for c in range(4):
            it += [f"v_mul_f32 v{src+2*c}, {QS}, v{src+2*c}", f"v_mul_f32 v{src+2*c+1}, {QS}, v{src+2*c+1}",
                   f"v_cvt_pk_bf16_f32 v{dst+c}, v{src+2*c}, v{src+2*c+1}"]
        return it
    it += ["v_lshrrev_b32 v20, 3, v0", "v_and_b32 v21, 7, v0", "v_bfe_u32 v22, v0, 4, 2", "v_lshlrev_b32 v22, 1, v22",
           "v_xor_b32 v21, v21, v22", "v_lshlrev_b32 v21, 4, v21", "v_xor_b32 v21, s75, v21",
           f"v_lshl_add_u32 v{VP_DMA}, v20, 10, v21"] + [f"v_add_u32 v{VP_DMA+u}, {7168*u}, v{VP_DMA}" for u in (1, 2, 3)]
    it += ["v_min_u32 v27, 6, v0", "v_lshlrev_b32 v27, 2, v27", f"v_mov_b32 v{vMask}, 0x1c000", f"v_mov_b32 v{vBit}, 0x40004000",
           f"v_mov_b32 v{vNinf}, 0xff800000", f"v_mov_b32 v{vR0}, {vL16}"]
    it += ["v_and_b32 v25, 3, v0", "v_add_u32 v25, -1, v25", "v_ashrrev_i32 v25, 31, v25", "v_and_b32 v25, 0x3f803f80, v25"]
    it += [f"v_mov_b32 v{NMA+r}, 0" for r in range(16)] + [f"v_mov_b32 v{EX+r}, 0" for r in range(4)]
    for i in range(8):
        it += q_epi(ACC1 + 8 * i, ACC1 + 4 * i)
    it = [x if isinstance(x, I) else I(x) for x in it]
    FH = 1737
    g.sh[FH - 1].append(WAIT("ACTst"))
    g.mem[FH].append(flag_store(vOne, 78, sr=SRD_ACT))
    g.mem[FH + 2].append(flag_store(vOne, 79, sr=SRD_ACT))
    g.sh[1788] += [f"s_cmp_eq_u32 {sCA}, 0", "s_cbranch_scc1 L_mask0", "L_mask0_back:"]
    ool.e("L_mask0:"); ool.e(mask_ops(NMA)); ool.e("s_branch L_mask0_back")
    g.fill(it, range(1283, 1788))
    hm = [h for h in range(NH) if it[nmish - 1] in g.mem[h] + g.val[h]][0]
    assert 1675 < hm < FH - 40, hm
    assert g.after([(f"s_add_u32 s{SRD_KV}, s{SRD_KV}, {6*16384}", f"s_addc_u32 s{SRD_KV+1}, s{SRD_KV+1}, 0"),
                    f"s_lshl_b32 s7, {sJ}, 2", "s_sub_u32 s7, 58, s7", f"s_lshl_b32 s{SRD_KV+2}, s7, 14", f"s_mov_b32 m0, {sM}"], 1768) < 1786
    if OPT["stamp"] or OPT["padat"] >= 0:
        for h in (511, 767, 1023, 1279, 1535):
            q = Prog(); stamp(q); g.post[h] += q.l
        if OPT["stamp"] == 2:
            for k in range(28):
                q = Prog(); stamp(q, 24 + k); g.post[64 * k] += q.l
    p.e(g.emit())
    stamp(p)
    mB, mA = qk_mf(JB1, True, "0"), qk_mf(JA0, True)
    p.wait("K0")
    g = Half(mB[:8] + mA[:8] + mB[8:] + mA[8:])
    qe = lambda l: sum((q_epi(grp(2, i), grp(2, i)) for i in l), [])
    g.fill(qe((2, 3, 6, 7)) + ["s_nop 0"], range(0, 16))
    g.fill(qe((0, 1, 4, 5)) + ["s_nop 0"], range(16, 24))
    g.fill(rowmax(S1), range(26, 32))
    p.e(g.emit())
    it = [f"v_sub_f32 v{NMB+r}, 0x{f2u(-SHIFT):x}, v{20+r//8}" for r in range(16)]
    it += rowmax(S0) + [f"v_add_f32 v{20+qb}, 0x{f2u(SHIFT):x}, v{20+qb}" for qb in range(2)]
    it += [f"v_sub_f32 v{S0+r}, v{S0+r}, v{20+r//8}" for r in range(16)]
    z = Gaps([f"{MF32} {ar(16*i,16)}, {vr(EX)}, {vr(EX)}, 0" for i in range(8)])
    z.spread(it, 0, 8)
    p.e(z.emit())
    p.e([f"v_sub_f32 v{NMA+r}, 0, v{20+r//8}" for r in range(16)])
    p.e(sm_split(JA0, "Y")[0])
    p.e([f"v_mov_b32 v{lreg(r//8, (r//4)%2)+r%4}, 0" for r in range(16)] +
        ([f"v_mov_b32 v{ONES+r}, v25" for r in range(4)] if OPT["ones4"] else [f"v_mov_b32 v{ONES+r}, 0x3f803f80" for r in range(4)]))
    if OPT["sent"]:
        p.e([f"v_mov_b32 v{32+r}, -1" for r in range(4)])
        for i in range(6):
            p.e(I(f"buffer_store_dwordx4 v[32:35], {vL16}, {srd(SRD_WS)}, s{24+i//2} offen offset:{(i%2)*1024} sc1"))
    p.wait("KV2")
    stamp(p)


def qfrag(blk, qb, ds):
    rb = 2 * blk + qb
    return ACC1 + 4 * (4 * ds + rb) if ds < 2 else grp(2, 4 * (ds - 2) + rb)


def lreg(blk, qb):
    return TP + 4 + 8 * (2 * blk + qb)


class Job:
    def __init__(self, blk, par):
        self.blk = blk
        self.S = (S0, S1)[par]
        self.P = (P0, P1)[par]
        self.NM = (NMA, NMB)[blk]
        self.O = (OA, OB)[blk]


JA0, JB1, JB0 = Job(0, 0), Job(1, 1), Job(1, 0)


def sm_ops(j):
    o = {}
    for r in range(16):
        o[f"e{r}"] = f"v_exp_f32 v{EX+r}, v{j.S+r}"
    for i in range(8):
        o[f"c{i}"] = f"v_cvt_pk_bf16_f32 v{j.P+i}, v{EX+2*i}, v{EX+2*i+1}"
    o["o0"] = f"v_or3_b32 v{vChk}, v{j.P}, v{j.P+1}, v{j.P+2}"
    o["o1"] = f"v_or3_b32 v{vChk}, v{vChk}, v{j.P+3}, v{j.P+4}"
    o["o2"] = f"v_or3_b32 v{vChk}, v{vChk}, v{j.P+5}, v{j.P+6}"
    o["o3"] = f"v_bitop3_b32 v{vChk}, v{vChk}, v{j.P+7}, v{vBit} bitop3:0xa8"
    o["k"] = f"v_cmp_ne_u32 vcc, 0, v{vChk}"
    return o


SM_PLAN = {
    "Z": ({17: "e0", 18: "e1", 19: "e2", 20: "c0", 21: "e3", 22: "e4", 24: "c1", 25: "e5", 26: "e6", 27: "e7", 28: "c2",
           29: "e8", 30: "c3", 32: "e9", 33: "e10"},
          {0: "o0", 1: "e11", 2: "c4", 3: "e12", 4: "o1", 5: "e13", 8: "c5 e14", 9: "e15", 10: "c6", 11: "o2 c7", 12: "o3 k"}),
    "W": ({16: "e0", 17: "e1", 18: "e2", 19: "e3", 20: "c0", 21: "e4", 22: "c1", 24: "e5", 25: "e6", 26: "c2", 27: "e7", 28: "e8",
           29: "e9", 30: "c3", 32: "e10", 33: "e11"},
          {0: "o0", 1: "e12", 2: "c4", 3: "e13", 4: "o1", 5: "e14", 8: "c5", 9: "e15", 10: "c6", 11: "o2 c7", 12: "o3 k"}),
    "X": ({17: "e0", 19: "e1", 21: "e2", 22: "c0", 24: "e3", 25: "e4", 26: "e5", 27: "c1 c2", 28: "e6", 29: "e7",
           30: "e8", 32: "o0 c3", 33: "e9"},
          {0: "e10", 1: "e11", 2: "c4 o1", 3: "e12", 4: "e13", 5: "e14", 6: "c5", 7: "e15", 8: "c6", 9: "o2 c7", 10: "o3", 11: "k"}),
    "Y": ({17: "e0", 18: "e1", 19: "e2", 20: "e3", 21: "e4", 22: "e5", 23: "e6", 24: "c0", 25: "e7", 26: "c1", 27: "e8",
           28: "c2", 29: "e9", 30: "c3", 31: "e10", 32: "e11", 33: "o0 c4"},
          {1: "e12", 3: "e13", 5: "e14", 8: "o1", 9: "e15", 10: "c5", 11: "c6 o2", 12: "c7 o3", 13: "k"}),
}


def sm_split(j, plan):
    o = sm_ops(j)
    return [[o[n] for h in sorted(part) for n in part[h].split()] for part in SM_PLAN[plan]]


for _p in SM_PLAN.values():
    _o = [n for part in _p for h in sorted(part) for n in part[h].split()]
    assert sorted(_o) == sorted(sm_ops(JA0))
    _dep = {f"c{i}": (f"e{2*i}", f"e{2*i+1}") for i in range(8)}
    _dep.update(o0=("c0", "c1", "c2"), o1=("o0", "c3", "c4"), o2=("o1", "c5", "c6"), o3=("o2", "c7"), k=("o3",))
    assert all(_o.index(d) < _o.index(n) for n in _dep for d in _dep[n])


def qk_mf(j, dsmajor=False, c0=None):
    idx = [(kb, qb, ds) for kb in range(2) for qb in range(2) for ds in range(4)]
    if dsmajor:
        idx.sort(key=lambda t: t[2])
    elif OPT["orda"]:
        idx = [(kb, qb, ds if qb == kb else 3 - ds) for kb, qb in ((0, 0), (0, 1), (1, 1), (1, 0)) for ds in range(4)]
    out, seen = [], set()
    for kb, qb, ds in idx:
        t = 8 * qb + 4 * kb
        c = vr(j.S + t) if t in seen else (vr(j.NM + t) if c0 is None else c0)
        seen.add(t)
        out.append(f"{MF} {vr(j.S+t)}, {ar(KF+4*(4*kb+ds))}, {vr(qfrag(j.blk,qb,ds))}, {c}")
    return out


def pv_mf(j):
    sn = OPT["orda"]
    out = [f"{MF} {vr(lreg(j.blk,qb))}, {vr(ONES)}, {vr(j.P+4*qb)}, {vr(lreg(j.blk,qb))}" for qb in ((1, 0) if sn else (0, 1))]
    for db in range(8):
        for qb in ((1, 0) if sn and db % 2 else (0, 1)):
            o = ar(j.O + 8 * (2 * (db // 2) + qb) + 4 * (db % 2))
            out.append(f"{MF} {o}, {ar(VF+4*db)}, {vr(j.P+4*qb)}, {o}")
    return out


def rowmax(S):
    l = []
    for a, b in ((0, 1), (3, 4), (5, 6)):
        for qb in range(2):
            s = S + 8 * qb
            l.append(f"v_max3_f32 v{20+qb}, v{s+2 if a == 0 else 20+qb}, v{s+a}, v{s+b}")
    l += [f"v_max_f32 v{20+qb}, v{20+qb}, v{S+8*qb+7}" for qb in range(2)]
    for op in ("v_permlane16_swap_b32", "v_permlane32_swap_b32"):
        l += ["v_mov_b32 v22, v20", "v_mov_b32 v23, v21", "s_nop 0", f"{op} v20, v22", f"{op} v21, v23",
              "v_max_f32 v20, v20, v22", "v_max_f32 v21, v21, v23"]
    return l


RARE = {}


def rare(cur, nxt):
    fix = nxt is not None and nxt.blk == cur.blk
    name = f"L_rare_{cur.blk}_{cur.S}_{int(fix)}"
    if name in RARE:
        return name
    q = Prog()
    q.e(f"{name}:")
    q.e("s_nop 15")
    q.e(rowmax(cur.S))
    for qb in range(2):
        q.e(f"v_add_f32 v{20+qb}, 0x{f2u(SHIFT):x}, v{20+qb}\nv_max_f32 v{20+qb}, 0, v{20+qb}\nv_exp_f32 v{22+qb}, -v{20+qb}")
    for r in range(16):
        q.e(f"v_sub_f32 v{cur.NM+r}, v{cur.NM+r}, v{20+r//8}")
        q.e(f"v_sub_f32 v{cur.S+r}, v{cur.S+r}, v{20+r//8}")
        if fix:
            q.e(f"v_sub_f32 v{nxt.S+r}, v{nxt.S+r}, v{20+r//8}")
    for r in range(8):
        b = lreg(cur.blk, r // 4) + r % 4
        q.e(f"v_mul_f32 v{b}, v{b}, v{22+r//4}")
    for r in range(64):
        q.e(f"v_accvgpr_read_b32 v24, a{cur.O+r}")
        q.e(f"v_mul_f32 v24, v24, v{22+(r//8)%2}")
        q.e(f"v_accvgpr_write_b32 a{cur.O+r}, v24")
    o = sm_ops(cur)
    q.e([o[f"e{r}"] for r in range(16)] + [o[f"c{i}"] for i in range(8)])
    q.e("s_nop 1")
    q.e("s_setpc_b64 s[46:47]")
    errs = lint(q.l, name)
    assert not errs, errs
    RARE[name] = q
    return name


site_n = [0]


def step(ool, kind, extra=None, bar=("s_barrier",), ringdma=True, vmw=None, bh=0):
    cur, nxt = dict(X=(JA0, JB1), Y=(JB1, JA0), T=(JB1, JB0), Z0=(JB0, JB1), Z1=(JB1, JB0), F=(JB0, None))[kind]
    pcur = dict(X="Y", Y="X", T="X", Z0="W", Z1="Z", F="W")[kind]
    pnxt = dict(X="X", Y="Y", T="W", Z0="Z", Z1="W", F=None)[kind]
    rdV2, rdK, rdV1 = kind in ("X", "Z0", "Z1", "F"), kind in ("X", "T", "Z0", "Z1"), kind in ("Y", "T", "Z0", "Z1")
    dma = kind in ("X", "Z0", "Z1")
    rV2 = vR1 if kind == "Z1" else vR0
    rK = vR1 if kind in ("T", "Z1") else vR0
    rV1 = vR1 if kind == "Z0" else vR0
    sK = sKb if kind in ("T", "Z1") else sKa
    g = Half((qk_mf(nxt) if nxt else [None] * 16) + pv_mf(cur))
    if rdK:
        g.val[6].append(f"v_and_or_b32 v{rK}, {sK}, v{vMask}, {vL16}")
    o = sm_ops(cur)
    for h, v in SM_PLAN[pcur][1].items():
        g.val[h] += [o[n] for n in v.split()]
    if nxt:
        o = sm_ops(nxt)
        for h, v in SM_PLAN[pnxt][0].items():
            g.val[h] += [o[n] for n in v.split()]
    else:
        g.val[7].append("s_nop 0")
    n = site_n[0]
    site_n[0] += 1
    g.sh[15] += [f"s_cbranch_vccnz L_site{n}", f"L_back{n}:"]
    ool.e(f"L_site{n}:\ns_call_b64 s[46:47], {rare(cur, nxt)}\ns_branch L_back{n}")
    KH = (8, 10, 13, 13, 15, 18, 20, 22) if pcur in "ZW" else (8, 10, 15, 18, 18, 20, 20, 22) if kind == "X" else (8, 10, 12, 13, 15, 18, 20, 22)
    if rdV2:
        for f in range(4, 8):
            g.mem[2 * (f - 4)].append(f"ds_read_b128 {ar(VF+4*f)}, v{rV2} offset:{8192+1024*f}")
        g.sh[17].append("s_waitcnt lgkmcnt(%d)" % (sum(h < 17 for h in KH) if rdK else 0))
        g.sh[bh] += list(bar)
    if rdK:
        for k in range(8):
            g.mem[KH[k]].append(f"ds_read_b128 {ar(KF+4*k)}, v{rK} offset:{1024*k}")
        g.sh[33].append("s_waitcnt lgkmcnt(%d)" % (4 if rdV1 else 0))
    if rdV1:
        for f in range(4):
            g.mem[24 + 2 * f].append(f"ds_read_b128 {ar(VF+4*f)}, v{rV1} offset:{8192+1024*f}")
        if vmw != -1:
            g.sh[28].append("s_waitcnt vmcnt(%d)" % (vmw if vmw is not None else 15 if dma else 16))
    if dma and ringdma:
        for u, h in enumerate((7, 14, 23, 31)):
            g.mem[h].append(f"buffer_load_dwordx4 {vL16}, {srd(SRD_KV)}, {sK} offen offset:{u*1024} sc1 lds")
    if kind == "Y":
        g.after([f"s_add_u32 {sM}, {sM}, 0x4000", f"s_bitset0_b32 {sM}, 17", f"s_add_u32 {sKa}, {sKa}, 0x4000", f"s_sub_u32 {sCA}, {sCA}, 1",
                 f"s_cmp_lt_u32 {sKa}, s{SRD_KV+2}", f"s_cselect_b32 m0, {sM}, 0x30000"], 18)
    if kind == "X":
        g.sh[9].append(f"s_cmp_ge_u32 {sCA}, 2")
    if kind == "T":
        g.after([f"s_add_u32 {sKb}, {sKa}, 0x4000", f"s_add_u32 {sM}, {sM}, 0x4000", f"s_add_u32 {sKa}, {sKa}, 0x8000",
                 (f"s_sub_u32 s{SRD_KV}, s{SRD_KV}, 0x4000", f"s_subb_u32 s{SRD_KV+1}, s{SRD_KV+1}, 0"),
                 f"s_add_u32 s{SRD_KV+2}, s{SRD_KV+2}, 0x4000", f"s_bitset0_b32 {sM}, 17"], 0)
    if kind in ("Z0", "Z1"):
        if ringdma:
            g.sh[1].append(f"s_cmp_lt_u32 {sK}, s{SRD_KV+2}")
            g.sh[3].append(f"s_cselect_b32 m0, {sM}, 0x30000")
        so = sKb if kind == "Z0" else sKa
        g.after([f"s_add_u32 {sM}, {sM}, 0x4000", f"s_bitset0_b32 {sM}, 17", f"s_add_u32 {so}, {so}, 0x8000"], 18)
    if kind == "Z0":
        g.sh[9].append(f"s_sub_u32 {sCB}, {sCB}, 1")
    if extra:
        extra(g)
    l = g.emit()
    cut = [i for i, x in enumerate(l) if x.text == g.mf[16]][0] + 1
    return l[:cut], l[cut:]


def mask_ops(NM):
    l = [f"v_cndmask_b32 v{NM+t+r}, v{NM+t+r}, v{vNinf}, s[{MASKS+2*r}:{MASKS+2*r+1}]" for t in (0, 12) for r in range(4)]
    return l + [f"v_mov_b32 v{NM+4+r}, v{vNinf}" for r in range(4)] + ["s_nop 1"]


def epilogue(p, blk, tag=None, gs=range(8), mems=()):
    O = (OA, OB)[blk]
    if 0 in gs:
        p.e(f"""
v_rcp_f32 v{lreg(blk,0)}, v{lreg(blk,0)}
v_rcp_f32 v{lreg(blk,1)}, v{lreg(blk,1)}
s_lshl_b32 s6, {sH}, 13
s_add_u32 s6, s6, s{50+blk}
s_add_u32 s7, s6, 4096
""")
    mems = list(mems)
    per = -(-len(mems) // len(gs))
    for i in gs:
        b = NMA + 8 * (i % 2)
        issue(p, mems[:per])
        mems = mems[per:]
        for r in range(8):
            p.e(f"v_accvgpr_read_b32 v{b+r}, a{O+8*i+r}")
        for c in range(4):
            p.e(f"v_pk_mul_f32 {vr(b+2*c,2)}, {vr(b+2*c,2)}, {vr(lreg(blk,i%2),2)} op_sel_hi:[1,0]")
        for c in range(4):
            p.e(f"v_cvt_pk_bf16_f32 v{b+c}, v{b+2*c}, v{b+2*c+1}")
        p.e(I(f"buffer_store_dwordx4 {vr(b)}, {vL16}, {srd(SRD_WS)}, s{6+i//4} offen offset:{(i%4)*1024} sc1", tag=tag))


def attention(ool, extra):
    q = Prog()

    def memx(lst, hs):
        def f(g):
            assert len(hs) == len(lst)
            for (pre, ins), h in zip(lst, hs):
                g.mem[h] += pre + [ins]
        return f

    def cbar(n):
        return [f"s_cmp_lt_u32 {sW}, {n}", f"s_cbranch_scc1 L_nb{n}", "s_barrier", f"L_nb{n}:"]
    X1, X2 = step(ool, "X")

    def exY(g):
        if OPT["wopf"]:
            g.sh[13].append(f"s_cmp_eq_u32 {sCA}, 5")
            g.sh[14] += ["s_cbranch_scc1 L_wo", "L_wo_back:"]
    Y = sum(step(ool, "Y", exY), [])
    _, X2c = step(Prog(), "X", memx([([f"v_mov_b32 v{vPoll}, 0", "s_mov_b64 exec, 0x7f", f"buffer_atomic_or v{vPoll}, v27, {srd(SRD_WS)}, s101 offen sc0"],
                                      "s_mov_b64 exec, -1")], (16,)))

    def exT(g):
        g.sh[30].append("s_waitcnt vmcnt(2)")
        if OPT["sent"]:
            g.mem[31].append(flag_store(vOne, 27))
        g.val[31].append(f"v_cmp_ne_u32 vcc, 1, v{vPoll}")
    T = sum(step(ool, "T", exT), [])
    pl = p_aload(0, 28)
    if not OPT["peel"]:
        ool.e("L_ldA:\ns_waitcnt vmcnt(24)"); issue(ool, pl); ool.e("s_setpc_b64 s[44:45]")
    ldA = lambda n: [f"s_cmp_lg_u32 {sW}, {n}", f"s_cbranch_scc1 L_nl{n}", "s_call_b64 s[44:45], L_ldA", f"L_nl{n}:"]

    def w2_both(s):
        a, b = p_dma(s), p_dma(s)
        b[0] = (["s_xor_b32 m0, m0, 0x2000", "s_xor_b32 s97, s97, 0x80"], b[0][1])
        return a + b
    Z0a, Z0b = step(ool, "Z0")
    Z1 = sum(step(ool, "Z1"), [])
    _, Z0bc = step(Prog(), "Z0", ringdma=False, vmw=2)
    Z1c = sum(step(ool, "Z1", bar=cbar(1), ringdma=False, vmw=-1), [])
    F = sum(step(ool, "F", bar=cbar(2)), [])
    for nm, seq in (("XY", X1 + X2 + Y + X1 + X2), ("XT", X1 + X2c + T + Z0a + Z0b + Z1 + Z0a + Z0bc + Z1c + F), ("TF", T + F)):
        errs = lint(seq, nm)
        assert not errs, "\n".join(errs)
    if OPT["sim"]:
        br = [I("s_cbranch_scc1 LL")]
        for nm, seq in (("XY", (X2 + Y + X1 + br) * 3), ("Z", (Z0b + Z1 + Z0a + br) * 3)):
            t, gp = simulate(seq, taken=("LL",))
            print(nm, sum(gp[67:135]), gp[67:135])
        print("X2c+T", simulate(X2c + T)[0], "Z0bc+Z1c", simulate(Z0bc + Z1c)[0], "F", simulate(F)[0])
    q.e(step(ool, "X")[0])
    q.e("s_cbranch_scc0 L_Xx")
    q.e(";LOOP\nL_X:"); q.e(X2); q.e(Y); q.e(X1)
    q.e("s_cbranch_scc1 L_X\n;ENDLOOP\nL_Xx:")
    q.e(f"s_cmp_eq_u32 {sCA}, 0\ns_cbranch_scc1 L_Xo")
    q.e(mask_ops(NMA)); q.e("s_branch L_X")
    if OPT["wopf"]:
        q.e(f"L_wo:\nbuffer_load_dword v{vDummy}, v26, s[20:23], s41 offen\ns_branch L_wo_back")
    q.e("L_Xo:")
    stamp(q, 9)
    q.e(f"s_cmp_eq_u32 {sCB}, -1\ns_cbranch_scc1 L_mB0\nL_mB0_back:")
    ool.e("L_mB0:"); ool.e(mask_ops(NMB)); ool.e("s_branch L_mB0_back")
    q.e(X2c); q.e(T)
    q.e("s_and_b32 s96, vcc_lo, 0x7f\ns_cbranch_scc1 L_pollACT\nL_pollACT_back:")
    poll_slow(ool, "L_pollACT", 27, 101)
    PE = OPT["peel"]
    q.e(f"s_cmp_ge_u32 s48, 30\ns_cbranch_scc1 L_noA" if PE else f"s_cmp_ge_u32 {sW}, 2\ns_cbranch_scc1 L_noA")

    def w01(k):
        t = Prog()
        t.e(f"s_cmp_ge_u32 {sW}, 2\ns_cbranch_scc1 L_w01_{k}")
        issue(t, w2_both(k))
        t.e(f"L_w01_{k}:")
        return t.l
    e = Prog()
    e.e(sum(step(ool, "Z0"), []))
    epilogue(e, 0, gs=range(4), mems=pl[:16])
    e.e(w01(0))
    e.e(sum(step(ool, "Z1", vmw=31), []))
    epilogue(e, 0, gs=range(4, 8), mems=pl[16:])
    e.e(w01(1))
    errs = lint(T + e.l + Z0a, "epiA")
    assert not errs, "\n".join(errs)
    q.e(e.l)
    q.e(f"L_noA:\ns_cmp_eq_u32 {sCB}, -1\ns_cbranch_scc1 L_F")
    stamp(q, 10)
    q.e(step(ool, "Z0", bar=["s_barrier"] + ([] if PE else ldA(2)))[0])
    q.e("s_cbranch_scc1 L_Zx")
    for c in range(1, OPT["zc"]):
        q.e(f"s_cmp_eq_u32 {sW}, {c}\ns_cbranch_scc1 L_Z{c}")
        a, b = step(ool, "Z0", bh=2 * c)
        extra.e(f";LOOP pad\nL_Z{c}:"); extra.e(b); extra.e(sum(step(ool, "Z1", bh=2 * c), [])); extra.e(a)
        extra.e(f"s_cbranch_scc0 L_Z{c}\n;ENDLOOP\ns_branch L_Zx")
    q.e(";LOOP\nL_Z:"); q.e(Z0b); q.e(Z1); q.e(Z0a)
    q.e("s_cbranch_scc0 L_Z\n;ENDLOOP\nL_Zx:")
    stamp(q, 11)
    q.e(mask_ops(NMB)); q.e(Z0bc); q.e(Z1c)
    q.e("L_F:")
    q.e(F)
    stamp(q, 12)
    q.e(f"s_cmp_lt_u32 {sW}, 2\ns_cbranch_scc1 L_epiB")
    q.e(cbar(3))
    a, b = Prog(), Prog()
    if PE:
        issue(a, w2_both(2) + w2_both(3) + w2_both(4) + w2_both(5))
        a.e("s_cmp_lt_u32 s48, 30\ns_cbranch_scc1 L_epiB\ns_waitcnt vmcnt(16)")
        epilogue(a, 0, mems=pl)
    else:
        epilogue(a, 0, mems=w2_both(2) + w2_both(3) + w2_both(4) + w2_both(5))
        a.e(ldA(3))
    epilogue(b, 1)
    errs = lint(F + a.l + b.l, "tail") + lint(F + b.l, "tail")
    assert not errs, "\n".join(errs)
    q.e(a.l); q.e("L_epiB:"); q.e(b.l)
    if OPT["pads"] and OPT["pad2"]:
        q.e(f"s_cmp_lt_u32 {sW}, 2\ns_cbranch_scc1 L_nopad2\ns_mov_b64 exec, 0\ns_cmp_eq_u32 {sW}, 2\ns_cbranch_scc1 L_qad1\ns_branch L_qad0")
        q.e("L_qadret:\ns_mov_b64 exec, -1\nL_nopad2:")
    q.e("s_waitcnt vmcnt(8)")
    return q


def oproj(ool):
    p = Prog()
    pre = [I("buffer_load_dword v0, v0, s[0:3], 0", tag=f"PA{f}") for f in range(28)]
    pre += [I("s_waitcnt vmcnt(0)")]
    pre += [I("buffer_load_dword v0, v0, s[0:3], 0", tag="CTXst") for _ in range(8)]
    p.e("L_P4:")
    stamp(p, 13)
    p.e(f"""
v_lshrrev_b32 v20, 2, v0
v_lshlrev_b32 v20, 7, v20
v_and_b32 v21, 3, v0
v_lshl_add_u32 v20, v21, 3, v20
v_bfe_u32 v21, v0, 3, 2
v_lshl_add_u32 v20, v21, 5, v20
s_and_b32 s6, s{sPM[0]}, 0x10000
v_add_u32 v{VP_TR[2]}, 0x20000, v20
v_add_u32 v{VP_TR[0]}, s6, v20
""")
    for cb in range(1, 4):
        p.e(f"v_xor_b32 v{VP_TR[2]+cb}, {32*cb}, v{VP_TR[2]}")
    p.e("s_barrier")

    def rd(n):
        kk, cb = n % 2, (n // 2) % 8
        win, k = divmod(P_SLOT[n // 16], 4)
        return [I(f"ds_read_b64_tr_b16 {vr(PWF+4*(n%16)+2*j,2)}, v{VP_TR[win]+cb%4} offset:{k*16384+(cb//4)*8192+kk*4096+j*2048}",
                  tag=f"PR{n//4}") for j in range(2)]
    for n in range(8):
        p.e(rd(n))
    p.wait("PR0")
    mf = []
    for kg in range(23):
        for cb in range(8):
            for rb, kk, f1 in walk(cb, 2):
                d = vr(PACC + 16 * (cb // 2) + 8 * rb + 4 * (cb % 2))
                n, f = 16 * kg + 2 * cb + kk, 4 * kg + 2 * kk + rb
                mf.append(I(f"{MF} {d}, {vr(PWF+4*(n%16))}, {p_areg(f)}, {'0' if kg == 0 and f1 else d}", needs=[f"PR{n//4}", f"PA{f}"]))
    NH = len(mf)
    g = Half(mf)
    for n in range(8, NH // 2):
        g.mem[2 * (n - 8)] += rd(n)
    for h in range(8, NH, 8):
        tags = [f"PR{h//8}"] + ([f"PA{h//8+3}"] if h % 32 == 0 else [])
        g.sh[h - 1].append(WAIT(*tags))
    for b in range(2, PSLAB, 2):
        tags = [f"PW{s}" for s in (b, b + 1) if 6 <= s < PSLAB]
        if tags:
            g.sh[32 * b - 20].append(WAIT(*tags))
        g.sh[32 * b - 19].append("s_barrier")

    def slot(h):
        h |= 1
        while g.cost(h):
            h += 2
        return h
    g.fill([f"v_xor_b32 v{VP_TR[0]+cb}, {32*cb}, v{VP_TR[0]}" for cb in range(1, 4)] +
           [f"v_xor_b32 v{VP_TR[1]+cb}, 0x10000, v{VP_TR[0]+cb}" for cb in range(4)] +
           ["v_and_b32 v27, 7, v0", "v_lshlrev_b32 v27, 2, v27"], (1, 3, 7, 9, 13))
    wstart = {6: 5, 7: 29, 8: 53, 9: 77, 10: 117, 11: 141}
    for s in range(12, PSLAB):
        wstart[s] = 191 + (s - 12) * 40
    lo = -1
    for s in range(6, PSLAB):
        if s >= 10:
            assert wstart[s] > 32 * (s - 8 + s % 2) - 19, s
        for i, (pr, ins) in enumerate(p_dma(s)):
            h = slot(wstart[s] + i * (6 if s < 12 else 10))
            if pr:
                g.before(pr, h, lo + 1)
            g.mem[h].append(ins)
            lo = h
        assert lo < 32 * (s - s % 2) - 40, s
    assert g.after(flag_addr("ctxA", 64) + flag_addr("ctxB", 65) +
                   ["s_and_b32 s66, s2, 1", "s_lshl_b32 s66, s66, 5", "s_add_u32 s66, s66, s48", "s_lshl_b32 s66, s66, 2",
                    "s_lshr_b32 s67, s2, 1", "s_and_b32 s67, s67, 3", "s_add_u32 s66, s66, s67", "s_lshl_b32 s66, s66, 7",
                    f"s_add_u32 s66, s66, {CTXF}"], 6) < 56
    g.sh[60].append(WAIT("CTXst"))
    g.mem[slot(61)].append(flag_store(vOne, 64))
    g.mem[slot(61)].append(flag_store(vOne, 65))
    if OPT["ctxa"]:
        g.val[slot(112)].append(I(f"v_mov_b32 v{vPoll}, 0"))
        g.mem[slot(120)] += ["s_mov_b64 exec, 0xff",
                             I(f"buffer_atomic_or v{vPoll}, v27, {srd(SRD_WS)}, s66 offen sc0", tag="pollCTX"), "s_mov_b64 exec, -1"]
        g.sh[163].append(WAIT("pollCTX"))
        g.val[163].append(I(f"v_cmp_ne_u32 vcc, 1, v{vPoll}", needs=["pollCTX"]))
        g.sh[165] += ["s_and_b32 s96, vcc_lo, 0xff", "s_cbranch_scc1 L_pollCTX", "L_pollCTX_back:"]
        ool.e(f"""
L_pollCTX:
s_mov_b32 s96, 0x40000
s_mov_b64 exec, 0xff
L_pollCTX_l:
v_mov_b32 v{vPoll}, 0
buffer_atomic_or v{vPoll}, v27, {srd(SRD_WS)}, s66 offen sc0
s_waitcnt vmcnt(0)
v_cmp_ne_u32 vcc, 1, v{vPoll}
s_sub_u32 s96, s96, 1
s_cbranch_scc1 L_pollCTX_x
s_cbranch_vccnz L_pollCTX_l
L_pollCTX_x:
s_mov_b64 exec, -1
s_branch L_pollCTX_back
""")
    else:
        g.mem[slot(120)].append(poll_req(27, 66, "pollCTX"))
        g.sh[163].append(WAIT("pollCTX"))
        g.val[163].append(I(f"v_cmp_ne_u32 vcc, 1, v{vPoll}", needs=["pollCTX"]))
        g.sh[165] += ["s_cbranch_vccnz L_pollCTX", "L_pollCTX_back:"]
        poll_slow(ool, "L_pollCTX", 27, 66)
    lo = 166
    for n, (pr, ins) in enumerate(p_aload(28, 92)):
        h = slot(max(lo + 1, 8 * (28 + n) - 100))
        if pr:
            g.before(pr, h, lo + 1)
        g.mem[h].append(ins)
        lo = h
    g.fill(["v_and_b32 v20, 15, v0", "v_lshrrev_b32 v21, 4, v0", "v_lshlrev_b32 v20, 10, v20", "v_lshl_add_u32 v22, v21, 3, v20",
            "v_lshrrev_b32 v21, 5, v0", "v_lshl_add_u32 v23, v21, 4, v20", "v_bfe_u32 v21, v0, 4, 1", "v_lshl_add_u32 v23, v21, 5, v23",
            "v_min_u32 v27, 2, v0", "v_xor_b32 v27, 3, v27", "v_xor_b32 v27, s67, v27", "v_lshlrev_b32 v27, 2, v27"], range(600, 640))
    ex = ["s_and_b32 s68, s2, 1", "s_lshl_b32 s68, s68, 5", "s_add_u32 s68, s68, s48", "s_lshl_b32 s68, s68, 15",
          "s_lshr_b32 s7, s2, 6", "s_lshl_b32 s6, s7, 8", "s_add_u32 s68, s68, s6", "s_lshl_b32 s6, s67, 6", "s_add_u32 s68, s68, s6",
          "s_add_u32 s69, s68, 0x4000"]
    if not OPT["sent"]:
        ex += ["s_mov_b32 s71, s67"] + ex_addr()
    ex += ["s_and_b32 s77, s27, 0xffffff80"]
    assert g.after(ex, 500) < 640
    if OPT["sent"]:
        g.mem[slot(642)].append(poll_req(27, 77, "pollEX"))
        g.sh[701].append(WAIT("pollEX"))
        g.val[701].append(I(f"v_cmp_ne_u32 vcc, 1, v{vPoll}", needs=["pollEX"]))
        g.sh[705] += ["s_cbranch_vccnz L_pollEX", "L_pollEX_back:"]
        poll_slow(ool, "L_pollEX", 27, 77)
    for a in range(4):
        g.mem[slot(656 + 8 * a)].append(I(f"buffer_load_dwordx2 {vr(PX+2*a,2)}, v22, {srd(SRD_X)}, s{68+a//2} offen offset:{32*(a%2)}", tag="xres"))
    if OPT["stamp"]:
        q = Prog(); stamp(q, 14); g.post[162] += q.l
        q = Prog(); stamp(q, 15); g.post[166] += q.l
        q = Prog(); stamp(q, 16); g.post[223] += q.l
    p.e(g.emit())
    stamp(p, 17)
    for i in range(3):
        b = PACC + 16 * i
        for t in range(2):
            for c in range(4 * t, 4 * t + 4):
                p.e(f"v_cvt_pk_bf16_f32 v{b+c}, v{b+2*c}, v{b+2*c+1}")
            if OPT["sent"]:
                for c in range(4 * t, 4 * t + 4):
                    p.e(f"v_min_u32 v{b+c}, -2, v{b+c}")
            p.e(I(f"buffer_store_dwordx4 {vr(b+4*t)}, {vL16}, {srd(SRD_WS)}, s{72+i} offen offset:{t*1024} sc1", tag="EXst"))
    b = PACC + 48

    def addbf(src):
        for c in range(8):
            p.e(f"v_lshlrev_b32 v20, 16, v{src+c}")
            p.e(f"v_and_b32 v21, 0xffff0000, v{src+c}")
            p.e(f"v_pk_add_f32 {vr(b+2*c,2)}, {vr(b+2*c,2)}, v[20:21]")
    exld = [I(f"buffer_load_dwordx4 {vr(PR+8*i+4*t)}, {vL16}, {srd(SRD_WS)}, s{24+i} offen offset:{t*1024} sc1", tag=f"EXr{i}")
            for i in range(3) for t in range(2)]
    if OPT["sent"]:
        p.e(exld)
        p.wait("xres")
        addbf(PX)
        stamp(p, 18)
        p.e("s_mov_b32 s96, 0x40000\nL_rx:\ns_waitcnt vmcnt(0)")
        p.e(f"v_max_u32 v20, v{PR}, v{PR+1}")
        for r in range(2, 24, 2):
            p.e(f"v_max3_u32 v20, v20, v{PR+r}, v{PR+r+1}")
        p.e("v_cmp_eq_u32 vcc, -1, v20\ns_sub_u32 s96, s96, 1\ns_cbranch_vccnz L_rx_again\nL_rx_done:")
        ool.e("L_rx_again:\ns_cbranch_scc1 L_rx_done\ns_sleep 1")
        ool.e([I(x.text) for x in exld])
        ool.e("s_branch L_rx")
        stamp(p, 19)
        for i in range(3):
            addbf(PR + 8 * i)
    else:
        p.wait("xres")
        addbf(PX)
        p.wait("EXst")
        if OPT["pk"] == 4:
            stamp(p, 18)
            p.e(f"""
s_mov_b32 s96, 0x40000
s_mov_b64 exec, 1
v_mov_b32 v{vPoll}, 1
buffer_atomic_add v{vPoll}, off, {srd(SRD_WS)}, s77 sc0
s_waitcnt vmcnt(0)
v_cmp_gt_u32 vcc, 3, v{vPoll}
s_cbranch_vccz L_pollEX_done
L_pollEX:
v_mov_b32 v{vPoll}, 0
buffer_atomic_add v{vPoll}, off, {srd(SRD_WS)}, s77 sc0
s_waitcnt vmcnt(0)
v_cmp_gt_u32 vcc, 4, v{vPoll}
s_sub_u32 s96, s96, 1
s_cbranch_scc1 L_pollEX_done
s_cbranch_vccnz L_pollEX
L_pollEX_done:
s_mov_b64 exec, -1
""")
        else:
            p.e(flag_store(vOne, 27))
            stamp(p, 18)
            p.e(f"""
s_mov_b32 s96, 0x40000
{"s_mov_b64 exec, 7" if OPT["pk"] == 2 else ""}
L_pollEX:
{spin_ld(27, 77, OPT["pk"])}
s_waitcnt vmcnt(0)
v_cmp_ne_u32 vcc, 1, v{vPoll}
s_sub_u32 s96, s96, 1
s_cbranch_scc1 L_pollEX_done
s_cbranch_vccnz L_pollEX
L_pollEX_done:
{"s_mov_b64 exec, -1" if OPT["pk"] == 2 else ""}
""")
        stamp(p, 19)
        p.e(exld)
        for i in range(3):
            p.wait(f"EXr{i}")
            addbf(PR + 8 * i)
    for c in range(8):
        p.e(f"v_cvt_pk_bf16_f32 v{b+c}, v{b+2*c}, v{b+2*c+1}")
    p.e("s_nop 1")
    for t in range(2):
        p.e(f"v_permlane16_swap_b32 v{b+4*t}, v{b+4*t+2}")
        p.e(f"v_permlane16_swap_b32 v{b+4*t+1}, v{b+4*t+3}")
    for t in range(2):
        p.e(f"buffer_store_dwordx4 {vr(b+4*t)}, v23, {srd(SRD_OUT)}, s{68+t} offen")
    stamp(p, 20)
    rstamp(p, 61)
    stamp_flush(p)
    p.e("L_end:\ns_endpgm")
    l = resolve_waits(pre + p.l)[len(pre):]
    errs = lint(l, "oproj")
    assert not errs, "\n".join(errs)
    if OPT["sim"]:
        t, gp = simulate(l)
        print("oproj", t, sum(gp))
    return l


def kernel():
    p, ool = Prog(), Prog()
    setup(p)
    if OPT["stamp"]:
        p.e("v_mov_b32 v31, 0")
    rstamp(p, 60)
    stamp(p)
    projections(p, ool)
    head = resolve_waits(p.l)
    errs = lint(head, "head")
    assert not errs, "\n".join(errs)
    if OPT["sim"]:
        t, gp = simulate(head)
        print("head", t, [sum(gp[a:b]) for a, b in ((0, 512), (512, 768), (768, 1024), (1024, 1280), (1280, 1536), (1536, 1791), (1791, 1900))])
    extra = Prog()
    l = head + attention(ool, extra).l + oproj(ool) + [I(";PADHERE")] + ool.l + extra.l + [I("L_hot_end:")]
    l = layout(l)
    for q in RARE.values():
        l += q.l
    return text_of(l)


def sizes(l):
    import subprocess, tempfile, os
    txt = '.amdgcn_target "amdgcn-amd-amdhsa--gfx950"\n.text\n' + text_of(l) + "".join(text_of(q.l) for q in RARE.values())
    txt += "L_pad0:\nL_pad1:\nL_pad2:\nL_pad3:\nL_qad0:\nL_qad1:\ns_endpgm\n"
    d = tempfile.mkdtemp()
    open(d + "/a.s", "w").write(txt)
    subprocess.run(["clang", "-x", "assembler", "-target", "amdgcn-amd-amdhsa", "-mcpu=gfx950", "-c", d + "/a.s", "-o", d + "/a.o"], check=True)
    out = subprocess.run(["llvm-objdump", "-d", "--mcpu=gfx950", d + "/a.o"], capture_output=True, text=True, check=True).stdout
    sz = [4 * len(re.findall(r"\b[0-9A-F]{8}\b", ln.split("//")[1].split(":")[1])) for ln in out.splitlines() if "//" in ln]
    it = iter(sz)
    return [0 if x.kind == "meta" else next(it) for x in l]


def layout(l):
    sz = sizes(l)
    out, pads, qads = [], [], []
    stage2 = False
    off = None
    need = False

    def pad():
        nonlocal off
        if OPT["pads"]:
            lst, nm = (qads, "qad") if stage2 else (pads, "pad")
            out.append(I(f"L_{nm}{len(lst)}:"))
            out.append(I("s_cbranch_execz PADNEXT"))
            lst.append(out[-1])
            off += 4
    for i, x in enumerate(l):
        if x.text == ";PAGE":
            out += [I("s_branch L_main"), I(".p2align 12"), I("L_main:")]
            off = 0
            pad()
            continue
        if x.text in ("L_P4:", "L_end:"):
            stage2 = OPT["pad2"] and x.text == "L_P4:"
        if x.text == ";PADHERE":
            pad()
            continue
        if x.text.startswith(";LOOP"):
            j = next(k for k in range(i, len(l)) if l[k].text == ";ENDLOOP")
            n = sum(sz[i:j])
            st = -(-off // 32) * 32
            if x.text == ";LOOP pad":
                o64 = -(-off // 64) * 64
                if o64 // 4096 != (o64 + 32 + n - 1) // 4096:
                    out.append(I(".p2align 12"))
                    o64 = -(-off // 4096) * 4096
                out.append(I(".p2align 6"))
                off, need = o64, False
                pad()
                out.append(I(".p2align 5"))
                off = -(-off // 32) * 32
                continue
            if need or st // 4096 != (st + n - 1) // 4096 or st // 4096 != (off - 1) // 4096:
                out.append(I(f"s_branch {l[i+1].text[:-1]}"))
                off += 4
                if not need:
                    out.append(I(".p2align 12"))
                    off = -(-off // 4096) * 4096
                need = False
                pad()
                st = -(-off // 32) * 32
            out.append(I(".p2align 5"))
            off = st
            continue
        out.append(x)
        if off is None:
            continue
        o0, off = off, off + sz[i]
        if o0 // 4096 != off // 4096:
            need = True
        if need and x.kind != "meta":
            nx = next(y for y in l[i + 1:] if y.kind != "meta")
            good = x.text.startswith("v_mfma") and not nx.text.startswith("s_")
            if good or off % 4096 >= 40:
                need = False
                pad()
    for k, x in enumerate(pads):
        x.text = "s_cbranch_execz " + (f"L_pad{k+4}" if k + 4 < len(pads) else "L_padret")
    for k, x in enumerate(qads):
        x.text = "s_cbranch_execz " + (f"L_qad{k+2}" if k + 2 < len(qads) else "L_qadret")
    if OPT["sim"]:
        print("code bytes after anchor", off, "pads", len(pads), len(qads))
    return out


def main():
    k = kernel()
    s = f"""; layernorm + K/V/Q/MLP projections + causal attention + output projection in one launch (generated by gen/gen3.py)
; @launch grid=(256,1,1) block=(256,1,1) lds=163840
.amdgcn_target "amdgcn-amd-amdhsa--gfx950"
.text
.globl {NAME}_kernel
.p2align 12
.p2align 8
.type {NAME}_kernel,@function
{NAME}_kernel:
{k}
.section .rodata,"a"
.p2align 6
.amdhsa_kernel {NAME}_kernel
  .amdhsa_next_free_vgpr 512
  .amdhsa_next_free_sgpr 102
  .amdhsa_accum_offset 256
  .amdhsa_group_segment_fixed_size 0
  .amdhsa_kernarg_size 104
  .amdhsa_user_sgpr_count 2
  .amdhsa_user_sgpr_kernarg_segment_ptr 1
  .amdhsa_system_sgpr_workgroup_id_x 1
.end_amdhsa_kernel
"""
    open(sys.argv[1], "w").write(s)


main()
```

```python
import sys, struct, re
from asmlib import *

NAME = "parallel_sum__compressed_kv_cla__dense_activation_mish__prompt"
OPT = dict(stamp=0, bal=12, balb=0, thr=40, rot=7, nt=0, xnt=0, deep=1, cpf=1, wopf=1, sim=0, barh=0, pads=1, wqt=150, w2t=1444, zc=4, sent=0, p2rot=7, xnsc=1, kvpad=0, xnpad=0, xnrt=0, sigp=4, dbgno=0, n0=6, pad2=0, lnh=60, ordp=1, orda=1, ones4=1, bko=0, exo=0, pk=4, pkc=0, ctxa=1, peel=1, probe=0, lnb=0, lnt=125, amp=0, esend=1, alead=100, cfh=60, cph=120, cch=163, w20=12, w21=13, w22=20, w23=20, la=5, kvs=8, xs=62, ramp=0, plh=745, bar2=1, slph=-2, slpn=8, slpj=0, kvst=0, wsoff=0, cpf2=1, padat=-1, padus=0)
for a in sys.argv[2:]:
    k, v = a.split("=")
    assert k in OPT, k
    OPT[k] = int(v)


def f2u(x):
    return struct.unpack("<I", struct.pack("<f", x))[0]


KVFL = ("", "sc1", "nt", "sc1 nt")[OPT["kvst"]]
MF = "v_mfma_f32_16x16x32_bf16"
MF32 = "v_mfma_f32_32x32x16_bf16"
XN_OFF = 0
KV_OFF = 72 << 20 if OPT['kvpad'] or OPT['xnpad'] else 2 << 20
KV_HS = (1 << 20) + OPT['kvpad']
XN_RS = 32768 + OPT['xnpad']
AF_OFF = 34 << 20
AF_KS = 368
FL_OFF = 58 << 20
CTXF, EXF, KVF = FL_OFF, FL_OFF + 32768, FL_OFF + 65536
ST_OFF = 60 << 20
EX_OFF = 64 << 20
WS_BYTES = 268435456 - (OPT['wsoff'] << 20)

sW, sH, sJ = "s3", "s4", "s5"
SRD_CKV, SRD_WUK, SRD_WUV, SRD_W1, SRD_WQ, SRD_WS, SRD_X, SRD_B1, SRD_DBG, SRD_ACT = (
    8, 12, 16, 20, 24, 28, 32, 36, 40, 44)
SRD_W2, SRD_WO, SRD_OUT, SRD_KV = 8, 12, 16, 36


def srd(n):
    return f"s[{n}:{n+3}]"


def vr(b, n=4):
    return f"v[{b}:{b+n-1}]"


def ar(b, n=4):
    return f"a[{b}:{b+n-1}]"


vL16 = "v1"
VA_DMA, VW_DMA, VW1_DMA, VTR, VA_RD = 2, 6, 10, 14, 18
WF, TP, ACC0, ACC1, BIAS = 32, 64, 96, 160, 224
LDS_A = 98304
vOne, vPoll, vDummy = 28, 29, 30
S0, S1, EX, P0, P1, NMA, NMB, ONES = 192, 208, 128, 144, 152, 96, 112, 228
OA, OB, KF, VF = 0, 64, 128, 160
vR0, vR1, vMask, vChk, vBit, vNinf = 2, 3, 4, 5, 6, 7
sKa, sKb, sM, sCA, sCB = "s52", "s53", "s54", "s55", "s56"
MASKS = 64
SHIFT = float(OPT["thr"])
VP_DMA = 10
VP_TR = (200, 204, 208)
sPA, sPC, sPW2, sPWO, sPM = 57, 58, 59, 60, (61, 62, 63)
PWF, PACC, PX, PR = 64, 128, 192, 200


def mk_srd(n, lo, nbytes):
    return [f"s_mov_b32 s{n}, s{lo}", f"s_and_b32 s{n+1}, s{lo+1}, 0xffff",
            f"s_mov_b32 s{n+2}, {nbytes}", f"s_mov_b32 s{n+3}, 0x20000"]


stamp_n = [0]


pad_n = [0]


def stamp(p, idx=None):
    if OPT["padat"] >= 0:
        if idx is None:
            idx = stamp_n[0]
            stamp_n[0] += 1
        if idx == OPT["padat"]:
            n = pad_n[0]
            pad_n[0] += 1
            p.e(f"""v_readfirstlane_b32 s96, v31
L_spin{n}:
s_memrealtime s[98:99]
s_waitcnt lgkmcnt(0)
s_sub_u32 s98, s98, s96
s_cmp_lt_u32 s98, {OPT["padus"]*100}
s_cbranch_scc1 L_spin{n}""")
        return
    if OPT["stamp"] == 0:
        return
    if idx is None:
        idx = stamp_n[0]
        stamp_n[0] += 1
    if OPT["stamp"] == 3 and idx not in (3, 5):
        return
    p.e(f"s_memtime s[98:99]")
    p.e("s_waitcnt lgkmcnt(0)")
    p.e(f"v_writelane_b32 v31, s98, {idx}")


def rstamp(p, lane):
    if not OPT["stamp"]:
        return
    p.e(f"s_memrealtime s[98:99]")
    p.e("s_waitcnt lgkmcnt(0)")
    p.e(f"v_writelane_b32 v31, s98, {lane}")


def stamp_flush(p):
    if not OPT["stamp"]:
        return
    p.e("s_lshl_b32 s98, s2, 2")
    p.e(f"s_add_u32 s98, s98, {sW}")
    p.e("s_lshl_b32 s98, s98, 8")
    p.e(f"s_add_u32 s98, s98, {ST_OFF}")
    p.e(f"v_lshrrev_b32 v30, 2, {vL16}")
    p.e(f"buffer_store_dword v31, v30, {srd(SRD_WS)}, s98 offen")


def setup(p):
    p.e(f"""
s_cmp_ge_u32 s2, 256
s_cbranch_scc1 L_end
""")
    if OPT["padat"] >= 0:
        p.e("s_memrealtime s[98:99]\ns_waitcnt lgkmcnt(0)\nv_mov_b32 v31, s98")
    p.e(f"""
s_load_dwordx16 s[48:63], s[0:1], 0
s_load_dwordx8 s[64:71], s[0:1], 64
s_load_dwordx2 s[72:73], s[0:1], 96
v_lshrrev_b32 v20, 6, v0
v_and_b32 v0, 63, v0
v_readfirstlane_b32 {sW}, v20
v_lshlrev_b32 {vL16}, 4, v0
s_and_b32 s6, s2, 7
s_lshr_b32 s7, s2, 6
s_lshl_b32 s7, s7, 3
s_add_u32 {sH}, s6, s7
s_lshr_b32 {sJ}, s2, 3
s_and_b32 {sJ}, {sJ}, 7
""")
    if OPT["cpf"]:
        p.e(f"""
s_getpc_b64 s[96:97]
L_pc:
s_lshr_b32 s6, s2, 3
s_mul_i32 s6, s6, 3072
v_min_u32 v20, 23, v0
v_lshl_add_u32 v20, v20, 7, s6
v_min_u32 v20, L_hot_end-L_pc, v20
s_cmp_lg_u32 {sW}, 0
s_cbranch_scc1 L_nocpf
global_load_dword v{vDummy}, v20, s[96:97]
L_nocpf:
""")
        p.l[-2].kind = "op"
    p.e(f"""
v_lshrrev_b32 v20, 3, v0
v_and_b32 v21, 7, v0
v_lshrrev_b32 v22, 4, v0
v_xor_b32 v23, v21, v22
v_lshlrev_b32 v23, 4, v23
v_lshl_add_u32 v{VA_DMA}, v20, 10, v23
v_xor_b32 v24, 64, v{VA_DMA}
v_add_u32 v{VA_DMA+1}, {7*1024}, v24
v_add_u32 v{VA_DMA+2}, {14*1024}, v{VA_DMA}
v_add_u32 v{VA_DMA+3}, {21*1024}, v24
v_and_b32 v22, 1, v22
v_lshlrev_b32 v22, 1, v22
v_xor_b32 v23, v21, v22
v_lshlrev_b32 v23, 4, v23
v_xor_b32 v25, 64, v23
v_lshl_add_u32 v{VW_DMA}, v20, 13, v23
v_lshl_add_u32 v{VW_DMA+1}, v20, 13, v25
v_mul_u32_u24 v24, 3584, v20
v_add_u32 v{VW1_DMA}, v24, v23
v_add_u32 v{VW1_DMA+1}, v24, v25
""")
    for b, pitch in ((VW_DMA, 8192), (VW1_DMA, 3584)):
        d = 8 * pitch - 1024
        p.e(f"v_add_u32 v{b+2}, {2*d}, v{b}\nv_add_u32 v{b+3}, {3*d}, v{b+1}\nv_add_u32 v{b+1}, {d}, v{b+1}")
    p.e(f"""
v_lshrrev_b32 v20, 4, v0
v_lshlrev_b32 v20, 3, v20
v_bfe_u32 v21, v0, 2, 2
v_add_u32 v20, v20, v21
v_lshlrev_b32 v20, 7, v20
v_and_b32 v21, 3, v0
v_lshl_add_u32 v20, v21, 3, v20
v_bfe_u32 v21, v0, 3, 2
v_lshl_add_u32 v{VTR}, v21, 5, v20
""")
    for cb in range(1, 4):
        p.e(f"v_xor_b32 v{VTR+cb}, {32*cb}, v{VTR}")
    p.e(f"""
s_lshl_b32 s6, {sW}, 13
s_add_u32 s74, s6, {LDS_A}
v_and_b32 v20, 15, v0
v_lshlrev_b32 v20, 7, v20
v_add_u32 v20, s74, v20
v_bfe_u32 v21, v0, 1, 3
v_lshrrev_b32 v22, 4, v0
v_xor_b32 v21, v21, v22
v_lshl_add_u32 v{VA_RD}, v21, 4, v20
v_xor_b32 v{VA_RD+1}, 64, v{VA_RD}
""")
    p.e(f"""
s_lshl_b32 s75, {sJ}, 2
s_add_u32 s75, s75, {sW}
s_lshl_b32 s75, s75, 16
s_lshl_b32 s76, {sH}, 8
s_lshl_b32 s77, {sW}, 12
s_lshr_b32 s6, {sW}, 1
s_lshl_b32 s6, s6, 7
s_and_b32 s7, {sW}, 1
s_lshl_b32 s7, s7, 18
s_add_u32 s78, s76, s6
s_add_u32 s78, s78, s7
s_add_u32 s79, {sJ}, {sH}
s_and_b32 s79, s79, {OPT["rot"]}
s_lshl_b32 s100, s79, 19
s_lshl_b32 s101, s79, 7
v_and_b32 v20, 7, v0
v_lshrrev_b32 v21, 3, v0
v_lshlrev_b32 v21, 4, v21
v_lshl_add_u32 v20, v20, 10, v21
s_lshl_b32 s6, s2, 13
s_lshl_b32 s7, {sW}, 8
s_add_u32 s6, s6, s7
s_waitcnt lgkmcnt(0)
""")
    if OPT["wsoff"]:
        p.e(f"s_add_u32 s72, s72, {OPT['wsoff'] << 20}\ns_addc_u32 s73, s73, 0")


def a_dma(q):
    out = []
    for rb in range(2):
        for u in range(4):
            pre = []
            if u == 0 and rb == 0:
                pre = [f"s_add_u32 m0, s74, {(q%2)*32768}", f"s_add_u32 s80, s101, {q*128}",
                       "s_and_b32 s80, s80, 0x3ff", "s_add_u32 s80, s80, s75"]
            if u == 0 and rb == 1:
                pre = [f"s_add_u32 m0, s74, {(q%2)*32768 + 4096}", "s_add_u32 s80, s80, 32768"]
            out.append((pre, I(f"buffer_load_dwordx4 v{VA_DMA+u}, {srd(SRD_CKV)}, s80 offen offset:{u*1024} lds", tag=f"A{q}")))
    return out


def res(rb, ks):
    return ar(((rb // 2) * 32 + 2 * ks + rb % 2) * 4)


def a_reads(q):
    out = []
    for s in range(2):
        for rb in range(4):
            out.append(I(f"ds_read_b128 {res(rb, 2*q+s)}, v{VA_RD+s} offset:{(q%2)*32768 + rb*2048}",
                         tag=f"Ar{q}", needs=[f"A{q}"]))
    return out


CHUNKS = [("Vlo", SRD_WUV, 0), ("Vhi", SRD_WUV, 128), ("H", SRD_W1, 0), ("Qlo", SRD_WQ, 0), ("Qhi", SRD_WQ, 128)]
NSLAB = 28
if OPT["deep"]:
    W_ISSUE = [-1, -1, 0, 1, 2, 3, 4, 5, 6, 6, 6, 7, 7, 7, 8, 8, 9, 9, 10, 11, OPT['w20'], OPT['w21'], OPT['w22'], OPT['w23'], 21, 21, 22, 22]
else:
    W_ISSUE = [-1, -1] + list(range(26))
W_SLOT = []
NOBAR = tuple(k for k in (13, 14, 15, 16, 17, 18, 19, 23, 26) if k not in W_ISSUE) if OPT["bar2"] else ()
_free_at = [-1] * 6 + [7, 7, 8, 8]
for _s in range(NSLAB):
    assert W_ISSUE[_s] <= max(_s - 2, -1)
    _c = [k for k in range(10) if _free_at[k] <= W_ISSUE[_s] and (_s < 24 or k >= 6) and (not 20 <= _s < 24 or k < 6)]
    _k = min(_c, key=lambda k: (_free_at[k], k))
    W_SLOT.append(_k)
    _free_at[_k] = _s + 2
WNT = " nt" if OPT["nt"] else ""
XNT = " nt" if OPT["xnt"] else ""


def w_dma(pslab):
    out = []
    slot = W_SLOT[pslab] * 16384
    if pslab < 8:
        sr, va = SRD_WUK, VW_DMA
        so = [f"s_add_u32 s81, s100, {pslab<<19}", "s_and_b32 s81, s81, 0x3fffff", "s_add_u32 s81, s81, s78"]
    else:
        c, i = divmod(pslab - 8, 4)
        nm, sr, col = CHUNKS[c]
        if nm == "H":
            va = VW1_DMA
            so = [f"s_mov_b32 s81, s{52+i}"]
        else:
            va = VW_DMA
            so = [f"s_add_u32 s81, s{60+i}, {col}"]
    for u in range(4):
        pre = [f"s_add_u32 m0, s77, {slot}"] + so if u == 0 else []
        out.append((pre, I(f"buffer_load_dwordx4 v{va+u}, {srd(sr)}, s81 offen offset:{u*1024}{' nt' if (OPT['nt'] >> pslab) & 1 else ''} lds", tag=f"W{pslab}")))
    return out


def w_read(n, j):
    slot = (W_SLOT[n // 16] * 16384) % 65536
    kk, cb = n % 2, (n // 2) % (8 if n < 128 else 4)
    if n < 128:
        off = slot + (cb // 4) * 8192 + kk * 4096 + j * 512
    else:
        off = slot + (2 * ((n // 8) % 2) + kk) * 4096 + j * 512
    return I(f"ds_read_b64_tr_b16 {vr(WF + 4*(n%8) + 2*j, 2)}, v{VTR + cb % 4} offset:{off}", tag=f"Wr{n//2}")


def walk(cb, nrb):
    out = []
    for pos in range(nrb):
        rb = nrb - 1 - pos if cb % 2 else pos
        for i in range(2):
            out.append((rb, i ^ (pos % 2), i == 0))
    if not OPT["ordp"]:
        out = [(rb, kk, kk == 0) for kk in range(2) for rb in range(nrb)]
    return out


LX, LU, LT = 224, 232, 76
LN_LDS = 5 * 16384


def layernorm(p):
    t, mean, var = LT, f"v{LT+4}", f"v{LT+5}"
    p.wait("X")
    for i in range(8):
        p.e(f"v_and_b32 v{LU+1+2*i}, 0xffff0000, v{LX+i}")
        p.e(f"v_lshlrev_b32 v{LU+2*i}, 16, v{LX+i}")

    def reduce(v, slot):
        p.e(f"""
s_nop 1
v_add_f32_dpp {v}, {v}, {v} row_ror:8 row_mask:0xf bank_mask:0xf
v_mov_b32 v{t}, {v}
s_nop 1
v_permlane16_swap_b32 {v}, v{t}
v_add_f32 {v}, {v}, v{t}
v_mov_b32 v{t}, {v}
s_nop 1
v_permlane32_swap_b32 {v}, v{t}
v_add_f32 {v}, {v}, v{t}
""")
        p.e(I(f"ds_write_b32 v22, {v} offset:{slot*128}", tag=f"lnw{slot}"))
        p.wait(f"lnw{slot}")
        p.e("s_barrier")
        p.e(I(f"ds_read_b128 {vr(t)}, v21 offset:{slot*128}", tag=f"lnr{slot}"))
        p.wait(f"lnr{slot}")
        p.e(f"""
v_add_f32 v{t}, v{t}, v{t+1}
v_add_f32 v{t+2}, v{t+2}, v{t+3}
v_add_f32 {v}, v{t}, v{t+2}
v_mul_f32 {v}, 0x{f2u(1/512):x}, {v}
""")

    p.e(f"v_add_f32 {mean}, v{LU}, v{LU+1}")
    for i in range(2, 16):
        p.e(f"v_add_f32 {mean}, {mean}, v{LU+i}")
    reduce(mean, 0)
    p.e(";CUT")
    p.e(f"v_sub_f32 v{t}, v{LU}, {mean}")
    p.e(f"v_mul_f32 {var}, v{t}, v{t}")
    for i in range(1, 16):
        p.e(f"v_sub_f32 v{t}, v{LU+i}, {mean}")
        p.e(f"v_fmac_f32 {var}, v{t}, v{t}")
    reduce(var, 1)
    tail = f"""
v_cvt_pk_bf16_f32 v{t}, {mean}, {var}
v_lshlrev_b32 {mean}, 16, v{t}
v_and_b32 {var}, 0xffff0000, v{t}
v_add_f32 {var}, 0x{f2u(1e-5):x}, {var}
v_cvt_pk_bf16_f32 v{t}, {var}, {var}
v_lshlrev_b32 {var}, 16, v{t}
v_sqrt_f32 {var}, {var}
v_sub_f32 v{LU}, v{LU}, {mean}
v_cvt_pk_bf16_f32 v{t}, {var}, {var}
v_lshlrev_b32 {var}, 16, v{t}
v_rcp_f32 {var}, {var}
""".strip().split("\n")
    for i in range(1, 16):
        tail.append(f"v_sub_f32 v{LU+i}, v{LU+i}, {mean}")
    for i in range(8):
        tail += [f"v_cvt_pk_bf16_f32 v{t}, v{LU+2*i}, v{LU+1+2*i}", f"v_lshlrev_b32 v{t+1}, 16, v{t}", f"v_and_b32 v{t+2}, 0xffff0000, v{t}",
                 f"v_mul_f32 v{t+1}, v{t+1}, {var}", f"v_mul_f32 v{t+2}, v{t+2}, {var}", f"v_cvt_pk_bf16_f32 v{64+i}, v{t+1}, v{t+2}"]
    return tail


def flag_addr(kind, dst):
    d = f"s{dst}"
    if kind in ("ctxA", "ctxB"):
        rb = "s48" if kind == "ctxA" else "s49"
        return [f"s_lshl_b32 {d}, {rb}, 2", f"s_lshr_b32 s7, {sH}, 3", f"s_add_u32 {d}, {d}, s7", f"s_lshl_b32 {d}, {d}, 5",
                f"s_and_b32 s7, {sH}, 7", f"s_add_u32 {d}, {d}, s7", f"s_lshl_b32 {d}, {d}, 2", f"s_add_u32 {d}, {d}, {CTXF}"]
    if kind in ("actA", "actB"):
        rb = "s48" if kind == "actA" else "s49"
        return [f"s_mul_i32 s7, {sH}, 37", "s_lshr_b32 s7, s7, 8", "s_mul_i32 s7, s7, 25", f"s_lshl_b32 {d}, {rb}, 7", f"s_add_u32 {d}, {d}, s7",
                f"s_add_u32 {d}, {d}, {sH}", f"s_lshl_b32 {d}, {d}, 2", f"s_add_u32 {d}, {d}, {CTXF + 32}"]
    if kind == "kv":
        return [f"s_lshl_b32 {d}, {sH}, 5", f"s_add_u32 {d}, {d}, s48", f"s_lshl_b32 {d}, {d}, 2", f"s_add_u32 {d}, {d}, {KVF}"]
    if kind == "ex":
        return [f"s_and_b32 {d}, s2, 1", f"s_lshl_b32 {d}, {d}, 3", f"s_add_u32 {d}, {d}, {sJ}", f"s_lshl_b32 {d}, {d}, 2",
                "s_lshr_b32 s7, s2, 6", f"s_add_u32 {d}, {d}, s7", f"s_lshl_b32 {d}, {d}, 2", f"s_add_u32 {d}, {d}, {sW}",
                f"s_lshl_b32 {d}, {d}, 7", "s_and_b32 s7, s2, 6", "s_lshl_b32 s7, s7, 1", f"s_add_u32 {d}, {d}, s7",
                f"s_add_u32 {d}, {d}, {EXF}"]
    raise Exception(kind)


def flag_store(val, s, tag=None, sr=SRD_WS):
    return I(f"buffer_store_dword v{val}, off, {srd(sr)}, s{s} sc1", tag=tag)


def poll_req(vidx, s, tag):
    return I(f"buffer_load_dword v{vPoll}, v{vidx}, {srd(SRD_WS)}, s{s} offen sc1", tag=tag)


def spin_ld(vidx, s, k):
    if k == 2:
        return f"v_mov_b32 v{vPoll}, 0\nbuffer_atomic_or v{vPoll}, v{vidx}, {srd(SRD_WS)}, s{s} offen sc0"
    return f"buffer_load_dword v{vPoll}, v{vidx}, {srd(SRD_WS)}, s{s} offen " + ("sc1", "sc1 nt", "", "sc0 sc1")[k]


def poll_slow(out, label, vidx, s, cmp="v_cmp_ne_u32 vcc, 1"):
    out.e(f"""
{label}:
s_mov_b32 s96, 0x40000
{label}_l:
{"s_sleep %d" % OPT["bko"] if OPT["bko"] else ""}
{spin_ld(vidx, s, OPT["pkc"])}
s_waitcnt vmcnt(0)
{cmp}, v{vPoll}
s_sub_u32 s96, s96, 1
s_cbranch_scc1 {label}_back
s_cbranch_vccnz {label}_l
s_branch {label}_back
""")


def grp(buf, i):
    if buf == 2:
        return TP + 8 * i if i < 4 else BIAS + 8 * (i - 4)
    return buf + 8 * i


def acc(buf, vtype, cb, rb):
    if vtype:
        return grp(buf, (rb // 2) * 4 + cb) + 4 * (rb % 2)
    return grp(buf, (cb // 2) * 4 + rb) + 4 * (cb % 2)


def issue(p, lst):
    for pre, ins in lst:
        p.e(pre)
        p.e(ins)


def place(g, lst, h0, step, lo):
    prev = lo
    for i, (pre, ins) in enumerate(lst):
        h = h0 + i * step
        assert h > prev
        if pre:
            g.before(pre, h, prev + 1)
        g.mem[h].append(ins)
        prev = h
    return prev


def kv_dma(n):
    out = []
    for u in range(4):
        pre = [f"s_sub_u32 m0, s{sPM[2]}, {0x20000 - n*16384}", f"s_mov_b32 s97, {n*16384}"] if u == 0 else []
        out.append((pre, I(f"buffer_load_dwordx4 {vL16}, {srd(SRD_KV)}, s97 offen offset:{u*1024} sc1 lds", tag=f"KV{n}")))
    return out


PSLAB = 23
P_SLOT = [8, 9, 0, 1, 2, 3, 4, 5, 6, 7]
P_SLOT = [P_SLOT[s % 10] for s in range(PSLAB)]


def p_dma(s):
    win, k = divmod(P_SLOT[s], 4)
    sr, so = (SRD_W2, f"s_add_u32 s97, s{sPW2}, {s*65536}") if s < 7 else (SRD_WO, f"s_add_u32 s97, s{sPWO}, {(s-7)*65536}")
    out = []
    for u in range(4):
        pre = [f"s_add_u32 m0, s{sPM[win]}, {k*16384}", so] if u == 0 else []
        out.append((pre, I(f"buffer_load_dwordx4 v{VP_DMA+u}, {srd(sr)}, s97 offen offset:{u*1024} lds", tag=f"PW{s}")))
    return out


def p_areg(ks):
    if 16 <= ks < 24:
        return vr(32 + 4 * (ks - 16))
    if 24 <= ks < 28:
        return vr((224, 232, 236, 244)[ks - 24])
    return ar(128 + 4 * ((ks + 16) % 32) if ks < 16 else 128 + 4 * ((ks - 24) % 32))


def p_aload(ks0, ks1):
    out = []
    for ks in range(ks0, ks1):
        pre = []
        if ks % 4 == 0:
            pre = [f"s_add_u32 s100, s{sPA}, {ks*1024}" if ks < 28 else f"s_add_u32 s100, s{sPC}, {(ks-28)*1024}"]
        out.append((pre, I(f"buffer_load_dwordx4 {p_areg(ks)}, {vL16}, {srd(SRD_WS)}, s100 offen offset:{(ks%4)*1024} sc1", tag=f"PA{ks}")))
    return out


def ex_addr():
    ex = ["s_and_b32 s76, s2, 1", "s_lshl_b32 s76, s76, 3", f"s_add_u32 s76, s76, {sJ}", "s_lshl_b32 s76, s76, 2", "s_lshr_b32 s7, s2, 6",
          "s_add_u32 s76, s76, s7", "s_lshl_b32 s76, s76, 17", f"s_lshl_b32 s6, {sW}, 11", "s_add_u32 s76, s76, s6", f"s_add_u32 s76, s76, {EX_OFF}"]
    for i in range(3):
        ex += [f"s_xor_b32 s6, s71, {i ^ 3}", "s_lshl_b32 s7, s6, 2", "s_add_u32 s7, s7, s71", "s_lshl_b32 s7, s7, 13", f"s_add_u32 s{72+i}, s76, s7",
               "s_lshl_b32 s7, s71, 2", "s_add_u32 s7, s7, s6", "s_lshl_b32 s7, s7, 13", f"s_add_u32 s{24+i}, s76, s7"]
    return ex + flag_addr("ex", 27)


def slp():
    if OPT["slpj"]:
        return [f"s_and_b32 s98, s2, {OPT['slpj']}", "s_cbranch_scc0 L_noslp", f"s_sleep {OPT['slpn']}", "L_noslp:"]
    return [f"s_sleep {OPT['slpn']}"]


def projections(p, ool):
    if OPT["slph"] == -1:
        p.e(slp())
    p.e(mk_srd(SRD_CKV, 50, 2048 * 1024))
    issue(p, a_dma(0))
    p.e("s_mov_b32 s96, s6")
    p.e(mk_srd(SRD_X, 48, 2048 * 1024))
    p.e(mk_srd(SRD_WUK, 54, 512 * 8192))
    p.e(mk_srd(SRD_WS, 72, WS_BYTES))
    p.e(mk_srd(SRD_WUV, 56, 512 * 8192))
    p.e(mk_srd(SRD_WQ, 52, 512 * 8192))
    p.e(mk_srd(SRD_W1, 62, 512 * 3584))
    p.e(mk_srd(SRD_B1, 64, 3584))
    p.e(mk_srd(SRD_DBG, 70, 256))
    p.e(mk_srd(SRD_ACT, 72, WS_BYTES))
    p.e(f"""
s_cmp_lt_u32 {sH}, 28
s_cselect_b32 s{SRD_W1+2}, s{SRD_W1+2}, 0
s_cselect_b32 s{SRD_ACT+2}, s{SRD_ACT+2}, 0
s_lshl_b32 s83, {sH}, 7
s_lshl_b32 s6, {sH}, 6
s_lshl_b32 s7, {sJ}, 3
s_add_u32 s6, s6, s7
s_lshl_b32 s7, {sW}, 1
s_add_u32 s6, s6, s7
s_lshl_b32 s6, s6, 14
s_add_u32 s84, s6, {KV_OFF}
s_mul_i32 s6, {sH}, {OPT['kvpad']}
s_add_u32 s84, s84, s6
""")
    for i in range(1, 8):
        p.e(f"s_add_u32 s{84+i}, s84, {i*4096}")
    p.e(f"s_lshl_b32 s6, s79, 1\ns_add_u32 s6, s6, {sW}\ns_lshl_b32 s6, s6, 5")
    for i in range(4):
        p.e(f"""
s_add_u32 s7, s6, {128*i}
s_and_b32 s7, s7, 511
s_lshl_b32 s{60+i}, s7, 13
s_add_u32 s{60+i}, s{60+i}, s76
""")
    p.e(f"s_and_b32 s79, s79, {OPT['p2rot']}\ns_lshl_b32 s6, s79, 1\ns_add_u32 s6, s6, {sW}\ns_lshl_b32 s82, s6, 5")
    for i in range(4):
        p.e(f"""
s_add_u32 s7, s82, {128*i}
s_and_b32 s7, s7, 511
s_mul_i32 s{52+i}, s7, 3584
s_add_u32 s{52+i}, s{52+i}, s83
""")
    p.e(f"""
s_lshl_b32 s70, s79, 12
s_lshl_b32 s48, {sJ}, 2
s_add_u32 s48, s48, {sW}
s_sub_u32 s49, 63, s48
s_mul_i32 s92, s48, {XN_RS}
s_mul_i32 s93, s49, {XN_RS}
s_mul_i32 s50, s48, {AF_KS*1024}
s_mul_i32 s51, s49, {AF_KS*1024}
s_add_u32 s50, s50, {AF_OFF}
s_add_u32 s51, s51, {AF_OFF}
s_lshl_b32 s6, {sH}, 12
s_add_u32 s6, s6, {256*1024}
s_add_u32 s94, s50, s6
s_add_u32 s95, s51, s6
""")
    stamp(p, 21)
    issue(p, w_dma(0))
    p.e(I(f"buffer_load_dwordx4 {vr(LX)}, v20, {srd(SRD_X)}, s96 offen", tag="X"))
    p.e(I(f"buffer_load_dwordx4 {vr(LX+4)}, v20, {srd(SRD_X)}, s96 offen offset:128", tag="X"))
    stamp(p, 22)
    p.e(f"""
v_and_b32 v21, 7, v0
v_lshlrev_b32 v21, 4, v21
v_bfe_u32 v24, v0, 3, 2
v_lshl_add_u32 v24, v24, 8, v21
v_lshrrev_b32 v25, 5, v0
v_lshl_add_u32 v24, v25, 11, v24
v_add_u32 v21, {LN_LDS}, v21
s_lshl_b32 s6, {sW}, 2
v_add_u32 v22, s6, v21
s_lshr_b32 s6, s2, 2
s_mul_i32 s6, s6, {XN_RS}
s_and_b32 s7, s2, 2
s_lshl_b32 s7, s7, 9
s_add_u32 s6, s6, s7
s_and_b32 s7, s2, 1
s_lshl_b32 s7, s7, 7
s_add_u32 s6, s6, s7
s_lshl_b32 s7, {sW}, 13
s_add_u32 s96, s6, s7
s_add_u32 s97, s96, 4096
""")
    p.e(flag_addr("kv", 65))
    p.e(f"""
s_getreg_b32 s57, hwreg(HW_REG_XCC_ID, 0, 4)
s_lshl_b32 s64, s2, 8
s_add_u32 s64, s64, {FL_OFF}
s_and_b32 s65, s65, 0xfffffff0
s_cmp_eq_u32 {sW}, 0
s_cselect_b32 s64, s64, 0x80000000
s_cmp_eq_u32 {sW}, 1
s_cselect_b32 s65, s65, 0x80000000
s_and_b32 s71, s2, 63
s_lshl_b32 s71, s71, 2
v_mov_b32 v27, 0
v_lshlrev_b32 v26, 2, v0
v_mov_b32 v{vOne}, 1
""")
    p.e([f"v_mov_b32 v{72+r}, s57" for r in range(4)])
    first = [([], I(f"buffer_store_dwordx4 v[64:67], v24, {srd(SRD_WS)}, s96 offen sc1", tag="XNst")),
             ([], I(f"buffer_store_dwordx4 v[68:71], v24, {srd(SRD_WS)}, s97 offen sc1", tag="XNst")),
             ([], I(f"buffer_store_dword v27, v26, {srd(SRD_WS)}, s64 offen sc1", tag="XNst")),
             ([], I(f"buffer_store_dwordx4 v[72:75], off, {srd(SRD_WS)}, s65 sc1", tag="XNst"))]
    if OPT["wqt"] >= 0:
        p.e(f"""
v_bfe_u32 v25, v0, 1, 4
v_lshlrev_b32 v25, 13, v25
v_and_b32 v23, 1, v0
v_lshl_add_u32 v25, v23, 7, v25
s_lshl_b32 s56, s75, 1
s_add_u32 s56, s56, s76
""")
    stamp(p, 23)
    if OPT["pads"]:
        p.e("s_mov_b64 exec, 0")
        for w in (1, 2, 3):
            p.e(f"s_cmp_eq_u32 {sW}, {w}\ns_cbranch_scc1 L_pad{w}")
        p.e("s_branch L_pad0\nL_padret:\ns_mov_b64 exec, -1")
    p.e(";PAGE")
    issue(p, a_dma(1))
    stamp(p)
    p.wait("A0")
    for x in a_reads(0):
        p.e(x)
    p.wait("W0")
    p.e("s_barrier")
    for n in range(4):
        p.e(w_read(n, 0))
        p.e(w_read(n, 1))
    p.wait("Wr0", "Ar0")

    mf = []
    for kg in range(8):
        for cb in range(8):
            m = len(mf) // 8
            for rb, kk, f1 in walk(cb, 4):
                d = vr(acc(ACC0 if cb < 4 else ACC1, 0, cb % 4, rb))
                mf.append(I(f"{MF} {d}, {vr(WF+4*((2*m+kk)%8))}, {res(rb, 2*kg+kk)}, {'0' if kg == 0 and f1 else d}", needs=[f"Wr{m}", f"Ar{kg}"]))
    for ci, (nm, _, _) in enumerate(CHUNKS):
        buf = (ACC0, ACC1, ACC0, ACC1, 2)[ci]
        for kg in range(8):
            for cb in range(4):
                m = len(mf) // 8
                for rb, kk, f1 in walk(cb, 4):
                    d = c = vr(acc(buf, nm[0] == "V", cb, rb))
                    if kg == 0 and f1:
                        c = vr(BIAS + 4 * cb) if nm == "H" else "0"
                    wf, af = vr(WF + 4 * ((2 * m + kk) % 8)), res(rb, 2 * kg + kk)
                    a, b = (af, wf) if nm[0] == "V" else (wf, af)
                    nd = [f"Wr{m}"] + ([f"XN{kg}"] if nm == "H" else [])
                    mf.append(I(f"{MF} {d}, {a}, {b}, {c}", needs=nd))
    NH = len(mf)
    g = Half(mf)
    for n in range(4, NH // 4):
        for j in range(2):
            g.mem[4 * (n - 4) + 2 * j].append(w_read(n, j))
        if n % 16 >= 8 and n % 2 and n // 16 + 1 < NSLAB:
            dw = W_SLOT[n // 16 + 1] // 4 - W_SLOT[n // 16] // 4
            if dw:
                g.val[4 * (n - 4) + 2].append(I(f"v_add_u32 v{VTR+(n//2)%4}, 0x{(dw*65536) & 0xffffffff:x}, v{VTR+(n//2)%4}"))
    for h in range(8, NH, 8):
        tags = [f"Wr{h//8}"]
        if h < 512 and h % 64 == 0:
            tags += [f"Ar{h//64}"]
        if 1024 <= h < 1280 and h % 32 == 0:
            tags += [f"XN{(h-1024)//32}"]
        g.sh[h - 1].append(WAIT(*tags))
    for q in range(1, 8):
        h = 64 * q - 27
        g.sh[h - 1].append(WAIT(f"A{q}"))
        for i, x in enumerate(a_reads(q)):
            g.mem[h - 1 + 2 * i].append(x)
    for ps in range(1, NSLAB):
        if ps in NOBAR:
            assert ps not in W_ISSUE
            continue
        nx = ps + 1
        while nx in NOBAR:
            assert W_ISSUE[nx] <= ps - 2
            nx += 1
        tags = [f"W{k}" for k in range(ps, nx)] + (["XNst"] if ps == OPT["sigp"] else []) + (["KV0"] if ps == 27 else [])
        g.sh[64 * ps - 19].append(WAIT(*tags))
        g.sh[64 * ps - 18].append("s_barrier")
    lo = -1
    for ps in range(0, NSLAB):
        lst = []
        for sl in range(NSLAB):
            if W_ISSUE[sl] == ps:
                lst += w_dma(sl)
        if ps == 0:
            lo = place(g, w_dma(1), 3, 2, -1)
            lo = place(g, a_dma(2) + lst, 13, 4, lo)
        elif ps < 6:
            st = max(lo + 4, 64 * ps + 1)
            lo = place(g, a_dma(ps + 2) + lst, st, 4, lo)
        elif lst:
            lo = place(g, lst, 64 * ps - 13, 4 if len(lst) > 8 else 6, max(lo, 64 * ps - 19))
    g.after([("s_mov_b32 s7, 1", f"s_cmp_lg_u32 {sW}, 0", "s_cbranch_scc1 L_nosig", f"s_atomic_add s7, s[{SRD_DBG}:{SRD_DBG+1}], s71", "L_nosig:")],
            64 * OPT["sigp"] - 16)

    def slot(h):
        h |= 1
        while g.mem[h] or g.val[h]:
            h += 2
        return h

    def kv_store(src, blk, f):
        return I(f"buffer_store_dwordx4 {vr(src)}, {vL16}, {srd(SRD_WS)}, s{84+blk*4+f//4} offen offset:{(f%4)*1024} {KVFL}", tag="KVst")

    def cvt4(dst, src):
        return [f"v_cvt_pk_bf16_f32 v{dst+c}, v{src+2*c}, v{src+2*c+1}" for c in range(4)]

    q = Prog()
    tail = layernorm(q)
    LH = OPT["lnh"]
    cut = [x.text for x in q.l].index(";CUT")
    LB = OPT["lnb"]
    g.post[LH] += q.l[:cut]
    g.post[LH + LB] += q.l[cut + 1:]
    if LB or OPT["lnt"]:
        hl = OPT["lnt"] or LH + 2 * LB
        g.post[hl] += [I(x) for x in tail]
    else:
        hl = g.fill(tail, range(LH + 1, LH + 90), dense=True)
    assert LH + LB < 64 * 3 - 20
    assert W_SLOT[5] == 5 and hl + 20 < 64 * OPT["sigp"] - 40, hl
    for _, x in first:
        hl = slot(hl + 1)
        g.mem[hl].append(x)
    if OPT["probe"]:
        for k, h in enumerate((450, 765, 1500)):
            q = Prog()
            q.e("s_waitcnt vmcnt(0)")
            q.e(f"s_lshl_b32 s96, s2, 13\ns_lshl_b32 s97, {sW}, 11\ns_add_u32 s96, s96, s97\ns_add_u32 s96, s96, {k*512}\ns_xor_b32 s96, s96, 0x54000\ns_add_u32 s97, s96, {120<<20}")
            stamp(q, 24 + 4 * k)
            q.e(f"buffer_load_dword v{vDummy}, off, {srd(SRD_WS)}, s96 sc1\ns_waitcnt vmcnt(0)")
            stamp(q, 25 + 4 * k)
            q.e(f"buffer_store_dwordx4 v[0:3], {vL16}, {srd(SRD_WS)}, s97 offen sc1\ns_waitcnt vmcnt(0)")
            stamp(q, 26 + 4 * k)
            q.e(f"buffer_load_dword v{vDummy}, off, {srd(SRD_WS)}, s97 sc1\ns_waitcnt vmcnt(0)")
            stamp(q, 27 + 4 * k)
            g.post[h] += q.l
    if OPT["slph"] >= 0:
        g.post[OPT["slph"]] += slp()
    if OPT["xnrt"]:
        for k in (96, 97):
            g.mem[slot(OPT["xnrt"])].append(I(f"buffer_load_dword v{vDummy}, v24, {srd(SRD_WS)}, s{k} offen sc1"))
    prev = 795
    for i in range(64):
        f, blk = divmod(i, 2)
        h = slot(max(800 + (OPT['xs'] * i) // 10, prev + 1))
        assert 768 + 32 * (f // 4 + 1) <= h < 1024 + 32 * (f // 4) - 48
        if i % 8 == 0:
            g.before(["s_add_u32 s64, s92, s70", "s_add_u32 s65, s93, s70"], h, prev + 1)
            g.after(["s_add_u32 s70, s70, 4096", "s_and_b32 s70, s70, 0x7fff"], h + 1)
        g.mem[h].append(I(f"buffer_load_dwordx4 {ar((blk*32+f)*4)}, {vL16}, {srd(SRD_WS)}, s{92 if OPT['dbgno'] == 2 else 64+blk} offen offset:{(f%4)*1024}{' sc1' if OPT['xnsc'] else ''}", tag=f"XN{f//4}"))
        prev = h
    kf = lambda i, hi: ((i % 4) // 2, (i % 2) * 4 + 2 * hi + i // 4)
    vf = lambda i, hi: (i // 4, 8 + 4 * hi + i % 4)
    it = []
    for i in range(8):
        it += cvt4(TP + 4 * i, ACC0 + 8 * i)
    g.fill(it, range(476, 512))
    tp_st = [kv_store(TP + 4 * i, *kf(i, 0)) for i in range(8)]

    def epi_inplace(buf, h0, fidx, extra):
        it, st = [], []
        for i in range(8):
            it += cvt4(buf + 8 * i, buf + 8 * i)
            st.append(kv_store(buf + 8 * i, *fidx(i)))
        st = extra[:2] + st + extra[2:]
        for n, x in enumerate(st):
            if (OPT["dbgno"] == 1 and h0 > 512) or (OPT["dbgno"] == 3 and h0 > 512 and n % 3 == 0) or (OPT["dbgno"] == 4 and h0 == 512 and n):
                continue
            g.mem[slot(h0 + 6 + (n * 240) // len(st))].append(x)
        g.fill(it, range(h0 + 2, h0 + 40))
    epi_inplace(ACC1, 512, lambda i: kf(i, 1), tp_st[:4])
    epi_inplace(ACC0, 768, lambda i: vf(i, 0), tp_st[4:6])
    epi_inplace(ACC1, 1024, lambda i: vf(i, 1), tp_st[6:])
    g.fill(["v_lshrrev_b32 v20, 4, v0", "v_lshlrev_b32 v20, 3, v20"], range(676, 680))
    for cb in range(4):
        g.mem[slot(684 + 6 * cb)].append(I(f"buffer_load_dwordx2 {vr(BIAS+4*cb+2,2)}, v20, {srd(SRD_B1)}, s83 offen offset:{32*cb}", tag="B1"))
    g.after([WAIT("B1")], 876)
    it = []
    for cb in range(4):
        b = BIAS + 4 * cb
        it += [I(f"v_lshlrev_b32 v{b}, 16, v{b+2}", needs=["B1"]), f"v_and_b32 v{b+1}, 0xffff0000, v{b+2}",
               f"v_lshlrev_b32 v{b+2}, 16, v{b+3}", f"v_and_b32 v{b+3}, 0xffff0000, v{b+3}"]
    g.fill(it, range(884, 920))
    g.mem[slot(OPT["plh"])].append(I(f"buffer_load_dword v{vPoll}, v26, {srd(SRD_DBG)}, 0 offen sc1", tag="pollLN"))
    PC = 760 if OPT["plh"] < 700 else 792
    g.sh[PC].append(WAIT("pollLN"))
    g.val[PC].append(I(f"v_cmp_gt_u32 vcc, 4, v{vPoll}", needs=["pollLN"]))
    g.sh[PC + 3] += ["s_cbranch_vccnz L_pollLN", "L_pollLN_back:"]
    ool.e(f"""
L_pollLN:
s_mov_b32 s96, 0x40000
L_pollLN_l:
s_sleep 2
buffer_load_dword v{vPoll}, v26, {srd(SRD_DBG)}, 0 offen sc1
s_waitcnt vmcnt(0)
v_cmp_gt_u32 vcc, 4, v{vPoll}
s_sub_u32 s96, s96, 1
s_cbranch_scc1 L_pollLN_back
s_cbranch_vccnz L_pollLN_l
s_branch L_pollLN_back
""")
    if OPT["p2rot"] != 7:
        l = []
        for i in range(4):
            l += [f"s_add_u32 s7, s82, {128*i}", "s_and_b32 s7, s7, 511", f"s_lshl_b32 s{60+i}, s7, 13", f"s_add_u32 s{60+i}, s{60+i}, s76"]
        assert g.after(l, 930) < 1000
    late = mk_srd(SRD_W2, 66, 1792 * 1024) + mk_srd(SRD_WO, 58, 4096 * 1024) + mk_srd(SRD_OUT, 68, 2048 * 1024)
    late += [f"s_mul_i32 s6, {sH}, {KV_HS}", "s_add_u32 s6, s6, s77", f"s_add_u32 s6, s6, {KV_OFF}", f"s_mov_b32 s{SRD_KV+2}, 0x100000",
             (f"s_add_u32 s{SRD_KV}, s72, s6", f"s_addc_u32 s{SRD_KV+1}, s73, 0"), f"s_and_b32 s{SRD_KV+1}, s{SRD_KV+1}, 0xffff"]
    late += flag_addr("kv", 82) + ["s_and_b32 s80, s82, 0xffffff80", "s_mov_b32 s71, 0"]
    if OPT["wopf"]:
        late += ["s_mul_i32 s56, s2, 7168", (f"s_cmp_eq_u32 {sW}, 2", "s_cselect_b32 s56, s56, 0x1000000")]
    assert g.after(late, 1160) < 1226
    g.fill(["v_and_b32 v27, 31, v0", "v_lshlrev_b32 v27, 2, v27", "v_lshlrev_b32 v26, 7, v0"], range(1218, 1226))
    g.mem[slot(1228)].append(poll_req(27, 80, "pollXC"))
    g.sh[1272].append(WAIT("pollXC"))
    g.fill([I(f"v_and_b32 v{vPoll}, 0xff, v{vPoll}", needs=["pollXC"]), f"v_cmp_ne_u32 vcc, s57, v{vPoll}",
            f"v_mov_b32 v{vPoll}, s57", f"v_or_b32 v{vPoll}, 0x100, v{vPoll}"], range(1272, 1277))
    g.sh[1300].append(WAIT("KVst"))
    g.sh[1301] += ["s_cbranch_vccnz L_xrel", "L_xrel_back:"]
    ool.e("L_xrel:\ns_mov_b32 s71, 1\nbuffer_wbl2 sc1\ns_waitcnt vmcnt(0)\ns_branch L_xrel_back")
    g.mem[slot(1302)].append(flag_store(vPoll, 82))
    if OPT["wopf"]:
        if OPT["w2t"] > 0:
            g.mem[slot(OPT["w2t"])].append(I(f"buffer_load_dword v{vDummy}, v26, {srd(SRD_W2)}, s56 offen", tag="wopf"))
    if OPT["wqt"] > 0:
        g.mem[slot(OPT["wqt"])].append(I(f"buffer_load_dword v{vDummy}, v25, {srd(SRD_WQ)}, s56 offen"))
    g.mem[slot(1540)].append(poll_req(27, 80, "pollKV"))
    assert g.after(flag_addr("actA", 78) + flag_addr("actB", 79) + [f"s_add_u32 s{sPM[2]}, s77, 0x20000"], 1544) < 1580
    g.sh[1586].append(WAIT("pollKV"))
    g.val[1586].append(I(f"v_cmp_gt_u32 vcc, 0x100, v{vPoll}", needs=["pollKV"]))
    g.sh[1589] += ["s_cbranch_vccnz L_pollKV", "L_pollKV_back:"]
    poll_slow(ool, "L_pollKV", 27, 80, "v_cmp_gt_u32 vcc, 0x100")
    g.sh[1592] += ["s_cmp_lg_u32 s71, 0", "s_cbranch_scc1 L_xacq", "L_xacq_back:"]
    ool.e("L_xacq:\nbuffer_inv sc1\ns_waitcnt vmcnt(0)\ns_branch L_xacq_back")
    assert W_SLOT[24:] == [6, 7, 8, 9]
    lo = 1592
    LA = OPT['la']
    for n in range(LA):
        lo = place(g, kv_dma(n), max(1597 + 4 * OPT['kvs'] * n, 1713 if n == 6 else 0), OPT['kvs'], lo)
    for k in range(12):
        g.mem[1714 + 4 * k].append(I(f"ds_read_b128 {ar(KF+4*k)}, {vL16} offset:{k*1024}", tag="K0", needs=["KV0"]))
    ps = [
        "s_and_b32 s6, s2, 1", "s_lshl_b32 s6, s6, 5", "s_add_u32 s6, s6, s48",
        "s_lshr_b32 s71, s2, 1", "s_and_b32 s71, s71, 3",
        "s_lshl_b32 s101, s6, 2", "s_add_u32 s101, s101, s71", "s_lshl_b32 s101, s101, 7", f"s_add_u32 s101, s101, {CTXF + 32}",
        "s_mul_i32 s7, s71, 28",
        f"s_mul_i32 s6, s6, {AF_KS*1024}", f"s_add_u32 s6, s6, {AF_OFF}",
        "s_lshl_b32 s7, s7, 10", f"s_add_u32 s{sPA}, s6, s7", f"s_add_u32 s{sPA}, s{sPA}, {256*1024}",
        "s_lshl_b32 s7, s71, 16", f"s_add_u32 s{sPC}, s6, s7",
        f"s_xor_b32 s6, s71, {sW}", "s_xor_b32 s6, s6, 3", "s_lshr_b32 s6, s6, 1", "s_lshl_b32 s6, s6, 7",
        "s_lshr_b32 s7, s2, 6", "s_lshl_b32 s7, s7, 8", "s_add_u32 s6, s6, s7",
        f"s_and_b32 s7, {sW}, 1", "s_lshl_b32 s7, s7, 15", "s_add_u32 s6, s6, s7",
        f"s_mul_i32 s7, s71, {448*1024}", f"s_add_u32 s{sPW2}, s6, s7",
        "s_lshl_b32 s7, s71, 20", f"s_add_u32 s{sPWO}, s6, s7",
        f"s_and_b32 s6, {sJ}, 1", "s_lshl_b32 s6, s6, 16", f"s_add_u32 s{sPM[0]}, s77, s6",
        f"s_xor_b32 s{sPM[1]}, s{sPM[0]}, 0x10000", f"s_add_u32 {sM}, s77, {LA*16384}",
        "s_and_b32 s75, s71, 1", "s_xor_b32 s75, s75, 1", "s_lshl_b32 s75, s75, 6",
        f"s_mov_b32 {sKa}, 0x4000", f"s_mov_b32 {sCA}, s48", f"s_sub_u32 {sCB}, 30, s48",
        f"s_sub_u32 s41, {sJ}, 2", "s_lshl_b32 s41, s41, 5", f"s_add_u32 s41, s41, {sH}", "s_lshl_b32 s41, s41, 2",
        f"s_add_u32 s41, s41, {sW}", "s_lshl_b32 s41, s41, 13",
    ]
    if OPT["w2t"] > 0:
        ps += [f"s_mov_b32 s{20+i}, s{SRD_WO+i}" for i in range(3)]
    else:
        ps += ["s_sub_u32 s6, s41, 0x200000", (f"s_cmp_lt_u32 {sJ}, 4", "s_cselect_b32 s41, s41, s6") +
               tuple(f"s_cselect_b32 s{20+i}, s{SRD_W2+i}, s{SRD_WO+i}" for i in range(3))]
    if OPT["sent"]:
        ps += ex_addr()
    for r in range(4):
        m = sum(1 << l for l in range(64) if 4 * (l // 16) + r > l % 16)
        ps += [f"s_mov_b32 s{MASKS+2*r}, 0x{m & 0xffffffff:x}", f"s_mov_b32 s{MASKS+2*r+1}, 0x{m >> 32:x}"]
    assert g.after(ps, 1594) < 1765
    it = []
    LOG2E = f"0x{f2u(1.4426950408889634):x}"
    for i in range(8):
        dl, rb = divmod(i, 4)
        b = ACC0 + 8 * i
        for c in range(4):
            x0, x1 = b + 2 * c, b + 2 * c + 1
            it += [f"v_mul_f32 v20, {LOG2E}, v{x0}", "v_exp_f32 v20, v20", f"v_mul_f32 v21, {LOG2E}, v{x1}", "v_exp_f32 v21, v21",
                   "v_fma_f32 v22, v20, 0.5, 1.0", "v_fma_f32 v20, v20, v22, 1.0", "v_fma_f32 v23, v21, 0.5, 1.0",
                   "v_fma_f32 v21, v21, v23, 1.0", "v_rcp_f32 v20, v20"]
            if c or i:
                it.append(pend.pop())
            it += ["v_rcp_f32 v21, v21", f"v_fma_f32 v24, -v{x0}, v20, v{x0}"]
            if c == 0 and i:
                it.append(pst.pop())
            it.append(f"v_fma_f32 v25, -v{x1}, v21, v{x1}")
            pend = [f"v_cvt_pk_bf16_f32 v{b+c}, v24, v25"]
        pst = [I(f"buffer_store_dwordx4 {vr(b)}, {vL16}, {srd(SRD_ACT)}, s{94+rb//2} offen offset:{(2*dl+rb%2)*1024} sc1", tag="ACTst")]
    it += pend + pst
    nmish = len(it)
    QS = f"0x{f2u(1.4426950408889634 / 128 ** 0.5):x}"

    def q_epi(src, dst):
        it = []
        for c in range(4):
            it += [f"v_mul_f32 v{src+2*c}, {QS}, v{src+2*c}", f"v_mul_f32 v{src+2*c+1}, {QS}, v{src+2*c+1}",
                   f"v_cvt_pk_bf16_f32 v{dst+c}, v{src+2*c}, v{src+2*c+1}"]
        return it
    it += ["v_lshrrev_b32 v20, 3, v0", "v_and_b32 v21, 7, v0", "v_bfe_u32 v22, v0, 4, 2", "v_lshlrev_b32 v22, 1, v22",
           "v_xor_b32 v21, v21, v22", "v_lshlrev_b32 v21, 4, v21", "v_xor_b32 v21, s75, v21",
           f"v_lshl_add_u32 v{VP_DMA}, v20, 10, v21"] + [f"v_add_u32 v{VP_DMA+u}, {7168*u}, v{VP_DMA}" for u in (1, 2, 3)]
    it += ["v_min_u32 v27, 6, v0", "v_lshlrev_b32 v27, 2, v27", f"v_mov_b32 v{vMask}, 0x1c000", f"v_mov_b32 v{vBit}, 0x40004000",
           f"v_mov_b32 v{vNinf}, 0xff800000", f"v_mov_b32 v{vR0}, {vL16}"]
    it += ["v_and_b32 v25, 3, v0", "v_add_u32 v25, -1, v25", "v_ashrrev_i32 v25, 31, v25", "v_and_b32 v25, 0x3f803f80, v25"]
    it += [f"v_mov_b32 v{NMA+r}, 0" for r in range(16)] + [f"v_mov_b32 v{EX+r}, 0" for r in range(4)]
    for i in range(8):
        it += q_epi(ACC1 + 8 * i, ACC1 + 4 * i)
    it = [x if isinstance(x, I) else I(x) for x in it]
    FH = 1737
    g.sh[FH - 1].append(WAIT("ACTst"))
    assert lo < 1766
    while g.mem[FH] or g.mem[FH + 2]:
        FH += 2
    g.mem[FH].append(flag_store(vOne, 78, sr=SRD_ACT))
    g.mem[FH + 2].append(flag_store(vOne, 79, sr=SRD_ACT))
    g.sh[1788] += [f"s_cmp_eq_u32 {sCA}, 0", "s_cbranch_scc1 L_mask0", "L_mask0_back:"]
    ool.e("L_mask0:"); ool.e(mask_ops(NMA)); ool.e("s_branch L_mask0_back")
    g.fill(it, range(1283, 1788))
    hm = [h for h in range(NH) if it[nmish - 1] in g.mem[h] + g.val[h]][0]
    assert 1675 < hm < FH - 40, hm
    assert g.after([(f"s_add_u32 s{SRD_KV}, s{SRD_KV}, {(LA-1)*16384}", f"s_addc_u32 s{SRD_KV+1}, s{SRD_KV+1}, 0"),
                    f"s_lshl_b32 s7, {sJ}, 2", f"s_sub_u32 s7, {65-LA}, s7", f"s_lshl_b32 s{SRD_KV+2}, s7, 14", f"s_mov_b32 m0, {sM}"], 1768) < 1786
    if OPT["ramp"]:
        for pi, ch in enumerate(str(OPT["ramp"])):
            for h in range(64 * pi, 64 * pi + 64):
                k = max(0, 2 - g.cost(h)) + (0 if g.sh[h] or g.cost(h) else 1) + int(ch) // 2 + (int(ch) % 2) * (h % 2)
                if int(ch) // 2 + (int(ch) % 2) * (h % 2):
                    g.post[h].append(f"s_nop {k-1}")
    if OPT["amp"]:
        for h in range(0, 440):
            for k in range(max(0, 2 - g.cost(h))):
                g.val[h].append(I(f"v_fma_f32 v{248+(h+k)%8}, v{32+(5*h+k)%32}, v{32+(7*h+k+3)%32}, v{32+(3*h+k+9)%32}"))
    if OPT["stamp"] or OPT["padat"] >= 0:
        for h in (511, 767, 1023, 1279, 1535):
            q = Prog(); stamp(q); g.post[h] += q.l
        if OPT["stamp"] == 2:
            for k in range(28):
                q = Prog(); stamp(q, 24 + k); g.post[64 * k] += q.l
    p.e(g.emit())
    stamp(p)
    mB, mA = qk_mf(JB1, True, "0"), qk_mf(JA0, True)
    p.wait("K0")
    g = Half(mB[:8] + mA[:8] + mB[8:] + mA[8:])
    qe = lambda l: sum((q_epi(grp(2, i), grp(2, i)) for i in l), [])
    g.fill(qe((2, 3, 6, 7)) + ["s_nop 0"], range(0, 16))
    g.fill(qe((0, 1, 4, 5)) + ["s_nop 0"], range(16, 24))
    g.fill(rowmax(S1), range(26, 32))
    p.e(g.emit())
    it = [f"v_sub_f32 v{NMB+r}, 0x{f2u(-SHIFT):x}, v{20+r//8}" for r in range(16)]
    it += rowmax(S0) + [f"v_add_f32 v{20+qb}, 0x{f2u(SHIFT):x}, v{20+qb}" for qb in range(2)]
    it += [f"v_sub_f32 v{S0+r}, v{S0+r}, v{20+r//8}" for r in range(16)]
    z = Gaps([f"{MF32} {ar(16*i,16)}, {vr(EX)}, {vr(EX)}, 0" for i in range(8)])
    z.spread(it, 0, 8)
    p.e(z.emit())
    p.e([f"v_sub_f32 v{NMA+r}, 0, v{20+r//8}" for r in range(16)])
    p.e(sm_split(JA0, "Y")[0])
    p.e([f"v_mov_b32 v{lreg(r//8, (r//4)%2)+r%4}, 0" for r in range(16)] +
        ([f"v_mov_b32 v{ONES+r}, v25" for r in range(4)] if OPT["ones4"] else [f"v_mov_b32 v{ONES+r}, 0x3f803f80" for r in range(4)]))
    if OPT["sent"]:
        p.e([f"v_mov_b32 v{32+r}, -1" for r in range(4)])
        for i in range(6):
            p.e(I(f"buffer_store_dwordx4 v[32:35], {vL16}, {srd(SRD_WS)}, s{24+i//2} offen offset:{(i%2)*1024} sc1"))
    p.wait("KV2")
    stamp(p)


def qfrag(blk, qb, ds):
    rb = 2 * blk + qb
    return ACC1 + 4 * (4 * ds + rb) if ds < 2 else grp(2, 4 * (ds - 2) + rb)


def lreg(blk, qb):
    return TP + 4 + 8 * (2 * blk + qb)


class Job:
    def __init__(self, blk, par):
        self.blk = blk
        self.S = (S0, S1)[par]
        self.P = (P0, P1)[par]
        self.NM = (NMA, NMB)[blk]
        self.O = (OA, OB)[blk]


JA0, JB1, JB0 = Job(0, 0), Job(1, 1), Job(1, 0)


def sm_ops(j):
    o = {}
    for r in range(16):
        o[f"e{r}"] = f"v_exp_f32 v{EX+r}, v{j.S+r}"
    for i in range(8):
        o[f"c{i}"] = f"v_cvt_pk_bf16_f32 v{j.P+i}, v{EX+2*i}, v{EX+2*i+1}"
    o["o0"] = f"v_or3_b32 v{vChk}, v{j.P}, v{j.P+1}, v{j.P+2}"
    o["o1"] = f"v_or3_b32 v{vChk}, v{vChk}, v{j.P+3}, v{j.P+4}"
    o["o2"] = f"v_or3_b32 v{vChk}, v{vChk}, v{j.P+5}, v{j.P+6}"
    o["o3"] = f"v_bitop3_b32 v{vChk}, v{vChk}, v{j.P+7}, v{vBit} bitop3:0xa8"
    o["k"] = f"v_cmp_ne_u32 vcc, 0, v{vChk}"
    return o


SM_PLAN = {
    "Z": ({17: "e0", 18: "e1", 19: "e2", 20: "c0", 21: "e3", 22: "e4", 24: "c1", 25: "e5", 26: "e6", 27: "e7", 28: "c2",
           29: "e8", 30: "c3", 32: "e9", 33: "e10"},
          {0: "o0", 1: "e11", 2: "c4", 3: "e12", 4: "o1", 5: "e13", 8: "c5 e14", 9: "e15", 10: "c6", 11: "o2 c7", 12: "o3 k"}),
    "W": ({16: "e0", 17: "e1", 18: "e2", 19: "e3", 20: "c0", 21: "e4", 22: "c1", 24: "e5", 25: "e6", 26: "c2", 27: "e7", 28: "e8",
           29: "e9", 30: "c3", 32: "e10", 33: "e11"},
          {0: "o0", 1: "e12", 2: "c4", 3: "e13", 4: "o1", 5: "e14", 8: "c5", 9: "e15", 10: "c6", 11: "o2 c7", 12: "o3 k"}),
    "X": ({17: "e0", 19: "e1", 21: "e2", 22: "c0", 24: "e3", 25: "e4", 26: "e5", 27: "c1 c2", 28: "e6", 29: "e7",
           30: "e8", 32: "o0 c3", 33: "e9"},
          {0: "e10", 1: "e11", 2: "c4 o1", 3: "e12", 4: "e13", 5: "e14", 6: "c5", 7: "e15", 8: "c6", 9: "o2 c7", 10: "o3", 11: "k"}),
    "Y": ({17: "e0", 18: "e1", 19: "e2", 20: "e3", 21: "e4", 22: "e5", 23: "e6", 24: "c0", 25: "e7", 26: "c1", 27: "e8",
           28: "c2", 29: "e9", 30: "c3", 31: "e10", 32: "e11", 33: "o0 c4"},
          {1: "e12", 3: "e13", 5: "e14", 8: "o1", 9: "e15", 10: "c5", 11: "c6 o2", 12: "c7 o3", 13: "k"}),
}


def sm_split(j, plan):
    o = sm_ops(j)
    return [[o[n] for h in sorted(part) for n in part[h].split()] for part in SM_PLAN[plan]]


for _p in SM_PLAN.values():
    _o = [n for part in _p for h in sorted(part) for n in part[h].split()]
    assert sorted(_o) == sorted(sm_ops(JA0))
    _dep = {f"c{i}": (f"e{2*i}", f"e{2*i+1}") for i in range(8)}
    _dep.update(o0=("c0", "c1", "c2"), o1=("o0", "c3", "c4"), o2=("o1", "c5", "c6"), o3=("o2", "c7"), k=("o3",))
    assert all(_o.index(d) < _o.index(n) for n in _dep for d in _dep[n])


def qk_mf(j, dsmajor=False, c0=None):
    idx = [(kb, qb, ds) for kb in range(2) for qb in range(2) for ds in range(4)]
    if dsmajor:
        idx.sort(key=lambda t: t[2])
    elif OPT["orda"]:
        idx = [(kb, qb, ds if qb == kb else 3 - ds) for kb, qb in ((0, 0), (0, 1), (1, 1), (1, 0)) for ds in range(4)]
    out, seen = [], set()
    for kb, qb, ds in idx:
        t = 8 * qb + 4 * kb
        c = vr(j.S + t) if t in seen else (vr(j.NM + t) if c0 is None else c0)
        seen.add(t)
        out.append(f"{MF} {vr(j.S+t)}, {ar(KF+4*(4*kb+ds))}, {vr(qfrag(j.blk,qb,ds))}, {c}")
    return out


def pv_mf(j):
    sn = OPT["orda"]
    out = [f"{MF} {vr(lreg(j.blk,qb))}, {vr(ONES)}, {vr(j.P+4*qb)}, {vr(lreg(j.blk,qb))}" for qb in ((1, 0) if sn else (0, 1))]
    for db in range(8):
        for qb in ((1, 0) if sn and db % 2 else (0, 1)):
            o = ar(j.O + 8 * (2 * (db // 2) + qb) + 4 * (db % 2))
            out.append(f"{MF} {o}, {ar(VF+4*db)}, {vr(j.P+4*qb)}, {o}")
    return out


def rowmax(S):
    l = []
    for a, b in ((0, 1), (3, 4), (5, 6)):
        for qb in range(2):
            s = S + 8 * qb
            l.append(f"v_max3_f32 v{20+qb}, v{s+2 if a == 0 else 20+qb}, v{s+a}, v{s+b}")
    l += [f"v_max_f32 v{20+qb}, v{20+qb}, v{S+8*qb+7}" for qb in range(2)]
    for op in ("v_permlane16_swap_b32", "v_permlane32_swap_b32"):
        l += ["v_mov_b32 v22, v20", "v_mov_b32 v23, v21", "s_nop 0", f"{op} v20, v22", f"{op} v21, v23",
              "v_max_f32 v20, v20, v22", "v_max_f32 v21, v21, v23"]
    return l


RARE = {}


def rare(cur, nxt):
    fix = nxt is not None and nxt.blk == cur.blk
    name = f"L_rare_{cur.blk}_{cur.S}_{int(fix)}"
    if name in RARE:
        return name
    q = Prog()
    q.e(f"{name}:")
    q.e("s_nop 15")
    q.e(rowmax(cur.S))
    for qb in range(2):
        q.e(f"v_add_f32 v{20+qb}, 0x{f2u(SHIFT):x}, v{20+qb}\nv_max_f32 v{20+qb}, 0, v{20+qb}\nv_exp_f32 v{22+qb}, -v{20+qb}")
    for r in range(16):
        q.e(f"v_sub_f32 v{cur.NM+r}, v{cur.NM+r}, v{20+r//8}")
        q.e(f"v_sub_f32 v{cur.S+r}, v{cur.S+r}, v{20+r//8}")
        if fix:
            q.e(f"v_sub_f32 v{nxt.S+r}, v{nxt.S+r}, v{20+r//8}")
    for r in range(8):
        b = lreg(cur.blk, r // 4) + r % 4
        q.e(f"v_mul_f32 v{b}, v{b}, v{22+r//4}")
    for r in range(64):
        q.e(f"v_accvgpr_read_b32 v24, a{cur.O+r}")
        q.e(f"v_mul_f32 v24, v24, v{22+(r//8)%2}")
        q.e(f"v_accvgpr_write_b32 a{cur.O+r}, v24")
    o = sm_ops(cur)
    q.e([o[f"e{r}"] for r in range(16)] + [o[f"c{i}"] for i in range(8)])
    q.e("s_nop 1")
    q.e("s_setpc_b64 s[46:47]")
    errs = lint(q.l, name)
    assert not errs, errs
    RARE[name] = q
    return name


site_n = [0]


def step(ool, kind, extra=None, bar=("s_barrier",), ringdma=True, vmw=None, bh=0):
    cur, nxt = dict(X=(JA0, JB1), Y=(JB1, JA0), T=(JB1, JB0), Z0=(JB0, JB1), Z1=(JB1, JB0), F=(JB0, None))[kind]
    pcur = dict(X="Y", Y="X", T="X", Z0="W", Z1="Z", F="W")[kind]
    pnxt = dict(X="X", Y="Y", T="W", Z0="Z", Z1="W", F=None)[kind]
    rdV2, rdK, rdV1 = kind in ("X", "Z0", "Z1", "F"), kind in ("X", "T", "Z0", "Z1"), kind in ("Y", "T", "Z0", "Z1")
    dma = kind in ("X", "Z0", "Z1")
    rV2 = vR1 if kind == "Z1" else vR0
    rK = vR1 if kind in ("T", "Z1") else vR0
    rV1 = vR1 if kind == "Z0" else vR0
    sK = sKb if kind in ("T", "Z1") else sKa
    g = Half((qk_mf(nxt) if nxt else [None] * 16) + pv_mf(cur))
    if rdK:
        g.val[6].append(f"v_and_or_b32 v{rK}, {sK}, v{vMask}, {vL16}")
    o = sm_ops(cur)
    for h, v in SM_PLAN[pcur][1].items():
        g.val[h] += [o[n] for n in v.split()]
    if nxt:
        o = sm_ops(nxt)
        for h, v in SM_PLAN[pnxt][0].items():
            g.val[h] += [o[n] for n in v.split()]
    else:
        g.val[7].append("s_nop 0")
    n = site_n[0]
    site_n[0] += 1
    g.sh[15] += [f"s_cbranch_vccnz L_site{n}", f"L_back{n}:"]
    ool.e(f"L_site{n}:\ns_call_b64 s[46:47], {rare(cur, nxt)}\ns_branch L_back{n}")
    KH = (8, 10, 13, 13, 15, 18, 20, 22) if pcur in "ZW" else (8, 10, 15, 18, 18, 20, 20, 22) if kind == "X" else (8, 10, 12, 13, 15, 18, 20, 22)
    if rdV2:
        for f in range(4, 8):
            g.mem[2 * (f - 4)].append(f"ds_read_b128 {ar(VF+4*f)}, v{rV2} offset:{8192+1024*f}")
        g.sh[17].append("s_waitcnt lgkmcnt(%d)" % (sum(h < 17 for h in KH) if rdK else 0))
        g.sh[bh] += list(bar)
    if rdK:
        for k in range(8):
            g.mem[KH[k]].append(f"ds_read_b128 {ar(KF+4*k)}, v{rK} offset:{1024*k}")
        g.sh[33].append("s_waitcnt lgkmcnt(%d)" % (4 if rdV1 else 0))
    if rdV1:
        for f in range(4):
            g.mem[24 + 2 * f].append(f"ds_read_b128 {ar(VF+4*f)}, v{rV1} offset:{8192+1024*f}")
        if vmw != -1:
            g.sh[28].append("s_waitcnt vmcnt(%d)" % (vmw if vmw is not None else 4 * OPT['la'] - (13 if dma else 12)))
    if dma and ringdma:
        for u, h in enumerate((7, 14, 23, 31)):
            g.mem[h].append(f"buffer_load_dwordx4 {vL16}, {srd(SRD_KV)}, {sK} offen offset:{u*1024} sc1 lds")
    if kind == "Y":
        g.after([f"s_add_u32 {sM}, {sM}, 0x4000", f"s_bitset0_b32 {sM}, 17", f"s_add_u32 {sKa}, {sKa}, 0x4000", f"s_sub_u32 {sCA}, {sCA}, 1",
                 f"s_cmp_lt_u32 {sKa}, s{SRD_KV+2}", f"s_cselect_b32 m0, {sM}, 0x30000"], 18)
    if kind == "X":
        g.sh[9].append(f"s_cmp_ge_u32 {sCA}, 2")
    if kind == "T":
        g.after([f"s_add_u32 {sKb}, {sKa}, 0x4000", f"s_add_u32 {sM}, {sM}, 0x4000", f"s_add_u32 {sKa}, {sKa}, 0x8000",
                 (f"s_sub_u32 s{SRD_KV}, s{SRD_KV}, 0x4000", f"s_subb_u32 s{SRD_KV+1}, s{SRD_KV+1}, 0"),
                 f"s_add_u32 s{SRD_KV+2}, s{SRD_KV+2}, 0x4000", f"s_bitset0_b32 {sM}, 17"], 0)
    if kind in ("Z0", "Z1"):
        if ringdma:
            g.sh[1].append(f"s_cmp_lt_u32 {sK}, s{SRD_KV+2}")
            g.sh[3].append(f"s_cselect_b32 m0, {sM}, 0x30000")
        so = sKb if kind == "Z0" else sKa
        g.after([f"s_add_u32 {sM}, {sM}, 0x4000", f"s_bitset0_b32 {sM}, 17", f"s_add_u32 {so}, {so}, 0x8000"], 18)
    if kind == "Z0":
        g.sh[9].append(f"s_sub_u32 {sCB}, {sCB}, 1")
    if extra:
        extra(g)
    l = g.emit()
    cut = [i for i, x in enumerate(l) if x.text == g.mf[16]][0] + 1
    return l[:cut], l[cut:]


def mask_ops(NM):
    l = [f"v_cndmask_b32 v{NM+t+r}, v{NM+t+r}, v{vNinf}, s[{MASKS+2*r}:{MASKS+2*r+1}]" for t in (0, 12) for r in range(4)]
    return l + [f"v_mov_b32 v{NM+4+r}, v{vNinf}" for r in range(4)] + ["s_nop 1"]


def epilogue(p, blk, tag=None, gs=range(8), mems=()):
    O = (OA, OB)[blk]
    if 0 in gs:
        p.e(f"""
v_rcp_f32 v{lreg(blk,0)}, v{lreg(blk,0)}
v_rcp_f32 v{lreg(blk,1)}, v{lreg(blk,1)}
s_lshl_b32 s6, {sH}, 13
s_add_u32 s6, s6, s{50+blk}
s_add_u32 s7, s6, 4096
""")
    mems = list(mems)
    per = -(-len(mems) // len(gs))
    for i in gs:
        b = NMA + 8 * (i % 2)
        issue(p, mems[:per])
        mems = mems[per:]
        for r in range(8):
            p.e(f"v_accvgpr_read_b32 v{b+r}, a{O+8*i+r}")
        for c in range(4):
            p.e(f"v_pk_mul_f32 {vr(b+2*c,2)}, {vr(b+2*c,2)}, {vr(lreg(blk,i%2),2)} op_sel_hi:[1,0]")
        for c in range(4):
            p.e(f"v_cvt_pk_bf16_f32 v{b+c}, v{b+2*c}, v{b+2*c+1}")
        p.e(I(f"buffer_store_dwordx4 {vr(b)}, {vL16}, {srd(SRD_WS)}, s{6+i//4} offen offset:{(i%4)*1024} sc1", tag=tag))


def attention(ool, extra):
    q = Prog()

    def memx(lst, hs):
        def f(g):
            assert len(hs) == len(lst)
            for (pre, ins), h in zip(lst, hs):
                g.mem[h] += pre + [ins]
        return f

    def cbar(n):
        return [f"s_cmp_lt_u32 {sW}, {n}", f"s_cbranch_scc1 L_nb{n}", "s_barrier", f"L_nb{n}:"]
    X1, X2 = step(ool, "X")

    def exY(g):
        if OPT["wopf"]:
            g.sh[13].append(f"s_cmp_eq_u32 {sCA}, 5")
            g.sh[14] += ["s_cbranch_scc1 L_wo", "L_wo_back:"]
    Y = sum(step(ool, "Y", exY), [])
    _, X2c = step(Prog(), "X", memx([([f"v_mov_b32 v{vPoll}, 0", "s_mov_b64 exec, 0x7f", f"buffer_atomic_or v{vPoll}, v27, {srd(SRD_WS)}, s101 offen sc0"],
                                      "s_mov_b64 exec, -1")], (16,)))

    def exT(g):
        g.sh[30].append("s_waitcnt vmcnt(2)")
        if OPT["sent"]:
            g.mem[31].append(flag_store(vOne, 27))
        g.val[31].append(f"v_cmp_ne_u32 vcc, 1, v{vPoll}")
    T = sum(step(ool, "T", exT), [])
    pl = p_aload(0, 28)
    if not OPT["peel"]:
        ool.e("L_ldA:\ns_waitcnt vmcnt(24)"); issue(ool, pl); ool.e("s_setpc_b64 s[44:45]")
    ldA = lambda n: [f"s_cmp_lg_u32 {sW}, {n}", f"s_cbranch_scc1 L_nl{n}", "s_call_b64 s[44:45], L_ldA", f"L_nl{n}:"]

    def w2_both(s):
        a, b = p_dma(s), p_dma(s)
        b[0] = (["s_xor_b32 m0, m0, 0x2000", "s_xor_b32 s97, s97, 0x80"], b[0][1])
        return a + b
    Z0a, Z0b = step(ool, "Z0")
    Z1 = sum(step(ool, "Z1"), [])
    assert OPT["la"] >= 5
    if OPT["la"] == 5:
        _, Z0bc = step(Prog(), "Z0")
        Z1c = sum(step(ool, "Z1", bar=cbar(1), ringdma=False, vmw=0), [])
    else:
        _, Z0bc = step(Prog(), "Z0", ringdma=False, vmw=2)
        Z1c = sum(step(ool, "Z1", bar=cbar(1), ringdma=False, vmw=-1), [])
    F = sum(step(ool, "F", bar=cbar(2)), [])
    for nm, seq in (("XY", X1 + X2 + Y + X1 + X2), ("XT", X1 + X2c + T + Z0a + Z0b + Z1 + Z0a + Z0bc + Z1c + F), ("TF", T + F)):
        errs = lint(seq, nm)
        assert not errs, "\n".join(errs)
    if OPT["sim"]:
        br = [I("s_cbranch_scc1 LL")]
        for nm, seq in (("XY", (X2 + Y + X1 + br) * 3), ("Z", (Z0b + Z1 + Z0a + br) * 3)):
            t, gp = simulate(seq, taken=("LL",))
            print(nm, sum(gp[67:135]), gp[67:135])
        print("X2c+T", simulate(X2c + T)[0], "Z0bc+Z1c", simulate(Z0bc + Z1c)[0], "F", simulate(F)[0])
    q.e(step(ool, "X")[0])
    q.e("s_cbranch_scc0 L_Xx")
    q.e(";LOOP\nL_X:"); q.e(X2); q.e(Y); q.e(X1)
    q.e("s_cbranch_scc1 L_X\n;ENDLOOP\nL_Xx:")
    q.e(f"s_cmp_eq_u32 {sCA}, 0\ns_cbranch_scc1 L_Xo")
    q.e(mask_ops(NMA)); q.e("s_branch L_X")
    if OPT["wopf"]:
        q.e(f"L_wo:\nbuffer_load_dword v{vDummy}, v26, s[20:23], s41 offen\ns_branch L_wo_back")
    q.e("L_Xo:")
    stamp(q, 9)
    q.e(f"s_cmp_eq_u32 {sCB}, -1\ns_cbranch_scc1 L_mB0\nL_mB0_back:")
    ool.e("L_mB0:"); ool.e(mask_ops(NMB)); ool.e("s_branch L_mB0_back")
    q.e(X2c); q.e(T)
    q.e("s_and_b32 s96, vcc_lo, 0x7f\ns_cbranch_scc1 L_pollACT\nL_pollACT_back:")
    poll_slow(ool, "L_pollACT", 27, 101)
    PE = OPT["peel"]
    q.e(f"s_cmp_ge_u32 s48, 30\ns_cbranch_scc1 L_noA" if PE else f"s_cmp_ge_u32 {sW}, 2\ns_cbranch_scc1 L_noA")

    def w01(k):
        t = Prog()
        t.e(f"s_cmp_ge_u32 {sW}, 2\ns_cbranch_scc1 L_w01_{k}")
        issue(t, w2_both(k))
        t.e(f"L_w01_{k}:")
        return t.l
    e = Prog()
    e.e(sum(step(ool, "Z0"), []))
    epilogue(e, 0, gs=range(4), mems=pl[:16])
    e.e(w01(0))
    e.e(sum(step(ool, "Z1", vmw=min(31, 4 * OPT['la'] - 13 + 20)), []))
    epilogue(e, 0, gs=range(4, 8), mems=pl[16:])
    e.e(w01(1))
    errs = lint(T + e.l + Z0a, "epiA")
    assert not errs, "\n".join(errs)
    q.e(e.l)
    q.e(f"L_noA:\ns_cmp_eq_u32 {sCB}, -1\ns_cbranch_scc1 L_F")
    stamp(q, 10)
    q.e(step(ool, "Z0", bar=["s_barrier"] + ([] if PE else ldA(2)))[0])
    q.e("s_cbranch_scc1 L_Zx")
    for c in range(1, OPT["zc"]):
        bh = 2 * c if OPT["zc"] == 4 else 4
        q.e(f"s_cmp_eq_u32 {sW}, {c}\ns_cbranch_scc1 L_Z{c}" if OPT["zc"] == 4 else f"s_cmp_ge_u32 {sW}, 2\ns_cbranch_scc1 L_Z1")
        a, b = step(ool, "Z0", bh=bh)
        extra.e(f";LOOP pad\nL_Z{c}:"); extra.e(b); extra.e(sum(step(ool, "Z1", bh=bh), [])); extra.e(a)
        extra.e(f"s_cbranch_scc0 L_Z{c}\n;ENDLOOP\ns_branch L_Zx")
    q.e(";LOOP\nL_Z:"); q.e(Z0b); q.e(Z1); q.e(Z0a)
    q.e("s_cbranch_scc0 L_Z\n;ENDLOOP\nL_Zx:")
    stamp(q, 11)
    q.e(mask_ops(NMB)); q.e(Z0bc); q.e(Z1c)
    q.e("L_F:")
    q.e(F)
    stamp(q, 12)
    q.e(f"s_cmp_lt_u32 {sW}, 2\ns_cbranch_scc1 L_epiB")
    q.e(cbar(3))
    a, b = Prog(), Prog()
    if PE:
        issue(a, w2_both(2) + w2_both(3) + w2_both(4) + w2_both(5))
        a.e("s_cmp_ge_u32 s48, 30\ns_cbranch_scc1 L_lateA")
        c = Prog()
        c.e("L_lateA:\ns_waitcnt vmcnt(16)")
        epilogue(c, 0, mems=pl)
        c.e("s_branch L_epiB")
        assert not lint(c.l)
        extra.e(c.l)
    else:
        epilogue(a, 0, mems=w2_both(2) + w2_both(3) + w2_both(4) + w2_both(5))
        a.e(ldA(3))
    epilogue(b, 1)
    errs = lint(F + a.l + b.l, "tail") + lint(F + b.l, "tail")
    assert not errs, "\n".join(errs)
    q.e(a.l); q.e("L_epiB:"); q.e(b.l)
    if OPT["pads"] and OPT["pad2"]:
        q.e(f"s_cmp_lt_u32 {sW}, 2\ns_cbranch_scc1 L_nopad2\ns_mov_b64 exec, 0\ns_cmp_eq_u32 {sW}, 2\ns_cbranch_scc1 L_qad1\ns_branch L_qad0")
        q.e("L_qadret:\ns_mov_b64 exec, -1\nL_nopad2:")
    q.e("s_waitcnt vmcnt(8)")
    return q


def oproj(ool):
    p = Prog()
    pre = [I("buffer_load_dword v0, v0, s[0:3], 0", tag=f"PA{f}") for f in range(28)]
    pre += [I("s_waitcnt vmcnt(0)")]
    pre += [I("buffer_load_dword v0, v0, s[0:3], 0", tag="CTXst") for _ in range(8)]
    p.e("L_P4:")
    stamp(p, 13)
    p.e(f"""
v_lshrrev_b32 v20, 2, v0
v_lshlrev_b32 v20, 7, v20
v_and_b32 v21, 3, v0
v_lshl_add_u32 v20, v21, 3, v20
v_bfe_u32 v21, v0, 3, 2
v_lshl_add_u32 v20, v21, 5, v20
s_and_b32 s6, s{sPM[0]}, 0x10000
v_add_u32 v{VP_TR[2]}, 0x20000, v20
v_add_u32 v{VP_TR[0]}, s6, v20
""")
    for cb in range(1, 4):
        p.e(f"v_xor_b32 v{VP_TR[2]+cb}, {32*cb}, v{VP_TR[2]}")
    p.e("s_barrier")

    def rd(n):
        kk, cb = n % 2, (n // 2) % 8
        win, k = divmod(P_SLOT[n // 16], 4)
        return [I(f"ds_read_b64_tr_b16 {vr(PWF+4*(n%16)+2*j,2)}, v{VP_TR[win]+cb%4} offset:{k*16384+(cb//4)*8192+kk*4096+j*2048}",
                  tag=f"PR{n//4}") for j in range(2)]
    for n in range(8):
        p.e(rd(n))
    p.wait("PR0")
    mf = []
    for kg in range(23):
        for cb in range(8):
            for rb, kk, f1 in walk(cb, 2):
                d = vr(PACC + 16 * (cb // 2) + 8 * rb + 4 * (cb % 2))
                n, f = 16 * kg + 2 * cb + kk, 4 * kg + 2 * kk + rb
                mf.append(I(f"{MF} {d}, {vr(PWF+4*(n%16))}, {p_areg(f)}, {'0' if kg == 0 and f1 else d}", needs=[f"PR{n//4}", f"PA{f}"]))
    NH = len(mf)
    g = Half(mf)
    for n in range(8, NH // 2):
        g.mem[2 * (n - 8)] += rd(n)
    for h in range(8, NH, 8):
        tags = [f"PR{h//8}"] + ([f"PA{h//8+3}"] if h % 32 == 0 else [])
        g.sh[h - 1].append(WAIT(*tags))
    for b in range(2, PSLAB, 2):
        tags = [f"PW{s}" for s in (b, b + 1) if 6 <= s < PSLAB]
        if tags:
            g.sh[32 * b - 20].append(WAIT(*tags))
        g.sh[32 * b - 19].append("s_barrier")

    def slot(h):
        h |= 1
        while g.cost(h):
            h += 2
        return h
    g.fill([f"v_xor_b32 v{VP_TR[0]+cb}, {32*cb}, v{VP_TR[0]}" for cb in range(1, 4)] +
           [f"v_xor_b32 v{VP_TR[1]+cb}, 0x10000, v{VP_TR[0]+cb}" for cb in range(4)] +
           ["v_and_b32 v27, 7, v0", "v_lshlrev_b32 v27, 2, v27"], (1, 3, 7, 9, 13))
    wstart = {6: 5, 7: 29, 8: 53, 9: 77, 10: 117, 11: 141}
    for s in range(12, PSLAB):
        wstart[s] = 191 + (s - 12) * 40
    lo = -1
    for s in range(6, PSLAB):
        if s >= 10:
            assert wstart[s] > 32 * (s - 8 + s % 2) - 19, s
        for i, (pr, ins) in enumerate(p_dma(s)):
            h = slot(wstart[s] + i * (6 if s < 12 else 10))
            if pr:
                g.before(pr, h, lo + 1)
            g.mem[h].append(ins)
            lo = h
        assert lo < 32 * (s - s % 2) - 40, s
    assert g.after(flag_addr("ctxA", 64) + flag_addr("ctxB", 65) +
                   ["s_and_b32 s66, s2, 1", "s_lshl_b32 s66, s66, 5", "s_add_u32 s66, s66, s48", "s_lshl_b32 s66, s66, 2",
                    "s_lshr_b32 s67, s2, 1", "s_and_b32 s67, s67, 3", "s_add_u32 s66, s66, s67", "s_lshl_b32 s66, s66, 7",
                    f"s_add_u32 s66, s66, {CTXF}"], 6) < 44
    CF, CP, CC = OPT["cfh"], OPT["cph"], OPT["cch"]
    g.sh[CF].append(WAIT("CTXst"))
    g.mem[slot(CF + 1)].append(flag_store(vOne, 65))
    g.mem[slot(CF + 1)].append(flag_store(vOne, 64))
    if OPT["ctxa"]:
        g.val[slot(CP - 8)].append(I(f"v_mov_b32 v{vPoll}, 0"))
        g.mem[slot(CP)] += ["s_mov_b64 exec, 0xff",
                             I(f"buffer_atomic_or v{vPoll}, v27, {srd(SRD_WS)}, s66 offen sc0", tag="pollCTX"), "s_mov_b64 exec, -1"]
        g.sh[CC].append(WAIT("pollCTX"))
        g.val[CC].append(I(f"v_cmp_ne_u32 vcc, 1, v{vPoll}", needs=["pollCTX"]))
        g.sh[CC + 2] += ["s_and_b32 s96, vcc_lo, 0xff", "s_cbranch_scc1 L_pollCTX", "L_pollCTX_back:"]
        ool.e(f"""
L_pollCTX:
s_mov_b32 s96, 0x40000
s_mov_b64 exec, 0xff
L_pollCTX_l:
v_mov_b32 v{vPoll}, 0
buffer_atomic_or v{vPoll}, v27, {srd(SRD_WS)}, s66 offen sc0
s_waitcnt vmcnt(0)
v_cmp_ne_u32 vcc, 1, v{vPoll}
s_sub_u32 s96, s96, 1
s_cbranch_scc1 L_pollCTX_x
s_cbranch_vccnz L_pollCTX_l
L_pollCTX_x:
s_mov_b64 exec, -1
s_branch L_pollCTX_back
""")
    else:
        g.mem[slot(120)].append(poll_req(27, 66, "pollCTX"))
        g.sh[163].append(WAIT("pollCTX"))
        g.val[163].append(I(f"v_cmp_ne_u32 vcc, 1, v{vPoll}", needs=["pollCTX"]))
        g.sh[165] += ["s_cbranch_vccnz L_pollCTX", "L_pollCTX_back:"]
        poll_slow(ool, "L_pollCTX", 27, 66)
    lo = CC + 3
    for n, (pr, ins) in enumerate(p_aload(28, 92)):
        h = slot(max(lo + 1, 8 * (28 + n) - OPT['alead']))
        if pr:
            g.before(pr, h, lo + 1)
        g.mem[h].append(ins)
        lo = h
    g.fill(["v_and_b32 v20, 15, v0", "v_lshrrev_b32 v21, 4, v0", "v_lshlrev_b32 v20, 10, v20", "v_lshl_add_u32 v22, v21, 3, v20",
            "v_lshrrev_b32 v21, 5, v0", "v_lshl_add_u32 v23, v21, 4, v20", "v_bfe_u32 v21, v0, 4, 1", "v_lshl_add_u32 v23, v21, 5, v23",
            "v_min_u32 v27, 2, v0", "v_xor_b32 v27, 3, v27", "v_xor_b32 v27, s67, v27", "v_lshlrev_b32 v27, 2, v27"], range(600, 640))
    ex = ["s_and_b32 s68, s2, 1", "s_lshl_b32 s68, s68, 5", "s_add_u32 s68, s68, s48", "s_lshl_b32 s68, s68, 15",
          "s_lshr_b32 s7, s2, 6", "s_lshl_b32 s6, s7, 8", "s_add_u32 s68, s68, s6", "s_lshl_b32 s6, s67, 6", "s_add_u32 s68, s68, s6",
          "s_add_u32 s69, s68, 0x4000"]
    if not OPT["sent"]:
        ex += ["s_mov_b32 s71, s67"] + ex_addr()
    ex += ["s_and_b32 s77, s27, 0xffffff80"]
    assert g.after(ex, 500) < 640
    if OPT["sent"]:
        g.mem[slot(642)].append(poll_req(27, 77, "pollEX"))
        g.sh[701].append(WAIT("pollEX"))
        g.val[701].append(I(f"v_cmp_ne_u32 vcc, 1, v{vPoll}", needs=["pollEX"]))
        g.sh[705] += ["s_cbranch_vccnz L_pollEX", "L_pollEX_back:"]
        poll_slow(ool, "L_pollEX", 27, 77)
    for a in range(4):
        g.mem[slot(656 + 8 * a)].append(I(f"buffer_load_dwordx2 {vr(PX+2*a,2)}, v22, {srd(SRD_X)}, s{68+a//2} offen offset:{32*(a%2)}", tag="xres"))
    snd = []
    for i in range(3):
        b = PACC + 16 * i
        it = []
        for t in range(2):
            it += [I(f"v_cvt_pk_bf16_f32 v{b+c}, v{b+2*c}, v{b+2*c+1}") for c in range(4 * t, 4 * t + 4)]
            it.append(I(f"buffer_store_dwordx4 {vr(b+4*t)}, {vL16}, {srd(SRD_WS)}, s{72+i} offen offset:{t*1024} sc1", tag="EXst"))
        snd.append(it)
    late_send = sum(snd, [])
    if OPT["esend"]:
        g.fill(snd[0], range(NH - 22, NH - 13))
        g.fill(snd[1], range(NH - 13, NH - 6))
        g.fill(snd[2], range(NH - 6, NH))
        late_send = ["s_nop 3"]
    if OPT["stamp"]:
        q = Prog(); stamp(q, 14); g.post[CC - 1] += q.l
        q = Prog(); stamp(q, 15); g.post[CC + 3] += q.l
        q = Prog(); stamp(q, 16); g.post[223] += q.l
    p.e(g.emit())
    stamp(p, 17)
    p.e(late_send)
    b = PACC + 48

    def addbf(src):
        for c in range(8):
            p.e(f"v_lshlrev_b32 v20, 16, v{src+c}")
            p.e(f"v_and_b32 v21, 0xffff0000, v{src+c}")
            p.e(f"v_pk_add_f32 {vr(b+2*c,2)}, {vr(b+2*c,2)}, v[20:21]")
    exld = [I(f"buffer_load_dwordx4 {vr(PR+8*i+4*t)}, {vL16}, {srd(SRD_WS)}, s{24+i} offen offset:{t*1024} sc1", tag=f"EXr{i}")
            for i in range(3) for t in range(2)]
    if OPT["sent"]:
        p.e(exld)
        p.wait("xres")
        addbf(PX)
        stamp(p, 18)
        p.e("s_mov_b32 s96, 0x40000\nL_rx:\ns_waitcnt vmcnt(0)")
        p.e(f"v_max_u32 v20, v{PR}, v{PR+1}")
        for r in range(2, 24, 2):
            p.e(f"v_max3_u32 v20, v20, v{PR+r}, v{PR+r+1}")
        p.e("v_cmp_eq_u32 vcc, -1, v20\ns_sub_u32 s96, s96, 1\ns_cbranch_vccnz L_rx_again\nL_rx_done:")
        ool.e("L_rx_again:\ns_cbranch_scc1 L_rx_done\ns_sleep 1")
        ool.e([I(x.text) for x in exld])
        ool.e("s_branch L_rx")
        stamp(p, 19)
        for i in range(3):
            addbf(PR + 8 * i)
    else:
        p.wait("xres")
        addbf(PX)
        p.wait("EXst")
        if OPT["pk"] == 4:
            stamp(p, 18)
            p.e(f"""
s_mov_b32 s96, 0x40000
s_mov_b64 exec, 1
v_mov_b32 v{vPoll}, 1
buffer_atomic_add v{vPoll}, off, {srd(SRD_WS)}, s77 sc0
s_waitcnt vmcnt(0)
v_cmp_gt_u32 vcc, 3, v{vPoll}
s_cbranch_vccz L_pollEX_done
L_pollEX:
v_mov_b32 v{vPoll}, 0
buffer_atomic_add v{vPoll}, off, {srd(SRD_WS)}, s77 sc0
s_waitcnt vmcnt(0)
v_cmp_gt_u32 vcc, 4, v{vPoll}
s_sub_u32 s96, s96, 1
s_cbranch_scc1 L_pollEX_done
s_cbranch_vccnz L_pollEX
L_pollEX_done:
s_mov_b64 exec, -1
""")
        else:
            p.e(flag_store(vOne, 27))
            stamp(p, 18)
            p.e(f"""
s_mov_b32 s96, 0x40000
{"s_mov_b64 exec, 7" if OPT["pk"] == 2 else ""}
L_pollEX:
{spin_ld(27, 77, OPT["pk"])}
s_waitcnt vmcnt(0)
v_cmp_ne_u32 vcc, 1, v{vPoll}
s_sub_u32 s96, s96, 1
s_cbranch_scc1 L_pollEX_done
s_cbranch_vccnz L_pollEX
L_pollEX_done:
{"s_mov_b64 exec, -1" if OPT["pk"] == 2 else ""}
""")
        stamp(p, 19)
        p.e(exld)
        for i in range(3):
            p.wait(f"EXr{i}")
            addbf(PR + 8 * i)
    for c in range(8):
        p.e(f"v_cvt_pk_bf16_f32 v{b+c}, v{b+2*c}, v{b+2*c+1}")
    p.e("s_nop 1")
    for t in range(2):
        p.e(f"v_permlane16_swap_b32 v{b+4*t}, v{b+4*t+2}")
        p.e(f"v_permlane16_swap_b32 v{b+4*t+1}, v{b+4*t+3}")
    for t in range(2):
        p.e(f"buffer_store_dwordx4 {vr(b+4*t)}, v23, {srd(SRD_OUT)}, s{68+t} offen")
    stamp(p, 20)
    rstamp(p, 61)
    stamp_flush(p)
    p.e("L_end:\ns_endpgm")
    l = resolve_waits(pre + p.l)[len(pre):]
    errs = lint(l, "oproj")
    assert not errs, "\n".join(errs)
    if OPT["sim"]:
        t, gp = simulate(l)
        print("oproj", t, sum(gp))
    return l


def kernel():
    p, ool = Prog(), Prog()
    setup(p)
    if OPT["stamp"]:
        p.e("v_mov_b32 v31, 0")
    rstamp(p, 60)
    stamp(p)
    projections(p, ool)
    head = resolve_waits(p.l)
    errs = lint(head, "head")
    assert not errs, "\n".join(errs)
    if OPT["sim"]:
        t, gp = simulate(head)
        print("head", t, [sum(gp[a:b]) for a, b in ((0, 512), (512, 768), (768, 1024), (1024, 1280), (1280, 1536), (1536, 1791), (1791, 1900))])
    extra = Prog()
    l = head + attention(ool, extra).l + oproj(ool) + [I(";PADHERE")] + ool.l + extra.l + [I("L_hot_end:")]
    l = layout(l)
    for q in RARE.values():
        l += q.l
    return text_of(l)


def sizes(l):
    import subprocess, tempfile, os
    txt = '.amdgcn_target "amdgcn-amd-amdhsa--gfx950"\n.text\n' + text_of(l) + "".join(text_of(q.l) for q in RARE.values())
    txt += "L_pad0:\nL_pad1:\nL_pad2:\nL_pad3:\nL_qad0:\nL_qad1:\ns_endpgm\n"
    d = tempfile.mkdtemp()
    open(d + "/a.s", "w").write(txt)
    subprocess.run(["clang", "-x", "assembler", "-target", "amdgcn-amd-amdhsa", "-mcpu=gfx950", "-c", d + "/a.s", "-o", d + "/a.o"], check=True)
    out = subprocess.run(["llvm-objdump", "-d", "--mcpu=gfx950", d + "/a.o"], capture_output=True, text=True, check=True).stdout
    sz = [4 * len(re.findall(r"\b[0-9A-F]{8}\b", ln.split("//")[1].split(":")[1])) for ln in out.splitlines() if "//" in ln]
    it = iter(sz)
    return [0 if x.kind == "meta" else next(it) for x in l]


def layout(l):
    sz = sizes(l)
    l = list(l)
    o = None
    for i, x in enumerate(l):
        if x.text.startswith(";LOOP"):
            o, cand = 0, []
        elif x.text == ";ENDLOOP":
            o = None
        elif o is not None:
            if x.text.startswith("v_exp_f32 "):
                cand.append(i)
            last = l[i + 1].text == ";ENDLOOP"
            if (x.text.startswith("s_cbranch") and not last) or (OPT["balb"] and x.text == "s_barrier"):
                k = (32 - o % 32) // 4 if o % 32 > OPT["bal"] else 0
                if k <= len(cand):
                    for c in cand[len(cand) - k:]:
                        l[c] = I(l[c].text.replace("v_exp_f32 ", "v_exp_f32_e64 "))
                        sz[c] += 4
                        o += 4
                cand = []
            o += sz[i]
    out, pads, qads = [], [], []
    stage2 = False
    off = None
    need = False

    def pad():
        nonlocal off
        if OPT["pads"]:
            lst, nm = (qads, "qad") if stage2 else (pads, "pad")
            out.append(I(f"L_{nm}{len(lst)}:"))
            out.append(I("s_cbranch_execz PADNEXT"))
            lst.append(out[-1])
            off += 4
    for i, x in enumerate(l):
        if x.text == ";PAGE":
            out += [I("s_branch L_main"), I(".p2align 12"), I("L_main:")]
            off = 0
            pad()
            continue
        if x.text in ("L_P4:", "L_end:"):
            stage2 = OPT["pad2"] and x.text == "L_P4:"
        if x.text == ";PADHERE":
            pad()
            continue
        if x.text.startswith(";LOOP"):
            j = next(k for k in range(i, len(l)) if l[k].text == ";ENDLOOP")
            n = sum(sz[i:j])
            st = -(-off // 32) * 32
            if x.text == ";LOOP pad":
                o64 = -(-off // 64) * 64
                if o64 // 4096 != (o64 + 32 + n - 1) // 4096:
                    out.append(I(".p2align 12"))
                    o64 = -(-off // 4096) * 4096
                out.append(I(".p2align 6"))
                off, need = o64, False
                pad()
                out.append(I(".p2align 5"))
                off = -(-off // 32) * 32
                continue
            if need or st // 4096 != (st + n - 1) // 4096 or st // 4096 != (off - 1) // 4096:
                out.append(I(f"s_branch {l[i+1].text[:-1]}"))
                off += 4
                if not need:
                    out.append(I(".p2align 12"))
                    off = -(-off // 4096) * 4096
                need = False
                pad()
                st = -(-off // 32) * 32
            out.append(I(".p2align 5"))
            off = st
            continue
        out.append(x)
        if off is None:
            continue
        o0, off = off, off + sz[i]
        if o0 // 4096 != off // 4096:
            need = True
        if need and x.kind != "meta":
            nx = next(y for y in l[i + 1:] if y.kind != "meta")
            good = x.text.startswith("v_mfma") and not nx.text.startswith("s_")
            if good or off % 4096 >= 40:
                need = False
                pad()
    for k, x in enumerate(pads):
        x.text = "s_cbranch_execz " + (f"L_pad{k+4}" if k + 4 < len(pads) else "L_padret")
    for k, x in enumerate(qads):
        x.text = "s_cbranch_execz " + (f"L_qad{k+2}" if k + 2 < len(qads) else "L_qadret")
    if OPT["sim"]:
        print("code bytes after anchor", off, "pads", len(pads), len(qads))
    return out


def main():
    k = kernel()
    s = f"""; layernorm + K/V/Q/MLP projections + causal attention + output projection in one launch (generated by gen/gen3.py)
; @launch grid=(256,1,1) block=(256,1,1) lds=163840
.amdgcn_target "amdgcn-amd-amdhsa--gfx950"
.text
.globl {NAME}_kernel
.p2align 12
.p2align 8
.type {NAME}_kernel,@function
{NAME}_kernel:
{k}
.section .rodata,"a"
.p2align 6
.amdhsa_kernel {NAME}_kernel
  .amdhsa_next_free_vgpr 512
  .amdhsa_next_free_sgpr 102
  .amdhsa_accum_offset 256
  .amdhsa_group_segment_fixed_size 0
  .amdhsa_kernarg_size 104
  .amdhsa_user_sgpr_count 2
  .amdhsa_user_sgpr_kernarg_segment_ptr 1
  .amdhsa_system_sgpr_workgroup_id_x 1
.end_amdhsa_kernel
"""
    open(sys.argv[1], "w").write(s)


main()
```
